```python
import torch

def _softmax(x, axis=-1):
    return torch.softmax(x, dim=axis)
def _gelu(x):
    return torch.nn.functional.gelu(x, approximate="tanh")
def _silu(x):
    return torch.nn.functional.silu(x)
def _sigmoid(x):
    return torch.sigmoid(x)
def _layernorm(x, axis=-1, eps=1e-5):
    m = x.mean(dim=axis, keepdim=True)
    v = x.var(dim=axis, keepdim=True, unbiased=False)
    return (x - m) / torch.sqrt(v + eps)
def _scatter_add(tgt, idx, src, axis=0):
    return tgt.clone().index_add_(axis, idx, src)
def _segment_sum(src, seg, n):
    out = torch.zeros((n,) + src.shape[1:], dtype=src.dtype)
    return out.index_add_(0, seg, src)
def _pad(x, pw):
    flat = tuple(v for pair in reversed(pw) for v in pair)
    return torch.nn.functional.pad(x, flat)

kernel_name = 'parallel_sum__linear_kernel_hedgehog__glu_gated_glu__prompt'

def setup_inputs():

    _w = (lambda a: (lambda t: t.to(torch.bfloat16) if t.is_floating_point() else t)(torch.as_tensor(a)))
    def _A_setup():
        B, S, D, H = 1, 2048, 1024, 32
        Dh = D // H
        return {
            "x": _w((lambda *s: torch.randn(*s, dtype=torch.bfloat16) * 0.05)(B, S, D)),
            "wqkv": _w((lambda *s: torch.randn(*s, dtype=torch.bfloat16) * 0.4)(D, 3 * D)),
            "w_phi": _w((lambda *s: torch.randn(*s, dtype=torch.bfloat16) * 0.4)(H, Dh, Dh) * (Dh ** -0.5)),
            "wo": _w((lambda *s: torch.randn(*s, dtype=torch.bfloat16) * 0.1)(D, D)),
        }
    _A_in = _A_setup()

    def _B_setup():
        B, S, D, F = 1, 2048, 1024, 3584
        return {
            "x": _w((lambda *s: torch.randn(*s, dtype=torch.bfloat16) * 0.05)(B, S, D)),
            "w_gate": _w((lambda *s: torch.randn(*s, dtype=torch.bfloat16) * 0.05)(D, F)),
            "w_up": _w((lambda *s: torch.randn(*s, dtype=torch.bfloat16) * 0.05)(D, F)),
            "w_down": _w((lambda *s: torch.randn(*s, dtype=torch.bfloat16) * 0.05)(F, D)),
        }
    _B_in = _B_setup()

    return {
        "A_x": _A_in["x"],
        "A_wqkv": _A_in["wqkv"],
        "A_w_phi": _A_in["w_phi"],
        "A_wo": _A_in["wo"],
        "B_x": _B_in["x"],
        "B_w_gate": _B_in["w_gate"],
        "B_w_up": _B_in["w_up"],
        "B_w_down": _B_in["w_down"],
    }

def reference(A_x, A_wqkv, A_w_phi, A_wo, B_x, B_w_gate, B_w_up, B_w_down):
    def _A_ref(x, wqkv, w_phi, wo):
        B, S, D = x.shape
        H = 32; Dh = D // H
        qkv = (lambda x, *d: x.permute(*d))((x @ wqkv).reshape(B, S, 3, H, Dh), 2, 0, 3, 1, 4)
        q, k, v = qkv[0], qkv[1], qkv[2]
        pq = torch.einsum("bhsd,hdf->bhsf", q, w_phi)
        pk = torch.einsum("bhsd,hdf->bhsf", k, w_phi)
        phi_q = torch.concatenate([_softmax(pq, axis=-1), _softmax(-pq, axis=-1)], axis=-1)
        phi_k = torch.concatenate([_softmax(pk, axis=-1), _softmax(-pk, axis=-1)], axis=-1)
        kv = torch.einsum("bhsf,bhsd->bhfd", phi_k, v)
        z  = torch.einsum("bhsf->bhf", phi_k)
        num = torch.einsum("bhqf,bhfd->bhqd", phi_q, kv)
        den = torch.einsum("bhqf,bhf->bhq", phi_q, z)[..., None] + 1e-6
        o = num / den
        return (lambda x, *d: x.permute(*d))(o, 0, 2, 1, 3).reshape(B, S, D) @ wo

    def _B_ref(x, w_gate, w_up, w_down):
        g = torch.einsum("bsd,df->bsf", x, w_gate)
        u = torch.einsum("bsd,df->bsf", x, w_up)
        h = _sigmoid(g) * u
        return torch.einsum("bsf,fd->bsd", h, w_down)

    x = A_x
    xn = _layernorm(x, axis=-1)
    return x + _A_ref(xn, A_wqkv, A_w_phi, A_wo) + _B_ref(xn, B_w_gate, B_w_up, B_w_down)
```

```python
class Asm:
    def __init__(self):
        self.lines = []
        self.lgkm = []
        self.vm = []
        self.nlabel = 0
    def __call__(self, s):
        self.lines.append("  " + s)
    def raw(self, s):
        self.lines.append(s)
    def label(self, name):
        self.lines.append(name + ":")
    def newlabel(self, pfx="L"):
        self.nlabel += 1
        return f"{pfx}_{self.nlabel}"
    def comment(self, s):
        self.lines.append("  ; " + s)
    def ds(self, s, tag):
        self(s); self.lgkm.append(tag)
    def wait_lgkm(self, tags, extra=""):
        if isinstance(tags, str): tags = [tags]
        idx = [i for i, t in enumerate(self.lgkm) if t in tags]
        if not idx:
            return False
        last = max(idx)
        n = len(self.lgkm) - 1 - last
        n = min(n, 15)
        self(f"s_waitcnt lgkmcnt({n})" + extra)
        self.lgkm = self.lgkm[len(self.lgkm) - n:] if n else []
        return True
    def lgkm_count_for(self, tags):
        if isinstance(tags, str): tags = [tags]
        idx = [i for i, t in enumerate(self.lgkm) if t in tags]
        if not idx: return None
        n = min(len(self.lgkm) - 1 - max(idx), 15)
        return n
    def lgkm_retire(self, n):
        self.lgkm = self.lgkm[len(self.lgkm) - n:] if n else []
    def text(self):
        return "\n".join(self.lines) + "\n"

def vr(a, n=1):
    return f"v{a}" if n == 1 else f"v[{a}:{a+n-1}]"
def sr(a, n=1):
    return f"s{a}" if n == 1 else f"s[{a}:{a+n-1}]"

def kernel_header(A, name):
    A.raw(f".globl {name}")
    A.raw(".p2align 8")
    A.raw(f".type {name},@function")
    A.label(name)

def kernel_desc(A, name, vgpr, sgpr=102, accum=None):
    accum = accum if accum is not None else (vgpr + 3) // 4 * 4
    A.raw(".p2align 6")
    A.raw(f".amdhsa_kernel {name}")
    A.raw(f"  .amdhsa_next_free_vgpr {vgpr}")
    A.raw(f"  .amdhsa_next_free_sgpr {sgpr}")
    A.raw(f"  .amdhsa_accum_offset {accum}")
    A.raw("  .amdhsa_group_segment_fixed_size 0")
    A.raw("  .amdhsa_kernarg_size 88")
    A.raw("  .amdhsa_user_sgpr_count 2")
    A.raw("  .amdhsa_user_sgpr_kernarg_segment_ptr 1")
    A.raw("  .amdhsa_system_sgpr_workgroup_id_x 1")
    A.raw(".end_amdhsa_kernel")

def make_srd(A, d, lo, hi, nbytes):
    A(f"s_mov_b32 s{d}, s{lo}")
    A(f"s_and_b32 s{d+1}, s{hi}, 0xffff")
    A(f"s_mov_b32 s{d+2}, {nbytes}")
    A(f"s_mov_b32 s{d+3}, 0x00020000")
```

```python
import sys
from asmlib import *

NAME = "parallel_sum__linear_kernel_hedgehog__glu_gated_glu__prompt"
MB = 1 << 20
WS_BYTES = 268435456
WS_XN = 0
WS_Q = 4 * MB
WS_ACT = 8 * MB
WS_KVP = 28 * MB
KVP_SZ = 8448
WS_PART = 32 * MB
WS_FLAG = 48 * MB
OPT = {"stamp": False, "nodma": False, "noepi": False, "nomfma": False}
WS_STAMP = 52 * MB
LOG2E = 0x3fb8aa3b
NLOG2E = 0xbfb8aa3b

def wave_allreduce(A, v, tmp, op, full=True):
    for dpp in ("quad_perm:[1,0,3,2]", "quad_perm:[2,3,0,1]", "row_half_mirror", "row_mirror"):
        A("s_nop 1")
        A(f"v_{op}_f32_dpp v{v}, v{v}, v{v} {dpp} row_mask:0xf bank_mask:0xf")
    xreduce_g(A, [v], [tmp], op)

def xreduce_g(A, vs, tmps, op):
    ops = op if isinstance(op, list) else [op] * len(vs)
    for sw in ("v_permlane16_swap_b32", "v_permlane32_swap_b32"):
        for v, t in zip(vs, tmps):
            A(f"v_mov_b32 v{t}, v{v}")
        A("s_nop 1")
        for v, t in zip(vs, tmps):
            A(f"{sw} v{v}, v{t}")
        if len(vs) == 1:
            A("s_nop 0")
        for v, t, o in zip(vs, tmps, ops):
            A(f"v_{o}_f32 v{v}, v{v}, v{t}")

def gen_ln(A):
    name = "ln_kernel"
    kernel_header(A, name)
    A("s_cmp_ge_u32 s2, 256")
    A("s_cbranch_scc1 L_ln_done")
    A("s_load_dwordx2 s[4:5], s[0:1], 0")
    A("s_load_dwordx2 s[6:7], s[0:1], 80")
    A("v_lshrrev_b32 v1, 6, v0")
    A("v_and_b32 v2, 63, v0")
    A("s_lshl_b32 s3, s2, 3")
    A("v_add_u32 v1, s3, v1           ; row")
    A("v_lshlrev_b32 v1, 11, v1")
    A("v_lshl_add_u32 v1, v2, 4, v1")
    A("s_waitcnt lgkmcnt(0)")
    make_srd(A, 8, 4, 5, 4 * MB)
    make_srd(A, 12, 6, 7, 4 * MB)
    A("buffer_load_dwordx4 v[4:7], v1, s[8:11], 0 offen")
    A("buffer_load_dwordx4 v[8:11], v1, s[8:11], 0 offen offset:1024")
    A("s_mov_b32 s16, 0xffff0000")
    A("s_waitcnt vmcnt(0)")
    for i in range(8):
        A(f"v_lshlrev_b32 v{16+2*i}, 16, v{4+i}")
        A(f"v_and_b32 v{17+2*i}, s16, v{4+i}")
    A("v_add_f32 v32, v16, v17")
    for i in range(2, 16):
        A(f"v_add_f32 v32, v32, v{16+i}")
    wave_allreduce(A, 32, 33, "add")
    A("v_mul_f32 v32, 0x3a800000, v32")
    A("v_sub_f32 v34, v16, v32")
    A("v_mul_f32 v35, v34, v34")
    for i in range(1, 16):
        A(f"v_sub_f32 v34, v{16+i}, v32")
        A(f"v_fmac_f32 v35, v34, v34")
    wave_allreduce(A, 35, 33, "add")
    A("v_mul_f32 v35, 0x3a800000, v35     ; var")
    A("v_cvt_pk_bf16_f32 v36, v32, v35")
    A("v_lshlrev_b32 v32, 16, v36")
    A("v_and_b32 v35, s16, v36")
    A("v_add_f32 v35, 0x3727c5ac, v35     ; + 1e-5")
    A("v_cvt_pk_bf16_f32 v35, v35, v35")
    A("v_lshlrev_b32 v35, 16, v35")
    A("v_sqrt_f32 v35, v35")
    A("s_nop 0")
    A("v_cvt_pk_bf16_f32 v35, v35, v35")
    A("v_lshlrev_b32 v35, 16, v35")
    A("v_rcp_f32 v35, v35")
    for i in range(8):
        A(f"v_sub_f32 v{16+2*i}, v{16+2*i}, v32")
        A(f"v_sub_f32 v{17+2*i}, v{17+2*i}, v32")
        A(f"v_cvt_pk_bf16_f32 v36, v{16+2*i}, v{17+2*i}")
        A(f"v_lshlrev_b32 v{16+2*i}, 16, v36")
        A(f"v_and_b32 v{17+2*i}, s16, v36")
        A(f"v_mul_f32 v{16+2*i}, v{16+2*i}, v35")
        A(f"v_mul_f32 v{17+2*i}, v{17+2*i}, v35")
        A(f"v_cvt_pk_bf16_f32 v{4+i}, v{16+2*i}, v{17+2*i}")
    A("buffer_store_dwordx4 v[4:7], v1, s[12:15], 0 offen")
    A("buffer_store_dwordx4 v[8:11], v1, s[12:15], 0 offen offset:1024")
    A.label("L_ln_done")
    A("s_endpgm")
    return name, 40

A_PAGE = 1040
A_BUF = 32 * A_PAGE
LDS_B = 2 * A_BUF
B_STAGE = 20480
G1_LDS = LDS_B + 4 * B_STAGE
V_A_DMA, V_B0, V_B1, V_B2 = 1, 2, 3, 4
V_AR, V_BG, V_BQ0, V_BQ1 = 5, 6, 7, 8
V_LANE16 = 9
T0, T1A, T1B, WR = 12, 28, 44, 60
SP = 80
ACC = 96
def acc(b, tb): return ACC + (b * 4 + tb) * 4
S_W, S_WM, S_WN, S_J, S_MT = 3, 4, 5, 6, 7
SRD_A, SRD_B0, SRD_B1, SRD_B2 = 8, 12, 16, 20
S_APAGE, S_AK, S_AKE = 24, 25, 26
S_B0OFF, S_B1OFF, S_B2OFF = 27, 28, 29
S_B0INC, S_B1INC, S_B2INC = 30, 31, 32
S_B0LDS, S_B1LDS, S_B2LDS = 33, 34, 35
S_PTR = 36
S_TMP = 50
S_ITER = 60
SRD_WS = 64
SRD_WP = 68
S_C = 72

def g1_blocks(wn):
    if wn == 0:
        return [("q", 0), ("q", 1)] + [x for b in range(4) for x in (("g", b), ("u", b))]
    return [("k", 0), ("k", 1), ("v", 0), ("v", 1)] + [x for b in range(4, 7) for x in (("g", b), ("u", b))]

def g1_wread1(A, wn, blk, stage, dst, tag, t):
    kind, idx = g1_blocks(wn)[blk]
    so = (stage & 1) * B_STAGE
    if kind in "qkv":
        sgm = "qkv".index(kind)
        off = so + (2 * sgm + t) * 1024
        va = V_BQ0 if idx == 0 else V_BQ1
    else:
        off = so + (6144 if kind == "g" else 13312) + t * 3584 + idx * 32
        va = V_BG
    A.ds(f"ds_read_b64_tr_b16 v[{dst+2*t}:{dst+2*t+1}], v{va} offset:{off}", tag)

def g1_wread(A, wn, blk, stage, dst, tag):
    for t in range(2): g1_wread1(A, wn, blk, stage, dst, tag, t)

def g1_tread1(A, abuf, ks, tb, dst, tag, t):
    off = abuf * A_BUF + tb * 256 + ks * 64 + t * 32
    A.ds(f"ds_read_b64 v[{dst+tb*4+2*t}:{dst+tb*4+2*t+1}], v{V_AR} offset:{off}", tag)

def g1_tread(A, abuf, ks, tb, dst, tag):
    for t in range(2): g1_tread1(A, abuf, ks, tb, dst, tag, t)

def g1_dma_list(wn, u):
    ops = []
    h = u & 1
    abuf = (u >> 1) & 1
    def adma(e):
        def f0(A):
            A(f"s_add_u32 s{S_TMP}, s{S_AKE}, {h * 128 * 2048 + e * 4096}")
            A(f"s_add_u32 m0, s{S_APAGE}, {abuf * A_BUF + (16 * h + e) * A_PAGE}")
        def f1(A):
            A(f"buffer_load_dwordx4 v{V_A_DMA}, s[{SRD_A}:{SRD_A+3}], s{S_TMP} offen lds")
        return f0, f1
    slot = (u + 3) & 3
    def bdma(v, srd, soff, sinc, slds):
        def f0(A):
            A(f"s_add_u32 m0, s{slds}, {LDS_B + slot * B_STAGE}")
        def f1(A):
            A(f"buffer_load_dwordx4 v{v}, s[{srd}:{srd+3}], s{soff} offen lds")
            A(f"s_add_u32 s{soff}, s{soff}, s{sinc}")
        return f0, f1
    ops.append(bdma(V_B0, SRD_B0, S_B0OFF, S_B0INC, S_B0LDS))
    ops.append(bdma(V_B1, SRD_B1, S_B1OFF, S_B1INC, S_B1LDS))
    if wn == 0:
        ops.append(bdma(V_B2, SRD_B2, S_B2OFF, S_B2INC, S_B2LDS))
    ops.append(adma(0))
    ops.append(adma(1))
    return ops

def g1_step(A, wn, u):
    blocks = g1_blocks(wn)
    dmas = g1_dma_list(wn, u)
    odd = u & 1
    Tuse = T0 if not odd else (T1A if u == 1 else T1B)
    gaps = [[] for _ in range(40)]
    for c in range(10):
        tgt = c + 4
        blk, st = (tgt, u) if tgt < 10 else (tgt - 10, (u + 1) & 3)
        sl = tgt % 5
        for t in range(2):
            gaps[4 * c + t].append(lambda A, blk=blk, st=st, sl=sl, t=t: g1_wread1(A, wn, blk, st, WR + sl * 4, f"W{sl}", t))
    if odd:
        d = 2 * B_STAGE if u == 1 else -2 * B_STAGE
        def sw(A, vs):
            for v in vs:
                if d > 0: A(f"v_add_u32 v{v}, {d}, v{v}")
                else: A(f"v_subrev_u32 v{v}, {-d}, v{v}")
        gaps[4 * 5 + 2].append(lambda A: sw(A, (V_BG, V_BQ0)))
        gaps[4 * 5 + 3].append(lambda A: sw(A, (V_BQ1,)))
        nb = ((u + 1) >> 1) & 1
        Tn1 = T1B if u == 1 else T1A
        tr = [(nb, 0, tb, T0, "T0") for tb in range(4)] + [(nb, 1, tb, Tn1, "T1") for tb in range(4)]
        pos = [0, 1, 2, 3, 4, 6, 7, 8]
        for k, x in enumerate(tr):
            for t in range(2):
                gaps[4 * pos[k] + 2 + t].append(lambda A, x=x, t=t: g1_tread1(A, *x, t))
        def adv(A):
            A(f"s_add_u32 s{S_AK}, s{S_AK}, 128")
            A(f"s_cmp_ge_u32 s{S_AK}, 2048")
            A(f"s_cselect_b32 s{S_AKE}, 0x10000000, s{S_AK}")
        gaps[4 * 9 + 2].append(adv)
    if not OPT["nodma"]:
        for k, (f0, f1) in enumerate(dmas):
            gaps[4 * k + 2].insert(0, f0)
            gaps[4 * k + 3].insert(0, f1)
    for b in range(10):
        need = [f"W{b % 5}"]
        if b == 0:
            need.append("T1" if odd else "T0")
        A.wait_lgkm(need)
        w = WR + (b % 5) * 4
        kind = blocks[b][0]
        for tb in range(4):
            a = acc(b, tb)
            if kind == "v":
                A(f"v_mfma_f32_16x16x32_bf16 v[{a}:{a+3}], v[{Tuse+tb*4}:{Tuse+tb*4+3}], v[{w}:{w+3}], v[{a}:{a+3}]")
            else:
                A(f"v_mfma_f32_16x16x32_bf16 v[{a}:{a+3}], v[{w}:{w+3}], v[{Tuse+tb*4}:{Tuse+tb*4+3}], v[{a}:{a+3}]")
            for f in gaps[4 * b + tb]: f(A)
    n = A.lgkm_count_for(["T0", "T1"]) if odd else None
    if n is not None:
        A(f"s_waitcnt vmcnt({len(dmas)}) lgkmcnt({n})")
        A.lgkm_retire(n)
    else:
        A(f"s_waitcnt vmcnt({len(dmas)})")
    A("s_barrier")

def gu_epilogue(A, bg, bu, tb, dst, tmp):
    g = acc(bg, tb); u = acc(bu, tb)
    for r in range(4): A(f"v_mul_f32 v{tmp+r}, s{S_C}, v{g+r}")
    for r in range(4): A(f"v_exp_f32 v{tmp+r}, v{tmp+r}")
    for r in range(4): A(f"v_add_f32 v{tmp+r}, 1.0, v{tmp+r}")
    for r in range(4): A(f"v_rcp_f32 v{tmp+r}, v{tmp+r}")
    for r in range(4): A(f"v_mul_f32 v{tmp+r}, v{tmp+r}, v{u+r}")
    A(f"v_cvt_pk_bf16_f32 v{dst}, v{tmp}, v{tmp+1}")
    A(f"v_cvt_pk_bf16_f32 v{dst+1}, v{tmp+2}, v{tmp+3}")

def load_wphi(A, tmp, vaddr, srd, soff):
    for fb in range(2):
        for j in range(8):
            d = (j & 3) + 16 * (j >> 2)
            off = d * 64 + fb * 32
            A(f"buffer_load_ushort v{tmp + fb * 8 + j}, v{vaddr}, s[{srd}:{srd+3}], {soff} offen offset:{off}")

def pack_wphi(A, dst, tmp):
    for r in range(8):
        A(f"v_lshl_or_b32 v{dst+r}, v{tmp+2*r+1}, 16, v{tmp+2*r}")

def softmax_pm(A, pk, Pp, Pm, t):
    mx, mn, x0, x1 = t, t + 1, t + 2, t + 3
    ep, em = t + 4, t + 12
    sp_, sm_ = t + 20, t + 21
    A(f"v_max3_f32 v{mx}, v{pk}, v{pk+1}, v{pk+2}")
    A(f"v_min3_f32 v{mn}, v{pk}, v{pk+1}, v{pk+2}")
    A(f"v_max3_f32 v{mx}, v{mx}, v{pk+3}, v{pk+4}")
    A(f"v_min3_f32 v{mn}, v{mn}, v{pk+3}, v{pk+4}")
    A(f"v_max3_f32 v{mx}, v{mx}, v{pk+5}, v{pk+6}")
    A(f"v_min3_f32 v{mn}, v{mn}, v{pk+5}, v{pk+6}")
    A(f"v_max_f32 v{mx}, v{mx}, v{pk+7}")
    A(f"v_min_f32 v{mn}, v{mn}, v{pk+7}")
    xreduce_g(A, [mx, mn], [x0, x1], ["max", "min"])
    A(f"v_mul_f32 v{mx}, s{S_C}, v{mx}       ; -mx*L")
    A(f"v_mul_f32 v{mn}, s{S_C+1}, v{mn}     ; mn*L")
    for r in range(8):
        A(f"v_fma_f32 v{ep+r}, v{pk+r}, s{S_C+1}, v{mx}")
        A(f"v_fma_f32 v{em+r}, v{pk+r}, s{S_C}, v{mn}")
    for r in range(8):
        A(f"v_exp_f32 v{ep+r}, v{ep+r}")
        A(f"v_exp_f32 v{em+r}, v{em+r}")
    A(f"v_add_f32 v{sp_}, v{ep}, v{ep+1}")
    A(f"v_add_f32 v{sm_}, v{em}, v{em+1}")
    for r in range(2, 8):
        A(f"v_add_f32 v{sp_}, v{sp_}, v{ep+r}")
        A(f"v_add_f32 v{sm_}, v{sm_}, v{em+r}")
    xreduce_g(A, [sp_, sm_], [x0, x1], "add")
    A(f"v_rcp_f32 v{sp_}, v{sp_}")
    A(f"v_rcp_f32 v{sm_}, v{sm_}")
    A("s_nop 0")
    for r in range(8):
        A(f"v_mul_f32 v{ep+r}, v{ep+r}, v{sp_}")
        A(f"v_mul_f32 v{em+r}, v{em+r}, v{sm_}")
    for r in range(4):
        A(f"v_cvt_pk_bf16_f32 v{Pp+r}, v{ep+2*r}, v{ep+2*r+1}")
        A(f"v_cvt_pk_bf16_f32 v{Pm+r}, v{em+2*r}, v{em+2*r+1}")

S_ST = 80
def stamp(A, i):
    if not OPT["stamp"]: return
    A(f"s_memtime s[{S_ST+4*i}:{S_ST+4*i+1}]")
    A(f"s_memrealtime s[{S_ST+4*i+2}:{S_ST+4*i+3}]")
def stamp_store(A, n, sw, srd, base=None):
    if not OPT["stamp"]: return
    A("s_mov_b64 exec, 1")
    A("s_waitcnt lgkmcnt(0)")
    A(f"s_lshl_b32 s{S_TMP}, s2, 3")
    A(f"s_add_u32 s{S_TMP}, s{S_TMP}, s{sw}")
    A(f"s_lshl_b32 s{S_TMP}, s{S_TMP}, 6")
    A(f"s_add_u32 s{S_TMP}, s{S_TMP}, {base or WS_STAMP}")
    A("v_mov_b32 v1, 0")
    for i in range(n):
        A(f"v_mov_b32 v2, s{S_ST+4*i}")
        A(f"v_mov_b32 v3, s{S_ST+4*i+2}")
        A(f"buffer_store_dwordx2 v[2:3], v1, s[{srd}:{srd+3}], s{S_TMP} offen offset:{8*i}")
        A("s_nop 1")

def gen_gemm1(A):
    name = "gemm1_kernel"
    kernel_header(A, name)
    A("s_cmp_ge_u32 s2, 256")
    A("s_cbranch_scc1 L_g1_done")
    stamp(A, 0)
    A(f"s_load_dwordx8 s[{S_PTR}:{S_PTR+7}], s[0:1], 0")
    A(f"s_load_dwordx4 s[{S_PTR+8}:{S_PTR+11}], s[0:1], 40")
    A(f"s_load_dwordx2 s[{S_PTR+12}:{S_PTR+13}], s[0:1], 80")
    A("v_lshrrev_b32 v1, 6, v0")
    A("v_and_b32 v10, 63, v0             ; lane")
    A(f"v_readfirstlane_b32 s{S_W}, v1")
    A("s_nop 3")
    A(f"s_and_b32 s{S_WM}, s{S_W}, 3")
    A(f"s_lshr_b32 s{S_WN}, s{S_W}, 2")
    A(f"s_and_b32 s{S_TMP}, s2, 7")
    A(f"s_lshr_b32 s{S_TMP+1}, s2, 3")
    A(f"s_and_b32 s{S_J}, s{S_TMP+1}, 3")
    A(f"s_lshl_b32 s{S_TMP}, s{S_TMP}, 2")
    A(f"s_add_u32 s{S_J}, s{S_J}, s{S_TMP}        ; head")
    A(f"s_lshr_b32 s{S_MT}, s{S_TMP+1}, 2          ; m tile")
    A(f"v_lshlrev_b32 v{V_LANE16}, 4, v10")
    A(f"s_lshl_b32 s{S_TMP}, s{S_MT}, 8")
    A(f"s_lshl_b32 s{S_TMP+1}, s{S_WN}, 6")
    A(f"s_add_u32 s{S_TMP}, s{S_TMP}, s{S_TMP+1}")
    A(f"s_lshl_b32 s{S_TMP+1}, s{S_WM}, 2")
    A(f"s_add_u32 s{S_TMP}, s{S_TMP}, s{S_TMP+1}")
    A("v_bfe_u32 v11, v10, 3, 1")
    A("v_lshrrev_b32 v12, 4, v10         ; g = l>>4 (= slot>>1)")
    A("v_lshl_add_u32 v11, v12, 4, v11")
    A(f"v_add_u32 v11, s{S_TMP}, v11")
    A("v_lshlrev_b32 v11, 11, v11")
    A("v_and_b32 v13, 7, v10")
    A(f"v_lshl_add_u32 v{V_A_DMA}, v13, 4, v11")
    A(f"s_mul_i32 s{S_APAGE}, s{S_W}, {2 * A_PAGE}")
    A(f"s_lshl_b32 s{S_TMP}, s{S_W}, 6")
    A(f"v_add_u32 v13, s{S_TMP}, v10")
    A("v_mul_u32_u24 v14, 4682, v13")
    A("v_lshrrev_b32 v14, 16, v14        ; row")
    A("v_mul_u32_u24 v15, 14, v14")
    A("v_sub_u32 v15, v13, v15           ; ch")
    A("v_mul_u32_u24 v14, 7168, v14")
    A("v_lshl_add_u32 v14, v15, 4, v14")
    A(f"s_mul_i32 s{S_TMP}, s{S_J}, 224")
    A(f"v_add_u32 v14, s{S_TMP}, v14")
    A("v_lshrrev_b32 v15, 2, v10")
    A("v_mul_u32_u24 v15, 6144, v15")
    A("v_lshrrev_b32 v16, 3, v10")
    A("v_and_b32 v16, 2, v16")
    A("v_and_b32 v17, 3, v10")
    A("v_xor_b32 v16, v16, v17")
    A("v_lshl_add_u32 v15, v16, 4, v15")
    A(f"s_lshl_b32 s{S_TMP}, s{S_J}, 6")
    A(f"v_add_u32 v15, s{S_TMP}, v15     ; qkv voffset for page 0")
    A("v_and_b32 v16, 15, v10            ; i / tok")
    A("v_lshrrev_b32 v17, 2, v16         ; i>>2")
    A("v_lshl_add_u32 v17, v12, 2, v17   ; 4g + (i>>2)")
    A("v_and_b32 v18, 3, v16")
    A("v_lshlrev_b32 v18, 3, v18         ; (i&3)*8")
    A("v_mul_u32_u24 v19, 224, v17")
    A("v_add_u32 v19, v19, v18")
    A(f"v_add_u32 v{V_BG}, {LDS_B}, v19")
    A("v_lshl_add_u32 v19, v17, 6, v18")
    A("v_and_b32 v20, 1, v12")
    A("v_lshl_add_u32 v19, v20, 5, v19")
    A(f"v_add_u32 v{V_BQ0}, {LDS_B}, v19")
    A(f"v_xor_b32 v{V_BQ1}, 32, v{V_BQ0}")
    assert LDS_B % 64 == 0
    A("v_lshrrev_b32 v19, 1, v16")
    A(f"s_lshl_b32 s{S_TMP}, s{S_WM}, 3")
    A(f"v_add_u32 v19, s{S_TMP}, v19")
    A(f"v_mul_u32_u24 v19, {A_PAGE}, v19")
    A("v_and_b32 v20, 1, v16")
    A("v_lshl_add_u32 v19, v20, 7, v19")
    A(f"v_lshl_add_u32 v{V_AR}, v12, 3, v19")
    A("s_waitcnt lgkmcnt(0)")
    P = S_PTR
    A(f"s_add_u32 s{S_TMP}, s{P+12}, {WS_XN}")
    A(f"s_addc_u32 s{S_TMP+1}, s{P+13}, 0")
    make_srd(A, SRD_A, S_TMP, S_TMP + 1, 4 * MB)
    make_srd(A, SRD_WS, P + 12, P + 13, WS_BYTES)
    make_srd(A, SRD_WP, P + 4, P + 5, 65536)
    make_srd(A, SRD_B2, P + 2, P + 3, 1024 * 6144)
    A(f"s_cmp_eq_u32 s{S_W}, 7")
    for d, pg in ((SRD_B0, P + 8), (SRD_B1, P + 10)):
        A(f"s_cselect_b32 s{d}, s{P+2}, s{pg}")
        A(f"s_cselect_b32 s{d+1}, s{P+3}, s{pg+1}")
        A(f"s_and_b32 s{d+1}, s{d+1}, 0xffff")
        A(f"s_cmp_eq_u32 s{S_W}, 7")
        A(f"s_mov_b32 s{d+2}, {1024*7168}")
        A(f"s_cselect_b32 s{d+2}, {1024*6144}, s{d+2}")
        A(f"s_mov_b32 s{d+3}, 0x00020000")
    A(f"s_mov_b32 s{S_B0INC}, {32*7168}")
    A(f"s_cselect_b32 s{S_B0INC}, {32*6144}, s{S_B0INC}")
    A(f"s_mov_b32 s{S_B1INC}, s{S_B0INC}")
    A(f"s_mov_b32 s{S_B2INC}, {32*6144}")
    A(f"s_lshl_b32 s{S_TMP}, s{S_W}, 10")
    A(f"s_add_u32 s{S_B0LDS}, s{S_TMP}, 6144")
    A(f"s_add_u32 s{S_B1LDS}, s{S_TMP}, 13312")
    A(f"s_mov_b32 s{S_B2LDS}, s{S_TMP}")
    A(f"s_cmp_eq_u32 s{S_W}, 7")
    A(f"s_cselect_b32 s{S_B0LDS}, 4096, s{S_B0LDS}")
    A(f"s_cselect_b32 s{S_B1LDS}, 5120, s{S_B1LDS}")
    A(f"v_mov_b32 v{V_B0}, v14")
    A(f"v_mov_b32 v{V_B1}, v14")
    A(f"s_lshr_b32 s{S_TMP}, s{S_W}, 1")
    A(f"s_lshl_b32 s{S_TMP}, s{S_TMP}, 11")
    A(f"s_and_b32 s{S_TMP+1}, s{S_W}, 1")
    A(f"s_mul_i32 s{S_TMP+1}, s{S_TMP+1}, {16*6144}")
    A(f"s_add_u32 s{S_TMP}, s{S_TMP}, s{S_TMP+1}")
    A(f"v_add_u32 v{V_B2}, s{S_TMP}, v15")
    A(f"s_cmp_lg_u32 s{S_W}, 7")
    A("s_cbranch_scc1 L_g1_not7")
    A(f"v_add_u32 v{V_B0}, 4096, v15")
    A(f"v_add_u32 v{V_B1}, {4096 + 16*6144}, v15")
    A.label("L_g1_not7")
    for s in (S_B0OFF, S_B1OFF, S_B2OFF): A(f"s_mov_b32 s{s}, 0")
    A(f"s_mov_b32 s{S_C}, {NLOG2E}")
    A(f"s_mov_b32 s{S_C+1}, {LOG2E}")
    A(f"s_cmp_eq_u32 s{S_WN}, 1")
    A("s_cbranch_scc1 L_g1_wn1")
    A(f"s_lshl_b32 s{S_TMP}, s2, 7")
    A(f"s_add_u32 s{S_TMP}, s{S_TMP}, {WS_FLAG}")
    A("v_mov_b32 v20, 0")
    A(f"buffer_store_dword v20, v20, s[{SRD_WS}:{SRD_WS+3}], s{S_TMP} offen")
    for wn in (0, 1):
        if wn == 1: A.label("L_g1_wn1")
        A.lgkm = []
        nB = 3 if wn == 0 else 2
        slots = [(V_B0, SRD_B0, S_B0OFF, S_B0INC, S_B0LDS), (V_B1, SRD_B1, S_B1OFF, S_B1INC, S_B1LDS), (V_B2, SRD_B2, S_B2OFF, S_B2INC, S_B2LDS)][:nB]
        def pro_a(stage):
            for h in range(2):
                for e in range(2):
                    A(f"s_mov_b32 s{S_TMP}, {stage * 128 + h * 128 * 2048 + e * 4096}")
                    A(f"s_add_u32 m0, s{S_APAGE}, {(stage & 1) * A_BUF + (16 * h + e) * A_PAGE}")
                    A("s_nop 0")
                    A(f"buffer_load_dwordx4 v{V_A_DMA}, s[{SRD_A}:{SRD_A+3}], s{S_TMP} offen lds")
        def pro_b(stage):
            for v, srd, soff, sinc, slds in slots:
                A(f"s_add_u32 m0, s{slds}, {LDS_B + stage * B_STAGE}")
                A("s_nop 0")
                A(f"buffer_load_dwordx4 v{v}, s[{srd}:{srd+3}], s{soff} offen lds")
                A(f"s_add_u32 s{soff}, s{soff}, s{sinc}")
        pro_a(0); pro_b(0); pro_b(1); pro_a(1); pro_b(2)
        A(f"s_mov_b32 s{S_AK}, 256")
        A(f"s_mov_b32 s{S_AKE}, 256")
        for r in range(ACC, 256): A(f"v_mov_b32 v{r}, 0")
        A(f"s_waitcnt vmcnt({4 + nB})")
        A("s_barrier")
        for tb in range(4): g1_tread(A, 0, 0, tb, T0, "T0")
        for tb in range(4): g1_tread(A, 0, 1, tb, T1A, "T1")
        A("s_waitcnt lgkmcnt(0)")
        A.lgkm = []
        for b in range(4): g1_wread(A, wn, b, 0, WR + b * 4, f"W{b}")
        A("s_barrier")
        if OPT["stamp"]:
            stamp(A, 1); A("s_waitcnt lgkmcnt(0)");
        A(f"s_mov_b32 s{S_ITER}, 8")
        entry = list(A.lgkm)
        lab = f"L_g1_loop{wn}"
        A.label(lab)
        for u in range(4): g1_step(A, wn, u)
        assert A.lgkm == entry[len(entry)-len(A.lgkm):], (A.lgkm, entry)
        A(f"s_sub_u32 s{S_ITER}, s{S_ITER}, 1")
        A(f"s_cmp_lg_u32 s{S_ITER}, 0")
        A(f"s_cbranch_scc1 {lab}")
        A("s_waitcnt vmcnt(0) lgkmcnt(0)")
        A("s_barrier")
        stamp(A, 2)
        A.lgkm = []
        A(f"s_lshl_b32 s{S_TMP}, s{S_MT}, 4")
        A(f"s_lshl_b32 s{S_TMP+1}, s{S_WM}, 2")
        A(f"s_add_u32 s{S_TMP}, s{S_TMP}, s{S_TMP+1}")
        A(f"s_lshl_b32 s{S_TMP}, s{S_TMP}, 10        ; tbg0*1024")
        A(f"s_mul_i32 s{S_TMP+1}, s{S_J}, {3 * 128 * 1024}")
        A(f"s_add_u32 s{S_TMP+1}, s{S_TMP+1}, s{S_TMP}")
        A(f"s_add_u32 s{S_TMP+1}, s{S_TMP+1}, {WS_ACT}")
        if wn == 0:
            A(f"s_lshl_b32 s{S_TMP+2}, s{S_J}, 17")
            A(f"s_add_u32 s{S_TMP+2}, s{S_TMP+2}, s{S_TMP}")
            A(f"s_add_u32 s{S_TMP+2}, s{S_TMP+2}, {WS_Q}")
            for tb in range(4):
                d = 12 + tb * 4
                for hb in range(2):
                    a = acc(hb, tb)
                    A(f"v_cvt_pk_bf16_f32 v{d+2*hb}, v{a}, v{a+1}")
                    A(f"v_cvt_pk_bf16_f32 v{d+2*hb+1}, v{a+2}, v{a+3}")
                A(f"buffer_store_dwordx4 v[{d}:{d+3}], v{V_LANE16}, s[{SRD_WS}:{SRD_WS+3}], s{S_TMP+2} offen offset:{tb*1024}")
            k = 0
            for p in range(2):
                if p == 1: A(f"s_add_u32 s{S_TMP+1}, s{S_TMP+1}, {128*1024}")
                for tb in range(4):
                    d = 28 + (k % 8) * 4; k += 1
                    gu_epilogue(A, 2 + 4 * p, 3 + 4 * p, tb, d, 80)
                    gu_epilogue(A, 4 + 4 * p, 5 + 4 * p, tb, d + 2, 84)
                    A(f"buffer_store_dwordx4 v[{d}:{d+3}], v{V_LANE16}, s[{SRD_WS}:{SRD_WS+3}], s{S_TMP+1} offen offset:{tb*1024}")
            A("s_barrier")
        else:
            A("v_lshrrev_b32 v10, 4, v9          ; lane")
            A("v_lshrrev_b32 v11, 4, v10         ; g")
            A("v_and_b32 v10, 15, v10            ; c")
            A("v_lshlrev_b32 v20, 8, v11")
            A("v_lshl_add_u32 v20, v10, 1, v20")
            A(f"s_lshl_b32 s{S_TMP+3}, s{S_J}, 11")
            load_wphi(A, 64, 20, SRD_WP, f"s{S_TMP+3}")
            A(f"s_add_u32 s{S_TMP+1}, s{S_TMP+1}, {2*128*1024}")
            A(f"s_lshr_b32 s{S_TMP+2}, s{S_J}, 1")
            A(f"s_add_u32 s{S_TMP+2}, s{S_TMP+2}, 96")
            A(f"s_lshl_b32 s{S_TMP+2}, s{S_TMP+2}, 17")
            A(f"s_add_u32 s{S_TMP+2}, s{S_TMP+2}, s{S_TMP}")
            A(f"s_and_b32 s{S_TMP+3}, s{S_J}, 1")
            A(f"s_lshl_b32 s{S_TMP+3}, s{S_TMP+3}, 3")
            A(f"s_add_u32 s{S_TMP+2}, s{S_TMP+2}, s{S_TMP+3}")
            A(f"s_add_u32 s{S_TMP+2}, s{S_TMP+2}, {WS_ACT}")
            for tb in range(4):
                d = 28 + tb * 8
                gu_epilogue(A, 4, 5, tb, d, 80)
                gu_epilogue(A, 6, 7, tb, d + 2, 84)
                A(f"buffer_store_dwordx4 v[{d}:{d+3}], v{V_LANE16}, s[{SRD_WS}:{SRD_WS+3}], s{S_TMP+1} offen offset:{tb*1024}")
                gu_epilogue(A, 8, 9, tb, d + 4, 80)
                A(f"buffer_store_dwordx2 v[{d+4}:{d+5}], v{V_LANE16}, s[{SRD_WS}:{SRD_WS+3}], s{S_TMP+2} offen offset:{tb*1024}")
            KV = 160
            D = 208
            ISEL = 240
            ONES = 248
            KF = 60; PK = 64; PP = 72; PM = 76; SC = 80
            SC = 60 + 0
            SC = 36
            A("s_waitcnt vmcnt(0)")
            pack_wphi(A, 12, 64)
            for r in range(48): A(f"v_mov_b32 v{KV+r}, 0")
            A("v_lshrrev_b32 v21, 2, v10")
            A("v_and_b32 v22, 3, v10")
            A("v_cmp_eq_u32 vcc, v21, v11")
            A("v_and_b32 v23, 1, v22")
            A("v_lshlrev_b32 v23, 4, v23")
            A("v_mov_b32 v24, 0x3f80")
            A("v_lshlrev_b32 v24, v23, v24")
            A("v_cndmask_b32 v24, 0, v24, vcc")
            A("v_cmp_gt_u32 vcc, 2, v22")
            A(f"v_mov_b32 v{ISEL}, 0")
            A(f"v_mov_b32 v{ISEL+1}, 0")
            A(f"v_cndmask_b32 v{ISEL+2}, 0, v24, vcc")
            A(f"v_cndmask_b32 v{ISEL+3}, v24, 0, vcc")
            A(f"v_mov_b32 v{ISEL+4}, 0")
            A(f"v_mov_b32 v{ISEL+5}, 0")
            for r in range(4): A(f"v_mov_b32 v{ONES+r}, 0x3f803f80")
            for tp in range(2):
                for e in range(2):
                    tb = 2 * tp + e
                    for hb in range(2):
                        a = acc(hb, tb)
                        A(f"v_cvt_pk_bf16_f32 v{KF+2*hb}, v{a}, v{a+1}")
                        A(f"v_cvt_pk_bf16_f32 v{KF+2*hb+1}, v{a+2}, v{a+3}")
                    A("s_nop 1")
                    A(f"v_mfma_f32_16x16x32_bf16 v[{PK}:{PK+3}], v[12:15], v[{KF}:{KF+3}], 0")
                    A(f"v_mfma_f32_16x16x32_bf16 v[{PK+4}:{PK+7}], v[16:19], v[{KF}:{KF+3}], 0")
                    A("s_nop 7")
                    softmax_pm(A, PK, PP, PM, SC)
                    A("s_nop 1")
                    dd = D + e * 16
                    A(f"v_mfma_f32_16x16x32_bf16 v[{dd}:{dd+3}], v[{PP}:{PP+3}], v[{ISEL+2}:{ISEL+5}], 0")
                    A(f"v_mfma_f32_16x16x32_bf16 v[{dd+4}:{dd+7}], v[{PP}:{PP+3}], v[{ISEL}:{ISEL+3}], 0")
                    A(f"v_mfma_f32_16x16x32_bf16 v[{dd+8}:{dd+11}], v[{PM}:{PM+3}], v[{ISEL+2}:{ISEL+5}], 0")
                    A(f"v_mfma_f32_16x16x32_bf16 v[{dd+12}:{dd+15}], v[{PM}:{PM+3}], v[{ISEL}:{ISEL+3}], 0")
                A("s_nop 7")
                PT, VF = 36, 52
                for fb in range(4):
                    for e in range(2):
                        dd = D + e * 16 + fb * 4
                        A(f"v_cvt_pk_bf16_f32 v{PT+fb*4+2*e}, v{dd}, v{dd+1}")
                        A(f"v_cvt_pk_bf16_f32 v{PT+fb*4+2*e+1}, v{dd+2}, v{dd+3}")
                for db in range(2):
                    for e in range(2):
                        a = acc(2 + db, 2 * tp + e)
                        A(f"v_cvt_pk_bf16_f32 v{VF+db*4+2*e}, v{a}, v{a+1}")
                        A(f"v_cvt_pk_bf16_f32 v{VF+db*4+2*e+1}, v{a+2}, v{a+3}")
                A("s_nop 1")
                for fb in range(4):
                    for db in range(3):
                        c = KV + (fb * 3 + db) * 4
                        bsrc = VF + db * 4 if db < 2 else ONES
                        A(f"v_mfma_f32_16x16x32_bf16 v[{c}:{c+3}], v[{PT+fb*4}:{PT+fb*4+3}], v[{bsrc}:{bsrc+3}], v[{c}:{c+3}]")
                A("s_nop 3")
            A("s_nop 7")
            A(f"s_mul_i32 s{S_TMP}, s{S_WM}, {12*1024}")
            A(f"v_add_u32 v20, s{S_TMP}, v{V_LANE16}")
            for blk in range(12):
                A(f"ds_write_b128 v20, v[{KV+blk*4}:{KV+blk*4+3}] offset:{blk*1024}")
            A("s_waitcnt lgkmcnt(0)")
            A("s_barrier")
        A(f"s_lshr_b32 s{S_TMP}, s{S_W}, 1")
        A(f"s_mul_i32 s{S_TMP}, s{S_TMP}, 3")
        A(f"s_and_b32 s{S_TMP+1}, s{S_W}, 1")
        A(f"s_add_u32 s{S_TMP}, s{S_TMP}, s{S_TMP+1}")
        A(f"s_lshl_b32 s{S_TMP}, s{S_TMP}, 10")
        A(f"v_add_u32 v20, s{S_TMP}, v{V_LANE16}")
        for p in range(4):
            A(f"ds_read_b128 v[{100+4*p}:{103+4*p}], v20 offset:{p*12*1024}")
        if wn == 0:
            A(f"s_mul_i32 s{S_TMP}, s{S_W}, 3072")
            A(f"v_add_u32 v21, s{S_TMP}, v{V_LANE16}")
            for p in range(4):
                A(f"ds_read_b128 v[{116+4*p}:{119+4*p}], v21 offset:{p*12*1024 + 2048}")
        A(f"s_lshl_b32 s{S_TMP}, s{S_J}, 3")
        A(f"s_add_u32 s{S_TMP}, s{S_TMP}, s{S_MT}")
        A(f"s_mul_i32 s{S_TMP}, s{S_TMP}, {KVP_SZ}")
        A(f"s_add_u32 s{S_TMP}, s{S_TMP}, {WS_KVP}")
        A(f"s_lshl_b32 s{S_TMP+1}, s{S_W}, 10")
        A(f"s_add_u32 s{S_TMP+1}, s{S_TMP+1}, s{S_TMP}")
        A("s_waitcnt lgkmcnt(0)")
        for r in range(4):
            A(f"v_add_f32 v{100+r}, v{100+r}, v{104+r}")
            A(f"v_add_f32 v{108+r}, v{108+r}, v{112+r}")
        for r in range(4):
            A(f"v_add_f32 v{100+r}, v{100+r}, v{108+r}")
        A(f"buffer_store_dwordx4 v[100:103], v{V_LANE16}, s[{SRD_WS}:{SRD_WS+3}], s{S_TMP+1} offen")
        if wn == 0:
            for r in range(4):
                A(f"v_add_f32 v{116+r}, v{116+r}, v{120+r}")
                A(f"v_add_f32 v{124+r}, v{124+r}, v{128+r}")
            for r in range(4):
                A(f"v_add_f32 v{116+r}, v{116+r}, v{124+r}")
            A(f"s_lshl_b32 s{S_TMP+1}, s{S_W}, 6")
            A(f"s_add_u32 s{S_TMP+1}, s{S_TMP+1}, s{S_TMP}")
            A(f"s_add_u32 s{S_TMP+1}, s{S_TMP+1}, 8192")
            A(f"v_lshrrev_b32 v21, 4, v{V_LANE16}    ; lane")
            A("v_and_b32 v22, 15, v21")
            A("v_cmp_eq_u32 vcc, 0, v22")
            A(f"s_and_saveexec_b64 s[{S_TMP+2}:{S_TMP+3}], vcc")
            A(f"buffer_store_dwordx4 v[116:119], v21, s[{SRD_WS}:{SRD_WS+3}], s{S_TMP+1} offen")
        if OPT["stamp"]:
            A("s_waitcnt vmcnt(0)")
            stamp(A, 3)
            stamp_store(A, 4, S_W, SRD_WS)
        A("s_endpgm")
    A.label("L_g1_done")
    A("s_endpgm")
    return name, 256

def gen_o(A):
    name = "o_kernel"
    kernel_header(A, name)
    A("s_cmp_ge_u32 s2, 256")
    A("s_cbranch_scc1 L_o_done")
    A(f"s_load_dwordx2 s[{S_PTR+4}:{S_PTR+5}], s[0:1], 16")
    A(f"s_load_dwordx2 s[{S_PTR+12}:{S_PTR+13}], s[0:1], 80")
    A("v_lshrrev_b32 v1, 6, v0")
    A("v_and_b32 v10, 63, v0             ; lane")
    A(f"v_readfirstlane_b32 s{S_W}, v1")
    A(f"v_lshlrev_b32 v{V_LANE16}, 4, v10")
    A("v_lshrrev_b32 v11, 4, v10         ; g")
    A("v_and_b32 v12, 15, v10            ; c")
    A("v_lshlrev_b32 v20, 8, v11")
    A("v_lshl_add_u32 v20, v12, 1, v20")
    A("v_lshlrev_b32 v21, 4, v11         ; g*16")
    A("v_lshlrev_b32 v22, 3, v10         ; lane*8")
    A(f"s_and_b32 s{S_J}, s2, 31")
    A(f"s_lshr_b32 s{S_MT}, s2, 5")
    A(f"s_mov_b32 s{S_C}, {NLOG2E}")
    A(f"s_mov_b32 s{S_C+1}, {LOG2E}")
    A("s_waitcnt lgkmcnt(0)")
    P = S_PTR
    make_srd(A, SRD_WS, P + 12, P + 13, WS_BYTES)
    make_srd(A, SRD_WP, P + 4, P + 5, 65536)
    o_stage(A, S_J, S_MT, S_W, "")
    A.label("L_o_done")
    A("s_endpgm")
    return name, 128

def o_stage(A, sj, stg, sw, sc):
    ws = f"s[{SRD_WS}:{SRD_WS+3}]"
    t = S_TMP
    A(f"s_mul_i32 s{t}, s{sj}, {8 * KVP_SZ}")
    A(f"s_add_u32 s{t}, s{t}, {WS_KVP}")
    A(f"s_lshl_b32 s{t+1}, s{sw}, 10")
    A(f"s_add_u32 s{t+1}, s{t+1}, s{t}")
    for p in range(8):
        A(f"buffer_load_dwordx4 v[{24+4*p}:{27+4*p}], v{V_LANE16}, {ws}, s{t+1} offen")
        if p < 7: A(f"s_add_u32 s{t+1}, s{t+1}, {KVP_SZ}")
    A(f"s_and_b32 s{t+1}, s{sw}, 3")
    A(f"s_lshl_b32 s{t+1}, s{t+1}, 6")
    A(f"s_add_u32 s{t+1}, s{t+1}, s{t}")
    A(f"s_add_u32 s{t+1}, s{t+1}, 8192")
    for p in range(8):
        A(f"buffer_load_dwordx4 v[{56+4*p}:{59+4*p}], v21, {ws}, s{t+1} offen")
        if p < 7: A(f"s_add_u32 s{t+1}, s{t+1}, {KVP_SZ}")
    A(f"s_lshl_b32 s{t+2}, s{stg}, 4")
    A(f"s_lshl_b32 s{t+3}, s{sw}, 1")
    A(f"s_add_u32 s{t+2}, s{t+2}, s{t+3}")
    A(f"s_lshl_b32 s{t+2}, s{t+2}, 10")
    A(f"s_lshl_b32 s{t+3}, s{sj}, 17")
    A(f"s_add_u32 s{t+2}, s{t+2}, s{t+3}          ; (j*128 + tbg)*1024")
    A(f"s_add_u32 s{t+3}, s{t+2}, {WS_Q}")
    A(f"buffer_load_dwordx4 v[88:91], v{V_LANE16}, {ws}, s{t+3} offen")
    A(f"buffer_load_dwordx4 v[92:95], v{V_LANE16}, {ws}, s{t+3} offen offset:1024")
    A(f"s_lshl_b32 s{t+3}, s{sj}, 11")
    load_wphi(A, 96, 20, SRD_WP, f"s{t+3}")
    A("s_waitcnt vmcnt(18)")
    for base in (24, 56):
        for st in (16, 8, 4):
            for r in range(st):
                A(f"v_add_f32 v{base+r}, v{base+r}, v{base+st+r}")
    A("v_cvt_pk_bf16_f32 v28, v24, v25")
    A("v_cvt_pk_bf16_f32 v29, v26, v27")
    A("v_cvt_pk_bf16_f32 v30, v56, v57")
    A("v_cvt_pk_bf16_f32 v31, v58, v59")
    A(f"s_lshl_b32 s{t+1}, s{sw}, 9")
    A(f"v_add_u32 v23, s{t+1}, v22")
    A("ds_write_b64 v23, v[28:29]")
    A(f"s_and_b32 s{t+1}, s{sw}, 3")
    A(f"s_lshl_b32 s{t+1}, s{t+1}, 9")
    A(f"v_add_u32 v23, s{t+1}, v22")
    A("ds_write_b64 v23, v[30:31] offset:4096")
    A("s_waitcnt lgkmcnt(0)")
    A("s_barrier")
    for db in range(2):
        for hf in range(2):
            for e in range(2):
                blk = (2 * hf + e) * 2 + db
                d = 32 + (db * 2 + hf) * 4 + 2 * e
                A(f"ds_read_b64 v[{d}:{d+1}], v22 offset:{blk*512}")
    for hf in range(2):
        for e in range(2):
            d = 48 + hf * 4 + 2 * e
            A(f"ds_read_b64 v[{d}:{d+1}], v22 offset:{4096 + (2*hf+e)*512}")
    A("s_waitcnt vmcnt(0)")
    pack_wphi(A, 56, 96)
    A(f"s_add_u32 s{t+3}, s{t+2}, {WS_ACT + 112 * 131072}")
    A("s_waitcnt lgkmcnt(0)")
    for e in range(2):
        PK, PP, PM, SC, O = 64, 72, 76, 96, 24
        q = 88 + 4 * e
        A("s_nop 1")
        A(f"v_mfma_f32_16x16x32_bf16 v[{PK}:{PK+3}], v[56:59], v[{q}:{q+3}], 0")
        A(f"v_mfma_f32_16x16x32_bf16 v[{PK+4}:{PK+7}], v[60:63], v[{q}:{q+3}], 0")
        A("s_nop 7")
        softmax_pm(A, PK, PP, PM, SC)
        A("s_nop 1")
        N0, N1, DN = 80, 84, 120
        A(f"v_mfma_f32_16x16x32_bf16 v[{DN}:{DN+3}], v[48:51], v[{PP}:{PP+3}], 0")
        A(f"v_mfma_f32_16x16x32_bf16 v[{N0}:{N0+3}], v[32:35], v[{PP}:{PP+3}], 0")
        A(f"v_mfma_f32_16x16x32_bf16 v[{N1}:{N1+3}], v[40:43], v[{PP}:{PP+3}], 0")
        A(f"v_mfma_f32_16x16x32_bf16 v[{DN}:{DN+3}], v[52:55], v[{PM}:{PM+3}], v[{DN}:{DN+3}]")
        A(f"v_mfma_f32_16x16x32_bf16 v[{N0}:{N0+3}], v[36:39], v[{PM}:{PM+3}], v[{N0}:{N0+3}]")
        A(f"v_mfma_f32_16x16x32_bf16 v[{N1}:{N1+3}], v[44:47], v[{PM}:{PM+3}], v[{N1}:{N1+3}]")
        A("s_nop 7")
        A(f"v_add_f32 v{DN}, 0x358637bd, v{DN}     ; +1e-6")
        A(f"v_rcp_f32 v{DN}, v{DN}")
        A("s_nop 0")
        for r in range(8): A(f"v_mul_f32 v{N0+r}, v{N0+r}, v{DN}")
        d = O + 4 * e
        for r in range(4): A(f"v_cvt_pk_bf16_f32 v{d+r}, v{N0+2*r}, v{N0+2*r+1}")
        A(f"buffer_store_dwordx4 v[{d}:{d+3}], v{V_LANE16}, {ws}, s{t+3} offen offset:{e*1024} {sc}")

G2_SLOT = 16640
G2_NSLOT = 9
G2_LDS = G2_SLOT * G2_NSLOT
G2_SPLIT = 64
def gen_gemm2(A):
    name = "gemm2_kernel"
    kernel_header(A, name)
    S_HALF, S_M, S_N, S_TILE, S_NIT = 4, 5, 6, 7, 60
    SRD_X, SRD_B, SRD_OUT = 8, 12, 16
    S_SLOT, S_DELTA = 24, 25
    S_AOFF, S_BOFF, S_INCA, S_INCB, S_CNT3, S_KB, S_EVT, S_LDS, S_END = 26, 27, 28, 29, 30, 31, 32, 33, 34
    P = S_PTR
    VT, VW = 1, 2
    TS = [8, 24]; WSR = [40, 56]; AC = 72
    def ac(cb, tb): return AC + (cb * 4 + tb) * 4
    ws = f"s[{SRD_WS}:{SRD_WS+3}]"
    A("s_cmp_ge_u32 s2, 256")
    A("s_cbranch_scc1 L_g2_done")
    stamp(A, 0)
    A(f"s_load_dwordx8 s[{P}:{P+7}], s[0:1], 0")
    A(f"s_load_dwordx4 s[{P+8}:{P+11}], s[0:1], 56")
    A(f"s_load_dwordx2 s[{P+12}:{P+13}], s[0:1], 80")
    A("v_lshrrev_b32 v1, 6, v0")
    A("v_and_b32 v3, 63, v0              ; lane")
    A(f"v_readfirstlane_b32 s{S_W}, v1")
    A(f"v_lshlrev_b32 v{V_LANE16 if False else 4}, 4, v3   ; lane*16")
    A("v_lshrrev_b32 v5, 4, v3           ; g")
    A("v_and_b32 v6, 15, v3              ; i / tok")
    A(f"s_and_b32 s{S_TMP}, s2, 7")
    A(f"s_lshr_b32 s{S_TMP+1}, s2, 3")
    A(f"s_and_b32 s{S_HALF}, s{S_TMP}, 1")
    A(f"s_lshr_b32 s{S_M}, s{S_TMP}, 1")
    A(f"s_lshl_b32 s{S_M}, s{S_M}, 2")
    A(f"s_and_b32 s{S_TMP}, s{S_TMP+1}, 3")
    A(f"s_add_u32 s{S_M}, s{S_M}, s{S_TMP}         ; m tile 0..15")
    A(f"s_lshr_b32 s{S_N}, s{S_TMP+1}, 2           ; n tile 0..7")
    A(f"s_lshl_b32 s{S_TILE}, s{S_M}, 3")
    A(f"s_add_u32 s{S_TILE}, s{S_TILE}, s{S_N}")
    A(f"s_cmp_eq_u32 s{S_HALF}, 1")
    A(f"s_cselect_b32 s{S_NIT}, {G2_SPLIT // 2}, {(144 - G2_SPLIT) // 2}")
    A("s_waitcnt lgkmcnt(0)")
    make_srd(A, SRD_WS, P + 12, P + 13, WS_BYTES)
    A(f"s_cmp_ge_u32 s{S_W}, 4")
    A("s_cbranch_scc1 L_g2_prod")
    make_srd(A, SRD_X, P + 0, P + 1, 4 * MB)
    make_srd(A, SRD_OUT, P + 10, P + 11, 4 * MB)
    S_CM, S_CN = 26, 27
    A(f"s_and_b32 s{S_CM}, s{S_W}, 1")
    A(f"s_lshr_b32 s{S_CN}, s{S_W}, 1")
    A(f"s_lshl_b32 s{S_TMP}, s{S_CM}, 12")
    A(f"v_add_u32 v{VT}, s{S_TMP}, v4")
    A("v_and_b32 v7, 1, v5")
    A("v_lshrrev_b32 v136, 2, v6")
    A("v_lshl_add_u32 v7, v7, 2, v136          ; 4(g&1) + (i>>2)")
    A("v_mul_u32_u24 v7, 1056, v7")
    A("v_lshrrev_b32 v136, 1, v5")
    A("v_lshl_add_u32 v7, v136, 8, v7")
    A("v_and_b32 v136, 3, v6")
    A("v_lshl_add_u32 v7, v136, 3, v7")
    A(f"s_lshl_b32 s{S_TMP}, s{S_CN}, 7")
    A(f"s_add_u32 s{S_TMP}, s{S_TMP}, 8192")
    A(f"v_add_u32 v{VW}, s{S_TMP}, v7")
    A(f"s_lshl_b32 s{S_TMP}, s{S_M}, 7")
    A(f"s_lshl_b32 s{S_TMP+1}, s{S_CM}, 6")
    A(f"s_add_u32 s{S_TMP}, s{S_TMP}, s{S_TMP+1}")
    A(f"v_add_u32 v7, s{S_TMP}, v6")
    A("v_lshlrev_b32 v7, 11, v7")
    A(f"s_lshl_b32 s{S_TMP}, s{S_N}, 8")
    A(f"s_lshl_b32 s{S_TMP+1}, s{S_CN}, 7")
    A(f"s_add_u32 s{S_TMP}, s{S_TMP}, s{S_TMP+1}")
    A(f"v_add_u32 v7, s{S_TMP}, v7")
    for tb in range(1, 4): A(f"s_mov_b32 s{28+tb}, {tb * 32768}")
    sof = lambda tb: "0" if tb == 0 else f"s{28+tb}"
    A(f"s_cmp_eq_u32 s{S_HALF}, 1")
    A("s_cbranch_scc1 L_g2_zero")
    A("v_lshl_add_u32 v136, v5, 3, v7          ; + g*8")
    for cb in range(4):
        for tb in range(4):
            d = 8 + (cb * 4 + tb) * 2
            A(f"buffer_load_dwordx2 v[{d}:{d+1}], v136, s[{SRD_X}:{SRD_X+3}], {sof(tb)} offen offset:{cb*32}")
    A("s_mov_b32 s35, 0xffff0000")
    A("s_waitcnt vmcnt(0)")
    for cb in range(4):
        for tb in range(4):
            d = 8 + (cb * 4 + tb) * 2; a = ac(cb, tb)
            A(f"v_lshlrev_b32 v{a}, 16, v{d}")
            A(f"v_and_b32 v{a+1}, s35, v{d}")
            A(f"v_lshlrev_b32 v{a+2}, 16, v{d+1}")
            A(f"v_and_b32 v{a+3}, s35, v{d+1}")
    A("s_branch L_g2_cstart")
    A.label("L_g2_zero")
    for r in range(64): A(f"v_mov_b32 v{AC+r}, 0")
    A.label("L_g2_cstart")
    A(f"s_mov_b32 s{S_SLOT}, 0")
    A("s_barrier")
    A.lgkm = []
    def reads(st):
        out = []
        for k in range(4):
            out.append(lambda A, k=k: A.ds(f"ds_read_b128 v[{TS[st]+4*k}:{TS[st]+4*k+3}], v{VT} offset:{k*1024}", f"S{st}"))
            for t in range(2):
                out.append(lambda A, k=k, t=t: A.ds(f"ds_read_b64_tr_b16 v[{WSR[st]+4*k+2*t}:{WSR[st]+4*k+2*t+1}], v{VW} offset:{t*512 + k*32}", f"S{st}"))
        return out
    def adv0(A):
        A(f"s_add_u32 s{S_SLOT}, s{S_SLOT}, 1")
        A(f"s_cmp_eq_u32 s{S_SLOT}, {G2_NSLOT}")
        A(f"s_cselect_b32 s{S_SLOT}, 0, s{S_SLOT}")
        A(f"s_mov_b32 s{S_DELTA}, {G2_SLOT}")
        A(f"s_cselect_b32 s{S_DELTA}, {(-(G2_NSLOT-1) * G2_SLOT) & 0xffffffff}, s{S_DELTA}")
    def adv1(A):
        A(f"v_add_u32 v{VT}, s{S_DELTA}, v{VT}")
        A(f"v_add_u32 v{VW}, s{S_DELTA}, v{VW}")
    for f in reads(0): f(A)
    adv0(A); adv1(A)
    stamp(A, 1)
    if OPT["stamp"]:
        A("s_waitcnt lgkmcnt(0)")
    entry = list(A.lgkm)
    A.label("L_g2_cloop")
    for e in range(2):
        A.wait_lgkm(f"S{e}")
        fill = reads(1 - e) + [adv0, adv1]
        m = 0
        for cb in range(4):
            tbs = range(4) if cb % 2 == 0 else range(3, -1, -1)
            for tb in tbs:
                a = ac(cb, tb)
                A(f"v_mfma_f32_16x16x32_bf16 v[{a}:{a+3}], v[{WSR[e]+4*cb}:{WSR[e]+4*cb+3}], v[{TS[e]+4*tb}:{TS[e]+4*tb+3}], v[{a}:{a+3}]")
                if m < len(fill): fill[m](A)
                m += 1
    assert A.lgkm == entry[len(entry)-len(A.lgkm):], (A.lgkm, entry)
    A(f"s_sub_u32 s{S_NIT}, s{S_NIT}, 1")
    A(f"s_cmp_lg_u32 s{S_NIT}, 0")
    A("s_barrier")
    A("s_cbranch_scc1 L_g2_cloop")
    A("s_waitcnt lgkmcnt(0)")
    stamp(A, 2)
    A(f"s_lshl_b32 s{S_TMP}, s{S_TILE}, 16")
    A(f"s_lshl_b32 s{S_TMP+1}, s{S_W}, 14")
    A(f"s_add_u32 s{S_TMP}, s{S_TMP}, s{S_TMP+1}")
    A(f"s_add_u32 s{S_TMP}, s{S_TMP}, {WS_PART}")
    A(f"s_cmp_eq_u32 s{S_HALF}, 1")
    A("s_cbranch_scc0 L_g2_fin")
    A("s_nop 7")
    for blk in range(16):
        if blk and blk % 4 == 0: A(f"s_add_u32 s{S_TMP}, s{S_TMP}, 4096")
        A(f"buffer_store_dwordx4 v[{AC+4*blk}:{AC+4*blk+3}], v4, {ws}, s{S_TMP} offen offset:{(blk%4)*1024} sc1")
    A("s_waitcnt vmcnt(0)")
    A("s_barrier")
    A(f"s_cmp_lg_u32 s{S_W}, 0")
    A("s_cbranch_scc1 L_g2_end")
    A(f"s_lshl_b32 s{S_TMP}, s{S_TILE}, 7")
    A(f"s_add_u32 s{S_TMP}, s{S_TMP}, {WS_FLAG}")
    A("v_mov_b32 v8, 1")
    A("v_mov_b32 v9, 0")
    A("s_mov_b64 exec, 1")
    A(f"buffer_store_dword v8, v9, {ws}, s{S_TMP} offen sc1")
    A("s_branch L_g2_end")
    A.label("L_g2_fin")
    A("s_barrier")
    for blk in range(16):
        if blk and blk % 4 == 0: A(f"s_add_u32 s{S_TMP}, s{S_TMP}, 4096")
        A(f"buffer_load_dwordx4 v[{136+4*blk}:{139+4*blk}], v4, {ws}, s{S_TMP} offen offset:{(blk%4)*1024} sc1")
    A("v_and_b32 v8, 1, v5")
    A("v_lshlrev_b32 v8, 5, v8")
    A("v_lshrrev_b32 v9, 1, v5")
    A("v_lshl_add_u32 v8, v9, 4, v8")
    A("v_add_u32 v7, v7, v8")
    for q in range(2):
        A(f"s_waitcnt vmcnt({8 if q == 0 else 4})" if q == 0 else "s_waitcnt vmcnt(4)")
        for tb in range(4):
            d = 8 + (q * 4 + tb) * 4
            for e in range(2):
                cb = 2 * q + e; a = ac(cb, tb); p = 136 + (cb * 4 + tb) * 4
                for r in range(4): A(f"v_add_f32 v{a+r}, v{a+r}, v{p+r}")
                A(f"v_cvt_pk_bf16_f32 v{d+2*e}, v{a}, v{a+1}")
                A(f"v_cvt_pk_bf16_f32 v{d+2*e+1}, v{a+2}, v{a+3}")
            A("s_nop 1")
            A(f"v_permlane16_swap_b32 v{d}, v{d+2}")
            A(f"v_permlane16_swap_b32 v{d+1}, v{d+3}")
            A(f"buffer_store_dwordx4 v[{d}:{d+3}], v7, s[{SRD_OUT}:{SRD_OUT+3}], {sof(tb)} offen offset:{q*64}")
    A("s_branch L_g2_end")
    A.label("L_g2_prod")
    make_srd(A, SRD_B, P + 8, P + 9, 3584 * 2048)
    A(f"s_sub_u32 s{S_TMP+2}, s{S_W}, 4          ; p")
    A(f"s_lshl_b32 s{S_TMP}, s{S_M}, 3")
    A(f"s_lshl_b32 s{S_TMP+1}, s{S_TMP+2}, 1")
    A(f"s_add_u32 s{S_TMP}, s{S_TMP}, s{S_TMP+1}")
    A(f"s_lshl_b32 s{S_TMP}, s{S_TMP}, 10")
    A(f"v_add_u32 v8, s{S_TMP}, v4")
    A(f"v_lshlrev_b32 v9, 3, v5")
    A(f"v_add_u32 v9, s{S_TMP+1}, v9")
    A("v_lshlrev_b32 v9, 11, v9")
    A("v_lshl_add_u32 v9, v6, 4, v9")
    A(f"s_lshl_b32 s{S_TMP}, s{S_N}, 8")
    A(f"v_add_u32 v9, s{S_TMP}, v9              ; regular")
    A("v_lshrrev_b32 v10, 1, v5")
    A(f"v_mul_u32_u24 v10, {96*2048}, v10")
    A("v_add_u32 v10, v10, v9                  ; odd")
    A("v_mov_b32 v11, v9                       ; current")
    A(f"s_lshl_b32 s{S_TMP+3}, s{S_TMP+2}, 11")
    A(f"s_mul_i32 s{S_TMP+4}, s{S_TMP+2}, {2*1056}")
    A(f"s_add_u32 s{S_TMP+4}, s{S_TMP+4}, 8192")
    j0, p0 = G2_SPLIT // 3, G2_SPLIT % 3
    A(f"s_cmp_eq_u32 s{S_HALF}, 1")
    A(f"s_cselect_b32 s{S_KB}, 0, {G2_SPLIT}")
    A(f"s_cselect_b32 s{S_BOFF}, 0, {(112*j0 + 32*p0) * 2048}")
    A(f"s_cselect_b32 s{S_CNT3}, 0, {p0}")
    A(f"s_cselect_b32 s{S_EVT}, {G2_SPLIT}, 96")
    A(f"s_mov_b32 s{S_END}, 144")
    A(f"s_cselect_b32 s{S_END}, {G2_SPLIT}, s{S_END}")
    A(f"s_lshl_b32 s{S_AOFF}, s{S_KB}, 17")
    A(f"s_add_u32 s{S_AOFF}, s{S_AOFF}, {WS_ACT}")
    A(f"s_mov_b32 s{S_INCA}, {32*2048}")
    A(f"s_mov_b32 s{S_INCB}, {48*2048}")
    A(f"s_mov_b32 s{S_LDS}, 0")
    def issue_kb(A):
        A(f"s_add_u32 m0, s{S_LDS}, s{S_TMP+3}")
        A(f"s_add_u32 s{S_TMP}, s{S_BOFF}, 2048")
        A(f"buffer_load_dwordx4 v8, {ws}, s{S_AOFF} offen lds")
        A(f"buffer_load_dwordx4 v8, {ws}, s{S_AOFF} offen offset:1024 lds")
        A(f"s_add_u32 m0, s{S_LDS}, s{S_TMP+4}")
        A(f"s_add_u32 s{S_AOFF}, s{S_AOFF}, 131072")
        A(f"buffer_load_dwordx4 v11, s[{SRD_B}:{SRD_B+3}], s{S_BOFF} offen lds")
        A(f"s_add_u32 m0, m0, 1056")
        A(f"s_add_u32 s{S_CNT3}, s{S_CNT3}, 1")
        A(f"buffer_load_dwordx4 v11, s[{SRD_B}:{SRD_B+3}], s{S_TMP} offen lds")
        A(f"s_cmp_eq_u32 s{S_CNT3}, 3")
        A(f"s_cselect_b32 s{S_TMP}, s{S_INCB}, s{S_INCA}")
        A(f"s_cselect_b32 s{S_CNT3}, 0, s{S_CNT3}")
        A(f"s_add_u32 s{S_BOFF}, s{S_BOFF}, s{S_TMP}")
        A(f"s_add_u32 s{S_KB}, s{S_KB}, 1")
        A(f"s_add_u32 s{S_LDS}, s{S_LDS}, {G2_SLOT}")
        A(f"s_cmp_eq_u32 s{S_LDS}, {G2_SLOT * G2_NSLOT}")
        A(f"s_cselect_b32 s{S_LDS}, 0, s{S_LDS}")
    for k in range(7): issue_kb(A)
    A("s_waitcnt vmcnt(16)")
    A("s_barrier")
    stamp(A, 1)
    A.label("L_g2_ploop")
    issue_kb(A)
    A(f"s_cmp_eq_u32 s{S_KB}, s{S_EVT}")
    A("s_cbranch_scc1 L_g2_evt")
    A.label("L_g2_pcont")
    issue_kb(A)
    A(f"s_sub_u32 s{S_NIT}, s{S_NIT}, 1")
    A(f"s_cmp_lg_u32 s{S_NIT}, 0")
    A("s_waitcnt vmcnt(16)")
    A("s_barrier")
    A("s_cbranch_scc1 L_g2_ploop")
    stamp(A, 2)
    A(f"s_cmp_eq_u32 s{S_HALF}, 1")
    A("s_cbranch_scc1 L_g2_pend")
    A(f"s_cmp_lg_u32 s{S_W}, 4")
    A("s_cbranch_scc1 L_g2_pend")
    A(f"s_lshl_b32 s{S_TMP}, s{S_TILE}, 7")
    A(f"s_add_u32 s{S_TMP}, s{S_TMP}, {WS_FLAG}")
    A("v_mov_b32 v13, 0")
    A.label("L_g2_poll")
    A(f"buffer_load_dword v12, v13, {ws}, s{S_TMP} offen sc1")
    A("s_waitcnt vmcnt(0)")
    A(f"v_readfirstlane_b32 s{S_TMP+1}, v12")
    A("s_nop 3")
    A(f"s_cmp_eq_u32 s{S_TMP+1}, 1")
    A("s_cbranch_scc1 L_g2_pend")
    A("s_sleep 2")
    A("s_branch L_g2_poll")
    A.label("L_g2_pend")
    A("s_waitcnt vmcnt(0)")
    A("s_barrier")
    A("s_branch L_g2_end")
    A.label("L_g2_evt")
    A(f"s_cmp_eq_u32 s{S_KB}, s{S_END}")
    A("s_cbranch_scc1 L_g2_evt_end")
    A(f"s_cmp_eq_u32 s{S_KB}, 96")
    A("s_cbranch_scc0 L_g2_evt112")
    A(f"s_mov_b32 s{S_BOFF}, {96*2048}")
    A(f"s_mov_b32 s{S_INCA}, {224*2048}")
    A(f"s_mov_b32 s{S_INCB}, {224*2048}")
    A("v_mov_b32 v11, v10")
    A(f"s_mov_b32 s{S_EVT}, 112")
    A("s_branch L_g2_pcont")
    A.label("L_g2_evt112")
    A(f"s_mov_b32 s{SRD_B}, s{P+6}")
    A(f"s_and_b32 s{SRD_B+1}, s{P+7}, 0xffff")
    A(f"s_mov_b32 s{SRD_B+2}, {1024*2048}")
    A(f"s_mov_b32 s{S_BOFF}, 0")
    A(f"s_mov_b32 s{S_INCA}, {32*2048}")
    A(f"s_mov_b32 s{S_INCB}, {32*2048}")
    A("v_mov_b32 v11, v9")
    A(f"s_mov_b32 s{S_EVT}, 144")
    A("s_branch L_g2_pcont")
    A.label("L_g2_evt_end")
    A(f"s_mov_b32 s{S_BOFF}, 0x40000000")
    A(f"s_mov_b32 s{S_AOFF}, 0x40000000")
    A(f"s_mov_b32 s{S_INCA}, 0")
    A(f"s_mov_b32 s{S_INCB}, 0")
    A(f"s_mov_b32 s{S_EVT}, -1")
    A("s_branch L_g2_pcont")
    A.label("L_g2_end")
    if OPT["stamp"]:
        A("s_waitcnt vmcnt(0)")
        stamp(A, 3)
        stamp_store(A, 4, S_W, SRD_WS, WS_STAMP + MB)
    A.label("L_g2_done")
    A("s_endpgm")
    return name, 200

def build(kernels):
    A = Asm()
    hdr = open("cdna_kernels/" + NAME + ".s.ref").read().split("\n")
    for l in hdr:
        if l.startswith(";") and "@launch" not in l and "Override" not in l and "grid=ceil" not in l:
            A.raw(l)
    launches = {"ln": "; @launch kernel=ln_kernel grid=(256,1,1) block=(512,1,1) lds=0",
                "gemm1": f"; @launch kernel=gemm1_kernel grid=(256,1,1) block=(512,1,1) lds={G1_LDS}",
                "o": "; @launch kernel=o_kernel grid=(256,1,1) block=(512,1,1) lds=8192",
                "gemm2": f"; @launch kernel=gemm2_kernel grid=(256,1,1) block=(512,1,1) lds={G2_LDS}"}
    for k in kernels: A.raw(launches[k])
    A.raw('.amdgcn_target "amdgcn-amd-amdhsa--gfx950"')
    A.raw(".text")
    descs = []
    gens = {"ln": gen_ln, "gemm1": gen_gemm1, "o": gen_o, "gemm2": gen_gemm2}
    for k in kernels:
        descs.append(gens[k](A))
    A.raw('.section .rodata,"a"')
    for n, v in descs:
        kernel_desc(A, n, v)
    return A.text()

if __name__ == "__main__":
    out = sys.argv[1] if len(sys.argv) > 1 else "k.s"
    for o in sys.argv[3:]: OPT[o] = True
    ks = sys.argv[2].split(",") if len(sys.argv) > 2 else ["ln", "gemm1", "o", "gemm2"]
    open(out, "w").write(build(ks))
```

```python
import sys
from asmlib import *

NAME = "parallel_sum__linear_kernel_hedgehog__glu_gated_glu__prompt"
MB = 1 << 20
WS_BYTES = 268435456
WS_XN = 0
WS_Q = 4 * MB
WS_ACT = 8 * MB
WS_KVP = 28 * MB
KVP_SZ = 8448
WS_PART = 32 * MB
WS_FLAG = 48 * MB
OPT = {"stamp": False, "nodma": False, "noepi": False, "nomfma": False, "st": "", "pf": False, "pf2": False}
WS_STAMP = 52 * MB
LOG2E = 0x3fb8aa3b
NLOG2E = 0xbfb8aa3b

def wave_allreduce(A, v, tmp, op, full=True):
    for dpp in ("quad_perm:[1,0,3,2]", "quad_perm:[2,3,0,1]", "row_half_mirror", "row_mirror"):
        A("s_nop 1")
        A(f"v_{op}_f32_dpp v{v}, v{v}, v{v} {dpp} row_mask:0xf bank_mask:0xf")
    xreduce_g(A, [v], [tmp], op)

def xreduce_g(A, vs, tmps, op):
    ops = op if isinstance(op, list) else [op] * len(vs)
    for sw in ("v_permlane16_swap_b32", "v_permlane32_swap_b32"):
        for v, t in zip(vs, tmps):
            A(f"v_mov_b32 v{t}, v{v}")
        A("s_nop 1")
        for v, t in zip(vs, tmps):
            A(f"{sw} v{v}, v{t}")
        if len(vs) == 1:
            A("s_nop 0")
        for v, t, o in zip(vs, tmps, ops):
            A(f"v_{o}_f32 v{v}, v{v}, v{t}")

A_PAGE = 1040
A_BUF = 32 * A_PAGE
LDS_B = 2 * A_BUF
B_STAGE = 20480
G1_LDS = LDS_B + 4 * B_STAGE
V_A_DMA, V_B0, V_B1, V_B2 = 1, 2, 3, 4
V_AR, V_BG, V_BQ0, V_BQ1 = 5, 6, 7, 8
V_LANE16 = 9
T0, T1A, T1B, WR = 12, 28, 44, 60
SP = 80
ACC = 96
def acc(b, tb): return ACC + (b * 4 + tb) * 4
S_W, S_WM, S_WN, S_J, S_MT = 3, 4, 5, 6, 7
SRD_A, SRD_B0, SRD_B1, SRD_B2 = 8, 12, 16, 20
S_APAGE, S_AK, S_AKE = 24, 25, 26
S_B0OFF, S_B1OFF, S_B2OFF = 27, 28, 29
S_B0INC, S_B1INC, S_B2INC = 30, 31, 32
S_B0LDS, S_B1LDS, S_B2LDS = 33, 34, 35
S_PTR = 36
S_TMP = 50
S_ITER = 60
SRD_WS = 64
SRD_WP = 68
S_C = 72
SRD_PF = 96
S_PFOFF, S_PFINC = 76, 77
V_PF, V_PFD = 10, 11
PF_DIST = 6

def g1_blocks(wn):
    if wn == 0:
        return [("q", 0), ("q", 1)] + [x for b in range(4) for x in (("g", b), ("u", b))]
    return [("k", 0), ("k", 1), ("v", 0), ("v", 1)] + [x for b in range(4, 7) for x in (("g", b), ("u", b))]

def g1_wread1(A, wn, blk, stage, dst, tag, t):
    kind, idx = g1_blocks(wn)[blk]
    so = (stage & 1) * B_STAGE
    if kind in "qkv":
        sgm = "qkv".index(kind)
        off = so + (2 * sgm + t) * 1024
        va = V_BQ0 if idx == 0 else V_BQ1
    else:
        off = so + (6144 if kind == "g" else 13312) + t * 3584 + idx * 32
        va = V_BG
    A.ds(f"ds_read_b64_tr_b16 v[{dst+2*t}:{dst+2*t+1}], v{va} offset:{off}", tag)

def g1_wread(A, wn, blk, stage, dst, tag):
    for t in range(2): g1_wread1(A, wn, blk, stage, dst, tag, t)

def g1_tread1(A, abuf, ks, tb, dst, tag, t):
    off = abuf * A_BUF + tb * 256 + ks * 64 + t * 32
    A.ds(f"ds_read_b64 v[{dst+tb*4+2*t}:{dst+tb*4+2*t+1}], v{V_AR} offset:{off}", tag)

def g1_tread(A, abuf, ks, tb, dst, tag):
    for t in range(2): g1_tread1(A, abuf, ks, tb, dst, tag, t)

def g1_dma_list(wn, u):
    ops = []
    h = u & 1
    abuf = (u >> 1) & 1
    def adma(e):
        def f0(A):
            A(f"s_add_u32 s{S_TMP}, s{S_AKE}, {h * 128 * 2048 + e * 4096}")
            A(f"s_add_u32 m0, s{S_APAGE}, {abuf * A_BUF + (16 * h + e) * A_PAGE}")
        def f1(A):
            A(f"buffer_load_dwordx4 v{V_A_DMA}, s[{SRD_A}:{SRD_A+3}], s{S_TMP} offen lds")
        return f0, f1
    slot = (u + 3) & 3
    def bdma(v, srd, soff, sinc, slds):
        def f0(A):
            A(f"s_add_u32 m0, s{slds}, {LDS_B + slot * B_STAGE}")
        def f1(A):
            A(f"buffer_load_dwordx4 v{v}, s[{srd}:{srd+3}], s{soff} offen lds")
            A(f"s_add_u32 s{soff}, s{soff}, s{sinc}")
        return f0, f1
    ops.append(bdma(V_B0, SRD_B0, S_B0OFF, S_B0INC, S_B0LDS))
    ops.append(bdma(V_B1, SRD_B1, S_B1OFF, S_B1INC, S_B1LDS))
    if wn == 0:
        ops.append(bdma(V_B2, SRD_B2, S_B2OFF, S_B2INC, S_B2LDS))
    ops.append(adma(0))
    ops.append(adma(1))
    return ops

def g1_step(A, wn, u):
    blocks = g1_blocks(wn)
    dmas = g1_dma_list(wn, u)
    odd = u & 1
    Tuse = T0 if not odd else (T1A if u == 1 else T1B)
    gaps = [[] for _ in range(40)]
    for c in range(10):
        tgt = c + 4
        blk, st = (tgt, u) if tgt < 10 else (tgt - 10, (u + 1) & 3)
        sl = tgt % 5
        for t in range(2):
            gaps[4 * c + t].append(lambda A, blk=blk, st=st, sl=sl, t=t: g1_wread1(A, wn, blk, st, WR + sl * 4, f"W{sl}", t))
    if odd:
        d = 2 * B_STAGE if u == 1 else -2 * B_STAGE
        def sw(A, vs):
            for v in vs:
                if d > 0: A(f"v_add_u32 v{v}, {d}, v{v}")
                else: A(f"v_subrev_u32 v{v}, {-d}, v{v}")
        gaps[4 * 5 + 2].append(lambda A: sw(A, (V_BG, V_BQ0)))
        gaps[4 * 5 + 3].append(lambda A: sw(A, (V_BQ1,)))
        nb = ((u + 1) >> 1) & 1
        Tn1 = T1B if u == 1 else T1A
        tr = [(nb, 0, tb, T0, "T0") for tb in range(4)] + [(nb, 1, tb, Tn1, "T1") for tb in range(4)]
        pos = [0, 1, 2, 3, 4, 6, 7, 8]
        for k, x in enumerate(tr):
            for t in range(2):
                gaps[4 * pos[k] + 2 + t].append(lambda A, x=x, t=t: g1_tread1(A, *x, t))
        def adv(A):
            A(f"s_add_u32 s{S_AK}, s{S_AK}, 128")
            A(f"s_cmp_ge_u32 s{S_AK}, 2048")
            A(f"s_cselect_b32 s{S_AKE}, 0x10000000, s{S_AK}")
        gaps[4 * 9 + 2].append(adv)
    if not OPT["nodma"]:
        for k, (f0, f1) in enumerate(dmas):
            gaps[4 * k + 2].insert(0, f0)
            gaps[4 * k + 3].insert(0, f1)
    npf = 0
    if OPT["pf"] and wn == 1:
        def pf(A):
            A(f"buffer_load_dword v{V_PFD}, v{V_PF}, s[{SRD_PF}:{SRD_PF+3}], s{S_PFOFF} offen")
            A(f"s_add_u32 s{S_PFOFF}, s{S_PFOFF}, s{S_PFINC}")
        gaps[4 * 8 + 3].append(pf)
        npf = 1
    if OPT["pf2"] and wn == 0 and u == 2:
        def pf2(A):
            lab = A.newlabel("L_nopf")
            A(f"s_cmp_gt_u32 s{S_ITER}, 5")
            A(f"s_cbranch_scc1 {lab}")
            A(f"s_cmp_lt_u32 s{S_ITER}, 4")
            A(f"s_cbranch_scc1 {lab}")
            A(f"buffer_load_dword v{V_PFD}, v{V_PF}, s[{SRD_PF}:{SRD_PF+3}], 0 offen")
            A(f"s_mov_b32 s{SRD_PF}, s{S_PTR+6}")
            A(f"s_and_b32 s{SRD_PF+1}, s{S_PTR+7}, 0xffff")
            A(f"s_mov_b32 s{SRD_PF+2}, {1024*2048}")
            A(f"v_mov_b32 v{V_PF}, v{V_PFD+1 if False else 95}")
            A.label(lab)
        gaps[4 * 8 + 3].append(pf2)
    for b in range(10):
        need = [f"W{b % 5}"]
        if b == 0:
            need.append("T1" if odd else "T0")
        A.wait_lgkm(need)
        w = WR + (b % 5) * 4
        kind = blocks[b][0]
        for tb in range(4):
            a = acc(b, tb)
            if kind == "v":
                A(f"v_mfma_f32_16x16x32_bf16 v[{a}:{a+3}], v[{Tuse+tb*4}:{Tuse+tb*4+3}], v[{w}:{w+3}], v[{a}:{a+3}]")
            else:
                A(f"v_mfma_f32_16x16x32_bf16 v[{a}:{a+3}], v[{w}:{w+3}], v[{Tuse+tb*4}:{Tuse+tb*4+3}], v[{a}:{a+3}]")
            for f in gaps[4 * b + tb]: f(A)
    n = A.lgkm_count_for(["T0", "T1"]) if odd else None
    nv = len(dmas) + 2 * npf
    if n is not None:
        A(f"s_waitcnt vmcnt({nv}) lgkmcnt({n})")
        A.lgkm_retire(n)
    else:
        A(f"s_waitcnt vmcnt({nv})")
    A("s_barrier")

def gu_epilogue(A, bg, bu, tb, dst, tmp):
    g = acc(bg, tb); u = acc(bu, tb)
    for r in range(4): A(f"v_mul_f32 v{tmp+r}, s{S_C}, v{g+r}")
    for r in range(4): A(f"v_exp_f32 v{tmp+r}, v{tmp+r}")
    for r in range(4): A(f"v_add_f32 v{tmp+r}, 1.0, v{tmp+r}")
    for r in range(4): A(f"v_rcp_f32 v{tmp+r}, v{tmp+r}")
    for r in range(4): A(f"v_mul_f32 v{tmp+r}, v{tmp+r}, v{u+r}")
    A(f"v_cvt_pk_bf16_f32 v{dst}, v{tmp}, v{tmp+1}")
    A(f"v_cvt_pk_bf16_f32 v{dst+1}, v{tmp+2}, v{tmp+3}")

def load_wphi(A, tmp, vaddr, srd, soff):
    for fb in range(2):
        for j in range(8):
            d = (j & 3) + 16 * (j >> 2)
            off = d * 64 + fb * 32
            A(f"buffer_load_ushort v{tmp + fb * 8 + j}, v{vaddr}, s[{srd}:{srd+3}], {soff} offen offset:{off}")

def pack_wphi(A, dst, tmp):
    for r in range(8):
        A(f"v_lshl_or_b32 v{dst+r}, v{tmp+2*r+1}, 16, v{tmp+2*r}")

def softmax_pm(A, pk, Pp, Pm, t):
    mx, mn, x0, x1 = t, t + 1, t + 2, t + 3
    ep, em = t + 4, t + 12
    sp_, sm_ = t + 20, t + 21
    A(f"v_max3_f32 v{mx}, v{pk}, v{pk+1}, v{pk+2}")
    A(f"v_min3_f32 v{mn}, v{pk}, v{pk+1}, v{pk+2}")
    A(f"v_max3_f32 v{mx}, v{mx}, v{pk+3}, v{pk+4}")
    A(f"v_min3_f32 v{mn}, v{mn}, v{pk+3}, v{pk+4}")
    A(f"v_max3_f32 v{mx}, v{mx}, v{pk+5}, v{pk+6}")
    A(f"v_min3_f32 v{mn}, v{mn}, v{pk+5}, v{pk+6}")
    A(f"v_max_f32 v{mx}, v{mx}, v{pk+7}")
    A(f"v_min_f32 v{mn}, v{mn}, v{pk+7}")
    xreduce_g(A, [mx, mn], [x0, x1], ["max", "min"])
    A(f"v_mul_f32 v{mx}, s{S_C}, v{mx}       ; -mx*L")
    A(f"v_mul_f32 v{mn}, s{S_C+1}, v{mn}     ; mn*L")
    for r in range(8):
        A(f"v_fma_f32 v{ep+r}, v{pk+r}, s{S_C+1}, v{mx}")
        A(f"v_fma_f32 v{em+r}, v{pk+r}, s{S_C}, v{mn}")
    for r in range(8):
        A(f"v_exp_f32 v{ep+r}, v{ep+r}")
        A(f"v_exp_f32 v{em+r}, v{em+r}")
    A(f"v_add_f32 v{sp_}, v{ep}, v{ep+1}")
    A(f"v_add_f32 v{sm_}, v{em}, v{em+1}")
    for r in range(2, 8):
        A(f"v_add_f32 v{sp_}, v{sp_}, v{ep+r}")
        A(f"v_add_f32 v{sm_}, v{sm_}, v{em+r}")
    xreduce_g(A, [sp_, sm_], [x0, x1], "add")
    A(f"v_rcp_f32 v{sp_}, v{sp_}")
    A(f"v_rcp_f32 v{sm_}, v{sm_}")
    A("s_nop 0")
    for r in range(8):
        A(f"v_mul_f32 v{ep+r}, v{ep+r}, v{sp_}")
        A(f"v_mul_f32 v{em+r}, v{em+r}, v{sm_}")
    for r in range(4):
        A(f"v_cvt_pk_bf16_f32 v{Pp+r}, v{ep+2*r}, v{ep+2*r+1}")
        A(f"v_cvt_pk_bf16_f32 v{Pm+r}, v{em+2*r}, v{em+2*r+1}")

S_ST = 80
def stamp(A, i):
    if not OPT["stamp"]: return
    A(f"s_memtime s[{S_ST+4*i}:{S_ST+4*i+1}]")
    A(f"s_memrealtime s[{S_ST+4*i+2}:{S_ST+4*i+3}]")
def stamp_store(A, n, sw, srd, base=None):
    if not OPT["stamp"]: return
    A("s_mov_b64 exec, 1")
    A("s_waitcnt lgkmcnt(0)")
    A(f"s_lshl_b32 s{S_TMP}, s2, 3")
    A(f"s_add_u32 s{S_TMP}, s{S_TMP}, s{sw}")
    A(f"s_lshl_b32 s{S_TMP}, s{S_TMP}, 6")
    A(f"s_add_u32 s{S_TMP}, s{S_TMP}, {base or WS_STAMP}")
    A("v_mov_b32 v1, 0")
    for i in range(n):
        A(f"v_mov_b32 v2, s{S_ST+4*i}")
        A(f"v_mov_b32 v3, s{S_ST+4*i+2}")
        A(f"buffer_store_dwordx2 v[2:3], v1, s[{srd}:{srd+3}], s{S_TMP} offen offset:{8*i}")
        A("s_nop 1")

def gen_ln(A):
    name = "ln_kernel"
    kernel_header(A, name)
    A("s_cmp_ge_u32 s2, 256")
    A("s_cbranch_scc1 L_ln_done")
    stamp(A, 0)
    A("s_load_dwordx2 s[4:5], s[0:1], 0")
    A("s_load_dwordx2 s[6:7], s[0:1], 80")
    A("v_lshrrev_b32 v1, 6, v0")
    A("v_and_b32 v2, 63, v0")
    A("s_lshl_b32 s3, s2, 3")
    A("v_add_u32 v1, s3, v1           ; row")
    A("v_lshlrev_b32 v1, 11, v1")
    A("v_lshl_add_u32 v1, v2, 4, v1")
    A("s_waitcnt lgkmcnt(0)")
    make_srd(A, 8, 4, 5, 4 * MB)
    make_srd(A, 12, 6, 7, 4 * MB)
    A("buffer_load_dwordx4 v[4:7], v1, s[8:11], 0 offen")
    A("buffer_load_dwordx4 v[8:11], v1, s[8:11], 0 offen offset:1024")
    A("s_mov_b32 s16, 0xffff0000")
    A("s_waitcnt vmcnt(0)")
    for i in range(8):
        A(f"v_lshlrev_b32 v{16+2*i}, 16, v{4+i}")
        A(f"v_and_b32 v{17+2*i}, s16, v{4+i}")
    A("v_add_f32 v32, v16, v17")
    for i in range(2, 16):
        A(f"v_add_f32 v32, v32, v{16+i}")
    wave_allreduce(A, 32, 33, "add")
    A("v_mul_f32 v32, 0x3a800000, v32")
    A("v_sub_f32 v34, v16, v32")
    A("v_mul_f32 v35, v34, v34")
    for i in range(1, 16):
        A(f"v_sub_f32 v34, v{16+i}, v32")
        A(f"v_fmac_f32 v35, v34, v34")
    wave_allreduce(A, 35, 33, "add")
    A("v_mul_f32 v35, 0x3a800000, v35     ; var")
    A("v_cvt_pk_bf16_f32 v36, v32, v35")
    A("v_lshlrev_b32 v32, 16, v36")
    A("v_and_b32 v35, s16, v36")
    A("v_add_f32 v35, 0x3727c5ac, v35     ; + 1e-5")
    A("v_cvt_pk_bf16_f32 v35, v35, v35")
    A("v_lshlrev_b32 v35, 16, v35")
    A("v_sqrt_f32 v35, v35")
    A("s_nop 0")
    A("v_cvt_pk_bf16_f32 v35, v35, v35")
    A("v_lshlrev_b32 v35, 16, v35")
    A("v_rcp_f32 v35, v35")
    for i in range(8):
        A(f"v_sub_f32 v{16+2*i}, v{16+2*i}, v32")
        A(f"v_sub_f32 v{17+2*i}, v{17+2*i}, v32")
        A(f"v_cvt_pk_bf16_f32 v36, v{16+2*i}, v{17+2*i}")
        A(f"v_lshlrev_b32 v{16+2*i}, 16, v36")
        A(f"v_and_b32 v{17+2*i}, s16, v36")
        A(f"v_mul_f32 v{16+2*i}, v{16+2*i}, v35")
        A(f"v_mul_f32 v{17+2*i}, v{17+2*i}, v35")
        A(f"v_cvt_pk_bf16_f32 v{4+i}, v{16+2*i}, v{17+2*i}")
    A("buffer_store_dwordx4 v[4:7], v1, s[12:15], 0 offen")
    A("buffer_store_dwordx4 v[8:11], v1, s[12:15], 0 offen offset:1024")
    if OPT["stamp"]:
        A("s_waitcnt vmcnt(0)")
        for i in (1, 2, 3): stamp(A, i)
        make_srd(A, SRD_WS, 6, 7, WS_BYTES)
        A("v_lshrrev_b32 v1, 6, v0")
        A("s_nop 0")
        A(f"v_readfirstlane_b32 s{S_W}, v1")
        A("s_nop 3")
        stamp_store(A, 4, S_W, SRD_WS, WS_STAMP + 2 * MB)
    A.label("L_ln_done")
    A("s_endpgm")
    return name, 40


def gen_gemm1(A):
    name = "gemm1_kernel"
    kernel_header(A, name)
    A("s_cmp_ge_u32 s2, 256")
    A("s_cbranch_scc1 L_g1_done")
    stamp(A, 0)
    A(f"s_load_dwordx8 s[{S_PTR}:{S_PTR+7}], s[0:1], 0")
    A(f"s_load_dwordx4 s[{S_PTR+8}:{S_PTR+11}], s[0:1], 40")
    A(f"s_load_dwordx2 s[{S_PTR+12}:{S_PTR+13}], s[0:1], 80")
    A("v_lshrrev_b32 v1, 6, v0")
    A("v_and_b32 v10, 63, v0             ; lane")
    A(f"v_readfirstlane_b32 s{S_W}, v1")
    A("s_nop 3")
    A(f"s_and_b32 s{S_WM}, s{S_W}, 3")
    A(f"s_lshr_b32 s{S_WN}, s{S_W}, 2")
    A(f"s_and_b32 s{S_TMP}, s2, 7")
    A(f"s_lshr_b32 s{S_TMP+1}, s2, 3")
    A(f"s_and_b32 s{S_J}, s{S_TMP+1}, 3")
    A(f"s_lshl_b32 s{S_TMP}, s{S_TMP}, 2")
    A(f"s_add_u32 s{S_J}, s{S_J}, s{S_TMP}        ; head")
    A(f"s_lshr_b32 s{S_MT}, s{S_TMP+1}, 2          ; m tile")
    A(f"v_lshlrev_b32 v{V_LANE16}, 4, v10")
    A(f"s_lshl_b32 s{S_TMP}, s{S_MT}, 8")
    A(f"s_lshl_b32 s{S_TMP+1}, s{S_WN}, 6")
    A(f"s_add_u32 s{S_TMP}, s{S_TMP}, s{S_TMP+1}")
    A(f"s_lshl_b32 s{S_TMP+1}, s{S_WM}, 2")
    A(f"s_add_u32 s{S_TMP}, s{S_TMP}, s{S_TMP+1}")
    A("v_bfe_u32 v11, v10, 3, 1")
    A("v_lshrrev_b32 v12, 4, v10         ; g = l>>4 (= slot>>1)")
    A("v_lshl_add_u32 v11, v12, 4, v11")
    A(f"v_add_u32 v11, s{S_TMP}, v11")
    A("v_lshlrev_b32 v11, 11, v11")
    A("v_and_b32 v13, 7, v10")
    A(f"v_lshl_add_u32 v{V_A_DMA}, v13, 4, v11")
    A(f"s_mul_i32 s{S_APAGE}, s{S_W}, {2 * A_PAGE}")
    A(f"s_lshl_b32 s{S_TMP}, s{S_W}, 6")
    A(f"v_add_u32 v13, s{S_TMP}, v10")
    A("v_mul_u32_u24 v14, 4682, v13")
    A("v_lshrrev_b32 v14, 16, v14        ; row")
    A("v_mul_u32_u24 v15, 14, v14")
    A("v_sub_u32 v15, v13, v15           ; ch")
    A("v_mul_u32_u24 v14, 7168, v14")
    A("v_lshl_add_u32 v14, v15, 4, v14")
    A(f"s_mul_i32 s{S_TMP}, s{S_J}, 224")
    A(f"v_add_u32 v14, s{S_TMP}, v14")
    A("v_lshrrev_b32 v15, 2, v10")
    A("v_mul_u32_u24 v15, 6144, v15")
    A("v_lshrrev_b32 v16, 3, v10")
    A("v_and_b32 v16, 2, v16")
    A("v_and_b32 v17, 3, v10")
    A("v_xor_b32 v16, v16, v17")
    A("v_lshl_add_u32 v15, v16, 4, v15")
    A(f"s_lshl_b32 s{S_TMP}, s{S_J}, 6")
    A(f"v_add_u32 v15, s{S_TMP}, v15     ; qkv voffset for page 0")
    A("v_and_b32 v16, 15, v10            ; i / tok")
    A("v_lshrrev_b32 v17, 2, v16         ; i>>2")
    A("v_lshl_add_u32 v17, v12, 2, v17   ; 4g + (i>>2)")
    A("v_and_b32 v18, 3, v16")
    A("v_lshlrev_b32 v18, 3, v18         ; (i&3)*8")
    A("v_mul_u32_u24 v19, 224, v17")
    A("v_add_u32 v19, v19, v18")
    A(f"v_add_u32 v{V_BG}, {LDS_B}, v19")
    A("v_lshl_add_u32 v19, v17, 6, v18")
    A("v_and_b32 v20, 1, v12")
    A("v_lshl_add_u32 v19, v20, 5, v19")
    A(f"v_add_u32 v{V_BQ0}, {LDS_B}, v19")
    A(f"v_xor_b32 v{V_BQ1}, 32, v{V_BQ0}")
    assert LDS_B % 64 == 0
    A("v_lshrrev_b32 v19, 1, v16")
    A(f"s_lshl_b32 s{S_TMP}, s{S_WM}, 3")
    A(f"v_add_u32 v19, s{S_TMP}, v19")
    A(f"v_mul_u32_u24 v19, {A_PAGE}, v19")
    A("v_and_b32 v20, 1, v16")
    A("v_lshl_add_u32 v19, v20, 7, v19")
    A(f"v_lshl_add_u32 v{V_AR}, v12, 3, v19")
    A("s_waitcnt lgkmcnt(0)")
    P = S_PTR
    A(f"s_add_u32 s{S_TMP}, s{P+12}, {WS_XN}")
    A(f"s_addc_u32 s{S_TMP+1}, s{P+13}, 0")
    make_srd(A, SRD_A, S_TMP, S_TMP + 1, 4 * MB)
    make_srd(A, SRD_WS, P + 12, P + 13, WS_BYTES)
    make_srd(A, SRD_WP, P + 4, P + 5, 65536)
    make_srd(A, SRD_B2, P + 2, P + 3, 1024 * 6144)
    A(f"s_cmp_eq_u32 s{S_W}, 7")
    for d, pg in ((SRD_B0, P + 8), (SRD_B1, P + 10)):
        A(f"s_cselect_b32 s{d}, s{P+2}, s{pg}")
        A(f"s_cselect_b32 s{d+1}, s{P+3}, s{pg+1}")
        A(f"s_and_b32 s{d+1}, s{d+1}, 0xffff")
        A(f"s_cmp_eq_u32 s{S_W}, 7")
        A(f"s_mov_b32 s{d+2}, {1024*7168}")
        A(f"s_cselect_b32 s{d+2}, {1024*6144}, s{d+2}")
        A(f"s_mov_b32 s{d+3}, 0x00020000")
    A(f"s_mov_b32 s{S_B0INC}, {32*7168}")
    A(f"s_cselect_b32 s{S_B0INC}, {32*6144}, s{S_B0INC}")
    A(f"s_mov_b32 s{S_B1INC}, s{S_B0INC}")
    A(f"s_mov_b32 s{S_B2INC}, {32*6144}")
    A(f"s_lshl_b32 s{S_TMP}, s{S_W}, 10")
    A(f"s_add_u32 s{S_B0LDS}, s{S_TMP}, 6144")
    A(f"s_add_u32 s{S_B1LDS}, s{S_TMP}, 13312")
    A(f"s_mov_b32 s{S_B2LDS}, s{S_TMP}")
    A(f"s_cmp_eq_u32 s{S_W}, 7")
    A(f"s_cselect_b32 s{S_B0LDS}, 4096, s{S_B0LDS}")
    A(f"s_cselect_b32 s{S_B1LDS}, 5120, s{S_B1LDS}")
    A(f"v_mov_b32 v{V_B0}, v14")
    A(f"v_mov_b32 v{V_B1}, v14")
    A(f"s_lshr_b32 s{S_TMP}, s{S_W}, 1")
    A(f"s_lshl_b32 s{S_TMP}, s{S_TMP}, 11")
    A(f"s_and_b32 s{S_TMP+1}, s{S_W}, 1")
    A(f"s_mul_i32 s{S_TMP+1}, s{S_TMP+1}, {16*6144}")
    A(f"s_add_u32 s{S_TMP}, s{S_TMP}, s{S_TMP+1}")
    A(f"v_add_u32 v{V_B2}, s{S_TMP}, v15")
    A(f"s_cmp_lg_u32 s{S_W}, 7")
    A("s_cbranch_scc1 L_g1_not7")
    A(f"v_add_u32 v{V_B0}, 4096, v15")
    A(f"v_add_u32 v{V_B1}, {4096 + 16*6144}, v15")
    A.label("L_g1_not7")
    for s in (S_B0OFF, S_B1OFF, S_B2OFF): A(f"s_mov_b32 s{s}, 0")
    A(f"s_mov_b32 s{S_C}, {NLOG2E}")
    A(f"s_mov_b32 s{S_C+1}, {LOG2E}")
    A(f"s_cmp_eq_u32 s{S_WN}, 1")
    A("s_cbranch_scc1 L_g1_wn1")
    A(f"s_lshl_b32 s{S_TMP}, s2, 7")
    A(f"s_add_u32 s{S_TMP}, s{S_TMP}, {WS_FLAG}")
    A("v_mov_b32 v20, 0")
    A(f"buffer_store_dword v20, v20, s[{SRD_WS}:{SRD_WS+3}], s{S_TMP} offen")
    for wn in (0, 1):
        if wn == 1: A.label("L_g1_wn1")
        A.lgkm = []
        nB = 3 if wn == 0 else 2
        slots = [(V_B0, SRD_B0, S_B0OFF, S_B0INC, S_B0LDS), (V_B1, SRD_B1, S_B1OFF, S_B1INC, S_B1LDS), (V_B2, SRD_B2, S_B2OFF, S_B2INC, S_B2LDS)][:nB]
        def pro_a(stage):
            for h in range(2):
                for e in range(2):
                    A(f"s_mov_b32 s{S_TMP}, {stage * 128 + h * 128 * 2048 + e * 4096}")
                    A(f"s_add_u32 m0, s{S_APAGE}, {(stage & 1) * A_BUF + (16 * h + e) * A_PAGE}")
                    A("s_nop 0")
                    A(f"buffer_load_dwordx4 v{V_A_DMA}, s[{SRD_A}:{SRD_A+3}], s{S_TMP} offen lds")
        def pro_b(stage):
            for v, srd, soff, sinc, slds in slots:
                A(f"s_add_u32 m0, s{slds}, {LDS_B + stage * B_STAGE}")
                A("s_nop 0")
                A(f"buffer_load_dwordx4 v{v}, s[{srd}:{srd+3}], s{soff} offen lds")
                A(f"s_add_u32 s{soff}, s{soff}, s{sinc}")
        pro_a(0); pro_b(0); pro_b(1); pro_a(1); pro_b(2)
        if wn == 1 and OPT["pf"]:
            A(f"v_lshrrev_b32 v12, 4, v{V_LANE16}      ; lane")
            A("v_min_u32 v13, 11, v12")
            A("v_mul_u32_u24 v14, 86, v13")
            A("v_lshrrev_b32 v14, 8, v14            ; l/3")
            A("v_mul_u32_u24 v15, 3, v14")
            A("v_sub_u32 v15, v13, v15              ; l%3")
            A(f"s_lshl_b32 s{S_TMP}, s{S_MT}, 2")
            A(f"v_add_u32 v14, s{S_TMP}, v14         ; row")
            A(f"s_cmp_lt_u32 s{S_W}, 6")
            A("s_cbranch_scc0 L_pf_67")
            A("v_mul_u32_u24 v14, 7168, v14")
            A("v_lshl_add_u32 v14, v15, 7, v14")
            A(f"s_mul_i32 s{S_TMP}, s{S_J}, 224")
            A(f"s_and_b32 s{S_TMP}, s{S_TMP}, 0xffffff80")
            A(f"v_add_u32 v{V_PF}, s{S_TMP}, v14")
            A(f"s_cmp_eq_u32 s{S_W}, 4")
            A(f"s_cselect_b32 s{SRD_PF}, s{S_PTR+8}, s{S_PTR+10}")
            A(f"s_cselect_b32 s{SRD_PF+1}, s{S_PTR+9}, s{S_PTR+11}")
            A(f"s_mov_b32 s{SRD_PF+2}, {1024*7168}")
            A(f"s_mov_b32 s{S_PFINC}, {32*7168}")
            A(f"s_mov_b32 s{S_PFOFF}, {(2+PF_DIST)*32*7168}")
            A("s_branch L_pf_done")
            A.label("L_pf_67")
            A(f"s_cmp_eq_u32 s{S_W}, 6")
            A("s_cbranch_scc0 L_pf_7")
            A("v_mul_u32_u24 v14, 6144, v14")
            A("v_lshl_add_u32 v14, v15, 11, v14")
            A(f"s_lshl_b32 s{S_TMP}, s{S_J}, 6")
            A(f"v_add_u32 v{V_PF}, s{S_TMP}, v14")
            A(f"s_mov_b32 s{SRD_PF}, s{S_PTR+2}")
            A(f"s_mov_b32 s{SRD_PF+1}, s{S_PTR+3}")
            A(f"s_mov_b32 s{SRD_PF+2}, {1024*6144}")
            A(f"s_mov_b32 s{S_PFINC}, {32*6144}")
            A(f"s_mov_b32 s{S_PFOFF}, {(2+PF_DIST)*32*6144}")
            A("s_branch L_pf_done")
            A.label("L_pf_7")
            A(f"s_lshl_b32 s{S_TMP}, s{S_MT}, 8")
            A(f"s_and_b32 s{S_TMP+1}, s{S_J}, 3")
            A(f"s_lshl_b32 s{S_TMP+1}, s{S_TMP+1}, 6")
            A(f"s_add_u32 s{S_TMP}, s{S_TMP}, s{S_TMP+1}")
            A(f"v_add_u32 v14, s{S_TMP}, v12")
            A(f"v_lshlrev_b32 v{V_PF}, 11, v14")
            A(f"s_mov_b32 s{SRD_PF}, s{SRD_A}")
            A(f"s_mov_b32 s{SRD_PF+1}, s{SRD_A+1}")
            A(f"s_mov_b32 s{SRD_PF+2}, {4*MB}")
            A(f"s_mov_b32 s{S_PFINC}, 64")
            A(f"s_mov_b32 s{S_PFOFF}, {(3+PF_DIST)*64}")
            A.label("L_pf_done")
            A(f"s_and_b32 s{SRD_PF+1}, s{SRD_PF+1}, 0xffff")
            A(f"s_mov_b32 s{SRD_PF+3}, 0x00020000")
            A(f"buffer_load_dword v{V_PFD}, v{V_PF}, s[{SRD_PF}:{SRD_PF+3}], s{S_PFOFF} offen")
            A(f"s_add_u32 s{S_PFOFF}, s{S_PFOFF}, s{S_PFINC}")
        if wn == 0 and OPT["pf2"]:
            A(f"s_load_dwordx2 s[{S_TMP+4}:{S_TMP+5}], s[0:1], 56")
            A(f"v_lshrrev_b32 v12, 4, v{V_LANE16}      ; lane")
            A("v_min_u32 v13, 55, v12")
            A(f"s_mul_i32 s{S_TMP}, s2, 224")
            A(f"s_mul_i32 s{S_TMP+1}, s{S_W}, 56")
            A(f"s_add_u32 s{S_TMP}, s{S_TMP}, s{S_TMP+1}")
            A(f"v_add_u32 v13, s{S_TMP}, v13")
            A(f"v_lshlrev_b32 v{V_PF}, 7, v13")
            A("v_and_b32 v13, 15, v12")
            A(f"s_lshl_b32 s{S_TMP}, s2, 6")
            A(f"s_lshl_b32 s{S_TMP+1}, s{S_W}, 4")
            A(f"s_add_u32 s{S_TMP}, s{S_TMP}, s{S_TMP+1}")
            A(f"v_add_u32 v13, s{S_TMP}, v13")
            A(f"v_lshlrev_b32 v95, 7, v13")
            A("s_waitcnt lgkmcnt(0)")
            make_srd(A, SRD_PF, S_TMP + 4, S_TMP + 5, 3584 * 2048)
        A(f"s_mov_b32 s{S_AK}, 256")
        A(f"s_mov_b32 s{S_AKE}, 256")
        for r in range(ACC, 256): A(f"v_mov_b32 v{r}, 0")
        A(f"s_waitcnt vmcnt({4 + nB + (1 if wn == 1 and OPT['pf'] else 0)})")
        A("s_barrier")
        for tb in range(4): g1_tread(A, 0, 0, tb, T0, "T0")
        for tb in range(4): g1_tread(A, 0, 1, tb, T1A, "T1")
        A("s_waitcnt lgkmcnt(0)")
        A.lgkm = []
        for b in range(4): g1_wread(A, wn, b, 0, WR + b * 4, f"W{b}")
        A("s_barrier")
        if OPT["stamp"]:
            stamp(A, 1); A("s_waitcnt lgkmcnt(0)");
        A(f"s_mov_b32 s{S_ITER}, 8")
        entry = list(A.lgkm)
        lab = f"L_g1_loop{wn}"
        A.label(lab)
        for u in range(4): g1_step(A, wn, u)
        assert A.lgkm == entry[len(entry)-len(A.lgkm):], (A.lgkm, entry)
        A(f"s_sub_u32 s{S_ITER}, s{S_ITER}, 1")
        A(f"s_cmp_lg_u32 s{S_ITER}, 0")
        A(f"s_cbranch_scc1 {lab}")
        A("s_waitcnt vmcnt(0) lgkmcnt(0)")
        A("s_barrier")
        stamp(A, 2)
        A.lgkm = []
        A(f"s_lshl_b32 s{S_TMP}, s{S_MT}, 4")
        A(f"s_lshl_b32 s{S_TMP+1}, s{S_WM}, 2")
        A(f"s_add_u32 s{S_TMP}, s{S_TMP}, s{S_TMP+1}")
        A(f"s_lshl_b32 s{S_TMP}, s{S_TMP}, 10        ; tbg0*1024")
        A(f"s_mul_i32 s{S_TMP+1}, s{S_J}, {3 * 128 * 1024}")
        A(f"s_add_u32 s{S_TMP+1}, s{S_TMP+1}, s{S_TMP}")
        A(f"s_add_u32 s{S_TMP+1}, s{S_TMP+1}, {WS_ACT}")
        if wn == 0:
            A(f"s_lshl_b32 s{S_TMP+2}, s{S_J}, 17")
            A(f"s_add_u32 s{S_TMP+2}, s{S_TMP+2}, s{S_TMP}")
            A(f"s_add_u32 s{S_TMP+2}, s{S_TMP+2}, {WS_Q}")
            for tb in range(4):
                d = 12 + tb * 4
                for hb in range(2):
                    a = acc(hb, tb)
                    A(f"v_cvt_pk_bf16_f32 v{d+2*hb}, v{a}, v{a+1}")
                    A(f"v_cvt_pk_bf16_f32 v{d+2*hb+1}, v{a+2}, v{a+3}")
                A(f"buffer_store_dwordx4 v[{d}:{d+3}], v{V_LANE16}, s[{SRD_WS}:{SRD_WS+3}], s{S_TMP+2} offen offset:{tb*1024} {OPT['st']}")
            k = 0
            for p in range(2):
                if p == 1: A(f"s_add_u32 s{S_TMP+1}, s{S_TMP+1}, {128*1024}")
                for tb in range(4):
                    d = 28 + (k % 8) * 4; k += 1
                    gu_epilogue(A, 2 + 4 * p, 3 + 4 * p, tb, d, 80)
                    gu_epilogue(A, 4 + 4 * p, 5 + 4 * p, tb, d + 2, 84)
                    A(f"buffer_store_dwordx4 v[{d}:{d+3}], v{V_LANE16}, s[{SRD_WS}:{SRD_WS+3}], s{S_TMP+1} offen offset:{tb*1024} {OPT['st']}")
            A("s_barrier")
        else:
            A("v_lshrrev_b32 v10, 4, v9          ; lane")
            A("v_lshrrev_b32 v11, 4, v10         ; g")
            A("v_and_b32 v10, 15, v10            ; c")
            A("v_lshlrev_b32 v20, 8, v11")
            A("v_lshl_add_u32 v20, v10, 1, v20")
            A(f"s_lshl_b32 s{S_TMP+3}, s{S_J}, 11")
            load_wphi(A, 64, 20, SRD_WP, f"s{S_TMP+3}")
            A(f"s_add_u32 s{S_TMP+1}, s{S_TMP+1}, {2*128*1024}")
            A(f"s_lshr_b32 s{S_TMP+2}, s{S_J}, 1")
            A(f"s_add_u32 s{S_TMP+2}, s{S_TMP+2}, 96")
            A(f"s_lshl_b32 s{S_TMP+2}, s{S_TMP+2}, 17")
            A(f"s_add_u32 s{S_TMP+2}, s{S_TMP+2}, s{S_TMP}")
            A(f"s_and_b32 s{S_TMP+3}, s{S_J}, 1")
            A(f"s_lshl_b32 s{S_TMP+3}, s{S_TMP+3}, 3")
            A(f"s_add_u32 s{S_TMP+2}, s{S_TMP+2}, s{S_TMP+3}")
            A(f"s_add_u32 s{S_TMP+2}, s{S_TMP+2}, {WS_ACT}")
            for tb in range(4):
                d = 28 + tb * 8
                gu_epilogue(A, 4, 5, tb, d, 80)
                gu_epilogue(A, 6, 7, tb, d + 2, 84)
                A(f"buffer_store_dwordx4 v[{d}:{d+3}], v{V_LANE16}, s[{SRD_WS}:{SRD_WS+3}], s{S_TMP+1} offen offset:{tb*1024} {OPT['st']}")
                gu_epilogue(A, 8, 9, tb, d + 4, 80)
                A(f"buffer_store_dwordx2 v[{d+4}:{d+5}], v{V_LANE16}, s[{SRD_WS}:{SRD_WS+3}], s{S_TMP+2} offen offset:{tb*1024} {OPT['st']}")
            KV = 160
            D = 208
            ISEL = 240
            ONES = 248
            KF = 60; PK = 64; PP = 72; PM = 76; SC = 80
            SC = 60 + 0
            SC = 36
            A("s_waitcnt vmcnt(0)")
            pack_wphi(A, 12, 64)
            for r in range(48): A(f"v_mov_b32 v{KV+r}, 0")
            A("v_lshrrev_b32 v21, 2, v10")
            A("v_and_b32 v22, 3, v10")
            A("v_cmp_eq_u32 vcc, v21, v11")
            A("v_and_b32 v23, 1, v22")
            A("v_lshlrev_b32 v23, 4, v23")
            A("v_mov_b32 v24, 0x3f80")
            A("v_lshlrev_b32 v24, v23, v24")
            A("v_cndmask_b32 v24, 0, v24, vcc")
            A("v_cmp_gt_u32 vcc, 2, v22")
            A(f"v_mov_b32 v{ISEL}, 0")
            A(f"v_mov_b32 v{ISEL+1}, 0")
            A(f"v_cndmask_b32 v{ISEL+2}, 0, v24, vcc")
            A(f"v_cndmask_b32 v{ISEL+3}, v24, 0, vcc")
            A(f"v_mov_b32 v{ISEL+4}, 0")
            A(f"v_mov_b32 v{ISEL+5}, 0")
            for r in range(4): A(f"v_mov_b32 v{ONES+r}, 0x3f803f80")
            for tp in range(2):
                for e in range(2):
                    tb = 2 * tp + e
                    for hb in range(2):
                        a = acc(hb, tb)
                        A(f"v_cvt_pk_bf16_f32 v{KF+2*hb}, v{a}, v{a+1}")
                        A(f"v_cvt_pk_bf16_f32 v{KF+2*hb+1}, v{a+2}, v{a+3}")
                    A("s_nop 1")
                    A(f"v_mfma_f32_16x16x32_bf16 v[{PK}:{PK+3}], v[12:15], v[{KF}:{KF+3}], 0")
                    A(f"v_mfma_f32_16x16x32_bf16 v[{PK+4}:{PK+7}], v[16:19], v[{KF}:{KF+3}], 0")
                    A("s_nop 7")
                    softmax_pm(A, PK, PP, PM, SC)
                    A("s_nop 1")
                    dd = D + e * 16
                    A(f"v_mfma_f32_16x16x32_bf16 v[{dd}:{dd+3}], v[{PP}:{PP+3}], v[{ISEL+2}:{ISEL+5}], 0")
                    A(f"v_mfma_f32_16x16x32_bf16 v[{dd+4}:{dd+7}], v[{PP}:{PP+3}], v[{ISEL}:{ISEL+3}], 0")
                    A(f"v_mfma_f32_16x16x32_bf16 v[{dd+8}:{dd+11}], v[{PM}:{PM+3}], v[{ISEL+2}:{ISEL+5}], 0")
                    A(f"v_mfma_f32_16x16x32_bf16 v[{dd+12}:{dd+15}], v[{PM}:{PM+3}], v[{ISEL}:{ISEL+3}], 0")
                A("s_nop 7")
                PT, VF = 36, 52
                for fb in range(4):
                    for e in range(2):
                        dd = D + e * 16 + fb * 4
                        A(f"v_cvt_pk_bf16_f32 v{PT+fb*4+2*e}, v{dd}, v{dd+1}")
                        A(f"v_cvt_pk_bf16_f32 v{PT+fb*4+2*e+1}, v{dd+2}, v{dd+3}")
                for db in range(2):
                    for e in range(2):
                        a = acc(2 + db, 2 * tp + e)
                        A(f"v_cvt_pk_bf16_f32 v{VF+db*4+2*e}, v{a}, v{a+1}")
                        A(f"v_cvt_pk_bf16_f32 v{VF+db*4+2*e+1}, v{a+2}, v{a+3}")
                A("s_nop 1")
                for fb in range(4):
                    for db in range(3):
                        c = KV + (fb * 3 + db) * 4
                        bsrc = VF + db * 4 if db < 2 else ONES
                        A(f"v_mfma_f32_16x16x32_bf16 v[{c}:{c+3}], v[{PT+fb*4}:{PT+fb*4+3}], v[{bsrc}:{bsrc+3}], v[{c}:{c+3}]")
                A("s_nop 3")
            A("s_nop 7")
            A(f"s_mul_i32 s{S_TMP}, s{S_WM}, {12*1024}")
            A(f"v_add_u32 v20, s{S_TMP}, v{V_LANE16}")
            for blk in range(12):
                A(f"ds_write_b128 v20, v[{KV+blk*4}:{KV+blk*4+3}] offset:{blk*1024}")
            A("s_waitcnt lgkmcnt(0)")
            A("s_barrier")
        A(f"s_lshr_b32 s{S_TMP}, s{S_W}, 1")
        A(f"s_mul_i32 s{S_TMP}, s{S_TMP}, 3")
        A(f"s_and_b32 s{S_TMP+1}, s{S_W}, 1")
        A(f"s_add_u32 s{S_TMP}, s{S_TMP}, s{S_TMP+1}")
        A(f"s_lshl_b32 s{S_TMP}, s{S_TMP}, 10")
        A(f"v_add_u32 v20, s{S_TMP}, v{V_LANE16}")
        for p in range(4):
            A(f"ds_read_b128 v[{100+4*p}:{103+4*p}], v20 offset:{p*12*1024}")
        if wn == 0:
            A(f"s_mul_i32 s{S_TMP}, s{S_W}, 3072")
            A(f"v_add_u32 v21, s{S_TMP}, v{V_LANE16}")
            for p in range(4):
                A(f"ds_read_b128 v[{116+4*p}:{119+4*p}], v21 offset:{p*12*1024 + 2048}")
        A(f"s_lshl_b32 s{S_TMP}, s{S_J}, 3")
        A(f"s_add_u32 s{S_TMP}, s{S_TMP}, s{S_MT}")
        A(f"s_mul_i32 s{S_TMP}, s{S_TMP}, {KVP_SZ}")
        A(f"s_add_u32 s{S_TMP}, s{S_TMP}, {WS_KVP}")
        A(f"s_lshl_b32 s{S_TMP+1}, s{S_W}, 10")
        A(f"s_add_u32 s{S_TMP+1}, s{S_TMP+1}, s{S_TMP}")
        A("s_waitcnt lgkmcnt(0)")
        for r in range(4):
            A(f"v_add_f32 v{100+r}, v{100+r}, v{104+r}")
            A(f"v_add_f32 v{108+r}, v{108+r}, v{112+r}")
        for r in range(4):
            A(f"v_add_f32 v{100+r}, v{100+r}, v{108+r}")
        A(f"buffer_store_dwordx4 v[100:103], v{V_LANE16}, s[{SRD_WS}:{SRD_WS+3}], s{S_TMP+1} offen {OPT['st']}")
        if wn == 0:
            for r in range(4):
                A(f"v_add_f32 v{116+r}, v{116+r}, v{120+r}")
                A(f"v_add_f32 v{124+r}, v{124+r}, v{128+r}")
            for r in range(4):
                A(f"v_add_f32 v{116+r}, v{116+r}, v{124+r}")
            A(f"s_lshl_b32 s{S_TMP+1}, s{S_W}, 6")
            A(f"s_add_u32 s{S_TMP+1}, s{S_TMP+1}, s{S_TMP}")
            A(f"s_add_u32 s{S_TMP+1}, s{S_TMP+1}, 8192")
            A(f"v_lshrrev_b32 v21, 4, v{V_LANE16}    ; lane")
            A("v_and_b32 v22, 15, v21")
            A("v_cmp_eq_u32 vcc, 0, v22")
            A(f"s_and_saveexec_b64 s[{S_TMP+2}:{S_TMP+3}], vcc")
            A(f"buffer_store_dwordx4 v[116:119], v21, s[{SRD_WS}:{SRD_WS+3}], s{S_TMP+1} offen {OPT['st']}")
        if OPT["stamp"]:
            A("s_waitcnt vmcnt(0)")
            stamp(A, 3)
            stamp_store(A, 4, S_W, SRD_WS)
        A("s_endpgm")
    A.label("L_g1_done")
    A("s_endpgm")
    return name, 256

def gen_o(A):
    name = "o_kernel"
    kernel_header(A, name)
    A("s_cmp_ge_u32 s2, 256")
    A("s_cbranch_scc1 L_o_done")
    stamp(A, 0)
    A(f"s_load_dwordx2 s[{S_PTR+4}:{S_PTR+5}], s[0:1], 16")
    A(f"s_load_dwordx2 s[{S_PTR+12}:{S_PTR+13}], s[0:1], 80")
    A("v_lshrrev_b32 v1, 6, v0")
    A("v_and_b32 v10, 63, v0             ; lane")
    A(f"v_readfirstlane_b32 s{S_W}, v1")
    A(f"v_lshlrev_b32 v{V_LANE16}, 4, v10")
    A("v_lshrrev_b32 v11, 4, v10         ; g")
    A("v_and_b32 v12, 15, v10            ; c")
    A("v_lshlrev_b32 v20, 8, v11")
    A("v_lshl_add_u32 v20, v12, 1, v20")
    A("v_lshlrev_b32 v21, 4, v11         ; g*16")
    A("v_lshlrev_b32 v22, 3, v10         ; lane*8")
    A(f"s_and_b32 s{S_J}, s2, 31")
    A(f"s_lshr_b32 s{S_MT}, s2, 5")
    A(f"s_mov_b32 s{S_C}, {NLOG2E}")
    A(f"s_mov_b32 s{S_C+1}, {LOG2E}")
    A("s_waitcnt lgkmcnt(0)")
    P = S_PTR
    make_srd(A, SRD_WS, P + 12, P + 13, WS_BYTES)
    make_srd(A, SRD_WP, P + 4, P + 5, 65536)
    o_stage(A, S_J, S_MT, S_W, "")
    if OPT["stamp"]:
        A("s_waitcnt vmcnt(0)")
        for i in (1, 2, 3): stamp(A, i)
        stamp_store(A, 4, S_W, SRD_WS, WS_STAMP + 3 * MB)
    A.label("L_o_done")
    A("s_endpgm")
    return name, 128

def o_stage(A, sj, stg, sw, sc, L16=V_LANE16, lds=0):
    ws = f"s[{SRD_WS}:{SRD_WS+3}]"
    t = S_TMP
    A(f"s_mul_i32 s{t}, s{sj}, {8 * KVP_SZ}")
    A(f"s_add_u32 s{t}, s{t}, {WS_KVP}")
    A(f"s_lshl_b32 s{t+1}, s{sw}, 10")
    A(f"s_add_u32 s{t+1}, s{t+1}, s{t}")
    for p in range(8):
        A(f"buffer_load_dwordx4 v[{24+4*p}:{27+4*p}], v{L16}, {ws}, s{t+1} offen")
        if p < 7: A(f"s_add_u32 s{t+1}, s{t+1}, {KVP_SZ}")
    A(f"s_and_b32 s{t+1}, s{sw}, 3")
    A(f"s_lshl_b32 s{t+1}, s{t+1}, 6")
    A(f"s_add_u32 s{t+1}, s{t+1}, s{t}")
    A(f"s_add_u32 s{t+1}, s{t+1}, 8192")
    for p in range(8):
        A(f"buffer_load_dwordx4 v[{56+4*p}:{59+4*p}], v21, {ws}, s{t+1} offen")
        if p < 7: A(f"s_add_u32 s{t+1}, s{t+1}, {KVP_SZ}")
    A(f"s_lshl_b32 s{t+2}, s{stg}, 4")
    A(f"s_lshl_b32 s{t+3}, s{sw}, 1")
    A(f"s_add_u32 s{t+2}, s{t+2}, s{t+3}")
    A(f"s_lshl_b32 s{t+2}, s{t+2}, 10")
    A(f"s_lshl_b32 s{t+3}, s{sj}, 17")
    A(f"s_add_u32 s{t+2}, s{t+2}, s{t+3}          ; (j*128 + tbg)*1024")
    A(f"s_add_u32 s{t+3}, s{t+2}, {WS_Q}")
    A(f"buffer_load_dwordx4 v[88:91], v{L16}, {ws}, s{t+3} offen")
    A(f"buffer_load_dwordx4 v[92:95], v{L16}, {ws}, s{t+3} offen offset:1024")
    A(f"s_lshl_b32 s{t+3}, s{sj}, 11")
    load_wphi(A, 96, 20, SRD_WP, f"s{t+3}")
    A("s_waitcnt vmcnt(18)")
    for base in (24, 56):
        for st in (16, 8, 4):
            for r in range(st):
                A(f"v_add_f32 v{base+r}, v{base+r}, v{base+st+r}")
    A("v_cvt_pk_bf16_f32 v28, v24, v25")
    A("v_cvt_pk_bf16_f32 v29, v26, v27")
    A("v_cvt_pk_bf16_f32 v30, v56, v57")
    A("v_cvt_pk_bf16_f32 v31, v58, v59")
    A(f"s_lshl_b32 s{t+1}, s{sw}, 9")
    A(f"v_add_u32 v23, s{t+1}, v22")
    A("ds_write_b64 v23, v[28:29]")
    A(f"s_and_b32 s{t+1}, s{sw}, 3")
    A(f"s_lshl_b32 s{t+1}, s{t+1}, 9")
    A(f"v_add_u32 v23, s{t+1}, v22")
    A("ds_write_b64 v23, v[30:31] offset:4096")
    A("s_waitcnt lgkmcnt(0)")
    A("s_barrier")
    for db in range(2):
        for hf in range(2):
            for e in range(2):
                blk = (2 * hf + e) * 2 + db
                d = 32 + (db * 2 + hf) * 4 + 2 * e
                A(f"ds_read_b64 v[{d}:{d+1}], v22 offset:{blk*512}")
    for hf in range(2):
        for e in range(2):
            d = 48 + hf * 4 + 2 * e
            A(f"ds_read_b64 v[{d}:{d+1}], v22 offset:{4096 + (2*hf+e)*512}")
    A("s_waitcnt vmcnt(0)")
    pack_wphi(A, 56, 96)
    A(f"s_add_u32 s{t+3}, s{t+2}, {WS_ACT + 112 * 131072}")
    A("s_waitcnt lgkmcnt(0)")
    for e in range(2):
        PK, PP, PM, SC, O = 64, 72, 76, 96, 24
        q = 88 + 4 * e
        A("s_nop 1")
        A(f"v_mfma_f32_16x16x32_bf16 v[{PK}:{PK+3}], v[56:59], v[{q}:{q+3}], 0")
        A(f"v_mfma_f32_16x16x32_bf16 v[{PK+4}:{PK+7}], v[60:63], v[{q}:{q+3}], 0")
        A("s_nop 7")
        softmax_pm(A, PK, PP, PM, SC)
        A("s_nop 1")
        N0, N1, DN = 80, 84, 120
        A(f"v_mfma_f32_16x16x32_bf16 v[{DN}:{DN+3}], v[48:51], v[{PP}:{PP+3}], 0")
        A(f"v_mfma_f32_16x16x32_bf16 v[{N0}:{N0+3}], v[32:35], v[{PP}:{PP+3}], 0")
        A(f"v_mfma_f32_16x16x32_bf16 v[{N1}:{N1+3}], v[40:43], v[{PP}:{PP+3}], 0")
        A(f"v_mfma_f32_16x16x32_bf16 v[{DN}:{DN+3}], v[52:55], v[{PM}:{PM+3}], v[{DN}:{DN+3}]")
        A(f"v_mfma_f32_16x16x32_bf16 v[{N0}:{N0+3}], v[36:39], v[{PM}:{PM+3}], v[{N0}:{N0+3}]")
        A(f"v_mfma_f32_16x16x32_bf16 v[{N1}:{N1+3}], v[44:47], v[{PM}:{PM+3}], v[{N1}:{N1+3}]")
        A("s_nop 7")
        A(f"v_add_f32 v{DN}, 0x358637bd, v{DN}     ; +1e-6")
        A(f"v_rcp_f32 v{DN}, v{DN}")
        A("s_nop 0")
        for r in range(8): A(f"v_mul_f32 v{N0+r}, v{N0+r}, v{DN}")
        d = O + 4 * e
        for r in range(4): A(f"v_cvt_pk_bf16_f32 v{d+r}, v{N0+2*r}, v{N0+2*r+1}")
        A(f"buffer_store_dwordx4 v[{d}:{d+3}], v{L16}, {ws}, s{t+3} offen offset:{e*1024} {sc}")

def o4_loads(A, sj, stg, sp, L16):
    ws = f"s[{SRD_WS}:{SRD_WS+3}]"
    t = S_TMP
    A(f"s_mul_i32 s{t}, s{sj}, {8 * KVP_SZ}")
    A(f"s_add_u32 s{t}, s{t}, {WS_KVP}")
    A(f"s_lshl_b32 s{t+1}, s{sp}, 11")
    A(f"s_add_u32 s{t+1}, s{t+1}, s{t}")
    for p in range(8):
        A(f"buffer_load_dwordx4 v[{24+4*p}:{27+4*p}], v{L16}, {ws}, s{t+1} offen")
        A(f"buffer_load_dwordx4 v[{56+4*p}:{59+4*p}], v{L16}, {ws}, s{t+1} offen offset:1024")
        if p < 7: A(f"s_add_u32 s{t+1}, s{t+1}, {KVP_SZ}")
    A(f"s_lshl_b32 s{t+1}, s{sp}, 6")
    A(f"s_add_u32 s{t+1}, s{t+1}, s{t}")
    A(f"s_add_u32 s{t+1}, s{t+1}, 8192")
    for p in range(8):
        A(f"buffer_load_dwordx4 v[{88+4*p}:{91+4*p}], v21, {ws}, s{t+1} offen")
        if p < 7: A(f"s_add_u32 s{t+1}, s{t+1}, {KVP_SZ}")
    A(f"s_lshl_b32 s{t+2}, s{stg}, 4")
    A(f"s_lshl_b32 s{t+3}, s{sp}, 2")
    A(f"s_add_u32 s{t+2}, s{t+2}, s{t+3}")
    A(f"s_lshl_b32 s{t+2}, s{t+2}, 10")
    A(f"s_lshl_b32 s{t+3}, s{sj}, 17")
    A(f"s_add_u32 s{t+2}, s{t+2}, s{t+3}          ; (j*128 + tbg)*1024")
    A(f"s_add_u32 s{t+3}, s{t+2}, {WS_Q}")
    for e in range(4):
        A(f"buffer_load_dwordx4 v[{120+4*e}:{123+4*e}], v{L16}, {ws}, s{t+3} offen offset:{e*1024}")
    A(f"s_lshl_b32 s{t+3}, s{sj}, 11")
    load_wphi(A, 136, 20, SRD_WP, f"s{t+3}")
    A(f"s_add_u32 s{t+3}, s{t+2}, {WS_ACT + 112 * 131072}")

def o4_reduce(A, sp):
    t = S_TMP
    for base in (24, 56, 88):
        for st in (16, 8, 4):
            for r in range(st):
                A(f"v_add_f32 v{base+r}, v{base+r}, v{base+st+r}")
    for k, base in enumerate((24, 56, 88)):
        A(f"v_cvt_pk_bf16_f32 v{28+2*k}, v{base}, v{base+1}")
        A(f"v_cvt_pk_bf16_f32 v{29+2*k}, v{base+2}, v{base+3}")
    A(f"s_lshl_b32 s{t+1}, s{sp}, 10")
    A(f"v_add_u32 v23, s{t+1}, v22")
    A("ds_write_b64 v23, v[28:29]")
    A("ds_write_b64 v23, v[30:31] offset:512")
    A(f"s_lshl_b32 s{t+1}, s{sp}, 9")
    A(f"v_add_u32 v23, s{t+1}, v22")
    A("ds_write_b64 v23, v[32:33] offset:4096")
    pack_wphi(A, 56, 136)
    A("s_waitcnt lgkmcnt(0)")

def o4_frags(A):
    for db in range(2):
        for hf in range(2):
            for e in range(2):
                blk = (2 * hf + e) * 2 + db
                d = 32 + (db * 2 + hf) * 4 + 2 * e
                A(f"ds_read_b64 v[{d}:{d+1}], v22 offset:{blk*512}")
    for hf in range(2):
        for e in range(2):
            d = 48 + hf * 4 + 2 * e
            A(f"ds_read_b64 v[{d}:{d+1}], v22 offset:{4096 + (2*hf+e)*512}")

def o4_tb(e, L16):
    B = Asm()
    ws = f"s[{SRD_WS}:{SRD_WS+3}]"
    PK, PP, PM, SC, O = 64, 72, 76, 96, 24
    q = 120 + 4 * e
    B(f"v_mfma_f32_16x16x32_bf16 v[{PK}:{PK+3}], v[56:59], v[{q}:{q+3}], 0")
    B(f"v_mfma_f32_16x16x32_bf16 v[{PK+4}:{PK+7}], v[60:63], v[{q}:{q+3}], 0")
    B("s_nop 7")
    softmax_pm(B, PK, PP, PM, SC)
    B("s_waitcnt lgkmcnt(0)")
    B("s_nop 1")
    N0, N1, DN = 80, 84, 88
    B(f"v_mfma_f32_16x16x32_bf16 v[{DN}:{DN+3}], v[48:51], v[{PP}:{PP+3}], 0")
    B(f"v_mfma_f32_16x16x32_bf16 v[{N0}:{N0+3}], v[32:35], v[{PP}:{PP+3}], 0")
    B(f"v_mfma_f32_16x16x32_bf16 v[{N1}:{N1+3}], v[40:43], v[{PP}:{PP+3}], 0")
    B(f"v_mfma_f32_16x16x32_bf16 v[{DN}:{DN+3}], v[52:55], v[{PM}:{PM+3}], v[{DN}:{DN+3}]")
    B(f"v_mfma_f32_16x16x32_bf16 v[{N0}:{N0+3}], v[36:39], v[{PM}:{PM+3}], v[{N0}:{N0+3}]")
    B(f"v_mfma_f32_16x16x32_bf16 v[{N1}:{N1+3}], v[44:47], v[{PM}:{PM+3}], v[{N1}:{N1+3}]")
    B("s_nop 7")
    B(f"v_add_f32 v{DN}, 0x358637bd, v{DN}     ; +1e-6")
    B(f"v_rcp_f32 v{DN}, v{DN}")
    B("s_nop 0")
    for r in range(8): B(f"v_mul_f32 v{N0+r}, v{N0+r}, v{DN}")
    d = O + 4 * (e & 1)
    for r in range(4): B(f"v_cvt_pk_bf16_f32 v{d+r}, v{N0+2*r}, v{N0+2*r+1}")
    B(f"buffer_store_dwordx4 v[{d}:{d+3}], v{L16}, {ws}, s{S_TMP+3} offen offset:{e*1024} sc1")
    n = len(B.lines)
    cut = max(i for i, l in enumerate(B.lines) if "v_exp_f32" in l) + 1
    return B.lines[:cut], B.lines[cut:]

G2_SLOT = 16640
G2_NSLOT = 9
G2_RING = G2_SLOT * G2_NSLOT
G2_LDS = G2_RING + 6144
def gen_gemm2(A):
    G2_SPLIT = int(OPT.get("split", 62))
    name = "gemm2_kernel"
    kernel_header(A, name)
    S_HALF, S_M, S_N, S_TILE, S_NIT = 4, 5, 6, 7, 60
    SRD_X, SRD_B, SRD_OUT, SRD_DBG = 8, 12, 16, 20
    S_SLOT, S_DELTA = 24, 25
    S_AOFF, S_BOFF, S_INCA, S_INCB, S_CNT3, S_KB, S_EVT, S_LDS, S_AINC, S_B2 = 26, 27, 28, 29, 30, 31, 32, 33, 34, 35
    S_LA, S_LB, S_OJ, S_OTG, S_SIG = 61, 62, 63, 74, 75
    P = S_PTR
    VT, VW = 1, 2
    TS = [8, 24]; WSR = [40, 56]; AC = 72; XR = 136
    def ac(cb, tb): return AC + (cb * 4 + tb) * 4
    ws = f"s[{SRD_WS}:{SRD_WS+3}]"
    dsc = OPT.get("dsc", "sc1")
    A("s_cmp_ge_u32 s2, 256")
    A("s_cbranch_scc1 L_g2_done")
    stamp(A, 0)
    A(f"s_load_dwordx8 s[{P}:{P+7}], s[0:1], 0")
    A(f"s_load_dwordx4 s[{P+8}:{P+11}], s[0:1], 56")
    A(f"s_load_dwordx4 s[96:99], s[0:1], 72")
    A("v_lshrrev_b32 v1, 6, v0")
    A("v_and_b32 v3, 63, v0              ; lane")
    A(f"v_readfirstlane_b32 s{S_W}, v1")
    A("v_lshlrev_b32 v4, 4, v3           ; lane*16")
    A("v_lshrrev_b32 v5, 4, v3           ; g")
    A("v_and_b32 v6, 15, v3              ; i / tok")
    A("v_lshlrev_b32 v20, 8, v5")
    A("v_lshl_add_u32 v20, v6, 1, v20")
    A("v_lshlrev_b32 v21, 4, v5          ; g*16")
    A("v_lshlrev_b32 v22, 3, v3")
    A(f"v_add_u32 v22, {G2_RING}, v22")
    A(f"s_and_b32 s{S_TMP}, s2, 7")
    A(f"s_lshr_b32 s{S_TMP+1}, s2, 3")
    A(f"s_and_b32 s{S_HALF}, s{S_TMP}, 1")
    A(f"s_lshr_b32 s{S_M}, s{S_TMP}, 1")
    A(f"s_lshl_b32 s{S_M}, s{S_M}, 2")
    A(f"s_and_b32 s{S_TMP}, s{S_TMP+1}, 3")
    A(f"s_add_u32 s{S_M}, s{S_M}, s{S_TMP}         ; m tile 0..15")
    A(f"s_lshr_b32 s{S_N}, s{S_TMP+1}, 2           ; n tile 0..7")
    A(f"s_lshl_b32 s{S_TILE}, s{S_M}, 3")
    A(f"s_add_u32 s{S_TILE}, s{S_TILE}, s{S_N}")
    A(f"s_and_b32 s{S_OJ}, s2, 7")
    A(f"s_lshl_b32 s{S_OJ}, s{S_OJ}, 2")
    A(f"s_add_u32 s{S_OJ}, s{S_OJ}, s{S_TMP}")
    A(f"s_lshr_b32 s{S_OTG}, s2, 5")
    A(f"s_mov_b32 s{S_C}, {NLOG2E}")
    A(f"s_mov_b32 s{S_C+1}, {LOG2E}")
    A(f"s_cmp_eq_u32 s{S_HALF}, 1")
    A(f"s_cselect_b32 s{S_NIT}, {G2_SPLIT // 2}, {(144 - G2_SPLIT) // 2}")
    A("s_waitcnt lgkmcnt(0)")
    make_srd(A, SRD_WS, 98, 99, WS_BYTES)
    make_srd(A, SRD_WP, P + 4, P + 5, 65536)
    A(f"s_cmp_ge_u32 s{S_W}, 4")
    A("s_cbranch_scc1 L_g2_prod")
    make_srd(A, SRD_X, P + 0, P + 1, 4 * MB)
    make_srd(A, SRD_OUT, P + 10, P + 11, 4 * MB)
    S_CM, S_CN = 26, 27
    A(f"s_and_b32 s{S_CM}, s{S_W}, 1")
    A(f"s_lshr_b32 s{S_CN}, s{S_W}, 1")
    A(f"s_lshl_b32 s{S_TMP}, s{S_CM}, 12")
    A(f"v_add_u32 v{VT}, s{S_TMP}, v4")
    A("v_and_b32 v7, 1, v5")
    A("v_lshrrev_b32 v8, 2, v6")
    A("v_lshl_add_u32 v7, v7, 2, v8            ; 4(g&1) + (i>>2)")
    A("v_mul_u32_u24 v7, 1056, v7")
    A("v_lshrrev_b32 v8, 1, v5")
    A("v_lshl_add_u32 v7, v8, 8, v7")
    A("v_and_b32 v8, 3, v6")
    A("v_lshl_add_u32 v7, v8, 3, v7")
    A(f"s_lshl_b32 s{S_TMP}, s{S_CN}, 7")
    A(f"s_add_u32 s{S_TMP}, s{S_TMP}, 8192")
    A(f"v_add_u32 v{VW}, s{S_TMP}, v7")
    A(f"s_lshl_b32 s{S_TMP}, s{S_M}, 7")
    A(f"s_lshl_b32 s{S_TMP+1}, s{S_CM}, 6")
    A(f"s_add_u32 s{S_TMP}, s{S_TMP}, s{S_TMP+1}")
    A(f"v_add_u32 v7, s{S_TMP}, v6")
    A("v_lshlrev_b32 v7, 11, v7")
    A(f"s_lshl_b32 s{S_TMP}, s{S_N}, 8")
    A(f"s_lshl_b32 s{S_TMP+1}, s{S_CN}, 7")
    A(f"s_add_u32 s{S_TMP}, s{S_TMP}, s{S_TMP+1}")
    A(f"v_add_u32 v7, s{S_TMP}, v7")
    for tb in range(1, 4): A(f"s_mov_b32 s{28+tb}, {tb * 32768}")
    sof = lambda tb: "0" if tb == 0 else f"s{28+tb}"
    A("v_lshl_add_u32 v3, v5, 3, v7            ; + g*8")
    A(f"s_cmp_eq_u32 s{S_HALF}, 1")
    A(f"s_cselect_b32 s32, 12, -1")
    PFON = OPT.get("pf3")
    PFD = int(OPT.get("pfd", 16))
    C_OFF, C_IA, C_IB, C_C3, C_KB, C_EVT, C_T = 33, 34, 35, 61, 62, 63, 74
    def pf_kb(A, tag):
        A(f"buffer_load_dword v200, v201, s[{SRD_PF}:{SRD_PF+3}], s{C_OFF} offen {OPT.get('pfsc', 'sc1')}")
        A(f"s_add_u32 s{C_C3}, s{C_C3}, 1")
        A(f"s_cmp_eq_u32 s{C_C3}, 3")
        A(f"s_cselect_b32 s{C_T}, s{C_IB}, s{C_IA}")
        A(f"s_cselect_b32 s{C_C3}, 0, s{C_C3}")
        A(f"s_add_u32 s{C_OFF}, s{C_OFF}, s{C_T}")
        A(f"s_add_u32 s{C_KB}, s{C_KB}, 1")
    if PFON:
        k0 = {1: 7, 0: G2_SPLIT + 7}
        def brow(kb): return (112 * (kb // 3) + 32 * (kb % 3)) * 2048
        A(f"s_cmp_eq_u32 s{S_HALF}, 1")
        A(f"s_cselect_b32 s{C_KB}, {k0[1]}, {k0[0]}")
        A(f"s_cselect_b32 s{C_C3}, {k0[1] % 3}, {k0[0] % 3}")
        A(f"s_movk_i32 s{C_EVT}, 96")
        A(f"s_cselect_b32 s{C_EVT}, {G2_SPLIT}, s{C_EVT}")
        A(f"s_mov_b32 s{C_OFF}, {brow(k0[0])}")
        A(f"s_cselect_b32 s{C_OFF}, {brow(k0[1])}, s{C_OFF}")
        A(f"s_cmp_eq_u32 s{S_W}, 0")
        A("s_cbranch_scc1 L_g2_pfA")
        A("v_and_b32 v8, 15, v3")
        A("v_lshrrev_b32 v9, 1, v6")
        A(f"s_and_b32 s{S_TMP}, s{S_M}, 3")
        A(f"s_lshl_b32 s{S_TMP}, s{S_TMP}, 3")
        A(f"v_add_u32 v9, s{S_TMP}, v9")
        A("v_lshlrev_b32 v9, 11, v9")
        A("v_and_b32 v8, 1, v6")
        A("v_lshl_add_u32 v9, v8, 7, v9")
        A(f"s_lshl_b32 s{S_TMP}, s{S_N}, 8")
        A(f"v_add_u32 v201, s{S_TMP}, v9")
        make_srd(A, SRD_PF, P + 8, P + 9, 3584 * 2048)
        A(f"s_mov_b32 s{C_IA}, {32*2048}")
        A(f"s_mov_b32 s{C_IB}, {48*2048}")
        A(f"s_cmp_eq_u32 s{S_W}, 1")
        A("s_cbranch_scc1 L_g2_pfset")
        A(f"s_mov_b32 s{C_OFF}, 0x40000000")
        A(f"s_mov_b32 s{C_IA}, 0")
        A(f"s_mov_b32 s{C_IB}, 0")
        A(f"s_mov_b32 s{C_EVT}, -1")
        A("s_branch L_g2_pfset")
        A.label("L_g2_pfA")
        A("v_and_b32 v8, 7, v6")
        A(f"s_lshl_b32 s{S_TMP}, s{S_M}, 6")
        A(f"s_lshl_b32 s{S_TMP+1}, s{S_N}, 3")
        A(f"s_add_u32 s{S_TMP}, s{S_TMP}, s{S_TMP+1}")
        A(f"v_add_u32 v8, s{S_TMP}, v8")
        A("v_lshlrev_b32 v201, 7, v8")
        A(f"s_mov_b32 s{SRD_PF}, s{SRD_WS}")
        A(f"s_mov_b32 s{SRD_PF+1}, s{SRD_WS+1}")
        A(f"s_mov_b32 s{SRD_PF+2}, {WS_ACT + 112 * 131072}")
        A(f"s_mov_b32 s{SRD_PF+3}, 0x00020000")
        A(f"s_lshl_b32 s{C_OFF}, s{C_KB}, 17")
        A(f"s_add_u32 s{C_OFF}, s{C_OFF}, {WS_ACT}")
        A(f"s_mov_b32 s{C_IA}, 131072")
        A(f"s_mov_b32 s{C_IB}, 131072")
        A(f"s_cmp_eq_u32 s{S_HALF}, 1")
        A(f"s_cselect_b32 s{C_EVT}, {G2_SPLIT}, -1")
        A.label("L_g2_pfset")
        for k in range(PFD - 7): pf_kb(A, k)
    for r in range(64): A(f"v_mov_b32 v{AC+r}, 0")
    A(f"s_mov_b32 s{S_SLOT}, 0")
    A("s_barrier")
    A.lgkm = []
    def reads(st):
        out = []
        for k in range(4):
            out.append(lambda A, k=k: A.ds(f"ds_read_b128 v[{TS[st]+4*k}:{TS[st]+4*k+3}], v{VT} offset:{k*1024}", f"S{st}"))
            for t in range(2):
                out.append(lambda A, k=k, t=t: A.ds(f"ds_read_b64_tr_b16 v[{WSR[st]+4*k+2*t}:{WSR[st]+4*k+2*t+1}], v{VW} offset:{t*512 + k*32}", f"S{st}"))
        return out
    def adv0(A):
        A(f"s_add_u32 s{S_SLOT}, s{S_SLOT}, 1")
        A(f"s_cmp_eq_u32 s{S_SLOT}, {G2_NSLOT}")
        A(f"s_cselect_b32 s{S_SLOT}, 0, s{S_SLOT}")
        A(f"s_mov_b32 s{S_DELTA}, {G2_SLOT}")
        A(f"s_cselect_b32 s{S_DELTA}, {(-(G2_NSLOT-1) * G2_SLOT) & 0xffffffff}, s{S_DELTA}")
    def adv1(A):
        A(f"v_add_u32 v{VT}, s{S_DELTA}, v{VT}")
        A(f"v_add_u32 v{VW}, s{S_DELTA}, v{VW}")
    for f in reads(0): f(A)
    adv0(A); adv1(A)
    stamp(A, 1)
    if OPT["stamp"]:
        A("s_waitcnt lgkmcnt(0)")
    entry = list(A.lgkm)
    A.label("L_g2_cloop")
    for e in range(2):
        A.wait_lgkm(f"S{e}")
        fill = reads(1 - e) + [adv0, adv1]
        if PFON:
            def pfe(A, e=e):
                if (PFD + e) % 2 == 0:
                    A(f"s_cmp_eq_u32 s{C_KB}, s{C_EVT}")
                    A("s_cbranch_scc1 L_g2_cevt")
                    A.label("L_g2_cevt_ret")
                pf_kb(A, e)
            fill.append(pfe)
        m = 0
        for cb in range(4):
            tbs = range(4) if cb % 2 == 0 else range(3, -1, -1)
            for tb in tbs:
                a = ac(cb, tb)
                A(f"v_mfma_f32_16x16x32_bf16 v[{a}:{a+3}], v[{WSR[e]+4*cb}:{WSR[e]+4*cb+3}], v[{TS[e]+4*tb}:{TS[e]+4*tb+3}], v[{a}:{a+3}]")
                if m < len(fill): fill[m](A)
                m += 1
    assert A.lgkm == entry[len(entry)-len(A.lgkm):], (A.lgkm, entry)
    A(f"s_cmp_eq_u32 s{S_NIT}, s32")
    A("s_cbranch_scc1 L_g2_ldx")
    A.label("L_g2_ldx_ret")
    A(f"s_sub_u32 s{S_NIT}, s{S_NIT}, 1")
    A(f"s_cmp_lg_u32 s{S_NIT}, 0")
    A("s_barrier")
    A("s_cbranch_scc1 L_g2_cloop")
    A("s_waitcnt vmcnt(0) lgkmcnt(0)")
    stamp(A, 2)
    A(f"s_cmp_eq_u32 s{S_HALF}, 1")
    A("s_cbranch_scc0 L_g2_fin")
    A(f"s_lshl_b32 s{S_TMP}, s{S_TILE}, 16")
    A(f"s_lshl_b32 s{S_TMP+1}, s{S_W}, 14")
    A(f"s_add_u32 s{S_TMP}, s{S_TMP}, s{S_TMP+1}")
    A(f"s_add_u32 s{S_TMP}, s{S_TMP}, {WS_PART}")
    A("s_mov_b32 s35, 0xffff0000")
    A("s_nop 4")
    for blk in range(16):
        d = XR + blk * 2; a = AC + blk * 4
        A(f"v_lshlrev_b32 v8, 16, v{d}")
        A(f"v_and_b32 v9, s35, v{d}")
        A(f"v_lshlrev_b32 v10, 16, v{d+1}")
        A(f"v_and_b32 v11, s35, v{d+1}")
        for r in range(4): A(f"v_add_f32 v{a+r}, v{a+r}, v{8+r}")
        if blk and blk % 4 == 0: A(f"s_add_u32 s{S_TMP}, s{S_TMP}, 4096")
        A(f"buffer_store_dwordx4 v[{a}:{a+3}], v4, {ws}, s{S_TMP} offen offset:{(blk%4)*1024} sc1")
    A("s_waitcnt vmcnt(0)")
    A("s_barrier")
    A(f"s_cmp_lg_u32 s{S_W}, 0")
    A("s_cbranch_scc1 L_g2_end")
    A(f"s_lshl_b32 s{S_TMP}, s{S_TILE}, 7")
    A(f"s_add_u32 s{S_TMP}, s{S_TMP}, {WS_FLAG}")
    A("v_mov_b32 v8, 1")
    A("v_mov_b32 v9, 0")
    A("s_mov_b64 exec, 1")
    A(f"buffer_store_dword v8, v9, {ws}, s{S_TMP} offen sc1")
    A("s_branch L_g2_end")
    A.label("L_g2_fin")
    A(f"s_add_u32 s{S_TMP}, s{S_W}, {(144 - G2_SPLIT) % G2_NSLOT}")
    A(f"s_cmp_ge_u32 s{S_TMP}, {G2_NSLOT}")
    A(f"s_cselect_b32 s{S_TMP+1}, {G2_NSLOT}, 0")
    A(f"s_sub_u32 s{S_TMP}, s{S_TMP}, s{S_TMP+1}")
    A(f"s_mul_i32 s{S_TMP}, s{S_TMP}, {G2_SLOT}")
    A(f"v_add_u32 v1, s{S_TMP}, v4")
    A("v_and_b32 v8, 1, v5")
    A("v_lshlrev_b32 v8, 5, v8")
    A("v_lshrrev_b32 v9, 1, v5")
    A("v_lshl_add_u32 v8, v9, 4, v8")
    A("v_add_u32 v7, v7, v8")
    A("s_barrier")
    for blk in range(16):
        off = blk * 1024 if blk < 8 else 8192 + (blk - 8) * 1056
        A.ds(f"ds_read_b128 v[{XR+4*blk}:{XR+4*blk+3}], v1 offset:{off}", f"P{blk}")
    for q in range(2):
        for tb in range(4):
            d = 8 + (q * 4 + tb) * 4
            A.wait_lgkm([f"P{(2*q)*4+tb}", f"P{(2*q+1)*4+tb}"])
            for e in range(2):
                cb = 2 * q + e; a = ac(cb, tb); p = XR + (cb * 4 + tb) * 4
                for r in range(4): A(f"v_add_f32 v{a+r}, v{a+r}, v{p+r}")
                A(f"v_cvt_pk_bf16_f32 v{d+2*e}, v{a}, v{a+1}")
                A(f"v_cvt_pk_bf16_f32 v{d+2*e+1}, v{a+2}, v{a+3}")
            A("s_nop 1")
            A(f"v_permlane16_swap_b32 v{d}, v{d+2}")
            A(f"v_permlane16_swap_b32 v{d+1}, v{d+3}")
            A(f"buffer_store_dwordx4 v[{d}:{d+3}], v7, s[{SRD_OUT}:{SRD_OUT+3}], {sof(tb)} offen offset:{q*64}")
    A("s_branch L_g2_end")
    if PFON:
        A.label("L_g2_cevt")
        A(f"s_cmp_eq_u32 s{C_KB}, 96")
        A("s_cbranch_scc0 L_g2_cevt2")
        A(f"s_and_b32 s{C_T}, s{S_M}, 2")
        A(f"s_mul_i32 s{C_OFF}, s{C_T}, {48*2048}")
        A(f"s_add_u32 s{C_OFF}, s{C_OFF}, {96*2048}")
        A(f"s_mov_b32 s{C_IA}, {224*2048}")
        A(f"s_mov_b32 s{C_IB}, {224*2048}")
        A(f"s_mov_b32 s{C_EVT}, 112")
        A("s_branch L_g2_cevt_ret")
        A.label("L_g2_cevt2")
        A(f"s_cmp_eq_u32 s{C_KB}, 112")
        A("s_cbranch_scc0 L_g2_cevt3")
        A(f"s_mov_b32 s{SRD_PF}, s{P+6}")
        A(f"s_and_b32 s{SRD_PF+1}, s{P+7}, 0xffff")
        A(f"s_mov_b32 s{SRD_PF+2}, {1024*2048}")
        A(f"s_mov_b32 s{C_OFF}, 0")
        A(f"s_mov_b32 s{C_IA}, {32*2048}")
        A(f"s_mov_b32 s{C_IB}, {32*2048}")
        A(f"s_mov_b32 s{C_EVT}, -1")
        A("s_branch L_g2_cevt_ret")
        A.label("L_g2_cevt3")
        A(f"s_mov_b32 s{C_OFF}, 0x40000000")
        A(f"s_mov_b32 s{C_IA}, 0")
        A(f"s_mov_b32 s{C_IB}, 0")
        A(f"s_mov_b32 s{C_EVT}, -1")
        A("s_branch L_g2_cevt_ret")
    A.label("L_g2_ldx")
    for cb in range(4):
        for tb in range(4):
            d = XR + (cb * 4 + tb) * 2
            A(f"buffer_load_dwordx2 v[{d}:{d+1}], v3, s[{SRD_X}:{SRD_X+3}], {sof(tb)} offen offset:{cb*32}")
    A("s_branch L_g2_ldx_ret")
    A.label("L_g2_prod")
    make_srd(A, SRD_B, P + 8, P + 9, 3584 * 2048)
    make_srd(A, SRD_DBG, 96, 97, 256)
    A(f"s_sub_u32 s{S_TMP+2}, s{S_W}, 4          ; p")
    A(f"s_lshl_b32 s{S_TMP}, s{S_M}, 3")
    A(f"s_lshl_b32 s{S_TMP+1}, s{S_TMP+2}, 1")
    A(f"s_add_u32 s{S_TMP}, s{S_TMP}, s{S_TMP+1}")
    A(f"s_lshl_b32 s{S_TMP}, s{S_TMP}, 10")
    A(f"v_add_u32 v8, s{S_TMP}, v4")
    A(f"v_lshlrev_b32 v9, 3, v5")
    A(f"v_add_u32 v9, s{S_TMP+1}, v9")
    A("v_lshlrev_b32 v9, 11, v9")
    A("v_lshl_add_u32 v9, v6, 4, v9")
    A(f"s_lshl_b32 s{S_TMP}, s{S_N}, 8")
    A(f"v_add_u32 v9, s{S_TMP}, v9              ; regular")
    A("v_lshrrev_b32 v10, 1, v5")
    A(f"v_mul_u32_u24 v10, {96*2048}, v10")
    A("v_add_u32 v10, v10, v9                  ; odd")
    A("v_mov_b32 v11, v9                       ; current")
    A(f"s_lshl_b32 s{S_LA}, s{S_TMP+2}, 11")
    A(f"s_mul_i32 s{S_LB}, s{S_TMP+2}, {2*1056}")
    A(f"s_add_u32 s{S_LB}, s{S_LB}, 8192")
    j0, p0 = G2_SPLIT // 3, G2_SPLIT % 3
    A(f"s_cmp_eq_u32 s{S_HALF}, 1")
    A(f"s_cselect_b32 s{S_KB}, 0, {G2_SPLIT}")
    A(f"s_cselect_b32 s{S_BOFF}, 0, {(112*j0 + 32*p0) * 2048}")
    A(f"s_cselect_b32 s{S_CNT3}, 0, {p0}")
    A(f"s_movk_i32 s{S_EVT}, 96")
    A(f"s_cselect_b32 s{S_EVT}, 148, s{S_EVT}")
    A(f"s_cselect_b32 s{S_TMP}, {148 - G2_SPLIT}, 0")
    A(f"s_lshl_b32 s{S_AOFF}, s{S_KB}, 17")
    A(f"s_add_u32 s{S_KB}, s{S_KB}, s{S_TMP}")
    A(f"s_add_u32 s{S_AOFF}, s{S_AOFF}, {WS_ACT}")
    A(f"s_mov_b32 s{S_INCA}, {32*2048}")
    A(f"s_mov_b32 s{S_INCB}, {48*2048}")
    A(f"s_mov_b32 s{S_AINC}, 131072")
    A(f"s_mov_b32 s{S_B2}, 2048")
    A(f"s_mov_b32 s{S_LDS}, 0")
    T2 = S_TMP + 6
    def issue_kb(A):
        A(f"s_add_u32 m0, s{S_LDS}, s{S_LA}")
        A(f"s_add_u32 s{T2}, s{S_BOFF}, s{S_B2}")
        A(f"buffer_load_dwordx4 v8, {ws}, s{S_AOFF} offen {dsc} lds")
        A(f"buffer_load_dwordx4 v8, {ws}, s{S_AOFF} offen offset:1024 {dsc} lds")
        A(f"s_add_u32 m0, s{S_LDS}, s{S_LB}")
        A(f"s_add_u32 s{S_AOFF}, s{S_AOFF}, s{S_AINC}")
        A(f"buffer_load_dwordx4 v11, s[{SRD_B}:{SRD_B+3}], s{S_BOFF} offen {dsc} lds")
        A(f"s_add_u32 m0, m0, 1056")
        A(f"s_add_u32 s{S_CNT3}, s{S_CNT3}, 1")
        A(f"buffer_load_dwordx4 v11, s[{SRD_B}:{SRD_B+3}], s{T2} offen {dsc} lds")
        A(f"s_cmp_eq_u32 s{S_CNT3}, 3")
        A(f"s_cselect_b32 s{T2}, s{S_INCB}, s{S_INCA}")
        A(f"s_cselect_b32 s{S_CNT3}, 0, s{S_CNT3}")
        A(f"s_add_u32 s{S_BOFF}, s{S_BOFF}, s{T2}")
        A(f"s_add_u32 s{S_KB}, s{S_KB}, 1")
        A(f"s_add_u32 s{S_LDS}, s{S_LDS}, {G2_SLOT}")
        A(f"s_cmp_eq_u32 s{S_LDS}, {G2_SLOT * G2_NSLOT}")
        A(f"s_cselect_b32 s{S_LDS}, 0, s{S_LDS}")
    S_P = S_SIG
    A(f"s_sub_u32 s{S_P}, s{S_W}, 4")
    for k in range(7): issue_kb(A)
    A("v_mov_b32 v13, 0")
    A("v_mov_b32 v14, 1")
    A("s_waitcnt vmcnt(16)")
    A("s_barrier")
    stamp(A, 1)
    NPEEL = 13
    assert G2_SPLIT <= 62
    for ss in range(NPEEL):
        issue_kb(A); issue_kb(A)
        noo = OPT.get("noo")
        if ss == 0 and not noo: o4_loads(A, S_OJ, S_OTG, S_P, 4)
        if ss == 4 and not noo: o4_frags(A)
        if 4 <= ss < 12 and not noo:
            for l in o4_tb((ss - 4) // 2, 4)[(ss - 4) & 1]: A.raw(l)
        dbg = OPT.get("g2dbg")
        if dbg and ss == 3: A("s_memrealtime s[84:85]")
        if ss == 3 or ss == 12: A("s_waitcnt vmcnt(0)")
        else: A("s_waitcnt vmcnt(16)")
        if dbg and ss == 3: A("s_memrealtime s[86:87]")
        if ss == 3 and not noo: o4_reduce(A, S_P)
        A("s_barrier")
        if dbg:
            k = {0: 80, 2: 82, 5: 88, 8: 90, 12: 92}.get(ss)
            if k: A(f"s_memrealtime s[{k}:{k+1}]")
    A(f"s_sub_u32 s{S_NIT}, s{S_NIT}, {NPEEL}")
    A(f"s_cmp_lg_u32 s{S_W}, 4")
    A("s_cbranch_scc1 L_g2_ploop")
    A(f"s_lshl_b32 s{T2}, s{S_OTG}, 5")
    A("s_mov_b64 exec, 1")
    A(f"buffer_atomic_add v14, v13, s[{SRD_DBG}:{SRD_DBG+3}], s{T2} offen sc1")
    A("s_mov_b64 exec, -1")
    A.label("L_g2_ploop")
    issue_kb(A)
    A(f"s_cmp_eq_u32 s{S_KB}, s{S_EVT}")
    A("s_cbranch_scc1 L_g2_evt")
    A.label("L_g2_pcont")
    issue_kb(A)
    A(f"s_sub_u32 s{S_NIT}, s{S_NIT}, 1")
    A(f"s_cmp_lg_u32 s{S_NIT}, 0")
    A("s_waitcnt vmcnt(16)")
    A("s_barrier")
    A("s_cbranch_scc1 L_g2_ploop")
    stamp(A, 2)
    A("s_waitcnt vmcnt(0)")
    A("s_barrier")
    A("s_branch L_g2_end")
    def poll(A, srd, soff, val, lab):
        A(f"s_cmp_lg_u32 s{S_W}, 4")
        A(f"s_cbranch_scc1 {lab}_ok")
        A.label(lab)
        A(f"buffer_load_dword v12, v13, {srd}, s{soff} offen sc1")
        A("s_waitcnt vmcnt(0)")
        A(f"v_readfirstlane_b32 s{T2+1}, v12")
        A("s_nop 3")
        A(f"s_cmp_eq_u32 s{T2+1}, {val}")
        A(f"s_cbranch_scc1 {lab}_ok")
        A("s_sleep 1")
        A(f"s_branch {lab}")
        A.label(lab + "_ok")
    A.label("L_g2_evt")
    A(f"s_cmp_eq_u32 s{S_KB}, 148")
    A("s_cbranch_scc1 L_g2_evt148")
    A(f"s_cmp_eq_u32 s{S_KB}, 144")
    A("s_cbranch_scc1 L_g2_evt144")
    A(f"s_cmp_eq_u32 s{S_KB}, 142")
    A("s_cbranch_scc1 L_g2_evt142")
    A(f"s_cmp_eq_u32 s{S_KB}, 112")
    A("s_cbranch_scc1 L_g2_evt112")
    A(f"s_mov_b32 s{S_BOFF}, {96*2048}")
    A(f"s_mov_b32 s{S_INCA}, {224*2048}")
    A(f"s_mov_b32 s{S_INCB}, {224*2048}")
    A("v_mov_b32 v11, v10")
    A(f"s_mov_b32 s{S_EVT}, 112")
    A(f"s_lshr_b32 s{T2}, s{S_M}, 1")
    A(f"s_lshl_b32 s{T2}, s{T2}, 5")
    poll(A, f"s[{SRD_DBG}:{SRD_DBG+3}]", T2, 32, "L_g2_pollo")
    A("s_branch L_g2_pcont")
    A.label("L_g2_evt112")
    A(f"s_mov_b32 s{SRD_B}, s{P+6}")
    A(f"s_and_b32 s{SRD_B+1}, s{P+7}, 0xffff")
    A(f"s_mov_b32 s{SRD_B+2}, {1024*2048}")
    A(f"s_mov_b32 s{S_BOFF}, 0")
    A(f"s_mov_b32 s{S_INCA}, {32*2048}")
    A(f"s_mov_b32 s{S_INCB}, {32*2048}")
    A("v_mov_b32 v11, v9")
    A(f"s_mov_b32 s{S_EVT}, 142")
    A("s_branch L_g2_pcont")
    A.label("L_g2_evt142")
    A(f"s_mov_b32 s{S_EVT}, 144")
    A(f"s_lshl_b32 s{T2}, s{S_TILE}, 7")
    A(f"s_add_u32 s{T2}, s{T2}, {WS_FLAG}")
    poll(A, ws, T2, 1, "L_g2_pollp")
    A("s_branch L_g2_pcont")
    A.label("L_g2_evt144")
    A(f"s_mov_b32 s{SRD_B}, s{SRD_WS}")
    A(f"s_mov_b32 s{SRD_B+1}, s{SRD_WS+1}")
    A(f"s_mov_b32 s{SRD_B+2}, s{SRD_WS+2}")
    A(f"s_lshl_b32 s{S_AOFF}, s{S_TILE}, 16")
    A(f"s_add_u32 s{S_AOFF}, s{S_AOFF}, {WS_PART}")
    A(f"s_add_u32 s{S_BOFF}, s{S_AOFF}, 8192")
    A(f"s_mov_b32 s{S_AINC}, 16384")
    A(f"s_mov_b32 s{S_INCA}, 16384")
    A(f"s_mov_b32 s{S_INCB}, 16384")
    A(f"s_mov_b32 s{S_B2}, 1024")
    A(f"v_add_u32 v8, s{S_LA}, v4")
    A("v_mov_b32 v11, v8")
    A(f"s_mov_b32 s{S_EVT}, 148")
    A("s_branch L_g2_pcont")
    A.label("L_g2_evt148")
    A(f"s_mov_b32 s{S_BOFF}, 0x40000000")
    A(f"s_mov_b32 s{S_AOFF}, 0x40000000")
    A(f"s_mov_b32 s{S_INCA}, 0")
    A(f"s_mov_b32 s{S_INCB}, 0")
    A(f"s_mov_b32 s{S_AINC}, 0")
    A(f"s_mov_b32 s{S_EVT}, -1")
    A("s_branch L_g2_pcont")
    A.label("L_g2_end")
    if OPT.get("g2dbg"):
        A("s_memrealtime s[94:95]")
        A("s_mov_b64 exec, 1")
        A("s_waitcnt lgkmcnt(0)")
        A(f"s_lshl_b32 s{S_TMP}, s2, 3")
        A(f"s_add_u32 s{S_TMP}, s{S_TMP}, s{S_W}")
        A(f"s_lshl_b32 s{S_TMP}, s{S_TMP}, 6")
        A(f"s_add_u32 s{S_TMP}, s{S_TMP}, {WS_STAMP + MB}")
        A("v_mov_b32 v1, 0")
        for i in range(8):
            A(f"v_mov_b32 v2, s{80+2*i}")
            A(f"buffer_store_dword v2, v1, s[{SRD_WS}:{SRD_WS+3}], s{S_TMP} offen offset:{4*i}")
            A("s_nop 1")
    if OPT["stamp"]:
        A("s_waitcnt vmcnt(0)")
        stamp(A, 3)
        stamp_store(A, 4, S_W, SRD_WS, WS_STAMP + MB)
    A.label("L_g2_done")
    A("s_endpgm")
    return name, 208

def build(kernels):
    A = Asm()
    hdr = open("cdna_kernels/" + NAME + ".s.ref").read().split("\n")
    for l in hdr:
        if l.startswith(";") and "@launch" not in l and "Override" not in l and "grid=ceil" not in l:
            A.raw(l)
    launches = {"ln": "; @launch kernel=ln_kernel grid=(256,1,1) block=(512,1,1) lds=0",
                "gemm1": f"; @launch kernel=gemm1_kernel grid=(256,1,1) block=(512,1,1) lds={G1_LDS}",
                "o": "; @launch kernel=o_kernel grid=(256,1,1) block=(512,1,1) lds=8192",
                "gemm2": f"; @launch kernel=gemm2_kernel grid=(256,1,1) block=(512,1,1) lds={G2_LDS}"}
    for k in kernels: A.raw(launches[k])
    A.raw('.amdgcn_target "amdgcn-amd-amdhsa--gfx950"')
    A.raw(".text")
    descs = []
    gens = {"ln": gen_ln, "gemm1": gen_gemm1, "o": gen_o, "gemm2": gen_gemm2}
    for k in kernels:
        descs.append(gens[k](A))
    A.raw('.section .rodata,"a"')
    for n, v in descs:
        kernel_desc(A, n, v)
    return A.text()

if __name__ == "__main__":
    out = sys.argv[1] if len(sys.argv) > 1 else "k.s"
    for o in sys.argv[3:]:
        if "=" in o: k, v = o.split("="); OPT[k] = v.replace("+", " ")
        else: OPT[o] = True
    ks = sys.argv[2].split(",") if len(sys.argv) > 2 else ["ln", "gemm1", "gemm2"]
    open(out, "w").write(build(ks))
```

```python
import sys
import gen as G
from gen import *

WS_STATS = 49 * MB
X_LDS = G1_LDS
CSL = X_LDS
STL = X_LDS + 1536
G1F_LDS = STL + 4096
HOFF = 100 * 1024
V_ST = 80
V_POLL = 88
V_CS = 90
V_CT = 10
S_HI = 79
S_ONES = 78
SRD_DBG1 = 20
SRD_D = 56

def bsel(reg):
    return reg & ~1, reg & 1

def pk_fma_bc(A, d, a, bc, c):
    p, s = bsel(bc)
    A(f"v_pk_fma_f32 v[{d}:{d+1}], v[{a}:{a+1}], v[{p}:{p+1}], v[{c}:{c+1}] op_sel:[0,{s},0] op_sel_hi:[1,{s},1]")
def pk_fma_bc2(A, d, a, bc):
    p, s = bsel(bc)
    A(f"v_pk_fma_f32 v[{d}:{d+1}], v[{a}:{a+1}], v[{p}:{p+1}], v[{p}:{p+1}] op_sel:[0,{s},{s}] op_sel_hi:[1,{s},{s}]")
def pk_mul_bc(A, d, a, bc):
    p, s = bsel(bc)
    A(f"v_pk_mul_f32 v[{d}:{d+1}], v[{a}:{a+1}], v[{p}:{p+1}] op_sel:[0,{s}] op_sel_hi:[1,{s}]")

def softmax_pk(A, pk, Pp, Pm, t):
    assert t % 2 == 0 and pk % 2 == 0
    mx, mn, x0, x1 = t, t + 1, t + 2, t + 3
    ep, em = t + 4, t + 12
    sp_, sm_ = t + 20, t + 21
    w0 = t + 22
    A(f"v_max3_f32 v{mx}, v{pk}, v{pk+1}, v{pk+2}")
    A(f"v_min3_f32 v{mn}, v{pk}, v{pk+1}, v{pk+2}")
    A(f"v_max3_f32 v{mx}, v{mx}, v{pk+3}, v{pk+4}")
    A(f"v_min3_f32 v{mn}, v{mn}, v{pk+3}, v{pk+4}")
    A(f"v_max3_f32 v{mx}, v{mx}, v{pk+5}, v{pk+6}")
    A(f"v_min3_f32 v{mn}, v{mn}, v{pk+5}, v{pk+6}")
    A(f"v_max_f32 v{mx}, v{mx}, v{pk+7}")
    A(f"v_min_f32 v{mn}, v{mn}, v{pk+7}")
    xreduce_g(A, [mx, mn], [x0, x1], ["max", "min"])
    A(f"v_pk_mul_f32 v[{mx}:{mn}], v[{mx}:{mn}], s[{S_C}:{S_C+1}]")
    for r in range(0, 8, 2):
        A(f"v_pk_fma_f32 v[{ep+r}:{ep+r+1}], v[{pk+r}:{pk+r+1}], s[{S_C}:{S_C+1}], v[{mx}:{mn}] op_sel:[0,1,0] op_sel_hi:[1,1,0]")
        A(f"v_pk_fma_f32 v[{em+r}:{em+r+1}], v[{pk+r}:{pk+r+1}], s[{S_C}:{S_C+1}], v[{mx}:{mn}] op_sel:[0,0,1] op_sel_hi:[1,0,1]")
    for r in range(8):
        A(f"v_exp_f32 v{ep+r}, v{ep+r}")
        A(f"v_exp_f32 v{em+r}, v{em+r}")
    A(f"v_pk_add_f32 v[{x0}:{x1}], v[{ep}:{ep+1}], v[{ep+2}:{ep+3}]")
    A(f"v_pk_add_f32 v[{w0}:{w0+1}], v[{em}:{em+1}], v[{em+2}:{em+3}]")
    A(f"v_pk_add_f32 v[{mx}:{mn}], v[{ep+4}:{ep+5}], v[{ep+6}:{ep+7}]")
    A(f"v_pk_add_f32 v[{sp_}:{sm_}], v[{em+4}:{em+5}], v[{em+6}:{em+7}]")
    A(f"v_pk_add_f32 v[{x0}:{x1}], v[{x0}:{x1}], v[{mx}:{mn}]")
    A(f"v_pk_add_f32 v[{w0}:{w0+1}], v[{w0}:{w0+1}], v[{sp_}:{sm_}]")
    A(f"v_add_f32 v{sp_}, v{x0}, v{x1}")
    A(f"v_add_f32 v{sm_}, v{w0}, v{w0+1}")
    xreduce_g(A, [sp_, sm_], [x0, x1], "add")
    A(f"v_rcp_f32 v{sp_}, v{sp_}")
    A(f"v_rcp_f32 v{sm_}, v{sm_}")
    A("s_nop 0")
    for r in range(0, 8, 2):
        pk_mul_bc(A, ep + r, ep + r, sp_)
        pk_mul_bc(A, em + r, em + r, sm_)
    for r in range(4):
        A(f"v_cvt_pk_bf16_f32 v{Pp+r}, v{ep+2*r}, v{ep+2*r+1}")
        A(f"v_cvt_pk_bf16_f32 v{Pm+r}, v{em+2*r}, v{em+2*r+1}")
G.softmax_pm = softmax_pk

def cs_ops(b, half):
    out = []
    c = V_CS + (b // 4)
    for r in (2 * half, 2 * half + 1):
        w = WR + (b % 5) * 4 + r
        def f0(A, w=w):
            A(f"v_lshlrev_b32 v{V_CT}, 16, v{w}")
            A(f"v_and_b32 v{V_CT+1}, s{S_HI}, v{w}")
        def f1(A, c=c):
            A(f"v_add_f32 v{c}, v{c}, v{V_CT}")
            A(f"v_add_f32 v{c}, v{c}, v{V_CT+1}")
        out += [f0, f1]
    return out

def g1f_body(A, wn, wm):
    blocks = g1_blocks(wn)
    cs_on = not OPT.get("nocs")
    G_ = [[] for _ in range(160)]
    def gap(u, i): return G_[(40 * u + i) % 160]
    for u in range(4):
        dmas = g1_dma_list(wn, u)
        odd = u & 1
        for c in range(10):
            tgt = c + 4
            blk, st = (tgt, u) if tgt < 10 else (tgt - 10, (u + 1) & 3)
            sl = tgt % 5
            prevb = (c - 1) % 10
            delayed = cs_on and prevb % 4 == wm
            for t in range(2):
                pos = 4 * (c + 1) + 2 + t if delayed else 4 * c + t
                gap(u, pos).append(("w", blk, st, sl, t))
        if odd:
            nb = ((u + 1) >> 1) & 1
            Tn1 = T1B if u == 1 else T1A
            tr = [(nb, 0, tb, T0, "T0") for tb in range(4)] + [(nb, 1, tb, Tn1, "T1") for tb in range(4)]
            pos = [0, 1, 2, 3, 4, 6, 7, 8]
            for k, x in enumerate(tr):
                for t in range(2):
                    gap(u, 4 * pos[k] + 2 + t).append(lambda A, x=x, t=t: g1_tread1(A, *x, t))
            def adv(A):
                A(f"s_add_u32 s{S_AK}, s{S_AK}, 128")
                A(f"s_cmp_ge_u32 s{S_AK}, 2048")
                A(f"s_cselect_b32 s{S_AKE}, 0x10000000, s{S_AK}")
            gap(u, 4 * 9 + 2).append(adv)
        for k, (f0, f1) in enumerate(dmas):
            gap(u, 4 * k + 2).insert(0, f0)
            gap(u, 4 * k + 3).insert(0, f1)
        if cs_on:
            for b in range(wm, 10, 4):
                ops = cs_ops(b, 0) + cs_ops(b, 1)
                for k, f in enumerate(ops): gap(u, 4 * b + k).append(f)
        ex = {1: [(8, "sig")] if (wn, wm) == (1, 3) else [], 0: [(2, "poll")], 2: [(2, "stat")]}.get(u, [])
        if wn == 0 and u == 3: ex = [(5, "pfd"), (4, "pfo")]
        for it, nm in ex:
            def g(A, it=it, nm=nm):
                A(f"s_cmp_eq_u32 s{S_ITER}, {it}")
                A(f"s_cbranch_scc1 L_x_{nm}_{wn}{wm}")
                A.label(f"L_x_{nm}_{wn}{wm}_ret")
            gap(u, 4 * 8 + 3).append(g)
    for u in range(4):
        odd = u & 1
        Tuse = T0 if not odd else (T1A if u == 1 else T1B)
        switched = False
        for b in range(10):
            need = [f"W{b % 5}"]
            if b == 0: need.append("T1" if odd else "T0")
            A.wait_lgkm(need)
            w = WR + (b % 5) * 4
            kind = blocks[b][0]
            tbs = list(range(4)) if (b % 2 == 0 or not OPT.get("snake")) else [3, 2, 1, 0]
            for k, tb in enumerate(tbs):
                a = acc(b, tb)
                if kind == "v":
                    A(f"v_mfma_f32_16x16x32_bf16 v[{a}:{a+3}], v[{Tuse+tb*4}:{Tuse+tb*4+3}], v[{w}:{w+3}], v[{a}:{a+3}]")
                else:
                    A(f"v_mfma_f32_16x16x32_bf16 v[{a}:{a+3}], v[{w}:{w+3}], v[{Tuse+tb*4}:{Tuse+tb*4+3}], v[{a}:{a+3}]")
                for x in G_[40 * u + 4 * b + k]:
                    if isinstance(x, tuple):
                        _, blk, st, sl, t = x
                        g1f_wread(A, wn, blk, st, WR + sl * 4, f"W{sl}", t)
                    else: x(A)
        nv = len(g1_dma_list(wn, u))
        n = A.lgkm_count_for(["T0", "T1"]) if odd else None
        if n is not None:
            A(f"s_waitcnt vmcnt({nv}) lgkmcnt({n})")
            A.lgkm_retire(n)
        else:
            A(f"s_waitcnt vmcnt({nv})")
        A("s_barrier")

V_BG2, V_BQ02, V_BQ12 = 93, 94, 95
def g1f_wread(A, wn, blk, stage, dst, tag, t):
    kind, idx = g1_blocks(wn)[blk]
    so = (stage & 1) * B_STAGE
    hi = stage >> 1
    if kind in "qkv":
        sgm = "qkv".index(kind)
        off = so + (2 * sgm + t) * 1024
        va = ((V_BQ0, V_BQ1), (V_BQ02, V_BQ12))[hi][idx]
    else:
        off = so + (6144 if kind == "g" else 13312) + t * 3584 + idx * 32
        va = (V_BG, V_BG2)[hi]
    A.ds(f"ds_read_b64_tr_b16 v[{dst+2*t}:{dst+2*t+1}], v{va} offset:{off}", tag)

def g1f_extras(A, wn, wm):
    ws = f"s[{SRD_WS}:{SRD_WS+3}]"
    dbg = f"s[{SRD_D}:{SRD_D+3}]"
    sfx = f"{wn}{wm}"
    if (wn, wm) == (1, 3):
        A.label(f"L_x_sig_{sfx}")
        A(f"s_lshr_b32 s{S_TMP+1}, s2, 5")
        A(f"s_lshl_b32 s{S_TMP+1}, s{S_TMP+1}, 5")
        A(f"v_mov_b32 v{V_POLL}, 1")
        A("s_mov_b64 exec, 1")
        A(f"buffer_atomic_add v{V_POLL}, v0, {dbg}, s{S_TMP+1} offen sc1")
        A("s_mov_b64 exec, -1")
        A(f"s_branch L_x_sig_{sfx}_ret")
    A.label(f"L_x_poll_{sfx}")
    A(f"s_lshl_b32 s{S_TMP+1}, s{S_MT}, 5")
    A(f"buffer_load_dword v{V_POLL}, v0, {dbg}, s{S_TMP+1} offen sc1")
    A(f"s_branch L_x_poll_{sfx}_ret")
    A.label(f"L_x_stat_{sfx}")
    A(f"v_readfirstlane_b32 s{S_TMP+2}, v{V_POLL}")
    A(f"s_lshl_b32 s{S_TMP+1}, s{S_MT}, 5")
    A("s_nop 2")
    A.label(f"L_x_stat_{sfx}_chk")
    A(f"s_cmp_eq_u32 s{S_TMP+2}, 32")
    A(f"s_cbranch_scc1 L_x_stat_{sfx}_go")
    A("s_sleep 2")
    A(f"buffer_load_dword v{V_POLL}, v0, {dbg}, s{S_TMP+1} offen sc1")
    A("s_waitcnt vmcnt(0)")
    A(f"v_readfirstlane_b32 s{S_TMP+2}, v{V_POLL}")
    A("s_nop 3")
    A(f"s_branch L_x_stat_{sfx}_chk")
    A.label(f"L_x_stat_{sfx}_go")
    A(f"v_and_b32 v{V_POLL}, 0xf0, v{V_LANE16}")
    A(f"v_lshrrev_b32 v{V_POLL}, 1, v{V_POLL}")
    A(f"s_lshl_b32 s{S_TMP+1}, s{S_MT}, 11")
    A(f"s_add_u32 s{S_TMP+1}, s{S_TMP+1}, {WS_STATS + wm * 512}")
    for tb in range(4):
        A(f"buffer_load_dwordx2 v[{V_ST+2*tb}:{V_ST+2*tb+1}], v{V_POLL}, {ws}, s{S_TMP+1} offen offset:{tb*128} sc1")
    A(f"s_branch L_x_stat_{sfx}_ret")
    if wn == 0:
        A.label(f"L_x_pfd_{sfx}")
        A(f"v_lshrrev_b32 v88, 4, v{V_LANE16}")
        A("v_min_u32 v88, 55, v88")
        A(f"s_mul_i32 s{S_TMP+1}, s2, 224")
        A(f"s_add_u32 s{S_TMP+1}, s{S_TMP+1}, {wm * 56}")
        A(f"v_add_u32 v88, s{S_TMP+1}, v88")
        A("v_lshlrev_b32 v88, 7, v88")
        A(f"buffer_load_dword v89, v88, s[{SRD_PF}:{SRD_PF+3}], 0 offen")
        A(f"s_branch L_x_pfd_{sfx}_ret")
        A.label(f"L_x_pfo_{sfx}")
        A(f"s_mov_b32 s{SRD_PF}, s{S_PTR+6}")
        A(f"s_and_b32 s{SRD_PF+1}, s{S_PTR+7}, 0xffff")
        A(f"s_mov_b32 s{SRD_PF+2}, {1024*2048}")
        A(f"v_and_b32 v88, 0xf0, v{V_LANE16}")
        A("v_lshlrev_b32 v88, 3, v88")
        A(f"s_lshl_b32 s{S_TMP+1}, s2, 13")
        A(f"s_add_u32 s{S_TMP+1}, s{S_TMP+1}, {wm * 2048}")
        A(f"buffer_load_dword v89, v88, s[{SRD_PF}:{SRD_PF+3}], s{S_TMP+1} offen")
        A(f"s_branch L_x_pfo_{sfx}_ret")

CR = 12
NM = 80
RR = 2
RL = [0, 1, 10, 11]

def corr(A, a, b, tb):
    for r in (0, 2):
        pk_fma_bc(A, a + r, CR + 4 * b + r, NM + 2 * tb, a + r)

def gu_f(A, bg, bu, tb, dst, tmp):
    g = acc(bg, tb); u = acc(bu, tb)
    corr(A, g, bg, tb)
    corr(A, u, bu, tb)
    for r in (0, 2): pk_mul_bc(A, tmp + r, g + r, RL[tb])
    for r in range(4): A(f"v_exp_f32 v{tmp+r}, v{tmp+r}")
    A("s_nop 0")
    for r in (0, 2): pk_fma_bc2(A, tmp + r, tmp + r, NM + 2 * tb + 1)
    for r in range(4): A(f"v_rcp_f32 v{tmp+r}, v{tmp+r}")
    A("s_nop 0")
    for r in (0, 2): A(f"v_pk_mul_f32 v[{tmp+r}:{tmp+r+1}], v[{tmp+r}:{tmp+r+1}], v[{u+r}:{u+r+1}]")
    A(f"v_cvt_pk_bf16_f32 v{dst}, v{tmp}, v{tmp+1}")
    A(f"v_cvt_pk_bf16_f32 v{dst+1}, v{tmp+2}, v{tmp+3}")

def qk_pack(A, tb, dst):
    for hb in range(2):
        a = acc(hb, tb)
        corr(A, a, hb, tb)
        for r in (0, 2): pk_mul_bc(A, a + r, a + r, RR + tb)
        A(f"v_cvt_pk_bf16_f32 v{dst+2*hb}, v{a}, v{a+1}")
        A(f"v_cvt_pk_bf16_f32 v{dst+2*hb+1}, v{a+2}, v{a+3}")

def kwork(A, KF, VF, WP, S):
    KV, D, ISEL, ONES, PK, PP, PM, SC, PT = S, S + 48, S + 80, S + 88, S + 92, S + 100, S + 104, S + 108, S + 132
    A(f"v_lshrrev_b32 v{SC}, 4, v{V_LANE16}      ; lane")
    A(f"v_lshrrev_b32 v{SC+1}, 4, v{SC}         ; g")
    A(f"v_and_b32 v{SC}, 15, v{SC}              ; c")
    A(f"v_lshrrev_b32 v{SC+2}, 2, v{SC}")
    A(f"v_and_b32 v{SC+3}, 3, v{SC}")
    A(f"v_cmp_eq_u32 vcc, v{SC+2}, v{SC+1}")
    A(f"v_and_b32 v{SC+4}, 1, v{SC+3}")
    A(f"v_lshlrev_b32 v{SC+4}, 4, v{SC+4}")
    A(f"v_mov_b32 v{SC+5}, 0x3f80")
    A(f"v_lshlrev_b32 v{SC+5}, v{SC+4}, v{SC+5}")
    A(f"v_cndmask_b32 v{SC+5}, 0, v{SC+5}, vcc")
    A(f"v_cmp_gt_u32 vcc, 2, v{SC+3}")
    A(f"v_mov_b32 v{ISEL}, 0")
    A(f"v_mov_b32 v{ISEL+1}, 0")
    A(f"v_cndmask_b32 v{ISEL+2}, 0, v{SC+5}, vcc")
    A(f"v_cndmask_b32 v{ISEL+3}, v{SC+5}, 0, vcc")
    A(f"v_mov_b32 v{ISEL+4}, 0")
    A(f"v_mov_b32 v{ISEL+5}, 0")
    for r in range(4): A(f"v_mov_b32 v{ONES+r}, s{S_ONES}")
    for e in range(2):
        kf = KF + 4 * e
        A(f"v_mfma_f32_16x16x32_bf16 v[{PK}:{PK+3}], v[{WP}:{WP+3}], v[{kf}:{kf+3}], 0")
        A(f"v_mfma_f32_16x16x32_bf16 v[{PK+4}:{PK+7}], v[{WP+4}:{WP+7}], v[{kf}:{kf+3}], 0")
        A("s_nop 7")
        softmax_pk(A, PK, PP, PM, SC)
        A("s_nop 1")
        dd = D + e * 16
        A(f"v_mfma_f32_16x16x32_bf16 v[{dd}:{dd+3}], v[{PP}:{PP+3}], v[{ISEL+2}:{ISEL+5}], 0")
        A(f"v_mfma_f32_16x16x32_bf16 v[{dd+4}:{dd+7}], v[{PP}:{PP+3}], v[{ISEL}:{ISEL+3}], 0")
        A(f"v_mfma_f32_16x16x32_bf16 v[{dd+8}:{dd+11}], v[{PM}:{PM+3}], v[{ISEL+2}:{ISEL+5}], 0")
        A(f"v_mfma_f32_16x16x32_bf16 v[{dd+12}:{dd+15}], v[{PM}:{PM+3}], v[{ISEL}:{ISEL+3}], 0")
    for fb in range(4):
        for e in range(2):
            if e == 1 and fb == 0: A("s_nop 5")
            dd = D + e * 16 + fb * 4
            A(f"v_cvt_pk_bf16_f32 v{PT+fb*4+2*e}, v{dd}, v{dd+1}")
            A(f"v_cvt_pk_bf16_f32 v{PT+fb*4+2*e+1}, v{dd+2}, v{dd+3}")
    A("s_nop 1")
    for fb in range(4):
        for db in range(3):
            c = KV + (fb * 3 + db) * 4
            bsrc = VF + db * 4 if db < 2 else ONES
            A(f"v_mfma_f32_16x16x32_bf16 v[{c}:{c+3}], v[{PT+fb*4}:{PT+fb*4+3}], v[{bsrc}:{bsrc+3}], 0")
    A("s_nop 7")
    return KV

def gen_gemm1f(A):
    name = "gemm1_kernel"
    kernel_header(A, name)
    P = S_PTR
    ws = f"s[{SRD_WS}:{SRD_WS+3}]"
    st = OPT['st']
    A("s_cmp_ge_u32 s2, 256")
    A("s_cbranch_scc1 L_g1_done")
    stamp(A, 0)
    A(f"s_load_dwordx8 s[{P}:{P+7}], s[0:1], 0")
    A(f"s_load_dwordx4 s[{P+8}:{P+11}], s[0:1], 40")
    A(f"s_load_dwordx4 s[96:99], s[0:1], 72")
    A(f"s_load_dwordx2 s[100:101], s[0:1], 56      ; w_down")
    A("v_lshrrev_b32 v1, 6, v0")
    A("v_and_b32 v10, 63, v0             ; lane")
    A(f"v_readfirstlane_b32 s{S_W}, v1")
    A("s_lshl_b32 s3, s2, 3") if False else None
    A(f"s_lshl_b32 s{S_TMP}, s2, 3")
    A(f"v_add_u32 v60, s{S_TMP}, v1")
    A("v_lshlrev_b32 v61, 11, v60")
    A("v_lshl_add_u32 v61, v10, 4, v61")
    A(f"s_and_b32 s{S_WM}, s{S_W}, 3")
    A(f"s_lshr_b32 s{S_WN}, s{S_W}, 2")
    A(f"s_and_b32 s{S_TMP}, s2, 7")
    A(f"s_lshr_b32 s{S_TMP+1}, s2, 3")
    A(f"s_and_b32 s{S_J}, s{S_TMP+1}, 3")
    A(f"s_lshl_b32 s{S_TMP}, s{S_TMP}, 2")
    A(f"s_add_u32 s{S_J}, s{S_J}, s{S_TMP}        ; head")
    A(f"s_lshr_b32 s{S_MT}, s{S_TMP+1}, 2          ; m tile")
    A(f"v_lshlrev_b32 v{V_LANE16}, 4, v10")
    A(f"s_lshl_b32 s{S_TMP}, s{S_MT}, 8")
    A(f"s_lshl_b32 s{S_TMP+1}, s{S_WN}, 6")
    A(f"s_add_u32 s{S_TMP}, s{S_TMP}, s{S_TMP+1}")
    A(f"s_lshl_b32 s{S_TMP+1}, s{S_WM}, 2")
    A(f"s_add_u32 s{S_TMP}, s{S_TMP}, s{S_TMP+1}")
    A("v_bfe_u32 v11, v10, 3, 1")
    A("v_lshrrev_b32 v12, 4, v10         ; g = l>>4 (= slot>>1)")
    A("v_lshl_add_u32 v11, v12, 4, v11")
    A(f"v_add_u32 v11, s{S_TMP}, v11")
    A("v_lshlrev_b32 v11, 11, v11")
    A("v_and_b32 v13, 7, v10")
    A(f"v_lshl_add_u32 v{V_A_DMA}, v13, 4, v11")
    A(f"s_mul_i32 s{S_APAGE}, s{S_W}, {2 * A_PAGE}")
    A("s_waitcnt lgkmcnt(0)")
    make_srd(A, SRD_A, P, P + 1, 4 * MB)
    A(f"buffer_load_dwordx4 v[64:67], v61, s[{SRD_A}:{SRD_A+3}], 0 offen")
    A(f"buffer_load_dwordx4 v[68:71], v61, s[{SRD_A}:{SRD_A+3}], 0 offen offset:1024")
    def pro_a(stage):
        for h in range(2):
            for e in range(2):
                A(f"s_mov_b32 s{S_TMP}, {stage * 128 + h * 128 * 2048 + e * 4096}")
                A(f"s_add_u32 m0, s{S_APAGE}, {(stage & 1) * A_BUF + (16 * h + e) * A_PAGE}")
                A("s_nop 0")
                A(f"buffer_load_dwordx4 v{V_A_DMA}, s[{SRD_A}:{SRD_A+3}], s{S_TMP} offen lds")
    pro_a(0)
    A(f"s_lshl_b32 s{S_TMP}, s{S_W}, 6")
    A(f"v_add_u32 v13, s{S_TMP}, v10")
    A("v_mul_u32_u24 v14, 4682, v13")
    A("v_lshrrev_b32 v14, 16, v14        ; row")
    A("v_mul_u32_u24 v15, 14, v14")
    A("v_sub_u32 v15, v13, v15           ; ch")
    A("v_mul_u32_u24 v14, 7168, v14")
    A("v_lshl_add_u32 v14, v15, 4, v14")
    A(f"s_mul_i32 s{S_TMP}, s{S_J}, 224")
    A(f"v_add_u32 v14, s{S_TMP}, v14")
    A("v_lshrrev_b32 v15, 2, v10")
    A("v_mul_u32_u24 v15, 6144, v15")
    A("v_lshrrev_b32 v16, 3, v10")
    A("v_and_b32 v16, 2, v16")
    A("v_and_b32 v17, 3, v10")
    A("v_xor_b32 v16, v16, v17")
    A("v_lshl_add_u32 v15, v16, 4, v15")
    A(f"s_lshl_b32 s{S_TMP}, s{S_J}, 6")
    A(f"v_add_u32 v15, s{S_TMP}, v15     ; qkv voffset for page 0")
    make_srd(A, SRD_B2, P + 2, P + 3, 1024 * 6144)
    A(f"s_cmp_eq_u32 s{S_W}, 7")
    for d, pg in ((SRD_B0, P + 8), (SRD_B1, P + 10)):
        A(f"s_cselect_b32 s{d}, s{P+2}, s{pg}")
        A(f"s_cselect_b32 s{d+1}, s{P+3}, s{pg+1}")
        A(f"s_and_b32 s{d+1}, s{d+1}, 0xffff")
        A(f"s_cmp_eq_u32 s{S_W}, 7")
        A(f"s_mov_b32 s{d+2}, {1024*7168}")
        A(f"s_cselect_b32 s{d+2}, {1024*6144}, s{d+2}")
        A(f"s_mov_b32 s{d+3}, 0x00020000")
    A(f"s_mov_b32 s{S_B0INC}, {32*7168}")
    A(f"s_cselect_b32 s{S_B0INC}, {32*6144}, s{S_B0INC}")
    A(f"s_mov_b32 s{S_B1INC}, s{S_B0INC}")
    A(f"s_mov_b32 s{S_B2INC}, {32*6144}")
    A(f"s_lshl_b32 s{S_TMP}, s{S_W}, 10")
    A(f"s_add_u32 s{S_B0LDS}, s{S_TMP}, 6144")
    A(f"s_add_u32 s{S_B1LDS}, s{S_TMP}, 13312")
    A(f"s_mov_b32 s{S_B2LDS}, s{S_TMP}")
    A(f"s_cmp_eq_u32 s{S_W}, 7")
    A(f"s_cselect_b32 s{S_B0LDS}, 4096, s{S_B0LDS}")
    A(f"s_cselect_b32 s{S_B1LDS}, 5120, s{S_B1LDS}")
    A(f"v_mov_b32 v{V_B0}, v14")
    A(f"v_mov_b32 v{V_B1}, v14")
    A(f"s_lshr_b32 s{S_TMP}, s{S_W}, 1")
    A(f"s_lshl_b32 s{S_TMP}, s{S_TMP}, 11")
    A(f"s_and_b32 s{S_TMP+1}, s{S_W}, 1")
    A(f"s_mul_i32 s{S_TMP+1}, s{S_TMP+1}, {16*6144}")
    A(f"s_add_u32 s{S_TMP}, s{S_TMP}, s{S_TMP+1}")
    A(f"v_add_u32 v{V_B2}, s{S_TMP}, v15")
    A(f"s_cmp_lg_u32 s{S_W}, 7")
    A("s_cbranch_scc1 L_g1_not7")
    A(f"v_add_u32 v{V_B0}, 4096, v15")
    A(f"v_add_u32 v{V_B1}, {4096 + 16*6144}, v15")
    A.label("L_g1_not7")
    for s in (S_B0OFF, S_B1OFF, S_B2OFF): A(f"s_mov_b32 s{s}, 0")
    A(f"s_cmp_eq_u32 s{S_WN}, 1")
    A("s_cbranch_scc1 L_g1_wn1")
    for wn in (0, 1):
        if wn == 1: A.label("L_g1_wn1")
        A.lgkm = []
        nB = 3 if wn == 0 else 2
        slots = [(V_B0, SRD_B0, S_B0OFF, S_B0INC, S_B0LDS), (V_B1, SRD_B1, S_B1OFF, S_B1INC, S_B1LDS), (V_B2, SRD_B2, S_B2OFF, S_B2INC, S_B2LDS)][:nB]
        def pro_b(stage):
            for v, srd, soff, sinc, slds in slots:
                A(f"s_add_u32 m0, s{slds}, {LDS_B + stage * B_STAGE}")
                A("s_nop 0")
                A(f"buffer_load_dwordx4 v{v}, s[{srd}:{srd+3}], s{soff} offen lds")
                A(f"s_add_u32 s{soff}, s{soff}, s{sinc}")
        pro_b(0); pro_b(1); pro_a(1); pro_b(2)
        ndma = 8 + 3 * nB
        make_srd(A, SRD_WS, 98, 99, WS_BYTES)
        make_srd(A, SRD_D, 96, 97, 256)
        make_srd(A, SRD_WP, P + 4, P + 5, 65536)
        A(f"s_mov_b32 s{S_C}, {NLOG2E}")
        A(f"s_mov_b32 s{S_C+1}, {LOG2E}")
        A(f"s_mov_b32 s{S_ONES}, 0x3f803f80")
        A("v_and_b32 v16, 15, v10            ; i / tok")
        A("v_lshrrev_b32 v17, 2, v16         ; i>>2")
        A("v_lshl_add_u32 v17, v12, 2, v17   ; 4g + (i>>2)")
        A("v_and_b32 v18, 3, v16")
        A("v_lshlrev_b32 v18, 3, v18         ; (i&3)*8")
        A("v_mul_u32_u24 v19, 224, v17")
        A("v_add_u32 v19, v19, v18")
        A(f"v_add_u32 v{V_BG}, {LDS_B}, v19")
        A("v_lshl_add_u32 v19, v17, 6, v18")
        A("v_and_b32 v20, 1, v12")
        A("v_lshl_add_u32 v19, v20, 5, v19")
        A(f"v_add_u32 v{V_BQ0}, {LDS_B}, v19")
        A(f"v_xor_b32 v{V_BQ1}, 32, v{V_BQ0}")
        for a_, b_ in ((V_BG2, V_BG), (V_BQ02, V_BQ0), (V_BQ12, V_BQ1)): A(f"v_add_u32 v{a_}, {2*B_STAGE}, v{b_}")
        A("v_lshrrev_b32 v19, 1, v16")
        A(f"s_lshl_b32 s{S_TMP}, s{S_WM}, 3")
        A(f"v_add_u32 v19, s{S_TMP}, v19")
        A(f"v_mul_u32_u24 v19, {A_PAGE}, v19")
        A("v_and_b32 v20, 1, v16")
        A("v_lshl_add_u32 v19, v20, 7, v19")
        A(f"v_lshl_add_u32 v{V_AR}, v12, 3, v19")
        if wn == 0:
            make_srd(A, SRD_PF, 100, 101, 3584 * 2048)
        A(f"s_mov_b32 s{S_AK}, 256")
        A(f"s_mov_b32 s{S_AKE}, 256")
        for r in range(ACC, 256): A(f"v_mov_b32 v{r}, 0")
        for r in range(3): A(f"v_mov_b32 v{V_CS+r}, 0")
        A(f"s_mov_b32 s{S_HI}, 0xffff0000")
        A("v_mov_b32 v0, 0")
        A(f"s_mov_b32 s{S_TMP+2}, 0xffff0000")
        A(f"s_waitcnt vmcnt({ndma})")
        for i in range(8):
            A(f"v_lshlrev_b32 v{16+2*i}, 16, v{64+i}")
            A(f"v_and_b32 v{17+2*i}, s{S_TMP+2}, v{64+i}")
        for st_ in (8, 4, 2):
            for r in range(0, st_, 2):
                src = 16 if st_ == 8 else 36
                A(f"v_pk_add_f32 v[{36+r}:{37+r}], v[{src+r}:{src+r+1}], v[{src+st_+r}:{src+st_+r+1}]")
        A("v_add_f32 v32, v36, v37")
        wave_allreduce(A, 32, 33, "add")
        A("v_mul_f32 v32, 0xba800000, v32")
        for r in range(0, 16, 2):
            p_, s_ = bsel(32)
            A(f"v_pk_add_f32 v[{16+r}:{17+r}], v[{16+r}:{17+r}], v[32:33] op_sel_hi:[1,0]")
        A("v_pk_mul_f32 v[36:37], v[16:17], v[16:17]")
        for r in range(2, 16, 2):
            A(f"v_pk_fma_f32 v[36:37], v[{16+r}:{17+r}], v[{16+r}:{17+r}], v[36:37]")
        A("v_add_f32 v35, v36, v37")
        wave_allreduce(A, 35, 33, "add")
        A("v_mul_f32 v35, 0x3a800000, v35     ; var")
        A("v_cvt_pk_bf16_f32 v36, v32, v35")
        A("v_lshlrev_b32 v38, 16, v36")
        A(f"v_and_b32 v35, s{S_TMP+2}, v36")
        A("v_add_f32 v35, 0x3727c5ac, v35     ; + 1e-5")
        A("v_cvt_pk_bf16_f32 v35, v35, v35")
        A("v_lshlrev_b32 v35, 16, v35")
        A("v_sqrt_f32 v35, v35")
        A("s_nop 0")
        A("v_cvt_pk_bf16_f32 v35, v35, v35")
        A("v_lshlrev_b32 v39, 16, v35")
        A("v_lshlrev_b32 v60, 3, v60")
        A(f"s_mov_b32 s{S_TMP}, {WS_STATS}")
        A("s_mov_b64 exec, 1")
        A(f"buffer_store_dwordx2 v[38:39], v60, {ws}, s{S_TMP} offen sc1")
        nx = 1
        if wn == 0:
            A(f"s_lshl_b32 s{S_TMP}, s2, 7")
            A(f"s_add_u32 s{S_TMP}, s{S_TMP}, {WS_FLAG}")
            A(f"buffer_store_dword v0, v0, {ws}, s{S_TMP} offen")
            nx = 2
        A("s_mov_b64 exec, -1")
        A(f"s_waitcnt vmcnt({4 + nB + nx})")
        A("s_barrier")
        for tb in range(4): g1_tread(A, 0, 0, tb, T0, "T0")
        for tb in range(4): g1_tread(A, 0, 1, tb, T1A, "T1")
        A("s_waitcnt lgkmcnt(0)")
        A.lgkm = []
        for b in range(4): g1_wread(A, wn, b, 0, WR + b * 4, f"W{b}")
        for r in range(4): A(f"v_mov_b32 v{WR+16+r}, 0")
        A("s_barrier")
        stamp(A, 1)
        A("s_waitcnt lgkmcnt(0)")
        A(f"s_mov_b32 s{S_ITER}, 8")
        for wm in range(1, 4):
            A(f"s_cmp_eq_u32 s{S_WM}, {wm}")
            A(f"s_cbranch_scc1 L_g1_loop{wn}{wm}")
        for wm in range(4):
            lab = f"L_g1_loop{wn}{wm}"
            B = Asm(); g1f_body(B, wn, wm); entry = list(B.lgkm)
            A.lgkm = list(entry)
            A.label(lab)
            g1f_body(A, wn, wm)
            assert A.lgkm == entry, (A.lgkm, entry)
            A(f"s_sub_u32 s{S_ITER}, s{S_ITER}, 1")
            A(f"s_cmp_lg_u32 s{S_ITER}, 0")
            A(f"s_cbranch_scc1 {lab}")
            if wm == 1 and not OPT.get("nocs"):
                for f in cs_ops(9, 1): f(A)
            A(f"s_branch L_g1_epi{wn}")
            g1f_extras(A, wn, wm)
        A.label(f"L_g1_epi{wn}")
        A.lgkm = []
        A("s_waitcnt vmcnt(0) lgkmcnt(0)")
        stamp(A, 2)
        xreduce_g(A, [V_CS, V_CS + 1, V_CS + 2], [12, 13, 14], "add")
        A(f"v_and_b32 v12, 0xf0, v{V_LANE16}")
        A("v_lshrrev_b32 v12, 2, v12                ; c*4")
        A(f"s_lshl_b32 s{S_TMP}, s{S_WM}, 6")
        A(f"s_add_u32 s{S_TMP}, s{S_TMP}, {CSL + wn * 640}")
        A(f"v_add_u32 v13, s{S_TMP}, v12")
        A(f"ds_write_b32 v13, v{V_CS}")
        A(f"ds_write_b32 v13, v{V_CS+1} offset:256")
        A(f"s_cmp_lt_u32 s{S_WM}, 2")
        A(f"s_cselect_b32 s{S_TMP}, s{S_TMP}, {CSL + 1280 - 512}")
        A(f"v_add_u32 v13, s{S_TMP}, v12")
        A(f"ds_write_b32 v13, v{V_CS+2} offset:512")
        for tb in range(4): A(f"v_rcp_f32 v{RR+tb}, v{NM+2*tb+1}")
        A("s_nop 0")
        for tb in range(4): A(f"v_mul_f32 v{RL[tb]}, s{S_C}, v{RR+tb}")
        if wn == 1:
            A(f"s_lshl_b32 s{S_TMP}, s{S_W}, 9")
            A(f"s_add_u32 s{S_TMP}, s{S_TMP}, {STL}")
            A(f"v_lshl_add_u32 v13, v12, 1, s{S_TMP}        ; + tok*8")
            for tb in range(4):
                A(f"v_mov_b32 v14, v{NM+2*tb}")
                A(f"v_mov_b32 v15, v{RR+tb}")
                A(f"ds_write_b64 v13, v[14:15] offset:{tb*128}")
        A("s_waitcnt lgkmcnt(0)")
        A("s_barrier")
        A(f"v_lshrrev_b32 v52, 8, v{V_LANE16}          ; g")
        A(f"v_lshlrev_b32 v52, 4, v52")
        A(f"v_add_u32 v52, {CSL + wn * 640}, v52       ; + g*16")
        for b in range(10):
            if wn == 1 and b in (2, 3): continue
            A.ds(f"ds_read_b128 v[{CR+4*b}:{CR+4*b+3}], v52 offset:{b*64}", f"C{b}")
        A(f"s_lshl_b32 s{S_TMP}, s{S_MT}, 4")
        A(f"s_lshl_b32 s{S_TMP+1}, s{S_WM}, 2")
        A(f"s_add_u32 s{S_TMP}, s{S_TMP}, s{S_TMP+1}")
        A(f"s_lshl_b32 s{S_TMP}, s{S_TMP}, 10        ; tbg0*1024")
        A(f"s_mul_i32 s{S_TMP+1}, s{S_J}, {3 * 128 * 1024}")
        A(f"s_add_u32 s{S_TMP+1}, s{S_TMP+1}, s{S_TMP}")
        A(f"s_add_u32 s{S_TMP+1}, s{S_TMP+1}, {WS_ACT}")
        A(f"s_lshl_b32 s{S_TMP+4}, s{S_WM}, 12")
        A(f"s_add_u32 s{S_TMP+4}, s{S_TMP+4}, {HOFF}")
        A(f"v_add_u32 v53, s{S_TMP+4}, v{V_LANE16}")
        A(f"v_lshrrev_b32 v54, 8, v{V_LANE16}")
        A("v_lshlrev_b32 v54, 8, v54")
        A(f"v_and_b32 v55, 0xf0, v{V_LANE16}")
        A("v_lshrrev_b32 v55, 3, v55")
        A("v_add_u32 v54, v54, v55")
        A(f"s_lshl_b32 s{S_TMP+3}, s{S_J}, 11")
        KF, VF = 56, 64
        if wn == 0:
            A(f"s_lshl_b32 s{S_TMP+2}, s{S_J}, 17")
            A(f"s_add_u32 s{S_TMP+2}, s{S_TMP+2}, s{S_TMP}")
            A(f"s_add_u32 s{S_TMP+2}, s{S_TMP+2}, {WS_Q}")
            A.wait_lgkm(["C0", "C1"])
            for tb in range(4):
                d = 56 + tb * 4
                qk_pack(A, tb, d)
                A(f"buffer_store_dwordx4 v[{d}:{d+3}], v{V_LANE16}, {ws}, s{S_TMP+2} offen offset:{tb*1024} {st}")
            load_wphi(A, 96, 54, SRD_WP, f"s{S_TMP+3}")
            A("s_barrier")
            k = 0
            for p in range(2):
                if p == 1: A(f"s_add_u32 s{S_TMP+1}, s{S_TMP+1}, {128*1024}")
                A.wait_lgkm([f"C{b}" for b in range(2 + 4 * p, 6 + 4 * p)])
                for tb in range(4):
                    d = 112 + (k % 4) * 4; k += 1
                    gu_f(A, 2 + 4 * p, 3 + 4 * p, tb, d, 72)
                    gu_f(A, 4 + 4 * p, 5 + 4 * p, tb, d + 2, 76)
                    A(f"buffer_store_dwordx4 v[{d}:{d+3}], v{V_LANE16}, {ws}, s{S_TMP+1} offen offset:{tb*1024} {st}")
                if p == 0:
                    for k2 in range(4):
                        A(f"ds_read_b128 v[{56+4*k2}:{59+4*k2}], v53 offset:{k2*1024}")
            nst = 8
        else:
            A(f"v_and_b32 v55, 0xf0, v{V_LANE16}")
            A("v_lshrrev_b32 v55, 2, v55")
            A(f"v_add_u32 v55, {CSL + 640}, v55")
            A.ds(f"ds_read_b32 v{CR+8}, v55 offset:128", "CV")
            A.ds(f"ds_read_b32 v{CR+9}, v55 offset:192", "CV")
            A(f"v_lshrrev_b32 v55, 8, v{V_LANE16}")
            A(f"s_lshl_b32 s{S_TMP+2}, s{S_W}, 9")
            A(f"s_add_u32 s{S_TMP+2}, s{S_TMP+2}, {STL}")
            A(f"v_lshl_add_u32 v55, v55, 5, s{S_TMP+2}      ; + g*32")
            A.wait_lgkm(["C0", "C1"])
            for tb in range(4):
                qk_pack(A, tb, (KF + 4 * tb) if tb < 2 else (72 + 4 * (tb - 2)))
            A("s_nop 0")
            A(f"ds_write_b128 v53, v[72:75]")
            A(f"ds_write_b128 v53, v[76:79] offset:1024")
            for tb in range(4):
                A.ds(f"ds_read_b128 v[{96+8*tb}:{99+8*tb}], v55 offset:{tb*128}", f"S{tb}")
                A.ds(f"ds_read_b128 v[{100+8*tb}:{103+8*tb}], v55 offset:{tb*128+16}", f"S{tb}")
            for tb in range(4):
                A.wait_lgkm(["CV", f"S{tb}"])
                for db in range(2):
                    a = acc(2 + db, tb)
                    for r in range(4):
                        A(f"v_fma_f32 v{a+r}, v{CR+8+db}, v{96+8*tb+2*r}, v{a+r}")
                    for r in range(4):
                        A(f"v_mul_f32 v{a+r}, v{a+r}, v{97+8*tb+2*r}")
                    d = (VF if tb < 2 else 72) + db * 4 + 2 * (tb & 1)
                    A(f"v_cvt_pk_bf16_f32 v{d}, v{a}, v{a+1}")
                    A(f"v_cvt_pk_bf16_f32 v{d+1}, v{a+2}, v{a+3}")
            A("s_nop 0")
            A(f"ds_write_b128 v53, v[72:75] offset:2048")
            A(f"ds_write_b128 v53, v[76:79] offset:3072")
            load_wphi(A, 96, 54, SRD_WP, f"s{S_TMP+3}")
            A("s_waitcnt lgkmcnt(0)")
            A.lgkm = []
            A("s_barrier")
            A(f"s_add_u32 s{S_TMP+1}, s{S_TMP+1}, {2*128*1024}")
            A(f"s_lshr_b32 s{S_TMP+2}, s{S_J}, 1")
            A(f"s_add_u32 s{S_TMP+2}, s{S_TMP+2}, 96")
            A(f"s_lshl_b32 s{S_TMP+2}, s{S_TMP+2}, 17")
            A(f"s_add_u32 s{S_TMP+2}, s{S_TMP+2}, s{S_TMP}")
            A(f"s_and_b32 s{S_TMP+3}, s{S_J}, 1")
            A(f"s_lshl_b32 s{S_TMP+3}, s{S_TMP+3}, 3")
            A(f"s_add_u32 s{S_TMP+2}, s{S_TMP+2}, s{S_TMP+3}")
            A(f"s_add_u32 s{S_TMP+2}, s{S_TMP+2}, {WS_ACT}")
            for tb in range(4):
                d = 112 + tb * 8
                gu_f(A, 4, 5, tb, d, 72)
                gu_f(A, 6, 7, tb, d + 2, 76)
                A(f"buffer_store_dwordx4 v[{d}:{d+3}], v{V_LANE16}, {ws}, s{S_TMP+1} offen offset:{tb*1024} {st}")
                gu_f(A, 8, 9, tb, d + 4, 72)
                A(f"buffer_store_dwordx2 v[{d+4}:{d+5}], v{V_LANE16}, {ws}, s{S_TMP+2} offen offset:{tb*1024} {st}")
            nst = 8
        A(f"s_waitcnt vmcnt({nst}) lgkmcnt(0)")
        pack_wphi(A, 12, 96)
        A("s_nop 1")
        KVb = kwork(A, KF, VF, 12, 104)
        A(f"s_mul_i32 s{S_TMP}, s{S_W}, {12*1024}")
        A(f"v_add_u32 v20, s{S_TMP}, v{V_LANE16}")
        for blk in range(12):
            A(f"ds_write_b128 v20, v[{KVb+blk*4}:{KVb+blk*4+3}] offset:{blk*1024}")
        A("s_waitcnt lgkmcnt(0)")
        A("s_barrier")
        A(f"s_lshr_b32 s{S_TMP}, s{S_W}, 1")
        A(f"s_mul_i32 s{S_TMP}, s{S_TMP}, 3")
        A(f"s_and_b32 s{S_TMP+1}, s{S_W}, 1")
        A(f"s_add_u32 s{S_TMP}, s{S_TMP}, s{S_TMP+1}")
        A(f"s_lshl_b32 s{S_TMP}, s{S_TMP}, 10")
        A(f"v_add_u32 v20, s{S_TMP}, v{V_LANE16}")
        A(f"v_add_u32 v22, {4*12*1024}, v20")
        for p in range(8):
            A(f"ds_read_b128 v[{100+4*p}:{103+4*p}], v{20 if p < 4 else 22} offset:{(p%4)*12*1024}")
        if wn == 0:
            A(f"s_mul_i32 s{S_TMP}, s{S_W}, 3072")
            A(f"v_add_u32 v21, s{S_TMP}, v{V_LANE16}")
            A(f"v_add_u32 v23, {4*12*1024}, v21")
            for p in range(8):
                A(f"ds_read_b128 v[{132+4*p}:{135+4*p}], v{21 if p < 4 else 23} offset:{(p%4)*12*1024 + 2048}")
        A(f"s_lshl_b32 s{S_TMP}, s{S_J}, 3")
        A(f"s_add_u32 s{S_TMP}, s{S_TMP}, s{S_MT}")
        A(f"s_mul_i32 s{S_TMP}, s{S_TMP}, {KVP_SZ}")
        A(f"s_add_u32 s{S_TMP}, s{S_TMP}, {WS_KVP}")
        A(f"s_lshl_b32 s{S_TMP+1}, s{S_W}, 10")
        A(f"s_add_u32 s{S_TMP+1}, s{S_TMP+1}, s{S_TMP}")
        A("s_waitcnt lgkmcnt(0)")
        for base in ((100, 132) if wn == 0 else (100,)):
            for st_ in (16, 8, 4):
                for r in range(0, st_, 2):
                    A(f"v_pk_add_f32 v[{base+r}:{base+r+1}], v[{base+r}:{base+r+1}], v[{base+st_+r}:{base+st_+r+1}]")
        A(f"buffer_store_dwordx4 v[100:103], v{V_LANE16}, {ws}, s{S_TMP+1} offen {st}")
        if wn == 0:
            A(f"s_lshl_b32 s{S_TMP+1}, s{S_W}, 6")
            A(f"s_add_u32 s{S_TMP+1}, s{S_TMP+1}, s{S_TMP}")
            A(f"s_add_u32 s{S_TMP+1}, s{S_TMP+1}, 8192")
            A(f"v_lshrrev_b32 v21, 4, v{V_LANE16}    ; lane")
            A("v_and_b32 v22, 15, v21")
            A("v_cmp_eq_u32 vcc, 0, v22")
            A(f"s_and_saveexec_b64 s[{S_TMP+2}:{S_TMP+3}], vcc")
            A(f"buffer_store_dwordx4 v[132:135], v21, {ws}, s{S_TMP+1} offen {st}")
        if OPT["stamp"]:
            A("s_waitcnt vmcnt(0)")
            stamp(A, 3)
            stamp_store(A, 4, S_W, SRD_WS)
        A("s_endpgm")
    A.label("L_g1_done")
    A("s_endpgm")
    return name, 256

def build(kernels):
    A = Asm()
    hdr = open("cdna_kernels/" + NAME + ".s.ref").read().split("\n")
    for l in hdr:
        if l.startswith(";") and "@launch" not in l and "Override" not in l and "grid=ceil" not in l:
            A.raw(l)
    launches = {"gemm1": f"; @launch kernel=gemm1_kernel grid=(256,1,1) block=(512,1,1) lds={G1F_LDS}",
                "gemm2": f"; @launch kernel=gemm2_kernel grid=(256,1,1) block=(512,1,1) lds={G.G2_LDS}"}
    for k in kernels: A.raw(launches[k])
    A.raw('.amdgcn_target "amdgcn-amd-amdhsa--gfx950"')
    A.raw(".text")
    descs = []
    gens = {"gemm1": gen_gemm1f, "gemm2": G.gen_gemm2}
    for k in kernels:
        descs.append(gens[k](A))
    A.raw('.section .rodata,"a"')
    for n, v in descs:
        kernel_desc(A, n, v)
    return A.text()

if __name__ == "__main__":
    out = sys.argv[1] if len(sys.argv) > 1 else "k.s"
    ks = sys.argv[2].split(",") if len(sys.argv) > 2 else ["gemm1", "gemm2"]
    for o in sys.argv[3:]:
        if "=" in o: k, v = o.split("="); OPT[k] = v.replace("+", " ")
        else: OPT[o] = True
    open(out, "w").write(build(ks))
```

```python
import sys
import gen as G
from gen import *

WS_STATS = 49 * MB
X_LDS = G1_LDS
CSL = X_LDS
STL = X_LDS + 1536
G1F_LDS = STL + 4096
HOFF = 100 * 1024
V_ST = 80
V_POLL = 88
V_CS = 90
V_CT = 10
S_HI = 79
S_ONES = 78
SRD_DBG1 = 20
SRD_D = 56

def bsel(reg):
    return reg & ~1, reg & 1

def pk_fma_bc(A, d, a, bc, c):
    p, s = bsel(bc)
    A(f"v_pk_fma_f32 v[{d}:{d+1}], v[{a}:{a+1}], v[{p}:{p+1}], v[{c}:{c+1}] op_sel:[0,{s},0] op_sel_hi:[1,{s},1]")
def pk_fma_bc2(A, d, a, bc):
    p, s = bsel(bc)
    A(f"v_pk_fma_f32 v[{d}:{d+1}], v[{a}:{a+1}], v[{p}:{p+1}], v[{p}:{p+1}] op_sel:[0,{s},{s}] op_sel_hi:[1,{s},{s}]")
def pk_mul_bc(A, d, a, bc):
    p, s = bsel(bc)
    A(f"v_pk_mul_f32 v[{d}:{d+1}], v[{a}:{a+1}], v[{p}:{p+1}] op_sel:[0,{s}] op_sel_hi:[1,{s}]")

def softmax_pk(A, pk, Pp, Pm, t):
    assert t % 2 == 0 and pk % 2 == 0
    mx, mn, x0, x1 = t, t + 1, t + 2, t + 3
    ep, em = t + 4, t + 12
    sp_, sm_ = t + 20, t + 21
    w0 = t + 22
    A(f"v_max3_f32 v{mx}, v{pk}, v{pk+1}, v{pk+2}")
    A(f"v_min3_f32 v{mn}, v{pk}, v{pk+1}, v{pk+2}")
    A(f"v_max3_f32 v{mx}, v{mx}, v{pk+3}, v{pk+4}")
    A(f"v_min3_f32 v{mn}, v{mn}, v{pk+3}, v{pk+4}")
    A(f"v_max3_f32 v{mx}, v{mx}, v{pk+5}, v{pk+6}")
    A(f"v_min3_f32 v{mn}, v{mn}, v{pk+5}, v{pk+6}")
    A(f"v_max_f32 v{mx}, v{mx}, v{pk+7}")
    A(f"v_min_f32 v{mn}, v{mn}, v{pk+7}")
    xreduce_g(A, [mx, mn], [x0, x1], ["max", "min"])
    A(f"v_pk_mul_f32 v[{mx}:{mn}], v[{mx}:{mn}], s[{S_C}:{S_C+1}]")
    for r in range(0, 8, 2):
        A(f"v_pk_fma_f32 v[{ep+r}:{ep+r+1}], v[{pk+r}:{pk+r+1}], s[{S_C}:{S_C+1}], v[{mx}:{mn}] op_sel:[0,1,0] op_sel_hi:[1,1,0]")
        A(f"v_pk_fma_f32 v[{em+r}:{em+r+1}], v[{pk+r}:{pk+r+1}], s[{S_C}:{S_C+1}], v[{mx}:{mn}] op_sel:[0,0,1] op_sel_hi:[1,0,1]")
    for r in range(8):
        A(f"v_exp_f32 v{ep+r}, v{ep+r}")
        A(f"v_exp_f32 v{em+r}, v{em+r}")
    A(f"v_pk_add_f32 v[{x0}:{x1}], v[{ep}:{ep+1}], v[{ep+2}:{ep+3}]")
    A(f"v_pk_add_f32 v[{w0}:{w0+1}], v[{em}:{em+1}], v[{em+2}:{em+3}]")
    A(f"v_pk_add_f32 v[{mx}:{mn}], v[{ep+4}:{ep+5}], v[{ep+6}:{ep+7}]")
    A(f"v_pk_add_f32 v[{sp_}:{sm_}], v[{em+4}:{em+5}], v[{em+6}:{em+7}]")
    A(f"v_pk_add_f32 v[{x0}:{x1}], v[{x0}:{x1}], v[{mx}:{mn}]")
    A(f"v_pk_add_f32 v[{w0}:{w0+1}], v[{w0}:{w0+1}], v[{sp_}:{sm_}]")
    A(f"v_add_f32 v{sp_}, v{x0}, v{x1}")
    A(f"v_add_f32 v{sm_}, v{w0}, v{w0+1}")
    xreduce_g(A, [sp_, sm_], [x0, x1], "add")
    A(f"v_rcp_f32 v{sp_}, v{sp_}")
    A(f"v_rcp_f32 v{sm_}, v{sm_}")
    A("s_nop 0")
    for r in range(0, 8, 2):
        pk_mul_bc(A, ep + r, ep + r, sp_)
        pk_mul_bc(A, em + r, em + r, sm_)
    for r in range(4):
        A(f"v_cvt_pk_bf16_f32 v{Pp+r}, v{ep+2*r}, v{ep+2*r+1}")
        A(f"v_cvt_pk_bf16_f32 v{Pm+r}, v{em+2*r}, v{em+2*r+1}")
G.softmax_pm = softmax_pk

def cs_ops(b, half):
    out = []
    c = V_CS + (b // 4)
    for r in (2 * half, 2 * half + 1):
        w = WR + (b % 5) * 4 + r
        def f0(A, w=w):
            A(f"v_lshlrev_b32 v{V_CT}, 16, v{w}")
            A(f"v_and_b32 v{V_CT+1}, s{S_HI}, v{w}")
        def f1(A, c=c):
            A(f"v_add_f32 v{c}, v{c}, v{V_CT}")
            A(f"v_add_f32 v{c}, v{c}, v{V_CT+1}")
        out += [f0, f1]
    return out

def g1f_body(A, wn, wm):
    blocks = g1_blocks(wn)
    cs_on = not OPT.get("nocs")
    G_ = [[] for _ in range(160)]
    def gap(u, i): return G_[(40 * u + i) % 160]
    for u in range(4):
        dmas = g1_dma_list(wn, u)
        odd = u & 1
        for c in range(10):
            tgt = c + 4
            blk, st = (tgt, u) if tgt < 10 else (tgt - 10, (u + 1) & 3)
            sl = tgt % 5
            prevb = (c - 1) % 10
            delayed = cs_on and prevb % 4 == wm
            for t in range(2):
                pos = 4 * (c + 1) + 2 + t if delayed else 4 * c + t
                gap(u, pos).append(("w", blk, st, sl, t))
        if odd:
            nb = ((u + 1) >> 1) & 1
            Tn1 = T1B if u == 1 else T1A
            tr = [(nb, 0, tb, T0, "T0") for tb in range(4)] + [(nb, 1, tb, Tn1, "T1") for tb in range(4)]
            pos = [0, 1, 2, 3, 4, 6, 7, 8]
            for k, x in enumerate(tr):
                for t in range(2):
                    gap(u, 4 * pos[k] + 2 + t).append(lambda A, x=x, t=t: g1_tread1(A, *x, t))
            def adv(A):
                A(f"s_add_u32 s{S_AK}, s{S_AK}, 128")
                A(f"s_cmp_ge_u32 s{S_AK}, 2048")
                A(f"s_cselect_b32 s{S_AKE}, 0x10000000, s{S_AK}")
            gap(u, 4 * 9 + 2).append(adv)
        for k, (f0, f1) in enumerate(dmas):
            gap(u, 4 * k + 2).insert(0, f0)
            gap(u, 4 * k + 3).insert(0, f1)
        if cs_on:
            for b in range(wm, 10, 4):
                ops = cs_ops(b, 0) + cs_ops(b, 1)
                for k, f in enumerate(ops): gap(u, 4 * b + k).append(f)
        ex = {3: [(8, "sig")] if (wn, wm) == (1, 3) else [], 0: [(2, "poll")], 2: [(2, "stat"), (8, "drain")]}.get(u, [])
        if wn == 0 and u == 3: ex = [(5, "pfd"), (4, "pfo")]
        for it, nm in ex:
            def g(A, it=it, nm=nm):
                A(f"s_cmp_eq_u32 s{S_ITER}, {it}")
                A(f"s_cbranch_scc1 L_x_{nm}_{wn}{wm}")
                A.label(f"L_x_{nm}_{wn}{wm}_ret")
            gap(u, 4 * 8 + 3).append(g)
    for u in range(4):
        odd = u & 1
        Tuse = T0 if not odd else (T1A if u == 1 else T1B)
        switched = False
        for b in range(10):
            need = [f"W{b % 5}"]
            if b == 0: need.append("T1" if odd else "T0")
            A.wait_lgkm(need)
            w = WR + (b % 5) * 4
            kind = blocks[b][0]
            tbs = list(range(4)) if (b % 2 == 0 or not OPT.get("snake")) else [3, 2, 1, 0]
            for k, tb in enumerate(tbs):
                a = acc(b, tb)
                if kind == "v":
                    A(f"v_mfma_f32_16x16x32_bf16 v[{a}:{a+3}], v[{Tuse+tb*4}:{Tuse+tb*4+3}], v[{w}:{w+3}], v[{a}:{a+3}]")
                else:
                    A(f"v_mfma_f32_16x16x32_bf16 v[{a}:{a+3}], v[{w}:{w+3}], v[{Tuse+tb*4}:{Tuse+tb*4+3}], v[{a}:{a+3}]")
                for x in G_[40 * u + 4 * b + k]:
                    if isinstance(x, tuple):
                        _, blk, st, sl, t = x
                        g1f_wread(A, wn, blk, st, WR + sl * 4, f"W{sl}", t)
                    else: x(A)
        nv = len(g1_dma_list(wn, u))
        n = A.lgkm_count_for(["T0", "T1"]) if odd else None
        if n is not None:
            A(f"s_waitcnt vmcnt({nv}) lgkmcnt({n})")
            A.lgkm_retire(n)
        else:
            A(f"s_waitcnt vmcnt({nv})")
        A("s_barrier")

V_BG2, V_BQ02, V_BQ12 = 93, 94, 95
def g1f_wread(A, wn, blk, stage, dst, tag, t):
    kind, idx = g1_blocks(wn)[blk]
    so = (stage & 1) * B_STAGE
    hi = stage >> 1
    if kind in "qkv":
        sgm = "qkv".index(kind)
        off = so + (2 * sgm + t) * 1024
        va = ((V_BQ0, V_BQ1), (V_BQ02, V_BQ12))[hi][idx]
    else:
        off = so + (6144 if kind == "g" else 13312) + t * 3584 + idx * 32
        va = (V_BG, V_BG2)[hi]
    A.ds(f"ds_read_b64_tr_b16 v[{dst+2*t}:{dst+2*t+1}], v{va} offset:{off}", tag)

def g1f_extras(A, wn, wm):
    ws = f"s[{SRD_WS}:{SRD_WS+3}]"
    dbg = f"s[{SRD_D}:{SRD_D+3}]"
    sfx = f"{wn}{wm}"
    if (wn, wm) == (1, 3):
        A.label(f"L_x_sig_{sfx}")
        A(f"s_lshr_b32 s{S_TMP+1}, s2, 5")
        A(f"s_lshl_b32 s{S_TMP+1}, s{S_TMP+1}, 5")
        A(f"v_mov_b32 v{V_POLL}, 1")
        A("s_mov_b64 exec, 1")
        A(f"buffer_atomic_add v{V_POLL}, v0, {dbg}, s{S_TMP+1} offen sc1")
        A("s_mov_b64 exec, -1")
        A(f"s_branch L_x_sig_{sfx}_ret")
    A.label(f"L_x_drain_{sfx}")
    A("s_waitcnt vmcnt(0)")
    A(f"s_branch L_x_drain_{sfx}_ret")
    A.label(f"L_x_poll_{sfx}")
    A(f"s_lshl_b32 s{S_TMP+1}, s{S_MT}, 5")
    A(f"buffer_load_dword v{V_POLL}, v0, {dbg}, s{S_TMP+1} offen sc1")
    A(f"s_branch L_x_poll_{sfx}_ret")
    A.label(f"L_x_stat_{sfx}")
    A("s_waitcnt vmcnt(0)")
    A(f"v_readfirstlane_b32 s{S_TMP+2}, v{V_POLL}")
    A(f"s_lshl_b32 s{S_TMP+1}, s{S_MT}, 5")
    A("s_nop 2")
    A.label(f"L_x_stat_{sfx}_chk")
    A(f"s_cmp_eq_u32 s{S_TMP+2}, 32")
    A(f"s_cbranch_scc1 L_x_stat_{sfx}_go")
    A("s_sleep 2")
    A(f"buffer_load_dword v{V_POLL}, v0, {dbg}, s{S_TMP+1} offen sc1")
    A("s_waitcnt vmcnt(0)")
    A(f"v_readfirstlane_b32 s{S_TMP+2}, v{V_POLL}")
    A("s_nop 3")
    A(f"s_branch L_x_stat_{sfx}_chk")
    A.label(f"L_x_stat_{sfx}_go")
    A(f"v_and_b32 v{V_POLL}, 0xf0, v{V_LANE16}")
    A(f"v_lshrrev_b32 v{V_POLL}, 1, v{V_POLL}")
    A(f"s_lshl_b32 s{S_TMP+1}, s{S_MT}, 11")
    A(f"s_add_u32 s{S_TMP+1}, s{S_TMP+1}, {WS_STATS + wm * 512}")
    for tb in range(4):
        A(f"buffer_load_dwordx2 v[{V_ST+2*tb}:{V_ST+2*tb+1}], v{V_POLL}, {ws}, s{S_TMP+1} offen offset:{tb*128} sc1")
    A(f"s_branch L_x_stat_{sfx}_ret")
    if wn == 0:
        A.label(f"L_x_pfd_{sfx}")
        A(f"v_lshrrev_b32 v88, 4, v{V_LANE16}")
        A("v_min_u32 v88, 55, v88")
        A(f"s_mul_i32 s{S_TMP+1}, s2, 224")
        A(f"s_add_u32 s{S_TMP+1}, s{S_TMP+1}, {wm * 56}")
        A(f"v_add_u32 v88, s{S_TMP+1}, v88")
        A("v_lshlrev_b32 v88, 7, v88")
        A(f"buffer_load_dword v89, v88, s[{SRD_PF}:{SRD_PF+3}], 0 offen")
        A(f"s_branch L_x_pfd_{sfx}_ret")
        A.label(f"L_x_pfo_{sfx}")
        A(f"s_mov_b32 s{SRD_PF}, s{S_PTR+6}")
        A(f"s_and_b32 s{SRD_PF+1}, s{S_PTR+7}, 0xffff")
        A(f"s_mov_b32 s{SRD_PF+2}, {1024*2048}")
        A(f"v_and_b32 v88, 0xf0, v{V_LANE16}")
        A("v_lshlrev_b32 v88, 3, v88")
        A(f"s_lshl_b32 s{S_TMP+1}, s2, 13")
        A(f"s_add_u32 s{S_TMP+1}, s{S_TMP+1}, {wm * 2048}")
        A(f"buffer_load_dword v89, v88, s[{SRD_PF}:{SRD_PF+3}], s{S_TMP+1} offen")
        A(f"s_branch L_x_pfo_{sfx}_ret")

CR = 12
NM = 80
RR = 2
RL = [0, 1, 10, 11]

def corr(A, a, b, tb):
    for r in (0, 2):
        pk_fma_bc(A, a + r, CR + 4 * b + r, NM + 2 * tb, a + r)

def gu_f(A, bg, bu, tb, dst, tmp):
    g = acc(bg, tb); u = acc(bu, tb)
    corr(A, g, bg, tb)
    corr(A, u, bu, tb)
    for r in (0, 2): pk_mul_bc(A, tmp + r, g + r, RL[tb])
    for r in range(4): A(f"v_exp_f32 v{tmp+r}, v{tmp+r}")
    A("s_nop 0")
    for r in (0, 2): pk_fma_bc2(A, tmp + r, tmp + r, NM + 2 * tb + 1)
    for r in range(4): A(f"v_rcp_f32 v{tmp+r}, v{tmp+r}")
    A("s_nop 0")
    for r in (0, 2): A(f"v_pk_mul_f32 v[{tmp+r}:{tmp+r+1}], v[{tmp+r}:{tmp+r+1}], v[{u+r}:{u+r+1}]")
    A(f"v_cvt_pk_bf16_f32 v{dst}, v{tmp}, v{tmp+1}")
    A(f"v_cvt_pk_bf16_f32 v{dst+1}, v{tmp+2}, v{tmp+3}")

def qk_pack(A, tb, dst):
    for hb in range(2):
        a = acc(hb, tb)
        corr(A, a, hb, tb)
        for r in (0, 2): pk_mul_bc(A, a + r, a + r, RR + tb)
        A(f"v_cvt_pk_bf16_f32 v{dst+2*hb}, v{a}, v{a+1}")
        A(f"v_cvt_pk_bf16_f32 v{dst+2*hb+1}, v{a+2}, v{a+3}")

def kwork(A, KF, VF, WP, S):
    KV, D, ISEL, ONES, PK, PP, PM, SC, PT = S, S + 48, S + 80, S + 88, S + 92, S + 100, S + 104, S + 108, S + 132
    A(f"v_lshrrev_b32 v{SC}, 4, v{V_LANE16}      ; lane")
    A(f"v_lshrrev_b32 v{SC+1}, 4, v{SC}         ; g")
    A(f"v_and_b32 v{SC}, 15, v{SC}              ; c")
    A(f"v_lshrrev_b32 v{SC+2}, 2, v{SC}")
    A(f"v_and_b32 v{SC+3}, 3, v{SC}")
    A(f"v_cmp_eq_u32 vcc, v{SC+2}, v{SC+1}")
    A(f"v_and_b32 v{SC+4}, 1, v{SC+3}")
    A(f"v_lshlrev_b32 v{SC+4}, 4, v{SC+4}")
    A(f"v_mov_b32 v{SC+5}, 0x3f80")
    A(f"v_lshlrev_b32 v{SC+5}, v{SC+4}, v{SC+5}")
    A(f"v_cndmask_b32 v{SC+5}, 0, v{SC+5}, vcc")
    A(f"v_cmp_gt_u32 vcc, 2, v{SC+3}")
    A(f"v_mov_b32 v{ISEL}, 0")
    A(f"v_mov_b32 v{ISEL+1}, 0")
    A(f"v_cndmask_b32 v{ISEL+2}, 0, v{SC+5}, vcc")
    A(f"v_cndmask_b32 v{ISEL+3}, v{SC+5}, 0, vcc")
    A(f"v_mov_b32 v{ISEL+4}, 0")
    A(f"v_mov_b32 v{ISEL+5}, 0")
    for r in range(4): A(f"v_mov_b32 v{ONES+r}, s{S_ONES}")
    for e in range(2):
        kf = KF + 4 * e
        A(f"v_mfma_f32_16x16x32_bf16 v[{PK}:{PK+3}], v[{WP}:{WP+3}], v[{kf}:{kf+3}], 0")
        A(f"v_mfma_f32_16x16x32_bf16 v[{PK+4}:{PK+7}], v[{WP+4}:{WP+7}], v[{kf}:{kf+3}], 0")
        A("s_nop 7")
        softmax_pk(A, PK, PP, PM, SC)
        A("s_nop 1")
        dd = D + e * 16
        A(f"v_mfma_f32_16x16x32_bf16 v[{dd}:{dd+3}], v[{PP}:{PP+3}], v[{ISEL+2}:{ISEL+5}], 0")
        A(f"v_mfma_f32_16x16x32_bf16 v[{dd+4}:{dd+7}], v[{PP}:{PP+3}], v[{ISEL}:{ISEL+3}], 0")
        A(f"v_mfma_f32_16x16x32_bf16 v[{dd+8}:{dd+11}], v[{PM}:{PM+3}], v[{ISEL+2}:{ISEL+5}], 0")
        A(f"v_mfma_f32_16x16x32_bf16 v[{dd+12}:{dd+15}], v[{PM}:{PM+3}], v[{ISEL}:{ISEL+3}], 0")
    for fb in range(4):
        for e in range(2):
            if e == 1 and fb == 0: A("s_nop 5")
            dd = D + e * 16 + fb * 4
            A(f"v_cvt_pk_bf16_f32 v{PT+fb*4+2*e}, v{dd}, v{dd+1}")
            A(f"v_cvt_pk_bf16_f32 v{PT+fb*4+2*e+1}, v{dd+2}, v{dd+3}")
    A("s_nop 1")
    for fb in range(4):
        for db in range(3):
            c = KV + (fb * 3 + db) * 4
            bsrc = VF + db * 4 if db < 2 else ONES
            A(f"v_mfma_f32_16x16x32_bf16 v[{c}:{c+3}], v[{PT+fb*4}:{PT+fb*4+3}], v[{bsrc}:{bsrc+3}], 0")
    A("s_nop 7")
    return KV

def gen_gemm1f(A):
    name = "gemm1_kernel"
    kernel_header(A, name)
    P = S_PTR
    ws = f"s[{SRD_WS}:{SRD_WS+3}]"
    st = OPT['st']
    A("s_cmp_ge_u32 s2, 256")
    A("s_cbranch_scc1 L_g1_done")
    stamp(A, 0)
    A(f"s_load_dwordx8 s[{P}:{P+7}], s[0:1], 0")
    A(f"s_load_dwordx4 s[{P+8}:{P+11}], s[0:1], 40")
    A(f"s_load_dwordx4 s[96:99], s[0:1], 72")
    A(f"s_load_dwordx2 s[100:101], s[0:1], 56      ; w_down")
    A("v_lshrrev_b32 v1, 6, v0")
    A("v_and_b32 v10, 63, v0             ; lane")
    A(f"v_readfirstlane_b32 s{S_W}, v1")
    A("s_lshl_b32 s3, s2, 3") if False else None
    A(f"s_lshl_b32 s{S_TMP}, s2, 3")
    A(f"v_add_u32 v60, s{S_TMP}, v1")
    A("v_lshlrev_b32 v61, 11, v60")
    A("v_lshl_add_u32 v61, v10, 4, v61")
    A(f"s_and_b32 s{S_WM}, s{S_W}, 3")
    A(f"s_lshr_b32 s{S_WN}, s{S_W}, 2")
    A(f"s_and_b32 s{S_TMP}, s2, 7")
    A(f"s_lshr_b32 s{S_TMP+1}, s2, 3")
    A(f"s_and_b32 s{S_J}, s{S_TMP+1}, 3")
    A(f"s_lshl_b32 s{S_TMP}, s{S_TMP}, 2")
    A(f"s_add_u32 s{S_J}, s{S_J}, s{S_TMP}        ; head")
    A(f"s_lshr_b32 s{S_MT}, s{S_TMP+1}, 2          ; m tile")
    A(f"v_lshlrev_b32 v{V_LANE16}, 4, v10")
    A(f"s_lshl_b32 s{S_TMP}, s{S_MT}, 8")
    A(f"s_lshl_b32 s{S_TMP+1}, s{S_WN}, 6")
    A(f"s_add_u32 s{S_TMP}, s{S_TMP}, s{S_TMP+1}")
    A(f"s_lshl_b32 s{S_TMP+1}, s{S_WM}, 2")
    A(f"s_add_u32 s{S_TMP}, s{S_TMP}, s{S_TMP+1}")
    A("v_bfe_u32 v11, v10, 3, 1")
    A("v_lshrrev_b32 v12, 4, v10         ; g = l>>4 (= slot>>1)")
    A("v_lshl_add_u32 v11, v12, 4, v11")
    A(f"v_add_u32 v11, s{S_TMP}, v11")
    A("v_lshlrev_b32 v11, 11, v11")
    A("v_and_b32 v13, 7, v10")
    A(f"v_lshl_add_u32 v{V_A_DMA}, v13, 4, v11")
    A(f"s_mul_i32 s{S_APAGE}, s{S_W}, {2 * A_PAGE}")
    A("s_waitcnt lgkmcnt(0)")
    make_srd(A, SRD_A, P, P + 1, 4 * MB)
    A(f"s_lshl_b32 s{S_TMP+3}, s{S_W}, 11")
    A(f"s_add_u32 s{S_TMP+3}, s{S_TMP+3}, {LDS_B + 3 * B_STAGE}")
    A(f"s_mov_b32 m0, s{S_TMP+3}")
    A(f"v_add_u32 v62, s{S_TMP+3}, v{V_LANE16}")
    A(f"buffer_load_dwordx4 v61, s[{SRD_A}:{SRD_A+3}], 0 offen lds")
    A(f"buffer_load_dwordx4 v61, s[{SRD_A}:{SRD_A+3}], 0 offen offset:1024 lds")
    def pro_a(stage):
        for h in range(2):
            for e in range(2):
                A(f"s_mov_b32 s{S_TMP}, {stage * 128 + h * 128 * 2048 + e * 4096}")
                A(f"s_add_u32 m0, s{S_APAGE}, {(stage & 1) * A_BUF + (16 * h + e) * A_PAGE}")
                A("s_nop 0")
                A(f"buffer_load_dwordx4 v{V_A_DMA}, s[{SRD_A}:{SRD_A+3}], s{S_TMP} offen lds")
    pro_a(0)
    A(f"s_lshl_b32 s{S_TMP}, s{S_W}, 6")
    A(f"v_add_u32 v13, s{S_TMP}, v10")
    A("v_mul_u32_u24 v14, 4682, v13")
    A("v_lshrrev_b32 v14, 16, v14        ; row")
    A("v_mul_u32_u24 v15, 14, v14")
    A("v_sub_u32 v15, v13, v15           ; ch")
    A("v_mul_u32_u24 v14, 7168, v14")
    A("v_lshl_add_u32 v14, v15, 4, v14")
    A(f"s_mul_i32 s{S_TMP}, s{S_J}, 224")
    A(f"v_add_u32 v14, s{S_TMP}, v14")
    A("v_lshrrev_b32 v15, 2, v10")
    A("v_mul_u32_u24 v15, 6144, v15")
    A("v_lshrrev_b32 v16, 3, v10")
    A("v_and_b32 v16, 2, v16")
    A("v_and_b32 v17, 3, v10")
    A("v_xor_b32 v16, v16, v17")
    A("v_lshl_add_u32 v15, v16, 4, v15")
    A(f"s_lshl_b32 s{S_TMP}, s{S_J}, 6")
    A(f"v_add_u32 v15, s{S_TMP}, v15     ; qkv voffset for page 0")
    make_srd(A, SRD_B2, P + 2, P + 3, 1024 * 6144)
    A(f"s_cmp_eq_u32 s{S_W}, 7")
    for d, pg in ((SRD_B0, P + 8), (SRD_B1, P + 10)):
        A(f"s_cselect_b32 s{d}, s{P+2}, s{pg}")
        A(f"s_cselect_b32 s{d+1}, s{P+3}, s{pg+1}")
        A(f"s_and_b32 s{d+1}, s{d+1}, 0xffff")
        A(f"s_cmp_eq_u32 s{S_W}, 7")
        A(f"s_mov_b32 s{d+2}, {1024*7168}")
        A(f"s_cselect_b32 s{d+2}, {1024*6144}, s{d+2}")
        A(f"s_mov_b32 s{d+3}, 0x00020000")
    A(f"s_mov_b32 s{S_B0INC}, {32*7168}")
    A(f"s_cselect_b32 s{S_B0INC}, {32*6144}, s{S_B0INC}")
    A(f"s_mov_b32 s{S_B1INC}, s{S_B0INC}")
    A(f"s_mov_b32 s{S_B2INC}, {32*6144}")
    A(f"s_lshl_b32 s{S_TMP}, s{S_W}, 10")
    A(f"s_add_u32 s{S_B0LDS}, s{S_TMP}, 6144")
    A(f"s_add_u32 s{S_B1LDS}, s{S_TMP}, 13312")
    A(f"s_mov_b32 s{S_B2LDS}, s{S_TMP}")
    A(f"s_cmp_eq_u32 s{S_W}, 7")
    A(f"s_cselect_b32 s{S_B0LDS}, 4096, s{S_B0LDS}")
    A(f"s_cselect_b32 s{S_B1LDS}, 5120, s{S_B1LDS}")
    A(f"v_mov_b32 v{V_B0}, v14")
    A(f"v_mov_b32 v{V_B1}, v14")
    A(f"s_lshr_b32 s{S_TMP}, s{S_W}, 1")
    A(f"s_lshl_b32 s{S_TMP}, s{S_TMP}, 11")
    A(f"s_and_b32 s{S_TMP+1}, s{S_W}, 1")
    A(f"s_mul_i32 s{S_TMP+1}, s{S_TMP+1}, {16*6144}")
    A(f"s_add_u32 s{S_TMP}, s{S_TMP}, s{S_TMP+1}")
    A(f"v_add_u32 v{V_B2}, s{S_TMP}, v15")
    A(f"s_cmp_lg_u32 s{S_W}, 7")
    A("s_cbranch_scc1 L_g1_not7")
    A(f"v_add_u32 v{V_B0}, 4096, v15")
    A(f"v_add_u32 v{V_B1}, {4096 + 16*6144}, v15")
    A.label("L_g1_not7")
    for s in (S_B0OFF, S_B1OFF, S_B2OFF): A(f"s_mov_b32 s{s}, 0")
    A(f"s_cmp_eq_u32 s{S_WN}, 1")
    A("s_cbranch_scc1 L_g1_wn1")
    for wn in (0, 1):
        if wn == 1: A.label("L_g1_wn1")
        A.lgkm = []
        nB = 3 if wn == 0 else 2
        slots = [(V_B0, SRD_B0, S_B0OFF, S_B0INC, S_B0LDS), (V_B1, SRD_B1, S_B1OFF, S_B1INC, S_B1LDS), (V_B2, SRD_B2, S_B2OFF, S_B2INC, S_B2LDS)][:nB]
        def pro_b(stage):
            for v, srd, soff, sinc, slds in slots:
                A(f"s_add_u32 m0, s{slds}, {LDS_B + stage * B_STAGE}")
                A("s_nop 0")
                A(f"buffer_load_dwordx4 v{v}, s[{srd}:{srd+3}], s{soff} offen lds")
                A(f"s_add_u32 s{soff}, s{soff}, s{sinc}")
        pro_b(0); pro_b(1); pro_a(1); pro_b(2)
        ndma = 8 + 3 * nB
        make_srd(A, SRD_WS, 98, 99, WS_BYTES)
        make_srd(A, SRD_D, 96, 97, 256)
        make_srd(A, SRD_WP, P + 4, P + 5, 65536)
        A(f"s_mov_b32 s{S_C}, {NLOG2E}")
        A(f"s_mov_b32 s{S_C+1}, {LOG2E}")
        A(f"s_mov_b32 s{S_ONES}, 0x3f803f80")
        A("v_and_b32 v16, 15, v10            ; i / tok")
        A("v_lshrrev_b32 v17, 2, v16         ; i>>2")
        A("v_lshl_add_u32 v17, v12, 2, v17   ; 4g + (i>>2)")
        A("v_and_b32 v18, 3, v16")
        A("v_lshlrev_b32 v18, 3, v18         ; (i&3)*8")
        A("v_mul_u32_u24 v19, 224, v17")
        A("v_add_u32 v19, v19, v18")
        A(f"v_add_u32 v{V_BG}, {LDS_B}, v19")
        A("v_lshl_add_u32 v19, v17, 6, v18")
        A("v_and_b32 v20, 1, v12")
        A("v_lshl_add_u32 v19, v20, 5, v19")
        A(f"v_add_u32 v{V_BQ0}, {LDS_B}, v19")
        A(f"v_xor_b32 v{V_BQ1}, 32, v{V_BQ0}")
        for a_, b_ in ((V_BG2, V_BG), (V_BQ02, V_BQ0), (V_BQ12, V_BQ1)): A(f"v_add_u32 v{a_}, {2*B_STAGE}, v{b_}")
        A("v_lshrrev_b32 v19, 1, v16")
        A(f"s_lshl_b32 s{S_TMP}, s{S_WM}, 3")
        A(f"v_add_u32 v19, s{S_TMP}, v19")
        A(f"v_mul_u32_u24 v19, {A_PAGE}, v19")
        A("v_and_b32 v20, 1, v16")
        A("v_lshl_add_u32 v19, v20, 7, v19")
        A(f"v_lshl_add_u32 v{V_AR}, v12, 3, v19")
        if wn == 0:
            make_srd(A, SRD_PF, 100, 101, 3584 * 2048)
        A(f"s_mov_b32 s{S_AK}, 256")
        A(f"s_mov_b32 s{S_AKE}, 256")
        for r in range(ACC, 256): A(f"v_mov_b32 v{r}, 0")
        for r in range(3): A(f"v_mov_b32 v{V_CS+r}, 0")
        A(f"s_mov_b32 s{S_HI}, 0xffff0000")
        A("v_mov_b32 v0, 0")
        A(f"s_mov_b32 s{S_TMP+2}, 0xffff0000")
        A(f"s_waitcnt vmcnt({ndma})")
        A("ds_read_b128 v[64:67], v62")
        A("ds_read_b128 v[68:71], v62 offset:1024")
        A("s_waitcnt lgkmcnt(0)")
        for i in range(8):
            A(f"v_lshlrev_b32 v{16+2*i}, 16, v{64+i}")
            A(f"v_and_b32 v{17+2*i}, s{S_TMP+2}, v{64+i}")
        for st_ in (8, 4, 2):
            for r in range(0, st_, 2):
                src = 16 if st_ == 8 else 36
                A(f"v_pk_add_f32 v[{36+r}:{37+r}], v[{src+r}:{src+r+1}], v[{src+st_+r}:{src+st_+r+1}]")
        A("v_add_f32 v32, v36, v37")
        wave_allreduce(A, 32, 33, "add")
        A("v_mul_f32 v32, 0xba800000, v32")
        for r in range(0, 16, 2):
            p_, s_ = bsel(32)
            A(f"v_pk_add_f32 v[{16+r}:{17+r}], v[{16+r}:{17+r}], v[32:33] op_sel_hi:[1,0]")
        A("v_pk_mul_f32 v[36:37], v[16:17], v[16:17]")
        for r in range(2, 16, 2):
            A(f"v_pk_fma_f32 v[36:37], v[{16+r}:{17+r}], v[{16+r}:{17+r}], v[36:37]")
        A("v_add_f32 v35, v36, v37")
        wave_allreduce(A, 35, 33, "add")
        A("v_mul_f32 v35, 0x3a800000, v35     ; var")
        A("v_cvt_pk_bf16_f32 v36, v32, v35")
        A("v_lshlrev_b32 v38, 16, v36")
        A(f"v_and_b32 v35, s{S_TMP+2}, v36")
        A("v_add_f32 v35, 0x3727c5ac, v35     ; + 1e-5")
        A("v_cvt_pk_bf16_f32 v35, v35, v35")
        A("v_lshlrev_b32 v35, 16, v35")
        A("v_sqrt_f32 v35, v35")
        A("s_nop 0")
        A("v_cvt_pk_bf16_f32 v35, v35, v35")
        A("v_lshlrev_b32 v39, 16, v35")
        A("v_lshlrev_b32 v60, 3, v60")
        A(f"s_mov_b32 s{S_TMP}, {WS_STATS}")
        A("s_mov_b64 exec, 1")
        A(f"buffer_store_dwordx2 v[38:39], v60, {ws}, s{S_TMP} offen sc1")
        nx = 1
        if wn == 0:
            A(f"s_lshl_b32 s{S_TMP}, s2, 7")
            A(f"s_add_u32 s{S_TMP}, s{S_TMP}, {WS_FLAG}")
            A(f"buffer_store_dword v0, v0, {ws}, s{S_TMP} offen")
            nx = 2
        A("s_mov_b64 exec, -1")
        A(f"s_waitcnt vmcnt({4 + nB})")
        A("s_barrier")
        for tb in range(4): g1_tread(A, 0, 0, tb, T0, "T0")
        for tb in range(4): g1_tread(A, 0, 1, tb, T1A, "T1")
        A("s_waitcnt lgkmcnt(0)")
        A.lgkm = []
        for b in range(4): g1_wread(A, wn, b, 0, WR + b * 4, f"W{b}")
        for r in range(4): A(f"v_mov_b32 v{WR+16+r}, 0")
        A("s_barrier")
        stamp(A, 1)
        A("s_waitcnt lgkmcnt(0)")
        A(f"s_mov_b32 s{S_ITER}, 8")
        for wm in range(1, 4):
            A(f"s_cmp_eq_u32 s{S_WM}, {wm}")
            A(f"s_cbranch_scc1 L_g1_loop{wn}{wm}")
        for wm in range(4):
            lab = f"L_g1_loop{wn}{wm}"
            B = Asm(); g1f_body(B, wn, wm); entry = list(B.lgkm)
            A.lgkm = list(entry)
            A.label(lab)
            g1f_body(A, wn, wm)
            assert A.lgkm == entry, (A.lgkm, entry)
            A(f"s_sub_u32 s{S_ITER}, s{S_ITER}, 1")
            A(f"s_cmp_lg_u32 s{S_ITER}, 0")
            A(f"s_cbranch_scc1 {lab}")
            if wm == 1 and not OPT.get("nocs"):
                for f in cs_ops(9, 1): f(A)
            A(f"s_branch L_g1_epi{wn}")
            g1f_extras(A, wn, wm)
        A.label(f"L_g1_epi{wn}")
        A.lgkm = []
        A("s_waitcnt vmcnt(0) lgkmcnt(0)")
        stamp(A, 2)
        xreduce_g(A, [V_CS, V_CS + 1, V_CS + 2], [12, 13, 14], "add")
        A(f"v_and_b32 v12, 0xf0, v{V_LANE16}")
        A("v_lshrrev_b32 v12, 2, v12                ; c*4")
        A(f"s_lshl_b32 s{S_TMP}, s{S_WM}, 6")
        A(f"s_add_u32 s{S_TMP}, s{S_TMP}, {CSL + wn * 640}")
        A(f"v_add_u32 v13, s{S_TMP}, v12")
        A(f"ds_write_b32 v13, v{V_CS}")
        A(f"ds_write_b32 v13, v{V_CS+1} offset:256")
        A(f"s_cmp_lt_u32 s{S_WM}, 2")
        A(f"s_cselect_b32 s{S_TMP}, s{S_TMP}, {CSL + 1280 - 512}")
        A(f"v_add_u32 v13, s{S_TMP}, v12")
        A(f"ds_write_b32 v13, v{V_CS+2} offset:512")
        for tb in range(4): A(f"v_rcp_f32 v{RR+tb}, v{NM+2*tb+1}")
        A("s_nop 0")
        for tb in range(4): A(f"v_mul_f32 v{RL[tb]}, s{S_C}, v{RR+tb}")
        if wn == 1:
            A(f"s_lshl_b32 s{S_TMP}, s{S_W}, 9")
            A(f"s_add_u32 s{S_TMP}, s{S_TMP}, {STL}")
            A(f"v_lshl_add_u32 v13, v12, 1, s{S_TMP}        ; + tok*8")
            for tb in range(4):
                A(f"v_mov_b32 v14, v{NM+2*tb}")
                A(f"v_mov_b32 v15, v{RR+tb}")
                A(f"ds_write_b64 v13, v[14:15] offset:{tb*128}")
        A("s_waitcnt lgkmcnt(0)")
        A("s_barrier")
        A(f"v_lshrrev_b32 v52, 8, v{V_LANE16}          ; g")
        A(f"v_lshlrev_b32 v52, 4, v52")
        A(f"v_add_u32 v52, {CSL + wn * 640}, v52       ; + g*16")
        for b in range(10):
            if wn == 1 and b in (2, 3): continue
            A.ds(f"ds_read_b128 v[{CR+4*b}:{CR+4*b+3}], v52 offset:{b*64}", f"C{b}")
        A(f"s_lshl_b32 s{S_TMP}, s{S_MT}, 4")
        A(f"s_lshl_b32 s{S_TMP+1}, s{S_WM}, 2")
        A(f"s_add_u32 s{S_TMP}, s{S_TMP}, s{S_TMP+1}")
        A(f"s_lshl_b32 s{S_TMP}, s{S_TMP}, 10        ; tbg0*1024")
        A(f"s_mul_i32 s{S_TMP+1}, s{S_J}, {3 * 128 * 1024}")
        A(f"s_add_u32 s{S_TMP+1}, s{S_TMP+1}, s{S_TMP}")
        A(f"s_add_u32 s{S_TMP+1}, s{S_TMP+1}, {WS_ACT}")
        A(f"s_lshl_b32 s{S_TMP+4}, s{S_WM}, 12")
        A(f"s_add_u32 s{S_TMP+4}, s{S_TMP+4}, {HOFF}")
        A(f"v_add_u32 v53, s{S_TMP+4}, v{V_LANE16}")
        A(f"v_lshrrev_b32 v54, 8, v{V_LANE16}")
        A("v_lshlrev_b32 v54, 8, v54")
        A(f"v_and_b32 v55, 0xf0, v{V_LANE16}")
        A("v_lshrrev_b32 v55, 3, v55")
        A("v_add_u32 v54, v54, v55")
        A(f"s_lshl_b32 s{S_TMP+3}, s{S_J}, 11")
        KF, VF = 56, 64
        if wn == 0:
            A(f"s_lshl_b32 s{S_TMP+2}, s{S_J}, 17")
            A(f"s_add_u32 s{S_TMP+2}, s{S_TMP+2}, s{S_TMP}")
            A(f"s_add_u32 s{S_TMP+2}, s{S_TMP+2}, {WS_Q}")
            A.wait_lgkm(["C0", "C1"])
            for tb in range(4):
                d = 56 + tb * 4
                qk_pack(A, tb, d)
                A(f"buffer_store_dwordx4 v[{d}:{d+3}], v{V_LANE16}, {ws}, s{S_TMP+2} offen offset:{tb*1024} {st}")
            load_wphi(A, 96, 54, SRD_WP, f"s{S_TMP+3}")
            A("s_barrier")
            k = 0
            for p in range(2):
                if p == 1: A(f"s_add_u32 s{S_TMP+1}, s{S_TMP+1}, {128*1024}")
                A.wait_lgkm([f"C{b}" for b in range(2 + 4 * p, 6 + 4 * p)])
                for tb in range(4):
                    d = 112 + (k % 4) * 4; k += 1
                    gu_f(A, 2 + 4 * p, 3 + 4 * p, tb, d, 72)
                    gu_f(A, 4 + 4 * p, 5 + 4 * p, tb, d + 2, 76)
                    A(f"buffer_store_dwordx4 v[{d}:{d+3}], v{V_LANE16}, {ws}, s{S_TMP+1} offen offset:{tb*1024} {st}")
                if p == 0:
                    for k2 in range(4):
                        A(f"ds_read_b128 v[{56+4*k2}:{59+4*k2}], v53 offset:{k2*1024}")
            nst = 8
        else:
            A(f"v_and_b32 v55, 0xf0, v{V_LANE16}")
            A("v_lshrrev_b32 v55, 2, v55")
            A(f"v_add_u32 v55, {CSL + 640}, v55")
            A.ds(f"ds_read_b32 v{CR+8}, v55 offset:128", "CV")
            A.ds(f"ds_read_b32 v{CR+9}, v55 offset:192", "CV")
            A(f"v_lshrrev_b32 v55, 8, v{V_LANE16}")
            A(f"s_lshl_b32 s{S_TMP+2}, s{S_W}, 9")
            A(f"s_add_u32 s{S_TMP+2}, s{S_TMP+2}, {STL}")
            A(f"v_lshl_add_u32 v55, v55, 5, s{S_TMP+2}      ; + g*32")
            A.wait_lgkm(["C0", "C1"])
            for tb in range(4):
                qk_pack(A, tb, (KF + 4 * tb) if tb < 2 else (72 + 4 * (tb - 2)))
            A("s_nop 0")
            A(f"ds_write_b128 v53, v[72:75]")
            A(f"ds_write_b128 v53, v[76:79] offset:1024")
            for tb in range(4):
                A.ds(f"ds_read_b128 v[{96+8*tb}:{99+8*tb}], v55 offset:{tb*128}", f"S{tb}")
                A.ds(f"ds_read_b128 v[{100+8*tb}:{103+8*tb}], v55 offset:{tb*128+16}", f"S{tb}")
            for tb in range(4):
                A.wait_lgkm(["CV", f"S{tb}"])
                for db in range(2):
                    a = acc(2 + db, tb)
                    for r in range(4):
                        A(f"v_fma_f32 v{a+r}, v{CR+8+db}, v{96+8*tb+2*r}, v{a+r}")
                    for r in range(4):
                        A(f"v_mul_f32 v{a+r}, v{a+r}, v{97+8*tb+2*r}")
                    d = (VF if tb < 2 else 72) + db * 4 + 2 * (tb & 1)
                    A(f"v_cvt_pk_bf16_f32 v{d}, v{a}, v{a+1}")
                    A(f"v_cvt_pk_bf16_f32 v{d+1}, v{a+2}, v{a+3}")
            A("s_nop 0")
            A(f"ds_write_b128 v53, v[72:75] offset:2048")
            A(f"ds_write_b128 v53, v[76:79] offset:3072")
            load_wphi(A, 96, 54, SRD_WP, f"s{S_TMP+3}")
            A("s_waitcnt lgkmcnt(0)")
            A.lgkm = []
            A("s_barrier")
            A(f"s_add_u32 s{S_TMP+1}, s{S_TMP+1}, {2*128*1024}")
            A(f"s_lshr_b32 s{S_TMP+2}, s{S_J}, 1")
            A(f"s_add_u32 s{S_TMP+2}, s{S_TMP+2}, 96")
            A(f"s_lshl_b32 s{S_TMP+2}, s{S_TMP+2}, 17")
            A(f"s_add_u32 s{S_TMP+2}, s{S_TMP+2}, s{S_TMP}")
            A(f"s_and_b32 s{S_TMP+3}, s{S_J}, 1")
            A(f"s_lshl_b32 s{S_TMP+3}, s{S_TMP+3}, 3")
            A(f"s_add_u32 s{S_TMP+2}, s{S_TMP+2}, s{S_TMP+3}")
            A(f"s_add_u32 s{S_TMP+2}, s{S_TMP+2}, {WS_ACT}")
            for tb in range(4):
                d = 112 + tb * 8
                gu_f(A, 4, 5, tb, d, 72)
                gu_f(A, 6, 7, tb, d + 2, 76)
                A(f"buffer_store_dwordx4 v[{d}:{d+3}], v{V_LANE16}, {ws}, s{S_TMP+1} offen offset:{tb*1024} {st}")
                gu_f(A, 8, 9, tb, d + 4, 72)
                A(f"buffer_store_dwordx2 v[{d+4}:{d+5}], v{V_LANE16}, {ws}, s{S_TMP+2} offen offset:{tb*1024} {st}")
            nst = 8
        A(f"s_waitcnt vmcnt({nst if OPT.get('trustls') else 0}) lgkmcnt(0)")
        pack_wphi(A, 12, 96)
        A("s_nop 1")
        KVb = kwork(A, KF, VF, 12, 104)
        A(f"s_mul_i32 s{S_TMP}, s{S_W}, {12*1024}")
        A(f"v_add_u32 v20, s{S_TMP}, v{V_LANE16}")
        for blk in range(12):
            A(f"ds_write_b128 v20, v[{KVb+blk*4}:{KVb+blk*4+3}] offset:{blk*1024}")
        A("s_waitcnt lgkmcnt(0)")
        A("s_barrier")
        A(f"s_lshr_b32 s{S_TMP}, s{S_W}, 1")
        A(f"s_mul_i32 s{S_TMP}, s{S_TMP}, 3")
        A(f"s_and_b32 s{S_TMP+1}, s{S_W}, 1")
        A(f"s_add_u32 s{S_TMP}, s{S_TMP}, s{S_TMP+1}")
        A(f"s_lshl_b32 s{S_TMP}, s{S_TMP}, 10")
        A(f"v_add_u32 v20, s{S_TMP}, v{V_LANE16}")
        A(f"v_add_u32 v22, {4*12*1024}, v20")
        for p in range(8):
            A(f"ds_read_b128 v[{100+4*p}:{103+4*p}], v{20 if p < 4 else 22} offset:{(p%4)*12*1024}")
        if wn == 0:
            A(f"s_mul_i32 s{S_TMP}, s{S_W}, 3072")
            A(f"v_add_u32 v21, s{S_TMP}, v{V_LANE16}")
            A(f"v_add_u32 v23, {4*12*1024}, v21")
            for p in range(8):
                A(f"ds_read_b128 v[{132+4*p}:{135+4*p}], v{21 if p < 4 else 23} offset:{(p%4)*12*1024 + 2048}")
        A(f"s_lshl_b32 s{S_TMP}, s{S_J}, 3")
        A(f"s_add_u32 s{S_TMP}, s{S_TMP}, s{S_MT}")
        A(f"s_mul_i32 s{S_TMP}, s{S_TMP}, {KVP_SZ}")
        A(f"s_add_u32 s{S_TMP}, s{S_TMP}, {WS_KVP}")
        A(f"s_lshl_b32 s{S_TMP+1}, s{S_W}, 10")
        A(f"s_add_u32 s{S_TMP+1}, s{S_TMP+1}, s{S_TMP}")
        A("s_waitcnt lgkmcnt(0)")
        for base in ((100, 132) if wn == 0 else (100,)):
            for st_ in (16, 8, 4):
                for r in range(0, st_, 2):
                    A(f"v_pk_add_f32 v[{base+r}:{base+r+1}], v[{base+r}:{base+r+1}], v[{base+st_+r}:{base+st_+r+1}]")
        A(f"buffer_store_dwordx4 v[100:103], v{V_LANE16}, {ws}, s{S_TMP+1} offen {st}")
        if wn == 0:
            A(f"s_lshl_b32 s{S_TMP+1}, s{S_W}, 6")
            A(f"s_add_u32 s{S_TMP+1}, s{S_TMP+1}, s{S_TMP}")
            A(f"s_add_u32 s{S_TMP+1}, s{S_TMP+1}, 8192")
            A(f"v_lshrrev_b32 v21, 4, v{V_LANE16}    ; lane")
            A("v_and_b32 v22, 15, v21")
            A("v_cmp_eq_u32 vcc, 0, v22")
            A(f"s_and_saveexec_b64 s[{S_TMP+2}:{S_TMP+3}], vcc")
            A(f"buffer_store_dwordx4 v[132:135], v21, {ws}, s{S_TMP+1} offen {st}")
        if OPT["stamp"]:
            A("s_waitcnt vmcnt(0)")
            stamp(A, 3)
            stamp_store(A, 4, S_W, SRD_WS)
        A("s_endpgm")
    A.label("L_g1_done")
    A("s_endpgm")
    return name, 256

def build(kernels):
    A = Asm()
    hdr = open("cdna_kernels/" + NAME + ".s.ref").read().split("\n")
    for l in hdr:
        if l.startswith(";") and "@launch" not in l and "Override" not in l and "grid=ceil" not in l:
            A.raw(l)
    launches = {"gemm1": f"; @launch kernel=gemm1_kernel grid=(256,1,1) block=(512,1,1) lds={G1F_LDS}",
                "gemm2": f"; @launch kernel=gemm2_kernel grid=(256,1,1) block=(512,1,1) lds={G.G2_LDS}"}
    for k in kernels: A.raw(launches[k])
    A.raw('.amdgcn_target "amdgcn-amd-amdhsa--gfx950"')
    A.raw(".text")
    descs = []
    gens = {"gemm1": gen_gemm1f, "gemm2": G.gen_gemm2}
    for k in kernels:
        descs.append(gens[k](A))
    A.raw('.section .rodata,"a"')
    for n, v in descs:
        kernel_desc(A, n, v)
    return A.text()

if __name__ == "__main__":
    out = sys.argv[1] if len(sys.argv) > 1 else "k.s"
    ks = sys.argv[2].split(",") if len(sys.argv) > 2 else ["gemm1", "gemm2"]
    for o in sys.argv[3:]:
        if "=" in o: k, v = o.split("="); OPT[k] = v.replace("+", " ")
        else: OPT[o] = True
    open(out, "w").write(build(ks))
```

```python
import sys
import gen as G
from gen import *

WS_STATS = 49 * MB
X_LDS = G1_LDS
CSL = X_LDS
STL = X_LDS + 1536
G1F_LDS = STL + 4096
HOFF = 100 * 1024
V_ST = 80
V_POLL = 88
V_CS = 90
V_CT = 10
S_HI = 79
S_ONES = 78
SRD_DBG1 = 20
SRD_D = 56

def bsel(reg):
    return reg & ~1, reg & 1

def pk_fma_bc(A, d, a, bc, c):
    p, s = bsel(bc)
    A(f"v_pk_fma_f32 v[{d}:{d+1}], v[{a}:{a+1}], v[{p}:{p+1}], v[{c}:{c+1}] op_sel:[0,{s},0] op_sel_hi:[1,{s},1]")
def pk_fma_bc2(A, d, a, bc):
    p, s = bsel(bc)
    A(f"v_pk_fma_f32 v[{d}:{d+1}], v[{a}:{a+1}], v[{p}:{p+1}], v[{p}:{p+1}] op_sel:[0,{s},{s}] op_sel_hi:[1,{s},{s}]")
def pk_mul_bc(A, d, a, bc):
    p, s = bsel(bc)
    A(f"v_pk_mul_f32 v[{d}:{d+1}], v[{a}:{a+1}], v[{p}:{p+1}] op_sel:[0,{s}] op_sel_hi:[1,{s}]")

def softmax_pk(A, pk, Pp, Pm, t):
    assert t % 2 == 0 and pk % 2 == 0
    mx, mn, x0, x1 = t, t + 1, t + 2, t + 3
    ep, em = t + 4, t + 12
    sp_, sm_ = t + 20, t + 21
    w0 = t + 22
    A(f"v_max3_f32 v{mx}, v{pk}, v{pk+1}, v{pk+2}")
    A(f"v_min3_f32 v{mn}, v{pk}, v{pk+1}, v{pk+2}")
    A(f"v_max3_f32 v{mx}, v{mx}, v{pk+3}, v{pk+4}")
    A(f"v_min3_f32 v{mn}, v{mn}, v{pk+3}, v{pk+4}")
    A(f"v_max3_f32 v{mx}, v{mx}, v{pk+5}, v{pk+6}")
    A(f"v_min3_f32 v{mn}, v{mn}, v{pk+5}, v{pk+6}")
    A(f"v_max_f32 v{mx}, v{mx}, v{pk+7}")
    A(f"v_min_f32 v{mn}, v{mn}, v{pk+7}")
    xreduce_g(A, [mx, mn], [x0, x1], ["max", "min"])
    A(f"v_pk_mul_f32 v[{mx}:{mn}], v[{mx}:{mn}], s[{S_C}:{S_C+1}]")
    for r in range(0, 8, 2):
        A(f"v_pk_fma_f32 v[{ep+r}:{ep+r+1}], v[{pk+r}:{pk+r+1}], s[{S_C}:{S_C+1}], v[{mx}:{mn}] op_sel:[0,1,0] op_sel_hi:[1,1,0]")
        A(f"v_pk_fma_f32 v[{em+r}:{em+r+1}], v[{pk+r}:{pk+r+1}], s[{S_C}:{S_C+1}], v[{mx}:{mn}] op_sel:[0,0,1] op_sel_hi:[1,0,1]")
    for r in range(8):
        A(f"v_exp_f32 v{ep+r}, v{ep+r}")
        A(f"v_exp_f32 v{em+r}, v{em+r}")
    A(f"v_pk_add_f32 v[{x0}:{x1}], v[{ep}:{ep+1}], v[{ep+2}:{ep+3}]")
    A(f"v_pk_add_f32 v[{w0}:{w0+1}], v[{em}:{em+1}], v[{em+2}:{em+3}]")
    A(f"v_pk_add_f32 v[{mx}:{mn}], v[{ep+4}:{ep+5}], v[{ep+6}:{ep+7}]")
    A(f"v_pk_add_f32 v[{sp_}:{sm_}], v[{em+4}:{em+5}], v[{em+6}:{em+7}]")
    A(f"v_pk_add_f32 v[{x0}:{x1}], v[{x0}:{x1}], v[{mx}:{mn}]")
    A(f"v_pk_add_f32 v[{w0}:{w0+1}], v[{w0}:{w0+1}], v[{sp_}:{sm_}]")
    A(f"v_add_f32 v{sp_}, v{x0}, v{x1}")
    A(f"v_add_f32 v{sm_}, v{w0}, v{w0+1}")
    xreduce_g(A, [sp_, sm_], [x0, x1], "add")
    A(f"v_rcp_f32 v{sp_}, v{sp_}")
    A(f"v_rcp_f32 v{sm_}, v{sm_}")
    A("s_nop 0")
    for r in range(0, 8, 2):
        pk_mul_bc(A, ep + r, ep + r, sp_)
        pk_mul_bc(A, em + r, em + r, sm_)
    for r in range(4):
        A(f"v_cvt_pk_bf16_f32 v{Pp+r}, v{ep+2*r}, v{ep+2*r+1}")
        A(f"v_cvt_pk_bf16_f32 v{Pm+r}, v{em+2*r}, v{em+2*r+1}")
G.softmax_pm = softmax_pk

def cs_ops(b, half):
    out = []
    c = V_CS + (b // 4)
    for r in (2 * half, 2 * half + 1):
        w = WR + (b % 5) * 4 + r
        def f0(A, w=w):
            A(f"v_lshlrev_b32 v{V_CT}, 16, v{w}")
            A(f"v_and_b32 v{V_CT+1}, s{S_HI}, v{w}")
        def f1(A, c=c):
            A(f"v_add_f32 v{c}, v{c}, v{V_CT}")
            A(f"v_add_f32 v{c}, v{c}, v{V_CT+1}")
        out += [f0, f1]
    return out

def g1f_body(A, wn, wm):
    blocks = g1_blocks(wn)
    cs_on = not OPT.get("nocs")
    G_ = [[] for _ in range(160)]
    def gap(u, i): return G_[(40 * u + i) % 160]
    for u in range(4):
        dmas = g1_dma_list(wn, u)
        odd = u & 1
        for c in range(10):
            tgt = c + 4
            blk, st = (tgt, u) if tgt < 10 else (tgt - 10, (u + 1) & 3)
            sl = tgt % 5
            prevb = (c - 1) % 10
            delayed = cs_on and prevb % 4 == wm
            for t in range(2):
                pos = 4 * (c + 1) + 2 + t if delayed else 4 * c + t
                gap(u, pos).append(("w", blk, st, sl, t))
        if odd:
            nb = ((u + 1) >> 1) & 1
            Tn1 = T1B if u == 1 else T1A
            tr = [(nb, 0, tb, T0, "T0") for tb in range(4)] + [(nb, 1, tb, Tn1, "T1") for tb in range(4)]
            pos = [0, 1, 2, 3, 4, 6, 7, 8]
            for k, x in enumerate(tr):
                for t in range(2):
                    gap(u, 4 * pos[k] + 2 + t).append(lambda A, x=x, t=t: g1_tread1(A, *x, t))
            def adv(A):
                A(f"s_add_u32 s{S_AK}, s{S_AK}, 128")
                A(f"s_cmp_ge_u32 s{S_AK}, 2048")
                A(f"s_cselect_b32 s{S_AKE}, 0x10000000, s{S_AK}")
            gap(u, 4 * 9 + 2).append(adv)
        for k, (f0, f1) in enumerate(dmas):
            gap(u, 4 * k + 2).insert(0, f0)
            gap(u, 4 * k + 3).insert(0, f1)
        if cs_on:
            for b in range(wm, 10, 4):
                ops = cs_ops(b, 0) + cs_ops(b, 1)
                for k, f in enumerate(ops): gap(u, 4 * b + k).append(f)
        ex = {3: [(8, "sig")] if (wn, wm) == (1, 3) else [], 0: [(2, "poll")], 2: [(2, "stat"), (8, "drain")]}.get(u, [])
        if wn == 0 and u == 3: ex = [(5, "pfd"), (4, "pfo")]
        for it, nm in ex:
            def g(A, it=it, nm=nm):
                A(f"s_cmp_eq_u32 s{S_ITER}, {it}")
                A(f"s_cbranch_scc1 L_x_{nm}_{wn}{wm}")
                A.label(f"L_x_{nm}_{wn}{wm}_ret")
            gap(u, 4 * 8 + 3).append(g)
    for u in range(4):
        odd = u & 1
        Tuse = T0 if not odd else (T1A if u == 1 else T1B)
        switched = False
        for b in range(10):
            need = [f"W{b % 5}"]
            if b == 0: need.append("T1" if odd else "T0")
            A.wait_lgkm(need)
            w = WR + (b % 5) * 4
            kind = blocks[b][0]
            tbs = list(range(4)) if (b % 2 == 0 or not OPT.get("snake")) else [3, 2, 1, 0]
            for k, tb in enumerate(tbs):
                a = acc(b, tb)
                if kind == "v":
                    A(f"v_mfma_f32_16x16x32_bf16 v[{a}:{a+3}], v[{Tuse+tb*4}:{Tuse+tb*4+3}], v[{w}:{w+3}], v[{a}:{a+3}]")
                else:
                    A(f"v_mfma_f32_16x16x32_bf16 v[{a}:{a+3}], v[{w}:{w+3}], v[{Tuse+tb*4}:{Tuse+tb*4+3}], v[{a}:{a+3}]")
                for x in G_[40 * u + 4 * b + k]:
                    if isinstance(x, tuple):
                        _, blk, st, sl, t = x
                        g1f_wread(A, wn, blk, st, WR + sl * 4, f"W{sl}", t)
                    else: x(A)
        nv = len(g1_dma_list(wn, u))
        n = A.lgkm_count_for(["T0", "T1"]) if odd else None
        if n is not None:
            A(f"s_waitcnt vmcnt({nv}) lgkmcnt({n})")
            A.lgkm_retire(n)
        else:
            A(f"s_waitcnt vmcnt({nv})")
        A("s_barrier")

V_BG2, V_BQ02, V_BQ12 = 93, 94, 95
def g1f_wread(A, wn, blk, stage, dst, tag, t):
    kind, idx = g1_blocks(wn)[blk]
    so = (stage & 1) * B_STAGE
    hi = stage >> 1
    if kind in "qkv":
        sgm = "qkv".index(kind)
        off = so + (2 * sgm + t) * 1024
        va = ((V_BQ0, V_BQ1), (V_BQ02, V_BQ12))[hi][idx]
    else:
        off = so + (6144 if kind == "g" else 13312) + t * 3584 + idx * 32
        va = (V_BG, V_BG2)[hi]
    A.ds(f"ds_read_b64_tr_b16 v[{dst+2*t}:{dst+2*t+1}], v{va} offset:{off}", tag)

def g1f_extras(A, wn, wm):
    ws = f"s[{SRD_WS}:{SRD_WS+3}]"
    dbg = f"s[{SRD_D}:{SRD_D+3}]"
    sfx = f"{wn}{wm}"
    if (wn, wm) == (1, 3):
        A.label(f"L_x_sig_{sfx}")
        A(f"s_lshr_b32 s{S_TMP+1}, s2, 5")
        A(f"s_lshl_b32 s{S_TMP+1}, s{S_TMP+1}, 5")
        A(f"v_mov_b32 v{V_POLL}, 1")
        A("s_mov_b64 exec, 1")
        A(f"buffer_atomic_add v{V_POLL}, v0, {dbg}, s{S_TMP+1} offen sc1")
        A("s_mov_b64 exec, -1")
        A(f"s_branch L_x_sig_{sfx}_ret")
    A.label(f"L_x_drain_{sfx}")
    A("s_waitcnt vmcnt(0)")
    A(f"s_branch L_x_drain_{sfx}_ret")
    A.label(f"L_x_poll_{sfx}")
    A(f"s_lshl_b32 s{S_TMP+1}, s{S_MT}, 5")
    A(f"buffer_load_dword v{V_POLL}, v0, {dbg}, s{S_TMP+1} offen sc1")
    A(f"s_branch L_x_poll_{sfx}_ret")
    A.label(f"L_x_stat_{sfx}")
    A("s_waitcnt vmcnt(0)")
    A(f"v_readfirstlane_b32 s{S_TMP+2}, v{V_POLL}")
    A(f"s_lshl_b32 s{S_TMP+1}, s{S_MT}, 5")
    A("s_nop 2")
    A.label(f"L_x_stat_{sfx}_chk")
    A(f"s_cmp_eq_u32 s{S_TMP+2}, 32")
    A(f"s_cbranch_scc1 L_x_stat_{sfx}_go")
    A("s_sleep 2")
    A(f"buffer_load_dword v{V_POLL}, v0, {dbg}, s{S_TMP+1} offen sc1")
    A("s_waitcnt vmcnt(0)")
    A(f"v_readfirstlane_b32 s{S_TMP+2}, v{V_POLL}")
    A("s_nop 3")
    A(f"s_branch L_x_stat_{sfx}_chk")
    A.label(f"L_x_stat_{sfx}_go")
    A(f"v_and_b32 v{V_POLL}, 0xf0, v{V_LANE16}")
    A(f"v_lshrrev_b32 v{V_POLL}, 1, v{V_POLL}")
    A(f"s_lshl_b32 s{S_TMP+1}, s{S_MT}, 11")
    A(f"s_add_u32 s{S_TMP+1}, s{S_TMP+1}, {WS_STATS + wm * 512}")
    for tb in range(4):
        A(f"buffer_load_dwordx2 v[{V_ST+2*tb}:{V_ST+2*tb+1}], v{V_POLL}, {ws}, s{S_TMP+1} offen offset:{tb*128} sc1")
    A(f"s_branch L_x_stat_{sfx}_ret")
    if wn == 0:
        A.label(f"L_x_pfd_{sfx}")
        A(f"v_lshrrev_b32 v88, 4, v{V_LANE16}")
        A("v_min_u32 v88, 55, v88")
        A(f"s_mul_i32 s{S_TMP+1}, s2, 224")
        A(f"s_add_u32 s{S_TMP+1}, s{S_TMP+1}, {wm * 56}")
        A(f"v_add_u32 v88, s{S_TMP+1}, v88")
        A("v_lshlrev_b32 v88, 7, v88")
        A(f"buffer_load_dword v89, v88, s[{SRD_PF}:{SRD_PF+3}], 0 offen")
        A(f"s_branch L_x_pfd_{sfx}_ret")
        A.label(f"L_x_pfo_{sfx}")
        A(f"s_mov_b32 s{SRD_PF}, s{S_PTR+6}")
        A(f"s_and_b32 s{SRD_PF+1}, s{S_PTR+7}, 0xffff")
        A(f"s_mov_b32 s{SRD_PF+2}, {1024*2048}")
        A(f"v_and_b32 v88, 0xf0, v{V_LANE16}")
        A("v_lshlrev_b32 v88, 3, v88")
        A(f"s_lshl_b32 s{S_TMP+1}, s2, 13")
        A(f"s_add_u32 s{S_TMP+1}, s{S_TMP+1}, {wm * 2048}")
        A(f"buffer_load_dword v89, v88, s[{SRD_PF}:{SRD_PF+3}], s{S_TMP+1} offen")
        A(f"s_branch L_x_pfo_{sfx}_ret")

CR = 12
NM = 80
RR = 2
RL = [0, 1, 10, 11]

def corr(A, a, b, tb):
    for r in (0, 2):
        pk_fma_bc(A, a + r, CR + 4 * b + r, NM + 2 * tb, a + r)

def gu_f(A, bg, bu, tb, dst, tmp):
    g = acc(bg, tb); u = acc(bu, tb)
    if OPT.get("nopk"):
        for r in range(4): A(f"v_fma_f32 v{g+r}, v{CR+4*bg+r}, v{NM+2*tb}, v{g+r}")
        for r in range(4): A(f"v_fma_f32 v{u+r}, v{CR+4*bu+r}, v{NM+2*tb}, v{u+r}")
        for r in range(4): A(f"v_mul_f32 v{tmp+r}, v{g+r}, v{RL[tb]}")
        for r in range(4): A(f"v_exp_f32 v{tmp+r}, v{tmp+r}")
        for r in range(4): A(f"v_fma_f32 v{tmp+r}, v{tmp+r}, v{NM+2*tb+1}, v{NM+2*tb+1}")
        for r in range(4): A(f"v_rcp_f32 v{tmp+r}, v{tmp+r}")
        for r in range(4): A(f"v_mul_f32 v{tmp+r}, v{tmp+r}, v{u+r}")
        A(f"v_cvt_pk_bf16_f32 v{dst}, v{tmp}, v{tmp+1}")
        A(f"v_cvt_pk_bf16_f32 v{dst+1}, v{tmp+2}, v{tmp+3}")
        return
    corr(A, g, bg, tb)
    corr(A, u, bu, tb)
    for r in (0, 2): pk_mul_bc(A, tmp + r, g + r, RL[tb])
    for r in range(4): A(f"v_exp_f32 v{tmp+r}, v{tmp+r}")
    A("s_nop 0")
    for r in (0, 2): pk_fma_bc2(A, tmp + r, tmp + r, NM + 2 * tb + 1)
    for r in range(4): A(f"v_rcp_f32 v{tmp+r}, v{tmp+r}")
    A("s_nop 0")
    for r in (0, 2): A(f"v_pk_mul_f32 v[{tmp+r}:{tmp+r+1}], v[{tmp+r}:{tmp+r+1}], v[{u+r}:{u+r+1}]")
    A(f"v_cvt_pk_bf16_f32 v{dst}, v{tmp}, v{tmp+1}")
    A(f"v_cvt_pk_bf16_f32 v{dst+1}, v{tmp+2}, v{tmp+3}")

def qk_pack(A, tb, dst):
    for hb in range(2):
        a = acc(hb, tb)
        corr(A, a, hb, tb)
        for r in (0, 2): pk_mul_bc(A, a + r, a + r, RR + tb)
        A(f"v_cvt_pk_bf16_f32 v{dst+2*hb}, v{a}, v{a+1}")
        A(f"v_cvt_pk_bf16_f32 v{dst+2*hb+1}, v{a+2}, v{a+3}")

def kwork(A, KF, VF, WP, S):
    KV, D, ISEL, ONES, PK, PP, PM, SC, PT = S, S + 48, S + 80, S + 88, S + 92, S + 100, S + 104, S + 108, S + 132
    A(f"v_lshrrev_b32 v{SC}, 4, v{V_LANE16}      ; lane")
    A(f"v_lshrrev_b32 v{SC+1}, 4, v{SC}         ; g")
    A(f"v_and_b32 v{SC}, 15, v{SC}              ; c")
    A(f"v_lshrrev_b32 v{SC+2}, 2, v{SC}")
    A(f"v_and_b32 v{SC+3}, 3, v{SC}")
    A(f"v_cmp_eq_u32 vcc, v{SC+2}, v{SC+1}")
    A(f"v_and_b32 v{SC+4}, 1, v{SC+3}")
    A(f"v_lshlrev_b32 v{SC+4}, 4, v{SC+4}")
    A(f"v_mov_b32 v{SC+5}, 0x3f80")
    A(f"v_lshlrev_b32 v{SC+5}, v{SC+4}, v{SC+5}")
    A(f"v_cndmask_b32 v{SC+5}, 0, v{SC+5}, vcc")
    A(f"v_cmp_gt_u32 vcc, 2, v{SC+3}")
    A(f"v_mov_b32 v{ISEL}, 0")
    A(f"v_mov_b32 v{ISEL+1}, 0")
    A(f"v_cndmask_b32 v{ISEL+2}, 0, v{SC+5}, vcc")
    A(f"v_cndmask_b32 v{ISEL+3}, v{SC+5}, 0, vcc")
    A(f"v_mov_b32 v{ISEL+4}, 0")
    A(f"v_mov_b32 v{ISEL+5}, 0")
    for r in range(4): A(f"v_mov_b32 v{ONES+r}, s{S_ONES}")
    for e in range(2):
        kf = KF + 4 * e
        A(f"v_mfma_f32_16x16x32_bf16 v[{PK}:{PK+3}], v[{WP}:{WP+3}], v[{kf}:{kf+3}], 0")
        A(f"v_mfma_f32_16x16x32_bf16 v[{PK+4}:{PK+7}], v[{WP+4}:{WP+7}], v[{kf}:{kf+3}], 0")
        A("s_nop 7")
        softmax_pk(A, PK, PP, PM, SC)
        A("s_nop 1")
        dd = D + e * 16
        A(f"v_mfma_f32_16x16x32_bf16 v[{dd}:{dd+3}], v[{PP}:{PP+3}], v[{ISEL+2}:{ISEL+5}], 0")
        A(f"v_mfma_f32_16x16x32_bf16 v[{dd+4}:{dd+7}], v[{PP}:{PP+3}], v[{ISEL}:{ISEL+3}], 0")
        A(f"v_mfma_f32_16x16x32_bf16 v[{dd+8}:{dd+11}], v[{PM}:{PM+3}], v[{ISEL+2}:{ISEL+5}], 0")
        A(f"v_mfma_f32_16x16x32_bf16 v[{dd+12}:{dd+15}], v[{PM}:{PM+3}], v[{ISEL}:{ISEL+3}], 0")
    for fb in range(4):
        for e in range(2):
            if e == 1 and fb == 0: A("s_nop 5")
            dd = D + e * 16 + fb * 4
            A(f"v_cvt_pk_bf16_f32 v{PT+fb*4+2*e}, v{dd}, v{dd+1}")
            A(f"v_cvt_pk_bf16_f32 v{PT+fb*4+2*e+1}, v{dd+2}, v{dd+3}")
    A("s_nop 1")
    for fb in range(4):
        for db in range(3):
            c = KV + (fb * 3 + db) * 4
            bsrc = VF + db * 4 if db < 2 else ONES
            A(f"v_mfma_f32_16x16x32_bf16 v[{c}:{c+3}], v[{PT+fb*4}:{PT+fb*4+3}], v[{bsrc}:{bsrc+3}], 0")
    A("s_nop 7")
    return KV

def gen_gemm1f(A):
    name = "gemm1_kernel"
    kernel_header(A, name)
    P = S_PTR
    ws = f"s[{SRD_WS}:{SRD_WS+3}]"
    st = OPT['st']
    A("s_cmp_ge_u32 s2, 256")
    A("s_cbranch_scc1 L_g1_done")
    stamp(A, 0)
    A(f"s_load_dwordx8 s[{P}:{P+7}], s[0:1], 0")
    A(f"s_load_dwordx4 s[{P+8}:{P+11}], s[0:1], 40")
    A(f"s_load_dwordx4 s[96:99], s[0:1], 72")
    A(f"s_load_dwordx2 s[100:101], s[0:1], 56      ; w_down")
    A("v_lshrrev_b32 v1, 6, v0")
    A("v_and_b32 v10, 63, v0             ; lane")
    A(f"v_readfirstlane_b32 s{S_W}, v1")
    A("s_lshl_b32 s3, s2, 3") if False else None
    A(f"s_lshl_b32 s{S_TMP}, s2, 3")
    A(f"v_add_u32 v60, s{S_TMP}, v1")
    A("v_lshlrev_b32 v61, 11, v60")
    A("v_lshl_add_u32 v61, v10, 4, v61")
    A(f"s_and_b32 s{S_WM}, s{S_W}, 3")
    A(f"s_lshr_b32 s{S_WN}, s{S_W}, 2")
    A(f"s_and_b32 s{S_TMP}, s2, 7")
    A(f"s_lshr_b32 s{S_TMP+1}, s2, 3")
    A(f"s_and_b32 s{S_J}, s{S_TMP+1}, 3")
    A(f"s_lshl_b32 s{S_TMP}, s{S_TMP}, 2")
    A(f"s_add_u32 s{S_J}, s{S_J}, s{S_TMP}        ; head")
    A(f"s_lshr_b32 s{S_MT}, s{S_TMP+1}, 2          ; m tile")
    A(f"v_lshlrev_b32 v{V_LANE16}, 4, v10")
    A(f"s_lshl_b32 s{S_TMP}, s{S_MT}, 8")
    A(f"s_lshl_b32 s{S_TMP+1}, s{S_WN}, 6")
    A(f"s_add_u32 s{S_TMP}, s{S_TMP}, s{S_TMP+1}")
    A(f"s_lshl_b32 s{S_TMP+1}, s{S_WM}, 2")
    A(f"s_add_u32 s{S_TMP}, s{S_TMP}, s{S_TMP+1}")
    A("v_bfe_u32 v11, v10, 3, 1")
    A("v_lshrrev_b32 v12, 4, v10         ; g = l>>4 (= slot>>1)")
    A("v_lshl_add_u32 v11, v12, 4, v11")
    A(f"v_add_u32 v11, s{S_TMP}, v11")
    A("v_lshlrev_b32 v11, 11, v11")
    A("v_and_b32 v13, 7, v10")
    A(f"v_lshl_add_u32 v{V_A_DMA}, v13, 4, v11")
    A(f"s_mul_i32 s{S_APAGE}, s{S_W}, {2 * A_PAGE}")
    A("s_waitcnt lgkmcnt(0)")
    make_srd(A, SRD_A, P, P + 1, 4 * MB)
    A(f"s_lshl_b32 s{S_TMP+3}, s{S_W}, 11")
    A(f"s_add_u32 s{S_TMP+3}, s{S_TMP+3}, {LDS_B + 3 * B_STAGE}")
    A(f"s_mov_b32 m0, s{S_TMP+3}")
    A(f"v_add_u32 v62, s{S_TMP+3}, v{V_LANE16}")
    A(f"buffer_load_dwordx4 v61, s[{SRD_A}:{SRD_A+3}], 0 offen lds")
    A(f"buffer_load_dwordx4 v61, s[{SRD_A}:{SRD_A+3}], 0 offen offset:1024 lds")
    def pro_a(stage):
        for h in range(2):
            for e in range(2):
                A(f"s_mov_b32 s{S_TMP}, {stage * 128 + h * 128 * 2048 + e * 4096}")
                A(f"s_add_u32 m0, s{S_APAGE}, {(stage & 1) * A_BUF + (16 * h + e) * A_PAGE}")
                A("s_nop 0")
                A(f"buffer_load_dwordx4 v{V_A_DMA}, s[{SRD_A}:{SRD_A+3}], s{S_TMP} offen lds")
    pro_a(0)
    A(f"s_lshl_b32 s{S_TMP}, s{S_W}, 6")
    A(f"v_add_u32 v13, s{S_TMP}, v10")
    A("v_mul_u32_u24 v14, 4682, v13")
    A("v_lshrrev_b32 v14, 16, v14        ; row")
    A("v_mul_u32_u24 v15, 14, v14")
    A("v_sub_u32 v15, v13, v15           ; ch")
    A("v_mul_u32_u24 v14, 7168, v14")
    A("v_lshl_add_u32 v14, v15, 4, v14")
    A(f"s_mul_i32 s{S_TMP}, s{S_J}, 224")
    A(f"v_add_u32 v14, s{S_TMP}, v14")
    A("v_lshrrev_b32 v15, 2, v10")
    A("v_mul_u32_u24 v15, 6144, v15")
    A("v_lshrrev_b32 v16, 3, v10")
    A("v_and_b32 v16, 2, v16")
    A("v_and_b32 v17, 3, v10")
    A("v_xor_b32 v16, v16, v17")
    A("v_lshl_add_u32 v15, v16, 4, v15")
    A(f"s_lshl_b32 s{S_TMP}, s{S_J}, 6")
    A(f"v_add_u32 v15, s{S_TMP}, v15     ; qkv voffset for page 0")
    make_srd(A, SRD_B2, P + 2, P + 3, 1024 * 6144)
    A(f"s_cmp_eq_u32 s{S_W}, 7")
    for d, pg in ((SRD_B0, P + 8), (SRD_B1, P + 10)):
        A(f"s_cselect_b32 s{d}, s{P+2}, s{pg}")
        A(f"s_cselect_b32 s{d+1}, s{P+3}, s{pg+1}")
        A(f"s_and_b32 s{d+1}, s{d+1}, 0xffff")
        A(f"s_cmp_eq_u32 s{S_W}, 7")
        A(f"s_mov_b32 s{d+2}, {1024*7168}")
        A(f"s_cselect_b32 s{d+2}, {1024*6144}, s{d+2}")
        A(f"s_mov_b32 s{d+3}, 0x00020000")
    A(f"s_mov_b32 s{S_B0INC}, {32*7168}")
    A(f"s_cselect_b32 s{S_B0INC}, {32*6144}, s{S_B0INC}")
    A(f"s_mov_b32 s{S_B1INC}, s{S_B0INC}")
    A(f"s_mov_b32 s{S_B2INC}, {32*6144}")
    A(f"s_lshl_b32 s{S_TMP}, s{S_W}, 10")
    A(f"s_add_u32 s{S_B0LDS}, s{S_TMP}, 6144")
    A(f"s_add_u32 s{S_B1LDS}, s{S_TMP}, 13312")
    A(f"s_mov_b32 s{S_B2LDS}, s{S_TMP}")
    A(f"s_cmp_eq_u32 s{S_W}, 7")
    A(f"s_cselect_b32 s{S_B0LDS}, 4096, s{S_B0LDS}")
    A(f"s_cselect_b32 s{S_B1LDS}, 5120, s{S_B1LDS}")
    A(f"v_mov_b32 v{V_B0}, v14")
    A(f"v_mov_b32 v{V_B1}, v14")
    A(f"s_lshr_b32 s{S_TMP}, s{S_W}, 1")
    A(f"s_lshl_b32 s{S_TMP}, s{S_TMP}, 11")
    A(f"s_and_b32 s{S_TMP+1}, s{S_W}, 1")
    A(f"s_mul_i32 s{S_TMP+1}, s{S_TMP+1}, {16*6144}")
    A(f"s_add_u32 s{S_TMP}, s{S_TMP}, s{S_TMP+1}")
    A(f"v_add_u32 v{V_B2}, s{S_TMP}, v15")
    A(f"s_cmp_lg_u32 s{S_W}, 7")
    A("s_cbranch_scc1 L_g1_not7")
    A(f"v_add_u32 v{V_B0}, 4096, v15")
    A(f"v_add_u32 v{V_B1}, {4096 + 16*6144}, v15")
    A.label("L_g1_not7")
    for s in (S_B0OFF, S_B1OFF, S_B2OFF): A(f"s_mov_b32 s{s}, 0")
    A(f"s_cmp_eq_u32 s{S_WN}, 1")
    A("s_cbranch_scc1 L_g1_wn1")
    for wn in (0, 1):
        if wn == 1: A.label("L_g1_wn1")
        A.lgkm = []
        nB = 3 if wn == 0 else 2
        slots = [(V_B0, SRD_B0, S_B0OFF, S_B0INC, S_B0LDS), (V_B1, SRD_B1, S_B1OFF, S_B1INC, S_B1LDS), (V_B2, SRD_B2, S_B2OFF, S_B2INC, S_B2LDS)][:nB]
        def pro_b(stage):
            for v, srd, soff, sinc, slds in slots:
                A(f"s_add_u32 m0, s{slds}, {LDS_B + stage * B_STAGE}")
                A("s_nop 0")
                A(f"buffer_load_dwordx4 v{v}, s[{srd}:{srd+3}], s{soff} offen lds")
                A(f"s_add_u32 s{soff}, s{soff}, s{sinc}")
        pro_b(0); pro_b(1); pro_a(1); pro_b(2)
        ndma = 8 + 3 * nB
        make_srd(A, SRD_WS, 98, 99, WS_BYTES)
        make_srd(A, SRD_D, 96, 97, 256)
        make_srd(A, SRD_WP, P + 4, P + 5, 65536)
        A(f"s_mov_b32 s{S_C}, {NLOG2E}")
        A(f"s_mov_b32 s{S_C+1}, {LOG2E}")
        A(f"s_mov_b32 s{S_ONES}, 0x3f803f80")
        A("v_and_b32 v16, 15, v10            ; i / tok")
        A("v_lshrrev_b32 v17, 2, v16         ; i>>2")
        A("v_lshl_add_u32 v17, v12, 2, v17   ; 4g + (i>>2)")
        A("v_and_b32 v18, 3, v16")
        A("v_lshlrev_b32 v18, 3, v18         ; (i&3)*8")
        A("v_mul_u32_u24 v19, 224, v17")
        A("v_add_u32 v19, v19, v18")
        A(f"v_add_u32 v{V_BG}, {LDS_B}, v19")
        A("v_lshl_add_u32 v19, v17, 6, v18")
        A("v_and_b32 v20, 1, v12")
        A("v_lshl_add_u32 v19, v20, 5, v19")
        A(f"v_add_u32 v{V_BQ0}, {LDS_B}, v19")
        A(f"v_xor_b32 v{V_BQ1}, 32, v{V_BQ0}")
        for a_, b_ in ((V_BG2, V_BG), (V_BQ02, V_BQ0), (V_BQ12, V_BQ1)): A(f"v_add_u32 v{a_}, {2*B_STAGE}, v{b_}")
        A("v_lshrrev_b32 v19, 1, v16")
        A(f"s_lshl_b32 s{S_TMP}, s{S_WM}, 3")
        A(f"v_add_u32 v19, s{S_TMP}, v19")
        A(f"v_mul_u32_u24 v19, {A_PAGE}, v19")
        A("v_and_b32 v20, 1, v16")
        A("v_lshl_add_u32 v19, v20, 7, v19")
        A(f"v_lshl_add_u32 v{V_AR}, v12, 3, v19")
        if wn == 0:
            make_srd(A, SRD_PF, 100, 101, 3584 * 2048)
        A(f"s_mov_b32 s{S_AK}, 256")
        A(f"s_mov_b32 s{S_AKE}, 256")
        for r in range(ACC, 256): A(f"v_mov_b32 v{r}, 0")
        for r in range(3): A(f"v_mov_b32 v{V_CS+r}, 0")
        A(f"s_mov_b32 s{S_HI}, 0xffff0000")
        A("v_mov_b32 v0, 0")
        A(f"s_mov_b32 s{S_TMP+2}, 0xffff0000")
        A(f"s_waitcnt vmcnt({ndma})")
        A("ds_read_b128 v[64:67], v62")
        A("ds_read_b128 v[68:71], v62 offset:1024")
        A("s_waitcnt lgkmcnt(0)")
        for i in range(8):
            A(f"v_lshlrev_b32 v{16+2*i}, 16, v{64+i}")
            A(f"v_and_b32 v{17+2*i}, s{S_TMP+2}, v{64+i}")
        for st_ in (8, 4, 2):
            for r in range(0, st_, 2):
                src = 16 if st_ == 8 else 36
                A(f"v_pk_add_f32 v[{36+r}:{37+r}], v[{src+r}:{src+r+1}], v[{src+st_+r}:{src+st_+r+1}]")
        A("v_add_f32 v32, v36, v37")
        wave_allreduce(A, 32, 33, "add")
        A("v_mul_f32 v32, 0xba800000, v32")
        for r in range(0, 16, 2):
            p_, s_ = bsel(32)
            A(f"v_pk_add_f32 v[{16+r}:{17+r}], v[{16+r}:{17+r}], v[32:33] op_sel_hi:[1,0]")
        A("v_pk_mul_f32 v[36:37], v[16:17], v[16:17]")
        for r in range(2, 16, 2):
            A(f"v_pk_fma_f32 v[36:37], v[{16+r}:{17+r}], v[{16+r}:{17+r}], v[36:37]")
        A("v_add_f32 v35, v36, v37")
        wave_allreduce(A, 35, 33, "add")
        A("v_mul_f32 v35, 0x3a800000, v35     ; var")
        A("v_cvt_pk_bf16_f32 v36, v32, v35")
        A("v_lshlrev_b32 v38, 16, v36")
        A(f"v_and_b32 v35, s{S_TMP+2}, v36")
        A("v_add_f32 v35, 0x3727c5ac, v35     ; + 1e-5")
        A("v_cvt_pk_bf16_f32 v35, v35, v35")
        A("v_lshlrev_b32 v35, 16, v35")
        A("v_sqrt_f32 v35, v35")
        A("s_nop 0")
        A("v_cvt_pk_bf16_f32 v35, v35, v35")
        A("v_lshlrev_b32 v39, 16, v35")
        A("v_lshlrev_b32 v60, 3, v60")
        A(f"s_mov_b32 s{S_TMP}, {WS_STATS}")
        A("s_mov_b64 exec, 1")
        A(f"buffer_store_dwordx2 v[38:39], v60, {ws}, s{S_TMP} offen sc1")
        nx = 1
        if wn == 0:
            A(f"s_lshl_b32 s{S_TMP}, s2, 7")
            A(f"s_add_u32 s{S_TMP}, s{S_TMP}, {WS_FLAG}")
            A(f"buffer_store_dword v0, v0, {ws}, s{S_TMP} offen")
            nx = 2
        A("s_mov_b64 exec, -1")
        A(f"s_waitcnt vmcnt({4 + nB})")
        A("s_barrier")
        for tb in range(4): g1_tread(A, 0, 0, tb, T0, "T0")
        for tb in range(4): g1_tread(A, 0, 1, tb, T1A, "T1")
        A("s_waitcnt lgkmcnt(0)")
        A.lgkm = []
        for b in range(4): g1_wread(A, wn, b, 0, WR + b * 4, f"W{b}")
        for r in range(4): A(f"v_mov_b32 v{WR+16+r}, 0")
        A("s_barrier")
        stamp(A, 1)
        A("s_waitcnt lgkmcnt(0)")
        A(f"s_mov_b32 s{S_ITER}, 8")
        for wm in range(1, 4):
            A(f"s_cmp_eq_u32 s{S_WM}, {wm}")
            A(f"s_cbranch_scc1 L_g1_loop{wn}{wm}")
        for wm in range(4):
            lab = f"L_g1_loop{wn}{wm}"
            B = Asm(); g1f_body(B, wn, wm); entry = list(B.lgkm)
            A.lgkm = list(entry)
            A.label(lab)
            g1f_body(A, wn, wm)
            assert A.lgkm == entry, (A.lgkm, entry)
            A(f"s_sub_u32 s{S_ITER}, s{S_ITER}, 1")
            A(f"s_cmp_lg_u32 s{S_ITER}, 0")
            A(f"s_cbranch_scc1 {lab}")
            if wm == 1 and not OPT.get("nocs"):
                for f in cs_ops(9, 1): f(A)
            A(f"s_branch L_g1_epi{wn}")
            g1f_extras(A, wn, wm)
        A.label(f"L_g1_epi{wn}")
        A.lgkm = []
        A("s_waitcnt vmcnt(0) lgkmcnt(0)")
        stamp(A, 2)
        xreduce_g(A, [V_CS, V_CS + 1, V_CS + 2], [12, 13, 14], "add")
        A(f"v_and_b32 v12, 0xf0, v{V_LANE16}")
        A("v_lshrrev_b32 v12, 2, v12                ; c*4")
        A(f"s_lshl_b32 s{S_TMP}, s{S_WM}, 6")
        A(f"s_add_u32 s{S_TMP}, s{S_TMP}, {CSL + wn * 640}")
        A(f"v_add_u32 v13, s{S_TMP}, v12")
        A(f"ds_write_b32 v13, v{V_CS}")
        A(f"ds_write_b32 v13, v{V_CS+1} offset:256")
        A(f"s_cmp_lt_u32 s{S_WM}, 2")
        A(f"s_cselect_b32 s{S_TMP}, s{S_TMP}, {CSL + 1280 - 512}")
        A(f"v_add_u32 v13, s{S_TMP}, v12")
        A(f"ds_write_b32 v13, v{V_CS+2} offset:512")
        for tb in range(4): A(f"v_rcp_f32 v{RR+tb}, v{NM+2*tb+1}")
        A("s_nop 0")
        for tb in range(4): A(f"v_mul_f32 v{RL[tb]}, s{S_C}, v{RR+tb}")
        if wn == 1:
            A(f"s_lshl_b32 s{S_TMP}, s{S_W}, 9")
            A(f"s_add_u32 s{S_TMP}, s{S_TMP}, {STL}")
            A(f"v_lshl_add_u32 v13, v12, 1, s{S_TMP}        ; + tok*8")
            for tb in range(4):
                A(f"v_mov_b32 v14, v{NM+2*tb}")
                A(f"v_mov_b32 v15, v{RR+tb}")
                A(f"ds_write_b64 v13, v[14:15] offset:{tb*128}")
        A("s_waitcnt lgkmcnt(0)")
        A("s_barrier")
        A(f"v_lshrrev_b32 v52, 8, v{V_LANE16}          ; g")
        A(f"v_lshlrev_b32 v52, 4, v52")
        A(f"v_add_u32 v52, {CSL + wn * 640}, v52       ; + g*16")
        for b in range(10):
            if wn == 1 and b in (2, 3): continue
            A.ds(f"ds_read_b128 v[{CR+4*b}:{CR+4*b+3}], v52 offset:{b*64}", f"C{b}")
        A(f"s_lshl_b32 s{S_TMP}, s{S_MT}, 4")
        A(f"s_lshl_b32 s{S_TMP+1}, s{S_WM}, 2")
        A(f"s_add_u32 s{S_TMP}, s{S_TMP}, s{S_TMP+1}")
        A(f"s_lshl_b32 s{S_TMP}, s{S_TMP}, 10        ; tbg0*1024")
        A(f"s_mul_i32 s{S_TMP+1}, s{S_J}, {3 * 128 * 1024}")
        A(f"s_add_u32 s{S_TMP+1}, s{S_TMP+1}, s{S_TMP}")
        A(f"s_add_u32 s{S_TMP+1}, s{S_TMP+1}, {WS_ACT}")
        A(f"s_lshl_b32 s{S_TMP+4}, s{S_WM}, 12")
        A(f"s_add_u32 s{S_TMP+4}, s{S_TMP+4}, {HOFF}")
        A(f"v_add_u32 v53, s{S_TMP+4}, v{V_LANE16}")
        A(f"v_lshrrev_b32 v54, 8, v{V_LANE16}")
        A("v_lshlrev_b32 v54, 8, v54")
        A(f"v_and_b32 v55, 0xf0, v{V_LANE16}")
        A("v_lshrrev_b32 v55, 3, v55")
        A("v_add_u32 v54, v54, v55")
        A(f"s_lshl_b32 s{S_TMP+3}, s{S_J}, 11")
        KF, VF = 56, 64
        if wn == 0:
            A(f"s_lshl_b32 s{S_TMP+2}, s{S_J}, 17")
            A(f"s_add_u32 s{S_TMP+2}, s{S_TMP+2}, s{S_TMP}")
            A(f"s_add_u32 s{S_TMP+2}, s{S_TMP+2}, {WS_Q}")
            A.wait_lgkm(["C0", "C1"])
            for tb in range(4):
                d = 56 + tb * 4
                qk_pack(A, tb, d)
                A(f"buffer_store_dwordx4 v[{d}:{d+3}], v{V_LANE16}, {ws}, s{S_TMP+2} offen offset:{tb*1024} {st}")
            load_wphi(A, 96, 54, SRD_WP, f"s{S_TMP+3}")
            A("s_barrier")
            k = 0
            for p in range(2):
                if p == 1: A(f"s_add_u32 s{S_TMP+1}, s{S_TMP+1}, {128*1024}")
                A.wait_lgkm([f"C{b}" for b in range(2 + 4 * p, 6 + 4 * p)])
                for tb in range(4):
                    d = 112 + (k % 4) * 4; k += 1
                    gu_f(A, 2 + 4 * p, 3 + 4 * p, tb, d, 72)
                    gu_f(A, 4 + 4 * p, 5 + 4 * p, tb, d + 2, 76)
                    A(f"buffer_store_dwordx4 v[{d}:{d+3}], v{V_LANE16}, {ws}, s{S_TMP+1} offen offset:{tb*1024} {st}")
                if p == 0:
                    for k2 in range(4):
                        A(f"ds_read_b128 v[{56+4*k2}:{59+4*k2}], v53 offset:{k2*1024}")
            nst = 8
        else:
            A(f"v_and_b32 v55, 0xf0, v{V_LANE16}")
            A("v_lshrrev_b32 v55, 2, v55")
            A(f"v_add_u32 v55, {CSL + 640}, v55")
            A.ds(f"ds_read_b32 v{CR+8}, v55 offset:128", "CV")
            A.ds(f"ds_read_b32 v{CR+9}, v55 offset:192", "CV")
            A(f"v_lshrrev_b32 v55, 8, v{V_LANE16}")
            A(f"s_lshl_b32 s{S_TMP+2}, s{S_W}, 9")
            A(f"s_add_u32 s{S_TMP+2}, s{S_TMP+2}, {STL}")
            A(f"v_lshl_add_u32 v55, v55, 5, s{S_TMP+2}      ; + g*32")
            A.wait_lgkm(["C0", "C1"])
            for tb in range(4):
                qk_pack(A, tb, (KF + 4 * tb) if tb < 2 else (72 + 4 * (tb - 2)))
            A("s_nop 0")
            A(f"ds_write_b128 v53, v[72:75]")
            A(f"ds_write_b128 v53, v[76:79] offset:1024")
            for tb in range(4):
                A.ds(f"ds_read_b128 v[{96+8*tb}:{99+8*tb}], v55 offset:{tb*128}", f"S{tb}")
                A.ds(f"ds_read_b128 v[{100+8*tb}:{103+8*tb}], v55 offset:{tb*128+16}", f"S{tb}")
            for tb in range(4):
                A.wait_lgkm(["CV", f"S{tb}"])
                for db in range(2):
                    a = acc(2 + db, tb)
                    for r in range(4):
                        A(f"v_fma_f32 v{a+r}, v{CR+8+db}, v{96+8*tb+2*r}, v{a+r}")
                    for r in range(4):
                        A(f"v_mul_f32 v{a+r}, v{a+r}, v{97+8*tb+2*r}")
                    d = (VF if tb < 2 else 72) + db * 4 + 2 * (tb & 1)
                    A(f"v_cvt_pk_bf16_f32 v{d}, v{a}, v{a+1}")
                    A(f"v_cvt_pk_bf16_f32 v{d+1}, v{a+2}, v{a+3}")
            A("s_nop 0")
            A(f"ds_write_b128 v53, v[72:75] offset:2048")
            A(f"ds_write_b128 v53, v[76:79] offset:3072")
            load_wphi(A, 96, 54, SRD_WP, f"s{S_TMP+3}")
            A("s_waitcnt lgkmcnt(0)")
            A.lgkm = []
            A("s_barrier")
            A(f"s_add_u32 s{S_TMP+1}, s{S_TMP+1}, {2*128*1024}")
            A(f"s_lshr_b32 s{S_TMP+2}, s{S_J}, 1")
            A(f"s_add_u32 s{S_TMP+2}, s{S_TMP+2}, 96")
            A(f"s_lshl_b32 s{S_TMP+2}, s{S_TMP+2}, 17")
            A(f"s_add_u32 s{S_TMP+2}, s{S_TMP+2}, s{S_TMP}")
            A(f"s_and_b32 s{S_TMP+3}, s{S_J}, 1")
            A(f"s_lshl_b32 s{S_TMP+3}, s{S_TMP+3}, 3")
            A(f"s_add_u32 s{S_TMP+2}, s{S_TMP+2}, s{S_TMP+3}")
            A(f"s_add_u32 s{S_TMP+2}, s{S_TMP+2}, {WS_ACT}")
            for tb in range(4):
                d = 112 + tb * 8
                gu_f(A, 4, 5, tb, d, 72)
                gu_f(A, 6, 7, tb, d + 2, 76)
                A(f"buffer_store_dwordx4 v[{d}:{d+3}], v{V_LANE16}, {ws}, s{S_TMP+1} offen offset:{tb*1024} {st}")
                gu_f(A, 8, 9, tb, d + 4, 72)
                A(f"buffer_store_dwordx2 v[{d+4}:{d+5}], v{V_LANE16}, {ws}, s{S_TMP+2} offen offset:{tb*1024} {st}")
            nst = 8
        A(f"s_waitcnt vmcnt({nst if OPT.get('trustls') else 0}) lgkmcnt(0)")
        pack_wphi(A, 12, 96)
        A("s_nop 1")
        KVb = kwork(A, KF, VF, 12, 104)
        A(f"s_mul_i32 s{S_TMP}, s{S_W}, {12*1024}")
        A(f"v_add_u32 v20, s{S_TMP}, v{V_LANE16}")
        for blk in range(12):
            A(f"ds_write_b128 v20, v[{KVb+blk*4}:{KVb+blk*4+3}] offset:{blk*1024}")
        A("s_waitcnt lgkmcnt(0)")
        A("s_barrier")
        A(f"s_lshr_b32 s{S_TMP}, s{S_W}, 1")
        A(f"s_mul_i32 s{S_TMP}, s{S_TMP}, 3")
        A(f"s_and_b32 s{S_TMP+1}, s{S_W}, 1")
        A(f"s_add_u32 s{S_TMP}, s{S_TMP}, s{S_TMP+1}")
        A(f"s_lshl_b32 s{S_TMP}, s{S_TMP}, 10")
        A(f"v_add_u32 v20, s{S_TMP}, v{V_LANE16}")
        A(f"v_add_u32 v22, {4*12*1024}, v20")
        for p in range(8):
            A(f"ds_read_b128 v[{100+4*p}:{103+4*p}], v{20 if p < 4 else 22} offset:{(p%4)*12*1024}")
        if wn == 0:
            A(f"s_mul_i32 s{S_TMP}, s{S_W}, 3072")
            A(f"v_add_u32 v21, s{S_TMP}, v{V_LANE16}")
            A(f"v_add_u32 v23, {4*12*1024}, v21")
            for p in range(8):
                A(f"ds_read_b128 v[{132+4*p}:{135+4*p}], v{21 if p < 4 else 23} offset:{(p%4)*12*1024 + 2048}")
        A(f"s_lshl_b32 s{S_TMP}, s{S_J}, 3")
        A(f"s_add_u32 s{S_TMP}, s{S_TMP}, s{S_MT}")
        A(f"s_mul_i32 s{S_TMP}, s{S_TMP}, {KVP_SZ}")
        A(f"s_add_u32 s{S_TMP}, s{S_TMP}, {WS_KVP}")
        A(f"s_lshl_b32 s{S_TMP+1}, s{S_W}, 10")
        A(f"s_add_u32 s{S_TMP+1}, s{S_TMP+1}, s{S_TMP}")
        A("s_waitcnt lgkmcnt(0)")
        for base in ((100, 132) if wn == 0 else (100,)):
            for st_ in (16, 8, 4):
                for r in range(0, st_, 2):
                    A(f"v_pk_add_f32 v[{base+r}:{base+r+1}], v[{base+r}:{base+r+1}], v[{base+st_+r}:{base+st_+r+1}]")
        A(f"buffer_store_dwordx4 v[100:103], v{V_LANE16}, {ws}, s{S_TMP+1} offen {st}")
        if wn == 0:
            A(f"s_lshl_b32 s{S_TMP+1}, s{S_W}, 6")
            A(f"s_add_u32 s{S_TMP+1}, s{S_TMP+1}, s{S_TMP}")
            A(f"s_add_u32 s{S_TMP+1}, s{S_TMP+1}, 8192")
            A(f"v_lshrrev_b32 v21, 4, v{V_LANE16}    ; lane")
            A("v_and_b32 v22, 15, v21")
            A("v_cmp_eq_u32 vcc, 0, v22")
            A(f"s_and_saveexec_b64 s[{S_TMP+2}:{S_TMP+3}], vcc")
            A(f"buffer_store_dwordx4 v[132:135], v21, {ws}, s{S_TMP+1} offen {st}")
        if OPT["stamp"]:
            A("s_waitcnt vmcnt(0)")
            stamp(A, 3)
            stamp_store(A, 4, S_W, SRD_WS)
        A("s_endpgm")
    A.label("L_g1_done")
    A("s_endpgm")
    return name, 256

def build(kernels):
    A = Asm()
    hdr = open("cdna_kernels/" + NAME + ".s.ref").read().split("\n")
    for l in hdr:
        if l.startswith(";") and "@launch" not in l and "Override" not in l and "grid=ceil" not in l:
            A.raw(l)
    launches = {"gemm1": f"; @launch kernel=gemm1_kernel grid=(256,1,1) block=(512,1,1) lds={G1F_LDS}",
                "gemm2": f"; @launch kernel=gemm2_kernel grid=(256,1,1) block=(512,1,1) lds={G.G2_LDS}"}
    for k in kernels: A.raw(launches[k])
    A.raw('.amdgcn_target "amdgcn-amd-amdhsa--gfx950"')
    A.raw(".text")
    descs = []
    gens = {"gemm1": gen_gemm1f, "gemm2": G.gen_gemm2}
    for k in kernels:
        descs.append(gens[k](A))
    A.raw('.section .rodata,"a"')
    for n, v in descs:
        kernel_desc(A, n, v)
    return A.text()

if __name__ == "__main__":
    out = sys.argv[1] if len(sys.argv) > 1 else "k.s"
    ks = sys.argv[2].split(",") if len(sys.argv) > 2 else ["gemm1", "gemm2"]
    for o in sys.argv[3:]:
        if "=" in o: k, v = o.split("="); OPT[k] = v.replace("+", " ")
        else: OPT[o] = True
    open(out, "w").write(build(ks))
```

```python
import sys
from asmlib import *

NAME = "parallel_sum__linear_kernel_hedgehog__glu_gated_glu__prompt"
MB = 1 << 20
WS_BYTES = 268435456
WS_ACT = 8 * MB
WS_KVP = 28 * MB
KVP_SZ = 8448
WS_PART = 32 * MB
WS_FLAG = 48 * MB
WS_STATS = 49 * MB
WS_STAMP = 52 * MB
F_H = WS_FLAG
F_K = WS_FLAG + 16384
F_O = WS_FLAG + 24576
F_P = WS_FLAG + 28672
LOG2E, NLOG2E = 0x3fb8aa3b, 0xbfb8aa3b
OPT = {}
def opt(k, d=None): return OPT.get(k, d)

A_PAGE = 1040; A_BUF = 32 * A_PAGE; LDS_B = 2 * A_BUF; B_STAGE = 20480
X_LDS = LDS_B + 4 * B_STAGE
CSL = X_LDS; STL = X_LDS + 1536; P1_LDS = STL + 4096
HOFF = 100 * 1024
SLOT = 16640; NSLOT = 9; RING = SLOT * NSLOT; P2_LDS = RING + 6144
V_A, V_B0, V_B1, V_B2, V_AR, V_BG, V_BQ0, V_BQ1, L16, V_CT = 1, 2, 3, 4, 5, 6, 7, 8, 9, 10
T0, T1A, T1B, WR = 12, 28, 44, 60
V_ST, V_POLL, V_PA, V_CS = 80, 88, 89, 90
V_BG2, V_BQ02, V_BQ12 = 93, 94, 95
ACC = 96
def acc(b, tb): return ACC + (b * 4 + tb) * 4
S_W, S_WM, S_WN, S_J, S_MT = 3, 4, 5, 6, 7
SRD_A, SRD_B0, SRD_B1, SRD_B2 = 8, 12, 16, 20
S_APAGE, S_AK, S_AKE = 24, 25, 26
S_BOFF, S_BINC, S_BLDS = (27, 28, 29), (30, 31, 32), (33, 34, 35)
P = 36
T = 50
SRD_D = 56
S_ITER = 60
SRD_WS, SRD_WP = 64, 68
S_C = 72; S_ONES = 78; S_HI = 79
S_ST = 80
SRD_PF = 96
WS = f"s[{SRD_WS}:{SRD_WS+3}]"
def srd(n): return f"s[{n}:{n+3}]"

def stamp(A, i):
    if opt("stamp"):
        A(f"s_memtime s[{S_ST+4*i}:{S_ST+4*i+1}]")
        A(f"s_memrealtime s[{S_ST+4*i+2}:{S_ST+4*i+3}]")
def stamp_store(A, base):
    if not opt("stamp"): return
    A("s_mov_b64 exec, 1")
    A("s_waitcnt lgkmcnt(0)")
    A(f"s_lshl_b32 s{T}, s2, 3")
    A(f"s_add_u32 s{T}, s{T}, s{S_W}")
    A(f"s_lshl_b32 s{T}, s{T}, 6")
    A(f"s_add_u32 s{T}, s{T}, {base}")
    A("v_mov_b32 v1, 0")
    for i in range(4):
        A(f"v_mov_b32 v2, s{S_ST+4*i}")
        A(f"v_mov_b32 v3, s{S_ST+4*i+2}")
        A(f"buffer_store_dwordx2 v[2:3], v1, {WS}, s{T} offen offset:{8*i}")
        A("s_nop 1")
    A("s_mov_b64 exec, -1")

def xreduce_g(A, vs, tmps, op):
    ops = op if isinstance(op, list) else [op] * len(vs)
    for sw in ("v_permlane16_swap_b32", "v_permlane32_swap_b32"):
        for v, t in zip(vs, tmps): A(f"v_mov_b32 v{t}, v{v}")
        A("s_nop 1")
        for v, t in zip(vs, tmps): A(f"{sw} v{v}, v{t}")
        if len(vs) == 1: A("s_nop 0")
        for v, t, o in zip(vs, tmps, ops): A(f"v_{o}_f32 v{v}, v{v}, v{t}")
def wave_allreduce(A, v, tmp):
    for dpp in ("quad_perm:[1,0,3,2]", "quad_perm:[2,3,0,1]", "row_half_mirror", "row_mirror"):
        A("s_nop 1")
        A(f"v_add_f32_dpp v{v}, v{v}, v{v} {dpp} row_mask:0xf bank_mask:0xf")
    xreduce_g(A, [v], [tmp], "add")
def MF(A, d, a, b, c=None):
    cs = "0" if c is None else f"v[{c}:{c+3}]"
    A(f"v_mfma_f32_16x16x32_bf16 v[{d}:{d+3}], v[{a}:{a+3}], v[{b}:{b+3}], {cs}")
def cvt(A, d, a): A(f"v_cvt_pk_bf16_f32 v{d}, v{a}, v{a+1}")

def softmax(A, pk, Pp, Pm, t):
    mx, mn, x0, x1, ep, em, sp, sm = t, t + 1, t + 2, t + 3, t + 4, t + 12, t + 20, t + 21
    A(f"v_max3_f32 v{mx}, v{pk}, v{pk+1}, v{pk+2}")
    A(f"v_min3_f32 v{mn}, v{pk}, v{pk+1}, v{pk+2}")
    for r in (3, 5):
        A(f"v_max3_f32 v{mx}, v{mx}, v{pk+r}, v{pk+r+1}")
        A(f"v_min3_f32 v{mn}, v{mn}, v{pk+r}, v{pk+r+1}")
    A(f"v_max_f32 v{mx}, v{mx}, v{pk+7}")
    A(f"v_min_f32 v{mn}, v{mn}, v{pk+7}")
    xreduce_g(A, [mx, mn], [x0, x1], ["max", "min"])
    A(f"v_mul_f32 v{mx}, s{S_C}, v{mx}")
    A(f"v_mul_f32 v{mn}, s{S_C+1}, v{mn}")
    for r in range(8):
        A(f"v_fma_f32 v{ep+r}, v{pk+r}, s{S_C+1}, v{mx}")
        A(f"v_fma_f32 v{em+r}, v{pk+r}, s{S_C}, v{mn}")
    for r in range(8):
        A(f"v_exp_f32 v{ep+r}, v{ep+r}")
        A(f"v_exp_f32 v{em+r}, v{em+r}")
    A(f"v_add_f32 v{sp}, v{ep}, v{ep+1}")
    A(f"v_add_f32 v{sm}, v{em}, v{em+1}")
    for r in range(2, 8):
        A(f"v_add_f32 v{sp}, v{sp}, v{ep+r}")
        A(f"v_add_f32 v{sm}, v{sm}, v{em+r}")
    xreduce_g(A, [sp, sm], [x0, x1], "add")
    A(f"v_rcp_f32 v{sp}, v{sp}")
    A(f"v_rcp_f32 v{sm}, v{sm}")
    A("s_nop 0")
    for r in range(8):
        A(f"v_mul_f32 v{ep+r}, v{ep+r}, v{sp}")
        A(f"v_mul_f32 v{em+r}, v{em+r}, v{sm}")
    for r in range(4):
        cvt(A, Pp + r, ep + 2 * r); cvt(A, Pm + r, em + 2 * r)

def blocks_of(wn):
    if wn == 0: return [("q", 0), ("q", 1)] + [x for b in range(4) for x in (("g", b), ("u", b))]
    return [("k", 0), ("k", 1), ("v", 0), ("v", 1)] + [x for b in range(4, 7) for x in (("g", b), ("u", b))]
def wread(A, wn, blk, stage, dst, tag, t):
    kind, idx = blocks_of(wn)[blk]
    so = (stage & 1) * B_STAGE; hi = stage >> 1
    if kind in "qkv":
        off = so + (2 * "qkv".index(kind) + t) * 1024
        va = ((V_BQ0, V_BQ1), (V_BQ02, V_BQ12))[hi][idx]
    else:
        off = so + (6144 if kind == "g" else 13312) + t * 3584 + idx * 32
        va = (V_BG, V_BG2)[hi]
    A.ds(f"ds_read_b64_tr_b16 v[{dst+2*t}:{dst+2*t+1}], v{va} offset:{off}", tag)
def tread(A, abuf, ks, tb, dst, tag, t):
    A.ds(f"ds_read_b64 v[{dst+tb*4+2*t}:{dst+tb*4+2*t+1}], v{V_AR} offset:{abuf * A_BUF + tb * 256 + ks * 64 + t * 32}", tag)
def nB(w): return 0 if w == 7 else (2 if w == 6 else 3)
def nA(w): return 0 if w == 7 else (4 if w == 6 else 2)
BS = ((V_B0, SRD_B0), (V_B1, SRD_B1), (V_B2, SRD_B2))
def bdma(k, slot):
    def f0(A): A(f"s_add_u32 m0, s{S_BLDS[k]}, {LDS_B + slot * B_STAGE}")
    def f1(A):
        A(f"buffer_load_dwordx4 v{BS[k][0]}, {srd(BS[k][1])}, s{S_BOFF[k]} offen lds")
        A(f"s_add_u32 s{S_BOFF[k]}, s{S_BOFF[k]}, s{S_BINC[k]}")
    return f0, f1
def adma(h, e, abuf, kconst=None):
    def f0(A):
        if kconst is None: A(f"s_add_u32 s{T}, s{S_AKE}, {h * 128 * 2048 + e * 4096}")
        else: A(f"s_mov_b32 s{T}, {kconst + h * 128 * 2048 + e * 4096}")
        A(f"s_add_u32 m0, s{S_APAGE}, {abuf * A_BUF + (16 * h + e) * A_PAGE}")
    def f1(A): A(f"buffer_load_dwordx4 v{V_A}, {srd(SRD_A)}, s{T} offen lds")
    return f0, f1
def pfload(A, k):
    A(f"buffer_load_dword v{V_A}, v{BS[k][0]}, {srd(BS[k][1])}, s{S_BOFF[k]} offen")
    A(f"s_add_u32 s{S_BOFF[k]}, s{S_BOFF[k]}, s{S_BINC[k]}")
def cs_ops(b, half):
    out = []
    c = V_CS + (b // 4)
    for r in (2 * half, 2 * half + 1):
        w = WR + (b % 5) * 4 + r
        def f0(A, w=w):
            A(f"v_lshlrev_b32 v{V_CT}, 16, v{w}")
            A(f"v_and_b32 v{V_CT+1}, s{S_HI}, v{w}")
        def f1(A, c=c):
            A(f"v_add_f32 v{c}, v{c}, v{V_CT}")
            A(f"v_add_f32 v{c}, v{c}, v{V_CT+1}")
        out += [f0, f1]
    return out
def extras_of(w, u):
    if w == 7: return {0: [(2, "poll"), (4, "drain")], 1: [(4, "sig")], 2: [(2, "stat"), (4, "pfd")], 3: []}[u]
    return {0: [(2, "poll")], 1: [], 2: [(2, "stat"), (8, "drain")], 3: []}[u]

def p1_body(A, w):
    wn, wm = w >> 2, w & 3
    blocks = blocks_of(wn)
    G_ = [[] for _ in range(160)]
    def gap(u, i): return G_[(40 * u + i) % 160]
    for u in range(4):
        odd = u & 1
        for c in range(10):
            tgt = c + 4
            blk, st = (tgt, u) if tgt < 10 else (tgt - 10, (u + 1) & 3)
            sl = tgt % 5
            delayed = ((c - 1) % 10) % 4 == wm
            for t in range(2):
                pos = 4 * (c + 1) + 2 + t if delayed else 4 * c + t
                gap(u, pos).append(lambda A, blk=blk, st=st, sl=sl, t=t: wread(A, wn, blk, st, WR + sl * 4, f"W{sl}", t))
        if odd:
            nb = ((u + 1) >> 1) & 1
            Tn1 = T1B if u == 1 else T1A
            tr = [(nb, 0, tb, T0, "T0") for tb in range(4)] + [(nb, 1, tb, Tn1, "T1") for tb in range(4)]
            for k, x in enumerate(tr):
                for t in range(2):
                    gap(u, 4 * [0, 1, 2, 3, 4, 6, 7, 8][k] + 2 + t).append(lambda A, x=x, t=t: tread(A, *x, t))
            def adv(A):
                A(f"s_add_u32 s{S_AK}, s{S_AK}, 128")
                A(f"s_cmp_ge_u32 s{S_AK}, 2048")
                A(f"s_cselect_b32 s{S_AKE}, 0x10000000, s{S_AK}")
            if nA(w): gap(u, 4 * 9 + 2).append(adv)
        dm = [bdma(k, (u + 3) & 3) for k in range(nB(w))] + [adma(u & 1, e, (u >> 1) & 1) for e in range(nA(w))]
        for k, (f0, f1) in enumerate(dm):
            gap(u, 4 * k + 2).insert(0, f0)
            gap(u, 4 * k + 3).insert(0, f1)
        if w == 7:
            for k in range(3): gap(u, 4 * k + 3).append(lambda A, k=k: pfload(A, k))
        for b in range(wm, 10, 4):
            for k, f in enumerate(cs_ops(b, 0) + cs_ops(b, 1)): gap(u, 4 * b + k).append(f)
        for it, nm in extras_of(w, u):
            def g(A, it=it, nm=nm):
                A(f"s_cmp_eq_u32 s{S_ITER}, {it}")
                A(f"s_cbranch_scc1 L_x_{nm}_{w}")
                A.label(f"L_x_{nm}_{w}_ret")
            gap(u, 4 * 8 + 3).append(g)
    for u in range(4):
        odd = u & 1
        Tuse = T0 if not odd else (T1A if u == 1 else T1B)
        for b in range(10):
            A.wait_lgkm([f"W{b % 5}"] + ([("T1" if odd else "T0")] if b == 0 else []))
            wr = WR + (b % 5) * 4
            for k, tb in enumerate(range(4) if b % 2 == 0 else range(3, -1, -1)):
                a = acc(b, tb)
                if blocks[b][0] == "v": MF(A, a, Tuse + tb * 4, wr, a)
                else: MF(A, a, wr, Tuse + tb * 4, a)
                for f in G_[40 * u + 4 * b + k]: f(A)
        nv = nA(w) + nB(w)
        ws_ = [f"vmcnt({nv})"] if nv else []
        n = A.lgkm_count_for(["T0", "T1"]) if odd else None
        if n is not None:
            ws_.append(f"lgkmcnt({n})"); A.lgkm_retire(n)
        if ws_: A("s_waitcnt " + " ".join(ws_))
        A("s_barrier")

def p1_extras(A, w):
    wm = w & 3
    dbg = srd(SRD_D)
    A.label(f"L_x_drain_{w}")
    A("s_waitcnt vmcnt(0)")
    A(f"s_branch L_x_drain_{w}_ret")
    def paddr(A):
        A(f"v_and_b32 v{V_PA}, 0x70, v{L16}")
        A(f"v_lshlrev_b32 v{V_PA}, 1, v{V_PA}")
        A(f"buffer_load_dword v{V_POLL}, v{V_PA}, {dbg}, 0 offen sc1")
    A.label(f"L_x_poll_{w}")
    paddr(A)
    A(f"s_branch L_x_poll_{w}_ret")
    A.label(f"L_x_stat_{w}")
    A("s_waitcnt vmcnt(0)")
    A(f"v_cmp_ne_u32 vcc, 32, v{V_POLL}")
    A("s_nop 4")
    A(f"s_cbranch_vccz L_x_stat_{w}_go")
    A("s_sleep 2")
    paddr(A)
    A(f"s_branch L_x_stat_{w}")
    A.label(f"L_x_stat_{w}_go")
    A(f"v_and_b32 v{V_POLL}, 0xf0, v{L16}")
    A(f"v_lshrrev_b32 v{V_POLL}, 1, v{V_POLL}")
    A(f"s_lshl_b32 s{T+1}, s{S_MT}, 11")
    A(f"s_add_u32 s{T+1}, s{T+1}, {WS_STATS + wm * 512}")
    for tb in range(4):
        A(f"buffer_load_dwordx2 v[{V_ST+2*tb}:{V_ST+2*tb+1}], v{V_POLL}, {WS}, s{T+1} offen offset:{tb*128} sc1")
    A(f"s_branch L_x_stat_{w}_ret")
    if w == 7:
        A.label(f"L_x_sig_{w}")
        A(f"s_lshr_b32 s{T+1}, s2, 5")
        A(f"s_lshl_b32 s{T+1}, s{T+1}, 5")
        A(f"v_mov_b32 v{V_POLL}, 1")
        A("s_mov_b64 exec, 1")
        A(f"buffer_atomic_add v{V_POLL}, v0, {dbg}, s{T+1} offen sc1")
        A("s_mov_b64 exec, -1")
        A(f"s_branch L_x_sig_{w}_ret")
        A.label(f"L_x_pfd_{w}")
        make_srd(A, SRD_PF, 100, 101, 3584 * 2048)
        A(f"v_lshrrev_b32 v{V_POLL}, 4, v{L16}")
        A(f"v_min_u32 v{V_POLL}, 55, v{V_POLL}")
        A(f"v_lshlrev_b32 v{V_POLL}, 7, v{V_POLL}")
        A(f"s_mul_i32 s{T+1}, s2, {224*128}")
        for k in range(4):
            A(f"buffer_load_dword v{V_A}, v{V_POLL}, {srd(SRD_PF)}, s{T+1} offen")
            A(f"s_add_u32 s{T+1}, s{T+1}, {56*128}")
        A(f"s_mov_b32 s{SRD_PF}, s{P+6}")
        A(f"s_and_b32 s{SRD_PF+1}, s{P+7}, 0xffff")
        A(f"s_mov_b32 s{SRD_PF+2}, {1024*2048}")
        A(f"v_lshlrev_b32 v{V_POLL}, 3, v{L16}")
        A(f"s_lshl_b32 s{T+1}, s2, 13")
        A(f"buffer_load_dword v{V_A}, v{V_POLL}, {srd(SRD_PF)}, s{T+1} offen")
        A(f"s_branch L_x_pfd_{w}_ret")

def tile_ids(A, H, M, N, TILE, t):
    A(f"s_and_b32 s{t}, s2, 7")
    A(f"s_lshr_b32 s{t+1}, s2, 3")
    A(f"s_and_b32 s{H}, s{t}, 1")
    A(f"s_lshr_b32 s{M}, s{t}, 1")
    A(f"s_lshl_b32 s{M}, s{M}, 2")
    A(f"s_and_b32 s{t}, s{t+1}, 3")
    A(f"s_add_u32 s{M}, s{M}, s{t}")
    A(f"s_lshr_b32 s{N}, s{t+1}, 2")
    A(f"s_lshl_b32 s{TILE}, s{M}, 3")
    A(f"s_add_u32 s{TILE}, s{TILE}, s{N}")
def lin(A, d, terms, base):
    first = True
    for r, sh in terms:
        if first: A(f"s_lshl_b32 s{d}, s{r}, {sh}"); first = False
        else:
            A(f"s_lshl_b32 s{T+5}, s{r}, {sh}")
            A(f"s_add_u32 s{d}, s{d}, s{T+5}")
    A(f"s_add_u32 s{d}, s{d}, {base}")
def off_h(A, d, ph): lin(A, d, [(S_MT, 11), (S_W, 7), (S_J, 2)], F_H + ph * 1024)
def off_k(A, d): lin(A, d, [(S_J, 8), (S_MT, 5), (S_W, 2)], F_K)
def off_o(A, d): lin(A, d, [(S_MT, 9), (S_WM, 7), (S_J, 2)], F_O)
def off_p(A, d, tile): lin(A, d, [(tile, 7), (S_WM, 2)], F_P)
def put(A, soff, vval, vzero): A(f"buffer_store_dword v{vval}, v{vzero}, {WS}, s{soff} offen sc1")

CR, NM, RR, RL, WPR, WPK, TMP = 12, 80, 2, [0, 1, 10, 11], 56, 88, 72
def pk_fma_bc(A, d, a, bc, c):
    p, s = bc & ~1, bc & 1
    A(f"v_pk_fma_f32 v[{d}:{d+1}], v[{a}:{a+1}], v[{p}:{p+1}], v[{c}:{c+1}] op_sel:[0,{s},0] op_sel_hi:[1,{s},1]")
def pk_mul_bc(A, d, a, bc):
    p, s = bc & ~1, bc & 1
    A(f"v_pk_mul_f32 v[{d}:{d+1}], v[{a}:{a+1}], v[{p}:{p+1}] op_sel:[0,{s}] op_sel_hi:[1,{s}]")
def corr(A, a, b, tb):
    for r in (0, 2): pk_fma_bc(A, a + r, CR + 4 * b + r, NM + 2 * tb, a + r)
def gu(A, bg, bu, tb, dst, tmp):
    g = acc(bg, tb); u = acc(bu, tb)
    corr(A, g, bg, tb); corr(A, u, bu, tb)
    for r in range(4): A(f"v_mul_f32 v{tmp+r}, v{g+r}, v{RL[tb]}")
    for r in range(4): A(f"v_exp_f32 v{tmp+r}, v{tmp+r}")
    for r in range(4): A(f"v_fma_f32 v{tmp+r}, v{tmp+r}, v{NM+2*tb+1}, v{NM+2*tb+1}")
    for r in range(4): A(f"v_rcp_f32 v{tmp+r}, v{tmp+r}")
    for r in range(4): A(f"v_mul_f32 v{tmp+r}, v{tmp+r}, v{u+r}")
    cvt(A, dst, tmp); cvt(A, dst + 1, tmp + 2)
def qk_pack(A, tb):
    d = acc(0, tb)
    for hb in range(2):
        a = acc(hb, tb)
        corr(A, a, hb, tb)
        for r in (0, 2): pk_mul_bc(A, a + r, a + r, RR + tb)
        cvt(A, d + 2 * hb, a); cvt(A, d + 2 * hb + 1, a + 2)
def kwork(A, KF, VF, WP, S):
    KV, D, ISEL, ONES, PP, PM, PK, SC = S, S + 48, S + 80, S + 88, S + 92, S + 96, S + 100, S + 108
    PT = PK
    A(f"v_lshrrev_b32 v{SC}, 4, v{L16}")
    A(f"v_lshrrev_b32 v{SC+1}, 4, v{SC}         ; g")
    A(f"v_and_b32 v{SC}, 15, v{SC}              ; c")
    A(f"v_lshrrev_b32 v{SC+2}, 2, v{SC}")
    A(f"v_and_b32 v{SC+3}, 3, v{SC}")
    A(f"v_cmp_eq_u32 vcc, v{SC+2}, v{SC+1}")
    A(f"v_and_b32 v{SC+4}, 1, v{SC+3}")
    A(f"v_lshlrev_b32 v{SC+4}, 4, v{SC+4}")
    A(f"v_mov_b32 v{SC+5}, 0x3f80")
    A(f"v_lshlrev_b32 v{SC+5}, v{SC+4}, v{SC+5}")
    A(f"v_cndmask_b32 v{SC+5}, 0, v{SC+5}, vcc")
    A(f"v_cmp_gt_u32 vcc, 2, v{SC+3}")
    A(f"v_mov_b32 v{ISEL}, 0")
    A(f"v_mov_b32 v{ISEL+1}, 0")
    A(f"v_cndmask_b32 v{ISEL+2}, 0, v{SC+5}, vcc")
    A(f"v_cndmask_b32 v{ISEL+3}, v{SC+5}, 0, vcc")
    A(f"v_mov_b32 v{ISEL+4}, 0")
    A(f"v_mov_b32 v{ISEL+5}, 0")
    for r in range(4): A(f"v_mov_b32 v{ONES+r}, s{S_ONES}")
    for e in range(2):
        MF(A, PK, WP, KF + 4 * e); MF(A, PK + 4, WP + 4, KF + 4 * e)
        A("s_nop 7")
        softmax(A, PK, PP, PM, SC)
        A("s_nop 1")
        dd = D + e * 16
        MF(A, dd, PP, ISEL + 2); MF(A, dd + 4, PP, ISEL); MF(A, dd + 8, PM, ISEL + 2); MF(A, dd + 12, PM, ISEL)
    for fb in range(4):
        for e in range(2):
            if e == 1 and fb == 0: A("s_nop 5")
            dd = D + e * 16 + fb * 4
            cvt(A, PT + fb * 4 + 2 * e, dd); cvt(A, PT + fb * 4 + 2 * e + 1, dd + 2)
    A("s_nop 1")
    for fb in range(4):
        for db in range(3):
            MF(A, KV + (fb * 3 + db) * 4, PT + fb * 4, VF + db * 4 if db < 2 else ONES)
    A("s_nop 7")
    return KV

def p1_epilogue(A, wn):
    st = "sc1"
    A.label(f"L_epi{wn}")
    A.lgkm = []
    A("s_waitcnt vmcnt(0) lgkmcnt(0)")
    stamp(A, 2)
    A(f"v_lshrrev_b32 v54, 8, v{L16}")
    A("v_lshlrev_b32 v52, 4, v54                ; g*16")
    A("v_lshlrev_b32 v54, 8, v54")
    A(f"v_and_b32 v55, 0xf0, v{L16}")
    A("v_lshrrev_b32 v12, 2, v55                ; c*4")
    A("v_lshrrev_b32 v55, 3, v55")
    A("v_add_u32 v54, v54, v55")
    A(f"s_lshl_b32 s{T+3}, s{S_J}, 11")
    for fb in range(2):
        for j in range(8):
            A(f"buffer_load_ushort v{WPR + fb * 8 + j}, v54, {srd(SRD_WP)}, s{T+3} offen offset:{((j & 3) + 16 * (j >> 2)) * 64 + fb * 32}")
    xreduce_g(A, [V_CS, V_CS + 1, V_CS + 2], [13, 14, 15], "add")
    A(f"s_lshl_b32 s{T}, s{S_WM}, 6")
    A(f"s_add_u32 s{T}, s{T}, {CSL + wn * 640}")
    A(f"v_add_u32 v13, s{T}, v12")
    A(f"ds_write_b32 v13, v{V_CS}")
    A(f"ds_write_b32 v13, v{V_CS+1} offset:256")
    A(f"s_cmp_lt_u32 s{S_WM}, 2")
    A(f"s_cselect_b32 s{T}, s{T}, {CSL + 1280 - 512}")
    A(f"v_add_u32 v14, s{T}, v12")
    A(f"ds_write_b32 v14, v{V_CS+2} offset:512")
    for tb in range(4): A(f"v_rcp_f32 v{RR+tb}, v{NM+2*tb+1}")
    A("s_nop 0")
    for tb in range(4): A(f"v_mul_f32 v{RL[tb]}, s{S_C}, v{RR+tb}")
    if wn == 1:
        A(f"s_lshl_b32 s{T}, s{S_W}, 9")
        A(f"s_add_u32 s{T}, s{T}, {STL}")
        A(f"v_lshl_add_u32 v15, v12, 1, s{T}")
        for tb in range(4):
            A(f"v_mov_b32 v{16+2*tb}, v{NM+2*tb}")
            A(f"v_mov_b32 v{17+2*tb}, v{RR+tb}")
            A(f"ds_write_b64 v15, v[{16+2*tb}:{17+2*tb}] offset:{tb*128}")
        A(f"v_lshl_add_u32 v55, v52, 1, s{T}")
        A(f"v_add_u32 v54, {CSL + 640}, v12")
    A(f"v_add_u32 v52, {CSL + wn * 640}, v52")
    lin(A, T + 4, [(S_WM, 12)], HOFF)
    A(f"v_add_u32 v53, s{T+4}, v{L16}")
    lin(A, T, [(S_MT, 14), (S_WM, 12)], WS_ACT)
    A(f"s_mul_i32 s{T+1}, s{S_J}, {3 * 131072}")
    A(f"s_add_u32 s{T+1}, s{T+1}, s{T}")
    A("s_waitcnt lgkmcnt(0)")
    A("s_barrier                ; B1")
    order = [2, 3, 4, 5, 0, 1, 6, 7, 8, 9] if wn == 0 else [4, 5, 6, 7, 0, 1, 8, 9]
    for b in order: A.ds(f"ds_read_b128 v[{CR+4*b}:{CR+4*b+3}], v52 offset:{b*64}", f"C{b}")
    def gupair(b0, soff):
        A.wait_lgkm([f"C{b}" for b in range(b0, b0 + 4)])
        for tb in range(4):
            d = acc(b0, tb)
            gu(A, b0 + 2, b0 + 3, tb, acc(b0 + 2, tb), TMP + 4)
            gu(A, b0, b0 + 1, tb, d, TMP)
            A(f"v_mov_b32 v{d+2}, v{acc(b0+2, tb)}")
            A(f"v_mov_b32 v{d+3}, v{acc(b0+2, tb)+1}")
            A(f"buffer_store_dwordx4 v[{d}:{d+3}], v{L16}, {WS}, s{soff} offen offset:{tb*1024} {st}")
    if wn == 0:
        gupair(2, T + 1)
        A(f"s_add_u32 s{T+1}, s{T+1}, 131072")
        gupair(6, T + 1)
        for tb in range(4): qk_pack(A, tb)
        A("s_barrier                ; B2")
        for k in range(4): A(f"ds_read_b128 v[{12+4*k}:{15+4*k}], v53 offset:{k*1024}")
        KF, VF = 12, 20
    else:
        A.ds(f"ds_read_b32 v{CR+8}, v54 offset:128", "CV")
        A.ds(f"ds_read_b32 v{CR+9}, v54 offset:192", "CV")
        A(f"s_add_u32 s{T+1}, s{T+1}, {2*131072}")
        gupair(4, T + 1)
        A.wait_lgkm(["C0", "C1"])
        for tb in (2, 3, 0, 1): qk_pack(A, tb)
        A(f"ds_write_b128 v53, v[{acc(0,2)}:{acc(0,2)+3}]")
        A(f"ds_write_b128 v53, v[{acc(0,3)}:{acc(0,3)+3}] offset:1024")
        for pair in (1, 0):
            for e in range(2):
                tb = 2 * pair + e
                A.ds(f"ds_read_b128 v[{112+8*e}:{115+8*e}], v55 offset:{tb*128}", f"S{e}")
                A.ds(f"ds_read_b128 v[{116+8*e}:{119+8*e}], v55 offset:{tb*128+16}", f"S{e}")
            for e in range(2):
                tb = 2 * pair + e
                A.wait_lgkm(["CV", f"S{e}"])
                for db in range(2):
                    a = acc(2 + db, tb)
                    for r in range(4): A(f"v_fma_f32 v{a+r}, v{CR+8+db}, v{112+8*e+2*r}, v{a+r}")
                    for r in range(4): A(f"v_mul_f32 v{a+r}, v{a+r}, v{113+8*e+2*r}")
                    d = acc(2 + db, 2 * pair) + 2 * e
                    cvt(A, d, a); cvt(A, d + 1, a + 2)
            if pair == 1:
                A("s_nop 0")
                A(f"ds_write_b128 v53, v[{acc(2,2)}:{acc(2,2)+3}] offset:2048")
                A(f"ds_write_b128 v53, v[{acc(3,2)}:{acc(3,2)+3}] offset:3072")
        A("s_waitcnt lgkmcnt(0)")
        A.lgkm = []
        A("s_barrier                ; B2")
        A(f"s_lshr_b32 s{T+2}, s{S_J}, 1")
        A(f"s_add_u32 s{T+2}, s{T+2}, 96")
        A(f"s_lshl_b32 s{T+2}, s{T+2}, 17")
        A(f"s_add_u32 s{T+2}, s{T+2}, s{T}")
        A(f"s_and_b32 s{T+3}, s{S_J}, 1")
        A(f"s_lshl_b32 s{T+3}, s{T+3}, 3")
        A(f"s_add_u32 s{T+2}, s{T+2}, s{T+3}")
        for tb in range(4):
            d = acc(8, tb)
            gu(A, 8, 9, tb, d, TMP + 4 * (tb & 1))
            A(f"buffer_store_dwordx2 v[{d}:{d+1}], v{L16}, {WS}, s{T+2} offen offset:{tb*1024} {st}")
        for db in range(2):
            for r in range(4): A(f"v_mov_b32 v{20+4*db+r}, v{acc(2+db,0)+r}")
        KF, VF = acc(0, 0), 20
    A("s_waitcnt vmcnt(8) lgkmcnt(0)")
    for r in range(8): A(f"v_lshl_or_b32 v{WPK+r}, v{WPR+2*r+1}, 16, v{WPR+2*r}")
    KV = kwork(A, KF, VF, WPK, 124)
    off_h(A, T, 0)
    A("v_mov_b32 v21, 1")
    A("v_mov_b32 v22, 0")
    A(f"s_mul_i32 s{T+1}, s{S_W}, {12*1024}")
    A(f"v_add_u32 v20, s{T+1}, v{L16}")
    for blk in range(12): A(f"ds_write_b128 v20, v[{KV+blk*4}:{KV+blk*4+3}] offset:{blk*1024}")
    A("s_waitcnt vmcnt(4)")
    A("s_mov_b64 exec, 1")
    put(A, T, 21, 22)
    A("s_mov_b64 exec, -1")
    A("s_waitcnt lgkmcnt(0)")
    A("s_barrier                ; B3")
    A(f"s_lshr_b32 s{T}, s{S_W}, 1")
    A(f"s_mul_i32 s{T}, s{T}, 3")
    A(f"s_and_b32 s{T+1}, s{S_W}, 1")
    A(f"s_add_u32 s{T}, s{T}, s{T+1}")
    A(f"s_lshl_b32 s{T}, s{T}, 10")
    A(f"v_add_u32 v20, s{T}, v{L16}")
    A(f"v_add_u32 v22, {4*12*1024}, v20")
    for p in range(8): A(f"ds_read_b128 v[{124+4*p}:{127+4*p}], v{20 if p < 4 else 22} offset:{(p%4)*12*1024}")
    if wn == 0:
        A(f"s_mul_i32 s{T}, s{S_W}, 3072")
        A(f"v_add_u32 v21, s{T}, v{L16}")
        A(f"v_add_u32 v23, {4*12*1024}, v21")
        for p in range(8): A(f"ds_read_b128 v[{156+4*p}:{159+4*p}], v{21 if p < 4 else 23} offset:{(p%4)*12*1024 + 2048}")
    A(f"s_lshl_b32 s{T}, s{S_J}, 3")
    A(f"s_add_u32 s{T}, s{T}, s{S_MT}")
    A(f"s_mul_i32 s{T}, s{T}, {KVP_SZ}")
    A(f"s_add_u32 s{T}, s{T}, {WS_KVP}")
    A(f"s_lshl_b32 s{T+1}, s{S_W}, 10")
    A(f"s_add_u32 s{T+1}, s{T+1}, s{T}")
    A("s_waitcnt lgkmcnt(0)")
    for base in ((124, 156) if wn == 0 else (124,)):
        for s_ in (16, 8, 4):
            for r in range(0, s_, 2):
                A(f"v_pk_add_f32 v[{base+r}:{base+r+1}], v[{base+r}:{base+r+1}], v[{base+s_+r}:{base+s_+r+1}]")
    A(f"buffer_store_dwordx4 v[124:127], v{L16}, {WS}, s{T+1} offen {st}")
    if wn == 0:
        A(f"s_lshl_b32 s{T+1}, s{S_W}, 6")
        A(f"s_add_u32 s{T+1}, s{T+1}, s{T}")
        A(f"s_add_u32 s{T+1}, s{T+1}, 8192")
        A(f"v_lshrrev_b32 v21, 4, v{L16}")
        A("v_and_b32 v22, 15, v21")
        A("v_cmp_eq_u32 vcc, 0, v22")
        A(f"s_and_saveexec_b64 s[{T+2}:{T+3}], vcc")
        A(f"buffer_store_dwordx4 v[156:159], v21, {WS}, s{T+1} offen {st}")
        A("s_mov_b64 exec, -1")
    stamp(A, 3)
    stamp_store(A, WS_STAMP)
    A(f"s_branch L_p2_{'prod' if wn == 0 else 'cons'}")

def p1_prologue(A):
    A("s_cmp_ge_u32 s2, 256")
    A("s_cbranch_scc1 L_done")
    stamp(A, 0)
    A(f"s_load_dwordx8 s[{P}:{P+7}], s[0:1], 0")
    A(f"s_load_dwordx4 s[{P+8}:{P+11}], s[0:1], 40")
    A(f"s_load_dwordx4 s[96:99], s[0:1], 72")
    A(f"s_load_dwordx2 s[100:101], s[0:1], 56")
    A(f"s_load_dwordx2 s[{P+12}:{P+13}], s[0:1], 64")
    A("v_lshrrev_b32 v1, 6, v0")
    A("v_and_b32 v10, 63, v0             ; lane")
    A(f"v_readfirstlane_b32 s{S_W}, v1")
    A(f"s_lshl_b32 s{T}, s2, 3")
    A(f"v_add_u32 v60, s{T}, v1")
    A("v_lshlrev_b32 v61, 11, v60")
    A("v_lshl_add_u32 v61, v10, 4, v61")
    A(f"v_lshlrev_b32 v{L16}, 4, v10")
    A(f"s_and_b32 s{S_WM}, s{S_W}, 3")
    A(f"s_lshr_b32 s{S_WN}, s{S_W}, 2")
    A(f"s_and_b32 s{T}, s2, 7")
    A(f"s_lshr_b32 s{T+1}, s2, 3")
    A(f"s_and_b32 s{S_J}, s{T+1}, 3")
    A(f"s_lshl_b32 s{T}, s{T}, 2")
    A(f"s_add_u32 s{S_J}, s{S_J}, s{T}")
    A(f"s_lshr_b32 s{S_MT}, s{T+1}, 2")
    lin(A, T, [(S_MT, 8), (S_WN, 6), (S_WM, 2)], 0)
    A("v_bfe_u32 v11, v10, 3, 1")
    A("v_lshrrev_b32 v12, 4, v10         ; g")
    A("v_lshl_add_u32 v11, v12, 4, v11")
    A(f"v_add_u32 v11, s{T}, v11")
    A("v_lshlrev_b32 v11, 11, v11")
    A("v_and_b32 v13, 7, v10")
    A(f"v_lshl_add_u32 v{V_A}, v13, 4, v11")
    A(f"s_mul_i32 s{S_APAGE}, s{S_W}, {2 * A_PAGE}")
    A(f"s_lshl_b32 s{T}, s{S_W}, 6")
    A(f"v_add_u32 v13, s{T}, v10")
    A("v_mul_u32_u24 v14, 4682, v13")
    A("v_lshrrev_b32 v14, 16, v14")
    A("v_mul_u32_u24 v15, 14, v14")
    A("v_sub_u32 v15, v13, v15")
    A("v_mul_u32_u24 v14, 7168, v14")
    A("v_lshl_add_u32 v14, v15, 4, v14")
    A(f"s_mul_i32 s{T}, s{S_J}, 224")
    A(f"v_add_u32 v{V_B0}, s{T}, v14")
    A(f"v_mov_b32 v{V_B1}, v{V_B0}")
    A("v_lshrrev_b32 v15, 2, v10")
    A("v_mul_u32_u24 v15, 6144, v15")
    A("v_lshrrev_b32 v16, 3, v10")
    A("v_and_b32 v16, 2, v16")
    A("v_and_b32 v17, 3, v10")
    A("v_xor_b32 v16, v16, v17")
    A("v_lshl_add_u32 v15, v16, 4, v15")
    A(f"s_lshr_b32 s{T}, s{S_W}, 1")
    A(f"s_lshl_b32 s{T}, s{T}, 11")
    A(f"s_and_b32 s{T+1}, s{S_W}, 1")
    A(f"s_mul_i32 s{T+1}, s{T+1}, {16*6144}")
    A(f"s_add_u32 s{T}, s{T}, s{T+1}")
    A(f"s_lshl_b32 s{T+1}, s{S_J}, 6")
    A(f"s_add_u32 s{T}, s{T}, s{T+1}")
    A(f"v_add_u32 v{V_B2}, s{T}, v15")
    A(f"s_lshl_b32 s{S_BLDS[2]}, s{S_W}, 10")
    A(f"s_add_u32 s{S_BLDS[0]}, s{S_BLDS[2]}, 6144")
    A(f"s_add_u32 s{S_BLDS[1]}, s{S_BLDS[2]}, 13312")
    for k in range(3):
        A(f"s_mov_b32 s{S_BOFF[k]}, 0")
        A(f"s_mov_b32 s{S_BINC[k]}, {32 * (6144 if k == 2 else 7168)}")
    A(f"s_lshl_b32 s{T+3}, s{S_W}, 11")
    A(f"s_add_u32 s{T+3}, s{T+3}, {LDS_B + 3 * B_STAGE}")
    A(f"v_add_u32 v62, s{T+3}, v{L16}")
    A(f"s_mov_b32 m0, s{T+3}")
    A("s_waitcnt lgkmcnt(0)")
    make_srd(A, SRD_A, P, P + 1, 4 * MB)
    make_srd(A, SRD_B0, P + 8, P + 9, 1024 * 7168)
    make_srd(A, SRD_B1, P + 10, P + 11, 1024 * 7168)
    make_srd(A, SRD_B2, P + 2, P + 3, 1024 * 6144)
    A(f"s_cmp_eq_u32 s{S_W}, 7")
    A("s_cbranch_scc1 L_pro7")
    A(f"buffer_load_dwordx4 v61, {srd(SRD_A)}, 0 offen lds")
    A(f"buffer_load_dwordx4 v61, {srd(SRD_A)}, 0 offen offset:1024 lds")
    A(f"s_cmp_eq_u32 s{S_W}, 6")
    A("s_cbranch_scc1 L_pro6")
    NPF = int(opt("npf", 3))
    PF0 = int(opt("pf0", 3))
    for cls, w in (("", 0), ("L_pro6", 6)):
        if cls: A.label(cls)
        def run(ops):
            for f0, f1 in ops:
                f0(A); A("s_nop 0"); f1(A)
        pa = lambda stage: [adma(h, e, stage & 1, stage * 128) for h in range(2) for e in range(nA(w))]
        pb = lambda stage: [bdma(k, stage) for k in range(nB(w))]
        run(pa(0)); run(pb(0)); run(pb(1)); run(pa(1)); run(pb(2))
        A(f"s_mov_b32 s{T+4}, {w}")
        A("s_branch L_pro_common")
    A.label("L_pro7")
    A(f"buffer_load_dwordx4 v[64:67], v61, {srd(SRD_A)}, 0 offen")
    A(f"buffer_load_dwordx4 v[68:71], v61, {srd(SRD_A)}, 0 offen offset:1024")
    A("v_min_u32 v13, 13, v10")
    A(f"s_mul_i32 s{T}, s2, 14")
    A(f"v_add_u32 v13, s{T}, v13")
    A(f"v_lshlrev_b32 v{V_B0}, 7, v13")
    A(f"v_mov_b32 v{V_B1}, v{V_B0}")
    A("v_min_u32 v13, 11, v10")
    A(f"s_mul_i32 s{T}, s2, 12")
    A(f"v_add_u32 v13, s{T}, v13")
    A(f"v_lshlrev_b32 v{V_B2}, 7, v13")
    for k in range(3):
        A(f"s_mov_b32 s{S_BOFF[k]}, {PF0 * 32 * (6144 if k == 2 else 7168)}")
        A(f"s_mov_b32 s{S_BINC[k]}, {64 * (6144 if k == 2 else 7168)}")
    for i in range(NPF):
        for k in range(3): pfload(A, k)
    A(f"s_mov_b32 s{T+4}, 7")
    A.label("L_pro_common")
    make_srd(A, SRD_WS, 98, 99, WS_BYTES)
    make_srd(A, SRD_D, 96, 97, 256)
    make_srd(A, SRD_WP, P + 4, P + 5, 65536)
    A(f"s_mov_b32 s{S_C}, {NLOG2E}")
    A(f"s_mov_b32 s{S_C+1}, {LOG2E}")
    A(f"s_mov_b32 s{S_ONES}, 0x3f803f80")
    A(f"s_mov_b32 s{S_HI}, 0xffff0000")
    A("v_and_b32 v16, 15, v10")
    A("v_lshrrev_b32 v17, 2, v16")
    A("v_lshl_add_u32 v17, v12, 2, v17   ; 4g + (i>>2)")
    A("v_and_b32 v18, 3, v16")
    A("v_lshlrev_b32 v18, 3, v18")
    A("v_mul_u32_u24 v19, 224, v17")
    A("v_add_u32 v19, v19, v18")
    A(f"v_add_u32 v{V_BG}, {LDS_B}, v19")
    A("v_lshl_add_u32 v19, v17, 6, v18")
    A("v_and_b32 v20, 1, v12")
    A("v_lshl_add_u32 v19, v20, 5, v19")
    A(f"v_add_u32 v{V_BQ0}, {LDS_B}, v19")
    A(f"v_xor_b32 v{V_BQ1}, 32, v{V_BQ0}")
    for a_, b_ in ((V_BG2, V_BG), (V_BQ02, V_BQ0), (V_BQ12, V_BQ1)): A(f"v_add_u32 v{a_}, {2*B_STAGE}, v{b_}")
    A("v_lshrrev_b32 v19, 1, v16")
    A(f"s_lshl_b32 s{T}, s{S_WM}, 3")
    A(f"v_add_u32 v19, s{T}, v19")
    A(f"v_mul_u32_u24 v19, {A_PAGE}, v19")
    A("v_and_b32 v20, 1, v16")
    A("v_lshl_add_u32 v19, v20, 7, v19")
    A(f"v_lshl_add_u32 v{V_AR}, v12, 3, v19")
    A(f"s_mov_b32 s{S_AK}, 256")
    A(f"s_mov_b32 s{S_AKE}, 256")
    for r in range(ACC, 256): A(f"v_mov_b32 v{r}, 0")
    for r in range(3): A(f"v_mov_b32 v{V_CS+r}, 0")
    for r in range(4): A(f"v_mov_b32 v{WR+16+r}, 0")
    A("v_mov_b32 v0, 0")
    off_h(A, T, 0)
    A(f"v_mov_b32 v40, s{T}")
    A(f"s_add_u32 s{T}, s{T}, 1024")
    A(f"v_writelane_b32 v40, s{T}, 1")
    off_k(A, T)
    A(f"v_writelane_b32 v40, s{T}, 2")
    off_o(A, T)
    tile_ids(A, 76, 77, 75, 74, T + 1)
    off_p(A, T + 1, 74)
    A(f"s_cmp_eq_u32 s{S_WN}, 0")
    A(f"s_cselect_b32 s{T}, s{T}, s{T+1}")
    A(f"v_writelane_b32 v40, s{T}, 3")
    A(f"s_cselect_b32 s{T+2}, 15, 7")
    A("s_cmp_eq_u32 s76, 1")
    A(f"s_cselect_b32 s{T+2}, 15, s{T+2}")
    def by_class(n0, n6, n7, tag, extra7=None):
        A(f"s_cmp_eq_u32 s{T+4}, 0")
        A(f"s_cbranch_scc1 L_c0_{tag}")
        A(f"s_cmp_eq_u32 s{T+4}, 6")
        A(f"s_cbranch_scc1 L_c6_{tag}")
        if n7 is not None: A(f"s_waitcnt vmcnt({n7})")
        A(f"s_branch L_c7_{tag}")
        A.label(f"L_c0_{tag}")
        A(f"s_waitcnt vmcnt({n0})")
        A.label(f"L_c6_{tag}")
        A(f"s_waitcnt vmcnt({n6})")
        if extra7: extra7()
        A.label(f"L_c7_{tag}")
    def rowread():
        A("ds_read_b128 v[64:67], v62")
        A("ds_read_b128 v[68:71], v62 offset:1024")
        A("s_waitcnt lgkmcnt(0)")
    by_class(17, 22, 3 * NPF, "r", rowread)
    for i in range(8):
        A(f"v_lshlrev_b32 v{16+2*i}, 16, v{64+i}")
        A(f"v_and_b32 v{17+2*i}, s{S_HI}, v{64+i}")
    for s_ in (8, 4, 2):
        for r in range(0, s_, 2):
            src = 16 if s_ == 8 else 44
            A(f"v_pk_add_f32 v[{44+r}:{45+r}], v[{src+r}:{src+r+1}], v[{src+s_+r}:{src+s_+r+1}]")
    A("v_add_f32 v32, v44, v45")
    wave_allreduce(A, 32, 33)
    A("v_mul_f32 v32, 0xba800000, v32     ; -mean")
    for r in range(0, 16, 2):
        A(f"v_pk_add_f32 v[{16+r}:{17+r}], v[{16+r}:{17+r}], v[32:33] op_sel_hi:[1,0]")
    A("v_pk_mul_f32 v[36:37], v[16:17], v[16:17]")
    for r in range(2, 16, 2):
        A(f"v_pk_fma_f32 v[36:37], v[{16+r}:{17+r}], v[{16+r}:{17+r}], v[36:37]")
    A("v_add_f32 v35, v36, v37")
    wave_allreduce(A, 35, 33)
    A("v_mul_f32 v35, 0x3a800000, v35     ; var")
    A("v_cvt_pk_bf16_f32 v36, v32, v35")
    A("v_lshlrev_b32 v38, 16, v36")
    A(f"v_and_b32 v35, s{S_HI}, v36")
    A("v_add_f32 v35, 0x3727c5ac, v35")
    A("v_cvt_pk_bf16_f32 v35, v35, v35")
    A("v_lshlrev_b32 v35, 16, v35")
    A("v_sqrt_f32 v35, v35")
    A("s_nop 0")
    A("v_cvt_pk_bf16_f32 v35, v35, v35")
    A("v_lshlrev_b32 v39, 16, v35")
    A("v_lshlrev_b32 v60, 3, v60")
    by_class(7, 10, None, "i")
    A(f"s_mov_b32 s{T}, {WS_STATS}")
    A("s_mov_b64 exec, 1")
    A(f"buffer_store_dwordx2 v[38:39], v60, {WS}, s{T} offen sc1")
    A(f"s_mov_b32 exec_lo, s{T+2}")
    A(f"buffer_store_dword v0, v40, {WS}, 0 offen sc1")
    A("s_mov_b64 exec, -1")
    A("s_barrier")
    for ts, ks in ((T0, 0), (T1A, 1)):
        for tb in range(4):
            for t in range(2): tread(A, 0, ks, tb, ts, "T", t)
    A(f"s_cmp_eq_u32 s{S_WN}, 1")
    A("s_cbranch_scc1 L_pro_w1")
    for wn in range(2):
        if wn: A.label("L_pro_w1")
        for b in range(4):
            for t in range(2): wread(A, wn, b, 0, WR + b * 4, "W", t)
        A("s_waitcnt lgkmcnt(8)")
        A("s_barrier")
        stamp(A, 1)
        A("s_waitcnt lgkmcnt(0)")
        A(f"s_mov_b32 s{S_ITER}, 8")
        for wm in range(1, 4):
            A(f"s_cmp_eq_u32 s{S_WM}, {wm}")
            A(f"s_cbranch_scc1 L_loop{wn*4+wm}")
        for wm in range(4):
            w = wn * 4 + wm
            B = Asm(); p1_body(B, w); entry = list(B.lgkm)
            A.lgkm = list(entry)
            A.label(f"L_loop{w}")
            p1_body(A, w)
            assert A.lgkm == entry
            A(f"s_sub_u32 s{S_ITER}, s{S_ITER}, 1")
            A(f"s_cmp_lg_u32 s{S_ITER}, 0")
            A(f"s_cbranch_scc1 L_loop{w}")
            if wm == 1:
                for f in cs_ops(9, 1): f(A)
            A(f"s_branch L_epi{wn}")
            p1_extras(A, w)
        p1_epilogue(A, wn)

def o_tb(e, soff):
    B = Asm()
    PK, PP, PM, SC, O, N0, N1, DN = 64, 72, 76, 96, 24, 80, 84, 88
    q = 120 + 4 * e
    MF(B, PK, 56, q); MF(B, PK + 4, 60, q)
    B("s_nop 7")
    softmax(B, PK, PP, PM, SC)
    B("s_waitcnt lgkmcnt(0)")
    B("s_nop 1")
    MF(B, DN, 48, PP); MF(B, N0, 32, PP); MF(B, N1, 40, PP)
    MF(B, DN, 52, PM, DN); MF(B, N0, 36, PM, N0); MF(B, N1, 44, PM, N1)
    B("s_nop 7")
    B(f"v_add_f32 v{DN}, 0x358637bd, v{DN}")
    B(f"v_rcp_f32 v{DN}, v{DN}")
    B("s_nop 0")
    for r in range(8): B(f"v_mul_f32 v{N0+r}, v{N0+r}, v{DN}")
    d = O + 4 * (e & 1)
    for r in range(4): cvt(B, d + r, N0 + 2 * r)
    B(f"buffer_store_dwordx4 v[{d}:{d+3}], v4, {WS}, s{soff} offen offset:{e*1024} sc1")
    cut = max(i for i, l in enumerate(B.lines) if "v_exp_f32" in l) + 1
    return B.lines[:cut], B.lines[cut:]

def phase2(A):
    SPL = int(opt("h1n", 62)); NB1 = SPL - 32; NB0 = 32 - NB1; N0 = 32 + NB0 + 16 + 32
    assert NB0 % 2 == 0 and NB0 >= 0
    H, M, N, TILE = 20, 21, 22, 23
    SRD_X, SRD_B, SRD_OUT = 8, 12, 16
    S_SLOT, S_DELTA = 24, 25
    AOFF, BOFF, AINC, BINC, POS, EVT, LDS, B2, LA, LB = 26, 27, 28, 29, 30, 31, 32, 33, 34, 35
    NIT, T2, S_OO, RET = 60, 56, 58, 76
    VT, VW = 1, 2
    TS = [8, 24]; WSR = [40, 56]; AC = 72; XR = 136; KG = 160
    KI = [int(x) for x in opt("ki", "1,3,6").split(",")]
    OS = KI[2] + 1
    def ac(cb, tb): return AC + (cb * 4 + tb) * 4
    def common(A):
        stamp(A, 0)
        A(f"v_mov_b32 v4, v{L16}")
        A("v_lshrrev_b32 v3, 4, v4")
        A("v_lshrrev_b32 v5, 4, v3           ; g")
        A("v_and_b32 v6, 15, v3")
        A("v_lshlrev_b32 v12, 2, v3          ; lane*4")
        A("v_mov_b32 v13, 0")
        A("v_mov_b32 v14, 1")
        tile_ids(A, H, M, N, TILE, T)
        A(f"s_cmp_eq_u32 s{H}, 1")
        A(f"s_cselect_b32 s{NIT}, {SPL // 2}, {N0 // 2}")
    def own_flags(A):
        off_h(A, T, 1); off_k(A, T + 1)
        A("s_waitcnt vmcnt(0)")
        A("s_mov_b64 exec, 1")
        put(A, T, 14, 13); put(A, T + 1, 14, 13)
        A("s_mov_b64 exec, -1")
    def poll64(A, soff, lab, vaddr, vdst):
        A.label(lab)
        A(f"buffer_load_dword v{vdst}, v{vaddr}, {WS}, s{soff} offen sc1")
        A("s_waitcnt vmcnt(0)")
        A(f"v_cmp_ne_u32 vcc, 1, v{vdst}")
        A("s_nop 4")
        A(f"s_cbranch_vccz {lab}_ok")
        A("s_sleep 1")
        A(f"s_branch {lab}")
        A.label(lab + "_ok")
    def hf_query(A, d, ph, wn):
        A(f"s_lshr_b32 s{d}, s{M}, 1")
        A(f"s_lshl_b32 s{d}, s{d}, 11")
        A(f"s_and_b32 s{d+1}, s{M}, 1")
        A(f"s_lshl_b32 s{d+1}, s{d+1}, 8")
        A(f"s_add_u32 s{d}, s{d}, s{d+1}")
        A(f"s_add_u32 s{d}, s{d}, {F_H + ph * 1024 + wn * 512}")
    A.label("L_p2_cons")
    common(A)
    A("s_barrier                 ; B4")
    make_srd(A, SRD_X, P + 0, P + 1, 4 * MB)
    make_srd(A, SRD_OUT, P + 12, P + 13, 4 * MB)
    A("v_mov_b32 v158, v12")
    S_CM, S_CN, CI = 26, 27, 28
    A(f"s_and_b32 s{S_CM}, s{S_WM}, 1")
    A(f"s_lshr_b32 s{S_CN}, s{S_WM}, 1")
    A(f"s_lshl_b32 s{T}, s{S_CM}, 12")
    A(f"v_add_u32 v{VT}, s{T}, v4")
    A("v_and_b32 v7, 1, v5")
    A("v_lshrrev_b32 v8, 2, v6")
    A("v_lshl_add_u32 v7, v7, 2, v8")
    A("v_mul_u32_u24 v7, 1056, v7")
    A("v_lshrrev_b32 v8, 1, v5")
    A("v_lshl_add_u32 v7, v8, 8, v7")
    A("v_and_b32 v8, 3, v6")
    A("v_lshl_add_u32 v7, v8, 3, v7")
    lin(A, T, [(S_CN, 7)], 8192)
    A(f"v_add_u32 v{VW}, s{T}, v7")
    lin(A, T, [(M, 7), (S_CM, 6)], 0)
    A(f"v_add_u32 v7, s{T}, v6")
    A("v_lshlrev_b32 v7, 11, v7")
    lin(A, T, [(N, 8), (S_CN, 7)], 0)
    A(f"v_add_u32 v7, s{T}, v7")
    for tb in range(1, 4): A(f"s_mov_b32 s{60+tb}, {tb * 32768}")
    sof = lambda tb: "0" if tb == 0 else f"s{60+tb}"
    A("v_lshl_add_u32 v3, v5, 3, v7")
    for r in range(64): A(f"v_mov_b32 v{AC+r}, 0")
    A(f"s_mov_b32 s{S_SLOT}, 0")
    A(f"s_mov_b32 s{CI}, 0")
    A(f"s_mov_b32 s{EVT}, {KI[0]}")
    own_flags(A)
    if opt("prio"): A("s_setprio 1")
    A("s_barrier")
    A.lgkm = []
    def reads(st):
        out = []
        for k in range(4):
            out.append(lambda A, k=k: A.ds(f"ds_read_b128 v[{TS[st]+4*k}:{TS[st]+4*k+3}], v{VT} offset:{k*1024}", f"S{st}"))
            for tt in range(2):
                out.append(lambda A, k=k, tt=tt: A.ds(f"ds_read_b64_tr_b16 v[{WSR[st]+4*k+2*tt}:{WSR[st]+4*k+2*tt+1}], v{VW} offset:{tt*512 + k*32}", f"S{st}"))
        return out
    def adv0(A):
        A(f"s_add_u32 s{S_SLOT}, s{S_SLOT}, 1")
        A(f"s_cmp_eq_u32 s{S_SLOT}, {NSLOT}")
        A(f"s_cselect_b32 s{S_SLOT}, 0, s{S_SLOT}")
        A(f"s_mov_b32 s{S_DELTA}, {SLOT}")
        A(f"s_cselect_b32 s{S_DELTA}, {(-(NSLOT-1) * SLOT) & 0xffffffff}, s{S_DELTA}")
    def adv1(A):
        A(f"v_add_u32 v{VT}, s{S_DELTA}, v{VT}")
        A(f"v_add_u32 v{VW}, s{S_DELTA}, v{VW}")
    for f in reads(0): f(A)
    adv0(A); adv1(A)
    stamp(A, 1)
    if opt("stamp"): A("s_waitcnt lgkmcnt(0)")
    entry = list(A.lgkm)
    A.label("L_p2_cloop")
    for e in range(2):
        A.wait_lgkm(f"S{e}")
        fill = reads(1 - e) + [adv0, adv1]
        m = 0
        for cb in range(4):
            for tb in (range(4) if cb % 2 == 0 else range(3, -1, -1)):
                MF(A, ac(cb, tb), WSR[e] + 4 * cb, TS[e] + 4 * tb, ac(cb, tb))
                if m < len(fill): fill[m](A)
                m += 1
    assert A.lgkm == entry[len(entry)-len(A.lgkm):]
    A(f"s_cmp_eq_u32 s{CI}, s{EVT}")
    A("s_cbranch_scc1 L_p2_cevt")
    A.label("L_p2_cevt_ret")
    A(f"s_add_u32 s{CI}, s{CI}, 1")
    A(f"s_cmp_lg_u32 s{CI}, s{NIT}")
    A("s_barrier")
    A("s_cbranch_scc1 L_p2_cloop")
    A("s_waitcnt vmcnt(0) lgkmcnt(0)")
    stamp(A, 2)
    A(f"s_cmp_eq_u32 s{H}, 1")
    A("s_cbranch_scc0 L_p2_fin")
    lin(A, T, [(TILE, 16), (S_WM, 14)], WS_PART)
    A("s_nop 4")
    for blk in range(16):
        d = XR + blk * 2; a = AC + blk * 4
        A(f"v_lshlrev_b32 v8, 16, v{d}")
        A(f"v_and_b32 v9, s{S_HI}, v{d}")
        A(f"v_lshlrev_b32 v10, 16, v{d+1}")
        A(f"v_and_b32 v11, s{S_HI}, v{d+1}")
        for r in range(4): A(f"v_add_f32 v{a+r}, v{a+r}, v{8+r}")
        if blk and blk % 4 == 0: A(f"s_add_u32 s{T}, s{T}, 4096")
        A(f"buffer_store_dwordx4 v[{a}:{a+3}], v4, {WS}, s{T} offen offset:{(blk%4)*1024} sc1")
    off_p(A, T, TILE)
    A("v_mov_b32 v13, 0")
    A("v_mov_b32 v14, 1")
    A("s_waitcnt vmcnt(0)")
    A("s_mov_b64 exec, 1")
    put(A, T, 14, 13)
    A("s_branch L_p2_end")
    A.label("L_p2_fin")
    A(f"s_add_u32 s{T}, s{S_WM}, {N0 % NSLOT}")
    A(f"s_cmp_ge_u32 s{T}, {NSLOT}")
    A(f"s_cselect_b32 s{T+1}, {NSLOT}, 0")
    A(f"s_sub_u32 s{T}, s{T}, s{T+1}")
    A(f"s_mul_i32 s{T}, s{T}, {SLOT}")
    A(f"v_add_u32 v1, s{T}, v4")
    A("v_and_b32 v8, 1, v5")
    A("v_lshlrev_b32 v8, 5, v8")
    A("v_lshrrev_b32 v9, 1, v5")
    A("v_lshl_add_u32 v8, v9, 4, v8")
    A("v_add_u32 v7, v7, v8")
    A("s_barrier")
    for blk in range(16):
        A.ds(f"ds_read_b128 v[{XR+4*blk}:{XR+4*blk+3}], v1 offset:{blk * 1024 if blk < 8 else 8192 + (blk - 8) * 1056}", f"P{blk}")
    for q in range(2):
        for tb in range(4):
            d = 8 + (q * 4 + tb) * 4
            A.wait_lgkm([f"P{(2*q)*4+tb}", f"P{(2*q+1)*4+tb}"])
            for e in range(2):
                cb = 2 * q + e; a = ac(cb, tb); p = XR + (cb * 4 + tb) * 4
                for r in range(4): A(f"v_add_f32 v{a+r}, v{a+r}, v{p+r}")
                cvt(A, d + 2 * e, a); cvt(A, d + 2 * e + 1, a + 2)
            A("s_nop 1")
            A(f"v_permlane16_swap_b32 v{d}, v{d+2}")
            A(f"v_permlane16_swap_b32 v{d+1}, v{d+3}")
            A(f"buffer_store_dwordx4 v[{d}:{d+3}], v7, {srd(SRD_OUT)}, {sof(tb)} offen offset:{q*64}")
    A("s_branch L_p2_end")
    A.label("L_p2_cevt")
    A(f"s_cmp_eq_u32 s{CI}, {KI[1]}")
    A("s_cbranch_scc1 L_p2_c1")
    A(f"s_cmp_eq_u32 s{CI}, {KI[2]}")
    A("s_cbranch_scc1 L_p2_c2")
    A(f"s_cmp_eq_u32 s{CI}, {KI[0]}")
    A("s_cbranch_scc0 L_p2_c3")
    lin(A, T2, [(S_J, 8)], F_K)
    A(f"buffer_load_dword v159, v158, {WS}, s{T2} offen sc1")
    A(f"s_mov_b32 s{EVT}, {KI[1]}")
    A("s_branch L_p2_cevt_ret")
    A.label("L_p2_c1")
    A("s_waitcnt vmcnt(0)")
    A("v_cmp_ne_u32 vcc, 1, v159")
    A("s_nop 4")
    A("s_cbranch_vccz L_p2_c1_ok")
    poll64(A, T2, "L_p2_c1", 158, 159) if False else None
    A("s_sleep 1")
    A(f"buffer_load_dword v159, v158, {WS}, s{T2} offen sc1")
    A("s_branch L_p2_c1")
    A.label("L_p2_c1_ok")
    A("v_lshlrev_b32 v159, 4, v5          ; g*16")
    A(f"s_mul_i32 s{T}, s{S_J}, {8 * KVP_SZ}")
    A(f"s_add_u32 s{T}, s{T}, {WS_KVP}")
    A(f"s_lshl_b32 s{T+1}, s{S_WM}, 11")
    A(f"s_add_u32 s{T+1}, s{T+1}, s{T}")
    for p in range(8):
        A(f"buffer_load_dwordx4 v[{KG+4*p}:{KG+3+4*p}], v4, {WS}, s{T+1} offen sc1")
        A(f"buffer_load_dwordx4 v[{KG+32+4*p}:{KG+35+4*p}], v4, {WS}, s{T+1} offen offset:1024 sc1")
        if p < 7: A(f"s_add_u32 s{T+1}, s{T+1}, {KVP_SZ}")
    A(f"s_lshl_b32 s{T+1}, s{S_WM}, 6")
    A(f"s_add_u32 s{T+1}, s{T+1}, s{T}")
    A(f"s_add_u32 s{T+1}, s{T+1}, 8192")
    for p in range(8):
        A(f"buffer_load_dwordx4 v[{KG+64+4*p}:{KG+67+4*p}], v159, {WS}, s{T+1} offen sc1")
        if p < 7: A(f"s_add_u32 s{T+1}, s{T+1}, {KVP_SZ}")
    A(f"s_mov_b32 s{EVT}, {KI[2]}")
    A("s_branch L_p2_cevt_ret")
    A.label("L_p2_c2")
    A("s_waitcnt vmcnt(0)")
    for base in (KG, KG + 32, KG + 64):
        for s_ in (16, 8, 4):
            for r in range(s_): A(f"v_add_f32 v{base+r}, v{base+r}, v{base+s_+r}")
    for k, base in enumerate((KG, KG + 32, KG + 64)):
        cvt(A, KG + 4 + 2 * k, base); cvt(A, KG + 5 + 2 * k, base + 2)
    lin(A, T, [(S_WM, 10)], RING)
    A(f"v_lshl_add_u32 v159, v158, 1, s{T}")
    A(f"ds_write_b64 v159, v[{KG+4}:{KG+5}]")
    A(f"ds_write_b64 v159, v[{KG+6}:{KG+7}] offset:512")
    lin(A, T, [(S_WM, 9)], RING + 4096)
    A(f"v_lshl_add_u32 v157, v158, 1, s{T}")
    A(f"ds_write_b64 v157, v[{KG+8}:{KG+9}]")
    A(f"s_cmp_eq_u32 s{H}, 1")
    A(f"s_cselect_b32 s{EVT}, {SPL // 2 - 12}, -1")
    A("s_waitcnt lgkmcnt(0)")
    A("s_branch L_p2_cevt_ret")
    A.label("L_p2_c3")
    for cb in range(4):
        for tb in range(4):
            d = XR + (cb * 4 + tb) * 2
            A(f"buffer_load_dwordx2 v[{d}:{d+1}], v3, {srd(SRD_X)}, {sof(tb)} offen offset:{cb*32}")
    A(f"s_mov_b32 s{EVT}, -1")
    A("s_branch L_p2_cevt_ret")
    A.label("L_p2_prod")
    for r in range(16): A(f"v_mov_b32 v{120+r}, v{96+r}")
    for r in range(8): A(f"v_mov_b32 v{56+r}, v{WPK+r}")
    common(A)
    A("s_barrier                 ; B4")
    make_srd(A, SRD_B, 100, 101, 3584 * 2048)
    A("v_lshlrev_b32 v22, 3, v3")
    A(f"v_add_u32 v22, {RING}, v22")
    lin(A, T, [(M, 13), (S_WM, 11)], 0)
    A(f"v_add_u32 v8, s{T}, v4")
    A(f"s_lshl_b32 s{T+1}, s{S_WM}, 1")
    A(f"v_lshlrev_b32 v9, 3, v5")
    A(f"v_add_u32 v9, s{T+1}, v9")
    A("v_lshlrev_b32 v9, 11, v9")
    A("v_lshl_add_u32 v9, v6, 4, v9")
    A(f"s_lshl_b32 s{T}, s{N}, 8")
    A(f"v_add_u32 v9, s{T}, v9              ; regular")
    A("v_lshrrev_b32 v10, 1, v5")
    A(f"v_mul_u32_u24 v10, {96*2048}, v10")
    A("v_add_u32 v10, v10, v9               ; odd")
    A("v_mov_b32 v11, v9")
    A(f"s_lshl_b32 s{LA}, s{S_WM}, 11")
    A(f"s_mul_i32 s{LB}, s{S_WM}, {2*1056}")
    A(f"s_add_u32 s{LB}, s{LB}, 8192")
    lin(A, S_OO, [(S_J, 17), (S_MT, 14), (S_WM, 12)], WS_ACT + 112 * 131072)
    A(f"s_cmp_eq_u32 s{H}, 1")
    A(f"s_cselect_b32 s{AOFF}, 0, {2 * 131072}")
    A(f"s_cselect_b32 s{BOFF}, 0, {64 * 2048}")
    A(f"s_cselect_b32 s{POS}, 1000, 0")
    A(f"s_add_u32 s{AOFF}, s{AOFF}, {WS_ACT}")
    A(f"s_add_u32 s{EVT}, s{POS}, 24")
    A(f"s_mov_b32 s{AINC}, {3 * 131072}")
    A(f"s_mov_b32 s{BINC}, {112 * 2048}")
    A(f"s_mov_b32 s{B2}, 2048")
    own_flags(A)
    def issue_a(A):
        A(f"s_add_u32 m0, s{LDS}, s{LA}")
        A(f"s_add_u32 s{T2}, s{BOFF}, s{B2}")
        A(f"buffer_load_dwordx4 v8, {WS}, s{AOFF} offen sc1 lds")
        A(f"buffer_load_dwordx4 v8, {WS}, s{AOFF} offen offset:1024 sc1 lds")
        A(f"s_add_u32 s{AOFF}, s{AOFF}, s{AINC}")
    def issue_b(A, own_t2=False):
        A(f"s_add_u32 m0, s{LDS}, s{LB}")
        if own_t2: A(f"s_add_u32 s{T2}, s{BOFF}, s{B2}")
        else: A("s_nop 0")
        A(f"buffer_load_dwordx4 v11, {srd(SRD_B)}, s{BOFF} offen sc1 lds")
        A(f"s_add_u32 m0, m0, 1056")
        A(f"s_add_u32 s{BOFF}, s{BOFF}, s{BINC}")
        A(f"buffer_load_dwordx4 v11, {srd(SRD_B)}, s{T2} offen sc1 lds")
    def nxt(A):
        A(f"s_add_u32 s{LDS}, s{LDS}, {SLOT}")
        A(f"s_cmp_eq_u32 s{LDS}, {RING}")
        A(f"s_cselect_b32 s{LDS}, 0, s{LDS}")
    def issue_kb(A):
        issue_a(A); issue_b(A)
        A(f"s_add_u32 s{POS}, s{POS}, 1")
        nxt(A)
    A(f"s_mov_b32 s{LDS}, 0")
    for k in range(7): issue_b(A, True); nxt(A)
    hf_query(A, T, 0, 0)
    A(f"s_cmp_eq_u32 s{H}, 1")
    A(f"s_cselect_b32 s{T+1}, 0, 512")
    A(f"s_add_u32 s{T}, s{T}, s{T+1}")
    poll64(A, T, "L_p2_poll0", 12, 15)
    A(f"s_mov_b32 s{LDS}, 0")
    for k in range(7): issue_a(A); nxt(A)
    A(f"s_add_u32 s{POS}, s{POS}, 7")
    A("s_waitcnt vmcnt(8)")
    A("s_barrier")
    stamp(A, 1)
    def mid(A):
        lab = A.newlabel("L_p2_ne")
        A(f"s_cmp_eq_u32 s{POS}, s{EVT}")
        A(f"s_cbranch_scc0 {lab}")
        A(f"s_call_b64 s[{RET}:{RET+1}], L_p2_evt")
        A.label(lab)
    NPEEL = OS + 9
    for ss in range(NPEEL):
        issue_kb(A); mid(A); issue_kb(A)
        if ss == OS:
            for db in range(2):
                for hf in range(2):
                    for e in range(2):
                        d = 32 + (db * 2 + hf) * 4 + 2 * e
                        A(f"ds_read_b64 v[{d}:{d+1}], v22 offset:{((2 * hf + e) * 2 + db)*512}")
            for hf in range(2):
                for e in range(2):
                    A(f"ds_read_b64 v[{48+hf*4+2*e}:{49+hf*4+2*e}], v22 offset:{4096 + (2*hf+e)*512}")
        if OS <= ss < OS + 8:
            for l in o_tb((ss - OS) // 2, S_OO)[(ss - OS) & 1]: A.raw(l)
        if ss == OS + 8:
            off_o(A, T2)
            A("s_waitcnt vmcnt(0)")
            A("s_mov_b64 exec, 1")
            put(A, T2, 14, 13)
            A("s_mov_b64 exec, -1")
        elif ss == 0: A("s_waitcnt vmcnt(12)")
        else: A("s_waitcnt vmcnt(16)")
        A("s_barrier")
    A(f"s_sub_u32 s{NIT}, s{NIT}, {NPEEL}")
    A.label("L_p2_ploop")
    issue_kb(A); mid(A); issue_kb(A)
    A(f"s_sub_u32 s{NIT}, s{NIT}, 1")
    A(f"s_cmp_lg_u32 s{NIT}, 0")
    A("s_waitcnt vmcnt(16)")
    A("s_barrier")
    A("s_cbranch_scc1 L_p2_ploop")
    stamp(A, 2)
    A(f"s_cmp_eq_u32 s{H}, 1")
    A("s_cbranch_scc1 L_p2_end")
    A("s_waitcnt vmcnt(0)")
    A("s_barrier")
    A("s_branch L_p2_end")
    ev = []
    def seg(aoff, ainc, boff, binc, vsel=None, wo=False):
        def f(A):
            A(f"s_mov_b32 s{AOFF}, {aoff}")
            A(f"s_mov_b32 s{AINC}, {ainc}")
            A(f"s_mov_b32 s{BOFF}, {boff}")
            A(f"s_mov_b32 s{BINC}, {binc}")
            if vsel is not None: A(f"v_mov_b32 v11, v{vsel}")
            if wo:
                A(f"s_mov_b32 s{SRD_B}, s{P+6}")
                A(f"s_and_b32 s{SRD_B+1}, s{P+7}, 0xffff")
                A(f"s_mov_b32 s{SRD_B+2}, {1024*2048}")
        return f
    def only0(body):
        def f(A):
            lab = A.newlabel("L_p2_w0")
            A(f"s_cmp_lg_u32 s{S_W}, 0")
            A(f"s_cbranch_scc1 {lab}")
            body(A, lab)
            A.label(lab)
        return f
    def pollh1(both):
        def b(A, lab):
            hf_query(A, T, 1, 0)
            poll64(A, T, lab + "_a", 12, 15)
            if both:
                A(f"s_add_u32 s{T}, s{T}, 512")
                poll64(A, T, lab + "_b", 12, 15)
        return only0(b)
    def pollo(A, lab):
        lin(A, T, [(M, 8)], F_O)
        poll64(A, T, lab + "_a", 12, 15)
    def pollp(A, lab):
        lin(A, T, [(TILE, 7)], F_P)
        A("v_and_b32 v16, 12, v12")
        poll64(A, T, lab + "_a", 16, 15)
    def part(A):
        for k in range(3): A(f"s_mov_b32 s{SRD_B+k}, s{SRD_WS+k}")
        lin(A, AOFF, [(TILE, 16)], WS_PART)
        A(f"s_add_u32 s{BOFF}, s{AOFF}, 8192")
        A(f"s_mov_b32 s{AINC}, 16384")
        A(f"s_mov_b32 s{BINC}, 16384")
        A(f"s_mov_b32 s{B2}, 1024")
        A(f"v_add_u32 v8, s{LA}, v4")
        A("v_mov_b32 v11, v8")
    oob = seg(0x40000000, 0, 0x40000000, 0)
    ev.append((24, pollh1(True)))
    if NB0: ev.append((32, seg(WS_ACT + (3 * NB1 + 1) * 131072, 3 * 131072, (112 * NB1 + 32) * 2048, 112 * 2048)))
    ev.append((32 + NB0, seg(WS_ACT + 96 * 131072, 131072, 96 * 2048, 224 * 2048, vsel=10)))
    ev.append((46 + NB0, only0(pollo)))
    ev.append((48 + NB0, seg(WS_ACT + 112 * 131072, 131072, 0, 32 * 2048, vsel=9, wo=True)))
    ev.append((N0 - 2, only0(pollp)))
    ev.append((N0, part))
    ev.append((N0 + 4, oob))
    ev.append((1024, pollh1(False)))
    ev.append((1032, seg(WS_ACT + 131072, 3 * 131072, 32 * 2048, 112 * 2048)))
    ev.append((1000 + SPL, oob))
    A.label("L_p2_evt")
    for k, (pos, f) in enumerate(ev[1:], 1):
        A(f"s_cmp_eq_u32 s{POS}, {pos}")
        A(f"s_cbranch_scc1 L_p2_ev{k}")
    for k, (pos, f) in enumerate(ev):
        A.label(f"L_p2_ev{k}")
        f(A)
        nx = ev[k + 1][0] if k + 1 < len(ev) and (ev[k + 1][0] >= 1000) == (pos >= 1000) else -1
        A(f"s_mov_b32 s{EVT}, {nx}")
        A(f"s_setpc_b64 s[{RET}:{RET+1}]")
    A.label("L_p2_end")
    if opt("stamp"):
        A("s_waitcnt vmcnt(0)")
        stamp(A, 3)
        stamp_store(A, WS_STAMP + MB)

def build():
    A = Asm()
    for l in open("cdna_kernels/" + NAME + ".s.ref").read().split("\n"):
        if l.startswith(";") and "@launch" not in l and "Override" not in l and "grid=ceil" not in l: A.raw(l)
    A.raw(f"; @launch kernel=fused_kernel grid=(256,1,1) block=(512,1,1) lds={max(P1_LDS, P2_LDS)}")
    A.raw('.amdgcn_target "amdgcn-amd-amdhsa--gfx950"')
    A.raw(".text")
    kernel_header(A, "fused_kernel")
    p1_prologue(A)
    phase2(A)
    A.label("L_done")
    A("s_endpgm")
    A.raw('.section .rodata,"a"')
    kernel_desc(A, "fused_kernel", 256)
    return A.text()

if __name__ == "__main__":
    for o in sys.argv[2:]:
        if "=" in o: k, v = o.split("=", 1); OPT[k] = v
        else: OPT[o] = True
    open(sys.argv[1], "w").write(build())
```

```python
import sys
from asmlib import *

NAME = "parallel_sum__linear_kernel_hedgehog__glu_gated_glu__prompt"
MB = 1 << 20
WS_BYTES = 268435456
WS_ACT = 8 * MB
WS_KVP = 28 * MB
KVP_SZ = 8448
WS_PART = 32 * MB
WS_FLAG = 48 * MB
WS_STATS = 49 * MB
WS_STAMP = 52 * MB
F_H = WS_FLAG
F_K = WS_FLAG + 16384
F_O = WS_FLAG + 24576
F_P = WS_FLAG + 28672
LOG2E, NLOG2E = 0x3fb8aa3b, 0xbfb8aa3b
OPT = {}
def opt(k, d=None): return OPT.get(k, d)

A_PAGE = 1040; A_BUF = 32 * A_PAGE; LDS_B = 2 * A_BUF; B_STAGE = 20480
X_LDS = LDS_B + 4 * B_STAGE
CSL = X_LDS; STL = X_LDS + 1536; WPL = STL + 4096; P1_LDS = WPL + 2048
HOFF = 100 * 1024
SLOT = 16640; NSLOT = 9; RING = SLOT * NSLOT; P2_LDS = RING + 6144
V_A, V_B0, V_B1, V_B2, V_AR, V_BG, V_BQ0, V_BQ1, L16, V_CT = 1, 2, 3, 4, 5, 6, 7, 8, 9, 10
T0, T1A, T1B, WR = 12, 28, 44, 60
V_ST, V_POLL, V_PA, V_CS = 80, 88, 89, 90
V_BG2, V_BQ02, V_BQ12 = 93, 94, 95
ACC = 96
def acc(b, tb): return ACC + (b * 4 + tb) * 4
S_W, S_WM, S_WN, S_J, S_MT = 3, 4, 5, 6, 7
SRD_A, SRD_B0, SRD_B1, SRD_B2 = 8, 12, 16, 20
S_APAGE, S_AK, S_AKE = 24, 25, 26
S_BOFF, S_BINC, S_BLDS = (27, 28, 29), (30, 31, 32), (33, 34, 35)
P = 36
T = 50
SRD_D = 56
S_ITER = 60
SRD_WS, SRD_WP = 64, 68
S_C = 72; S_ONES = 78; S_HI = 79
S_ST = 80
SRD_PF = 96
WS = f"s[{SRD_WS}:{SRD_WS+3}]"
def srd(n): return f"s[{n}:{n+3}]"

def stamp(A, i):
    if opt("pdbg") and i > 0 and not getattr(A, "p2", False): return
    if opt("stamp"):
        A(f"s_memtime s[{S_ST+4*i}:{S_ST+4*i+1}]")
        A(f"s_memrealtime s[{S_ST+4*i+2}:{S_ST+4*i+3}]")
def stamp_store(A, base):
    if not opt("stamp"): return
    A("s_mov_b64 exec, 1")
    A("s_waitcnt lgkmcnt(0)")
    A(f"s_lshl_b32 s{T}, s2, 3")
    A(f"s_add_u32 s{T}, s{T}, s{S_W}")
    A(f"s_lshl_b32 s{T}, s{T}, 6")
    A(f"s_add_u32 s{T}, s{T}, {base}")
    A("v_mov_b32 v1, 0")
    for i in range(4):
        A(f"v_mov_b32 v2, s{S_ST+4*i}")
        A(f"v_mov_b32 v3, s{S_ST+4*i+2}")
        A(f"buffer_store_dwordx2 v[2:3], v1, {WS}, s{T} offen offset:{8*i}")
        A("s_nop 1")
    A("s_mov_b64 exec, -1")

def xreduce_g(A, vs, tmps, op):
    ops = op if isinstance(op, list) else [op] * len(vs)
    for sw in ("v_permlane16_swap_b32", "v_permlane32_swap_b32"):
        for v, t in zip(vs, tmps): A(f"v_mov_b32 v{t}, v{v}")
        A("s_nop 1")
        for v, t in zip(vs, tmps): A(f"{sw} v{v}, v{t}")
        if len(vs) == 1: A("s_nop 0")
        for v, t, o in zip(vs, tmps, ops): A(f"v_{o}_f32 v{v}, v{v}, v{t}")
def wave_allreduce(A, v, tmp):
    for dpp in ("quad_perm:[1,0,3,2]", "quad_perm:[2,3,0,1]", "row_half_mirror", "row_mirror"):
        A("s_nop 1")
        A(f"v_add_f32_dpp v{v}, v{v}, v{v} {dpp} row_mask:0xf bank_mask:0xf")
    xreduce_g(A, [v], [tmp], "add")
def MF(A, d, a, b, c=None):
    cs = "0" if c is None else f"v[{c}:{c+3}]"
    A(f"v_mfma_f32_16x16x32_bf16 v[{d}:{d+3}], v[{a}:{a+3}], v[{b}:{b+3}], {cs}")
def cvt(A, d, a): A(f"v_cvt_pk_bf16_f32 v{d}, v{a}, v{a+1}")

def softmax(A, pk, Pp, Pm, t):
    mx, mn, x0, x1, ep, em, sp, sm = t, t + 1, t + 2, t + 3, t + 4, t + 12, t + 20, t + 21
    A(f"v_max3_f32 v{mx}, v{pk}, v{pk+1}, v{pk+2}")
    A(f"v_min3_f32 v{mn}, v{pk}, v{pk+1}, v{pk+2}")
    for r in (3, 5):
        A(f"v_max3_f32 v{mx}, v{mx}, v{pk+r}, v{pk+r+1}")
        A(f"v_min3_f32 v{mn}, v{mn}, v{pk+r}, v{pk+r+1}")
    A(f"v_max_f32 v{mx}, v{mx}, v{pk+7}")
    A(f"v_min_f32 v{mn}, v{mn}, v{pk+7}")
    xreduce_g(A, [mx, mn], [x0, x1], ["max", "min"])
    A(f"v_mul_f32 v{mx}, s{S_C}, v{mx}")
    A(f"v_mul_f32 v{mn}, s{S_C+1}, v{mn}")
    for r in range(8):
        A(f"v_fma_f32 v{ep+r}, v{pk+r}, s{S_C+1}, v{mx}")
        A(f"v_fma_f32 v{em+r}, v{pk+r}, s{S_C}, v{mn}")
    for r in range(8):
        A(f"v_exp_f32 v{ep+r}, v{ep+r}")
        A(f"v_exp_f32 v{em+r}, v{em+r}")
    A(f"v_add_f32 v{sp}, v{ep}, v{ep+1}")
    A(f"v_add_f32 v{sm}, v{em}, v{em+1}")
    for r in range(2, 8):
        A(f"v_add_f32 v{sp}, v{sp}, v{ep+r}")
        A(f"v_add_f32 v{sm}, v{sm}, v{em+r}")
    xreduce_g(A, [sp, sm], [x0, x1], "add")
    A(f"v_rcp_f32 v{sp}, v{sp}")
    A(f"v_rcp_f32 v{sm}, v{sm}")
    A("s_nop 0")
    for r in range(8):
        A(f"v_mul_f32 v{ep+r}, v{ep+r}, v{sp}")
        A(f"v_mul_f32 v{em+r}, v{em+r}, v{sm}")
    for r in range(4):
        cvt(A, Pp + r, ep + 2 * r); cvt(A, Pm + r, em + 2 * r)

def blocks_of(wn):
    if wn == 0: return [("q", 0), ("q", 1)] + [x for b in range(4) for x in (("g", b), ("u", b))]
    return [("k", 0), ("k", 1), ("v", 0), ("v", 1)] + [x for b in range(4, 7) for x in (("g", b), ("u", b))]
def wread(A, wn, blk, stage, dst, tag, t):
    kind, idx = blocks_of(wn)[blk]
    so = (stage & 1) * B_STAGE; hi = stage >> 1
    if kind in "qkv":
        off = so + (2 * "qkv".index(kind) + t) * 1024
        va = ((V_BQ0, V_BQ1), (V_BQ02, V_BQ12))[hi][idx]
    else:
        off = so + (6144 if kind == "g" else 13312) + t * 3584 + idx * 32
        va = (V_BG, V_BG2)[hi]
    A.ds(f"ds_read_b64_tr_b16 v[{dst+2*t}:{dst+2*t+1}], v{va} offset:{off}", tag)
def tread(A, abuf, ks, tb, dst, tag, t):
    A.ds(f"ds_read_b64 v[{dst+tb*4+2*t}:{dst+tb*4+2*t+1}], v{V_AR} offset:{abuf * A_BUF + tb * 256 + ks * 64 + t * 32}", tag)
def nB(w): return 0 if w == 7 else (2 if w == 6 else 3)
def nA(w): return 0 if w == 7 else (4 if w == 6 else 2)
BS = ((V_B0, SRD_B0), (V_B1, SRD_B1), (V_B2, SRD_B2))
def bdma(k, slot):
    def f0(A): A(f"s_add_u32 m0, s{S_BLDS[k]}, {LDS_B + slot * B_STAGE}")
    def f1(A):
        A(f"buffer_load_dwordx4 v{BS[k][0]}, {srd(BS[k][1])}, s{S_BOFF[k]} offen lds")
        A(f"s_add_u32 s{S_BOFF[k]}, s{S_BOFF[k]}, s{S_BINC[k]}")
    return f0, f1
def adma(h, e, abuf, kconst=None):
    def f0(A):
        if kconst is None: A(f"s_add_u32 s{T}, s{S_AKE}, {h * 128 * 2048 + e * 4096}")
        else: A(f"s_mov_b32 s{T}, {kconst + h * 128 * 2048 + e * 4096}")
        A(f"s_add_u32 m0, s{S_APAGE}, {abuf * A_BUF + (16 * h + e) * A_PAGE}")
    def f1(A): A(f"buffer_load_dwordx4 v{V_A}, {srd(SRD_A)}, s{T} offen lds")
    return f0, f1
def pfload(A, k):
    A(f"buffer_load_dword v{V_A}, v{BS[k][0]}, {srd(BS[k][1])}, s{S_BOFF[k]} offen")
    A(f"s_add_u32 s{S_BOFF[k]}, s{S_BOFF[k]}, s{S_BINC[k]}")
def cs_ops(b, half):
    out = []
    c = V_CS + (b // 4)
    for r in (2 * half, 2 * half + 1):
        w = WR + (b % 5) * 4 + r
        def f0(A, w=w):
            A(f"v_lshlrev_b32 v{V_CT}, 16, v{w}")
            A(f"v_and_b32 v{V_CT+1}, s{S_HI}, v{w}")
        def f1(A, c=c):
            A(f"v_add_f32 v{c}, v{c}, v{V_CT}")
            A(f"v_add_f32 v{c}, v{c}, v{V_CT+1}")
        out += [f0, f1]
    return out
def extras_of(w, u):
    if w == 7: return {0: [(2, "poll"), (4, "drain")], 1: [(4, "sig")], 2: [(2, "stat"), (4, "pfd"), (8, "rows")], 3: []}[u]
    return {0: [(2, "poll"), (6, "drain")], 1: [(3, "wphi")] if w == 4 else [], 2: [(2, "stat"), (8, "rows")], 3: []}[u]

def p1_body(A, w):
    wn, wm = w >> 2, w & 3
    blocks = blocks_of(wn)
    G_ = [[] for _ in range(160)]
    def gap(u, i): return G_[(40 * u + i) % 160]
    for u in range(4):
        odd = u & 1
        for c in range(10):
            tgt = c + 4
            blk, st = (tgt, u) if tgt < 10 else (tgt - 10, (u + 1) & 3)
            sl = tgt % 5
            delayed = ((c - 1) % 10) % 4 == wm
            for t in range(2):
                pos = 4 * (c + 1) + 2 + t if delayed else 4 * c + t
                gap(u, pos).append(lambda A, blk=blk, st=st, sl=sl, t=t: wread(A, wn, blk, st, WR + sl * 4, f"W{sl}", t))
        if odd:
            nb = ((u + 1) >> 1) & 1
            Tn1 = T1B if u == 1 else T1A
            tr = [(nb, 0, tb, T0, "T0") for tb in range(4)] + [(nb, 1, tb, Tn1, "T1") for tb in range(4)]
            for k, x in enumerate(tr):
                for t in range(2):
                    gap(u, 4 * [0, 1, 2, 3, 4, 6, 7, 8][k] + 2 + t).append(lambda A, x=x, t=t: tread(A, *x, t))
            def adv(A):
                A(f"s_add_u32 s{S_AK}, s{S_AK}, 128")
                A(f"s_cmp_ge_u32 s{S_AK}, 2048")
                A(f"s_cselect_b32 s{S_AKE}, 0x10000000, s{S_AK}")
            if nA(w): gap(u, 4 * 9 + 2).append(adv)
        dm = [bdma(k, (u + 3) & 3) for k in range(nB(w))] + [adma(u & 1, e, (u >> 1) & 1) for e in range(nA(w))]
        for k, (f0, f1) in enumerate(dm):
            gap(u, 4 * k + 2).insert(0, f0)
            gap(u, 4 * k + 3).insert(0, f1)
        if w == 7:
            for k in range(3): gap(u, 4 * k + 3).append(lambda A, k=k: pfload(A, k))
        for b in range(wm, 10, 4):
            for k, f in enumerate(cs_ops(b, 0) + cs_ops(b, 1)): gap(u, 4 * b + k).append(f)
        for it, nm in extras_of(w, u):
            def g(A, it=it, nm=nm):
                A(f"s_cmp_eq_u32 s{S_ITER}, {it}")
                A(f"s_cbranch_scc1 L_x_{nm}_{w}")
                A.label(f"L_x_{nm}_{w}_ret")
            gap(u, 4 * 8 + 3).append(g)
    for u in range(4):
        odd = u & 1
        Tuse = T0 if not odd else (T1A if u == 1 else T1B)
        for b in range(10):
            A.wait_lgkm([f"W{b % 5}"] + ([("T1" if odd else "T0")] if b == 0 else []))
            wr = WR + (b % 5) * 4
            for k, tb in enumerate(range(4) if b % 2 == 0 else range(3, -1, -1)):
                a = acc(b, tb)
                if blocks[b][0] == "v": MF(A, a, Tuse + tb * 4, wr, a)
                else: MF(A, a, wr, Tuse + tb * 4, a)
                for f in G_[40 * u + 4 * b + k]: f(A)
        nv = nA(w) + nB(w)
        ws_ = [f"vmcnt({nv})"] if nv else []
        n = A.lgkm_count_for(["T0", "T1"]) if odd else None
        if n is not None:
            ws_.append(f"lgkmcnt({n})"); A.lgkm_retire(n)
        if ws_: A("s_waitcnt " + " ".join(ws_))
        A("s_barrier")

ROWS7 = 0
def p1_extras(A, w):
    global ROWS7
    ROWS7 = 3 * int(opt("npf", 0)) + 9 + (2 if opt("pfx") else 0)
    wm = w & 3
    dbg = srd(SRD_D)
    A.label(f"L_x_drain_{w}")
    A("s_waitcnt vmcnt(0)")
    A(f"s_branch L_x_drain_{w}_ret")
    A.label(f"L_x_rows_{w}")
    A(f"s_waitcnt vmcnt({ROWS7 if w == 7 else 0})")
    a0, a1, t0, t1 = 88, 89, 10, 11
    for i in range(8):
        A(f"v_lshlrev_b32 v{t0}, 16, v{80+i}")
        A(f"v_and_b32 v{t1}, s{S_HI}, v{80+i}")
        if i == 0:
            A(f"v_mov_b32 v{a0}, v{t0}"); A(f"v_mov_b32 v{a1}, v{t1}")
        else:
            A(f"v_add_f32 v{a0}, v{a0}, v{t0}"); A(f"v_add_f32 v{a1}, v{a1}, v{t1}")
    A(f"v_add_f32 v{a0}, v{a0}, v{a1}")
    wave_allreduce(A, a0, t0)
    A(f"v_mul_f32 v{a0}, 0xba800000, v{a0}     ; -mean")
    for i in range(8):
        A(f"v_lshlrev_b32 v{t0}, 16, v{80+i}")
        A(f"v_and_b32 v{t1}, s{S_HI}, v{80+i}")
        A(f"v_add_f32 v{t0}, v{t0}, v{a0}")
        A(f"v_add_f32 v{t1}, v{t1}, v{a0}")
        if i == 0: A(f"v_mul_f32 v{a1}, v{t0}, v{t0}")
        else: A(f"v_fmac_f32 v{a1}, v{t0}, v{t0}")
        A(f"v_fmac_f32 v{a1}, v{t1}, v{t1}")
    wave_allreduce(A, a1, t0)
    A(f"v_mul_f32 v{a1}, 0x3a800000, v{a1}     ; var")
    A(f"v_cvt_pk_bf16_f32 v{t0}, v{a0}, v{a1}")
    A(f"v_lshlrev_b32 v80, 16, v{t0}")
    A(f"v_and_b32 v{a1}, s{S_HI}, v{t0}")
    A(f"v_add_f32 v{a1}, 0x3727c5ac, v{a1}")
    A(f"v_cvt_pk_bf16_f32 v{a1}, v{a1}, v{a1}")
    A(f"v_lshlrev_b32 v{a1}, 16, v{a1}")
    A(f"v_sqrt_f32 v{a1}, v{a1}")
    A(f"s_lshl_b32 s{T+1}, s2, 6")
    A(f"v_cvt_pk_bf16_f32 v{a1}, v{a1}, v{a1}")
    A(f"s_add_u32 s{T+1}, s{T+1}, {WS_STATS + w * 8}")
    A(f"v_lshlrev_b32 v81, 16, v{a1}")
    A("s_mov_b64 exec, 1")
    A(f"buffer_store_dwordx2 v[80:81], v0, {WS}, s{T+1} offen sc1")
    A("s_mov_b64 exec, -1")
    A(f"s_branch L_x_rows_{w}_ret")
    def paddr(A):
        A(f"v_and_b32 v{V_PA}, 0x70, v{L16}")
        A(f"v_lshlrev_b32 v{V_PA}, 1, v{V_PA}")
        A(f"buffer_load_dword v{V_POLL}, v{V_PA}, {dbg}, 0 offen sc1")
    A.label(f"L_x_poll_{w}")
    paddr(A)
    A(f"s_branch L_x_poll_{w}_ret")
    A.label(f"L_x_stat_{w}")
    A("s_waitcnt vmcnt(0)")
    A(f"v_cmp_ne_u32 vcc, 32, v{V_POLL}")
    A("s_nop 4")
    A(f"s_cbranch_vccz L_x_stat_{w}_go")
    A("s_sleep 2")
    paddr(A)
    A(f"s_branch L_x_stat_{w}")
    A.label(f"L_x_stat_{w}_go")
    A(f"v_and_b32 v{V_POLL}, 0xf0, v{L16}")
    A(f"v_lshrrev_b32 v{V_POLL}, 1, v{V_POLL}")
    A(f"s_lshl_b32 s{T+1}, s{S_MT}, 11")
    A(f"s_add_u32 s{T+1}, s{T+1}, {WS_STATS + wm * 512}")
    for tb in range(4):
        A(f"buffer_load_dwordx2 v[{V_ST+2*tb}:{V_ST+2*tb+1}], v{V_POLL}, {WS}, s{T+1} offen offset:{tb*128} sc1")
    A(f"s_branch L_x_stat_{w}_ret")
    if w == 4:
        A.label(f"L_x_wphi_{w}")
        A(f"s_mov_b32 m0, {WPL}")
        A(f"s_lshl_b32 s{T+1}, s{S_J}, 11")
        A(f"buffer_load_dwordx4 v{L16}, {srd(SRD_WP)}, s{T+1} offen lds")
        A(f"buffer_load_dwordx4 v{L16}, {srd(SRD_WP)}, s{T+1} offen offset:1024 lds")
        A(f"s_branch L_x_wphi_{w}_ret")
    if w == 7:
        A.label(f"L_x_sig_{w}")
        A(f"s_lshr_b32 s{T+1}, s2, 5")
        A(f"s_lshl_b32 s{T+1}, s{T+1}, 5")
        A(f"v_mov_b32 v{V_POLL}, 1")
        A("s_mov_b64 exec, 1")
        A(f"buffer_atomic_add v{V_POLL}, v0, {dbg}, s{T+1} offen sc1")
        A("s_mov_b64 exec, -1")
        A(f"s_branch L_x_sig_{w}_ret")
        A.label(f"L_x_pfd_{w}")
        make_srd(A, SRD_PF, 100, 101, 3584 * 2048)
        A(f"v_lshrrev_b32 v{V_POLL}, 4, v{L16}")
        A(f"v_min_u32 v{V_POLL}, 55, v{V_POLL}")
        A(f"v_lshlrev_b32 v{V_POLL}, 7, v{V_POLL}")
        A(f"s_mul_i32 s{T+1}, s2, {224*128}")
        for k in range(4):
            A(f"buffer_load_dword v{V_A}, v{V_POLL}, {srd(SRD_PF)}, s{T+1} offen")
            A(f"s_add_u32 s{T+1}, s{T+1}, {56*128}")
        A(f"s_mov_b32 s{SRD_PF}, s{P+6}")
        A(f"s_and_b32 s{SRD_PF+1}, s{P+7}, 0xffff")
        A(f"s_mov_b32 s{SRD_PF+2}, {1024*2048}")
        A(f"v_lshlrev_b32 v{V_POLL}, 3, v{L16}")
        A(f"s_lshl_b32 s{T+1}, s2, 13")
        A(f"buffer_load_dword v{V_A}, v{V_POLL}, {srd(SRD_PF)}, s{T+1} offen")
        A(f"s_branch L_x_pfd_{w}_ret")

def tile_ids(A, H, M, N, TILE, t):
    A(f"s_and_b32 s{t}, s2, 7")
    A(f"s_lshr_b32 s{t+1}, s2, 3")
    A(f"s_and_b32 s{H}, s{t}, 1")
    A(f"s_lshr_b32 s{M}, s{t}, 1")
    A(f"s_lshl_b32 s{M}, s{M}, 2")
    A(f"s_and_b32 s{t}, s{t+1}, 3")
    A(f"s_add_u32 s{M}, s{M}, s{t}")
    A(f"s_lshr_b32 s{N}, s{t+1}, 2")
    A(f"s_lshl_b32 s{TILE}, s{M}, 3")
    A(f"s_add_u32 s{TILE}, s{TILE}, s{N}")
def lin(A, d, terms, base):
    first = True
    for r, sh in terms:
        if first: A(f"s_lshl_b32 s{d}, s{r}, {sh}"); first = False
        else:
            A(f"s_lshl_b32 s{T+5}, s{r}, {sh}")
            A(f"s_add_u32 s{d}, s{d}, s{T+5}")
    A(f"s_add_u32 s{d}, s{d}, {base}")
def off_h(A, d, ph): lin(A, d, [(S_MT, 11), (S_W, 7), (S_J, 2)], F_H + ph * 1024)
def off_k(A, d): lin(A, d, [(S_J, 8), (S_MT, 5), (S_W, 2)], F_K)
def off_o(A, d): lin(A, d, [(S_MT, 9), (S_WM, 7), (S_J, 2)], F_O)
def off_p(A, d, tile): lin(A, d, [(tile, 7), (S_WM, 2)], F_P)
def put(A, soff, vval, vzero): A(f"buffer_store_dword v{vval}, v{vzero}, {WS}, s{soff} offen sc1")

CR, NM, RR, RL, WPR, WPK, TMP = 12, 80, 2, [0, 1, 10, 11], 56, 88, 72
def pk_fma_bc(A, d, a, bc, c):
    p, s = bc & ~1, bc & 1
    A(f"v_pk_fma_f32 v[{d}:{d+1}], v[{a}:{a+1}], v[{p}:{p+1}], v[{c}:{c+1}] op_sel:[0,{s},0] op_sel_hi:[1,{s},1]")
def pk_mul_bc(A, d, a, bc):
    p, s = bc & ~1, bc & 1
    A(f"v_pk_mul_f32 v[{d}:{d+1}], v[{a}:{a+1}], v[{p}:{p+1}] op_sel:[0,{s}] op_sel_hi:[1,{s}]")
def corr(A, a, b, tb):
    for r in (0, 2): pk_fma_bc(A, a + r, CR + 4 * b + r, NM + 2 * tb, a + r)
def gu(A, bg, bu, tb, dst, tmp):
    g = acc(bg, tb); u = acc(bu, tb)
    corr(A, g, bg, tb); corr(A, u, bu, tb)
    for r in range(4): A(f"v_mul_f32 v{tmp+r}, v{g+r}, v{RL[tb]}")
    for r in range(4): A(f"v_exp_f32 v{tmp+r}, v{tmp+r}")
    for r in range(4): A(f"v_fma_f32 v{tmp+r}, v{tmp+r}, v{NM+2*tb+1}, v{NM+2*tb+1}")
    for r in range(4): A(f"v_rcp_f32 v{tmp+r}, v{tmp+r}")
    for r in range(4): A(f"v_mul_f32 v{tmp+r}, v{tmp+r}, v{u+r}")
    cvt(A, dst, tmp); cvt(A, dst + 1, tmp + 2)
def qk_pack(A, tb):
    d = acc(0, tb)
    for hb in range(2):
        a = acc(hb, tb)
        corr(A, a, hb, tb)
        for r in (0, 2): pk_mul_bc(A, a + r, a + r, RR + tb)
        cvt(A, d + 2 * hb, a); cvt(A, d + 2 * hb + 1, a + 2)
def kwork(A, groups, WP, S):
    KV, D, ISEL, ONES, PP, PM, PK, SC = S, S + 48, S + 80, S + 88, S + 92, S + 96, S + 100, S + 108
    PT = PK
    A(f"v_lshrrev_b32 v{SC}, 4, v{L16}")
    A(f"v_lshrrev_b32 v{SC+1}, 4, v{SC}         ; g")
    A(f"v_and_b32 v{SC}, 15, v{SC}              ; c")
    A(f"v_lshrrev_b32 v{SC+2}, 2, v{SC}")
    A(f"v_and_b32 v{SC+3}, 3, v{SC}")
    A(f"v_cmp_eq_u32 vcc, v{SC+2}, v{SC+1}")
    A(f"v_and_b32 v{SC+4}, 1, v{SC+3}")
    A(f"v_lshlrev_b32 v{SC+4}, 4, v{SC+4}")
    A(f"v_mov_b32 v{SC+5}, 0x3f80")
    A(f"v_lshlrev_b32 v{SC+5}, v{SC+4}, v{SC+5}")
    A(f"v_cndmask_b32 v{SC+5}, 0, v{SC+5}, vcc")
    A(f"v_cmp_gt_u32 vcc, 2, v{SC+3}")
    A(f"v_mov_b32 v{ISEL}, 0")
    A(f"v_mov_b32 v{ISEL+1}, 0")
    A(f"v_cndmask_b32 v{ISEL+2}, 0, v{SC+5}, vcc")
    A(f"v_cndmask_b32 v{ISEL+3}, v{SC+5}, 0, vcc")
    A(f"v_mov_b32 v{ISEL+4}, 0")
    A(f"v_mov_b32 v{ISEL+5}, 0")
    for r in range(4): A(f"v_mov_b32 v{ONES+r}, s{S_ONES}")
    for gi, (VF, kfs) in enumerate(groups):
        if gi: A("s_nop 3")
        for e, kf in kfs.items():
            MF(A, PK, WP, kf); MF(A, PK + 4, WP + 4, kf)
            A("s_nop 7")
            softmax(A, PK, PP, PM, SC)
            A("s_nop 1")
            dd = D + e * 16
            MF(A, dd, PP, ISEL + 2); MF(A, dd + 4, PP, ISEL); MF(A, dd + 8, PM, ISEL + 2); MF(A, dd + 12, PM, ISEL)
        es = list(kfs)
        for e in range(2):
            if e not in kfs:
                for fb in range(4):
                    A(f"v_mov_b32 v{PT+fb*4+2*e}, 0"); A(f"v_mov_b32 v{PT+fb*4+2*e+1}, 0")
        for e in es:
            if e == es[-1] and len(es) == 2: pass
            for fb in range(4):
                dd = D + e * 16 + fb * 4
                cvt(A, PT + fb * 4 + 2 * e, dd); cvt(A, PT + fb * 4 + 2 * e + 1, dd + 2)
        A("s_nop 1")
        for fb in range(4):
            for db in range(3):
                c = KV + (fb * 3 + db) * 4
                MF(A, c, PT + fb * 4, VF + db * 4 if db < 2 else ONES, c if gi else None)
    A("s_nop 7")
    return KV

def p1_epilogue(A, wn):
    st = "sc1"
    A.label(f"L_epi{wn}")
    A.lgkm = []
    A("s_waitcnt vmcnt(0) lgkmcnt(0)")
    stamp(A, 2)
    if opt("edbg"): A("s_memrealtime s[80:81]")
    A(f"v_lshrrev_b32 v54, 8, v{L16}")
    A("v_lshlrev_b32 v52, 4, v54                ; g*16")
    A(f"v_and_b32 v55, 0xf0, v{L16}")
    A("v_lshrrev_b32 v12, 2, v55                ; c*4")
    A("v_lshrrev_b32 v56, 6, v55                ; i>>2")
    A("v_lshl_add_u32 v56, v54, 2, v56")
    A("v_lshlrev_b32 v56, 6, v56")
    A("v_and_b32 v57, 12, v12")
    A("v_lshl_add_u32 v56, v57, 1, v56")
    A(f"v_add_u32 v56, {WPL}, v56")
    xreduce_g(A, [V_CS, V_CS + 1, V_CS + 2], [13, 14, 15], "add")
    A(f"s_lshl_b32 s{T}, s{S_WM}, 6")
    A(f"s_add_u32 s{T}, s{T}, {CSL + wn * 640}")
    A(f"v_add_u32 v13, s{T}, v12")
    A(f"ds_write_b32 v13, v{V_CS}")
    A(f"ds_write_b32 v13, v{V_CS+1} offset:256")
    A(f"s_cmp_lt_u32 s{S_WM}, 2")
    A(f"s_cselect_b32 s{T}, s{T}, {CSL + 1280 - 512}")
    A(f"v_add_u32 v14, s{T}, v12")
    A(f"ds_write_b32 v14, v{V_CS+2} offset:512")
    for tb in range(4): A(f"v_rcp_f32 v{RR+tb}, v{NM+2*tb+1}")
    A("s_nop 0")
    for tb in range(4): A(f"v_mul_f32 v{RL[tb]}, s{S_C}, v{RR+tb}")
    if wn == 1:
        A(f"s_lshl_b32 s{T}, s{S_W}, 9")
        A(f"s_add_u32 s{T}, s{T}, {STL}")
        A(f"v_lshl_add_u32 v15, v12, 1, s{T}")
        for tb in range(4):
            A(f"v_mov_b32 v{16+2*tb}, v{NM+2*tb}")
            A(f"v_mov_b32 v{17+2*tb}, v{RR+tb}")
            A(f"ds_write_b64 v15, v[{16+2*tb}:{17+2*tb}] offset:{tb*128}")
        A(f"v_lshl_add_u32 v55, v52, 1, s{T}")
        A(f"v_add_u32 v54, {CSL + 640}, v12")
    A(f"v_add_u32 v52, {CSL + wn * 640}, v52")
    lin(A, T + 4, [(S_WM, 13)], HOFF)
    A(f"v_add_u32 v53, s{T+4}, v{L16}")
    lin(A, T, [(S_MT, 14), (S_WM, 12)], WS_ACT)
    A(f"s_mul_i32 s{T+1}, s{S_J}, {3 * 131072}")
    A(f"s_add_u32 s{T+1}, s{T+1}, s{T}")
    A("s_waitcnt lgkmcnt(0)")
    A("s_barrier                ; B1")
    if opt("edbg"): A("s_memrealtime s[82:83]")
    order = [2, 3, 4, 5, 0, 1, 6, 7, 8, 9] if wn == 0 else [4, 5, 6, 7, 0, 1, 8, 9]
    for b in order: A.ds(f"ds_read_b128 v[{CR+4*b}:{CR+4*b+3}], v52 offset:{b*64}", f"C{b}")
    def gupair(b0, soff):
        A.wait_lgkm([f"C{b}" for b in range(b0, b0 + 4)])
        for tb in range(4):
            d = acc(b0, tb)
            gu(A, b0 + 2, b0 + 3, tb, acc(b0 + 2, tb), TMP + 4)
            gu(A, b0, b0 + 1, tb, d, TMP)
            A(f"v_mov_b32 v{d+2}, v{acc(b0+2, tb)}")
            A(f"v_mov_b32 v{d+3}, v{acc(b0+2, tb)+1}")
            A(f"buffer_store_dwordx4 v[{d}:{d+3}], v{L16}, {WS}, s{soff} offen offset:{tb*1024} {st}")
    if wn == 0:
        gupair(2, T + 1)
        A(f"s_add_u32 s{T+1}, s{T+1}, 131072")
        gupair(6, T + 1)
        for tb in range(4): qk_pack(A, tb)
        A("s_barrier                ; B2")
        if opt("edbg"): A("s_memrealtime s[84:85]")
        for k in range(7): A(f"ds_read_b128 v[{12+4*k}:{15+4*k}], v53 offset:{k*1024}")
        off_h(A, T + 3, 0)
        A("v_mov_b32 v58, 1")
        A("v_mov_b32 v59, 0")
        A("s_waitcnt vmcnt(4)")
        A("s_mov_b64 exec, 1")
        put(A, T + 3, 58, 59)
        A("s_mov_b64 exec, -1")
        groups = [(20, {0: 12, 1: 16}), (32, {1: 28})]
    else:
        A.ds(f"ds_read_b32 v{CR+8}, v54 offset:128", "CV")
        A.ds(f"ds_read_b32 v{CR+9}, v54 offset:192", "CV")
        A(f"s_add_u32 s{T+1}, s{T+1}, {2*131072}")
        gupair(4, T + 1)
        A.wait_lgkm(["C0", "C1"])
        for tb in (2, 3, 0, 1): qk_pack(A, tb)
        A(f"ds_write_b128 v53, v[{acc(0,2)}:{acc(0,2)+3}]")
        A(f"ds_write_b128 v53, v[{acc(0,3)}:{acc(0,3)+3}] offset:1024")
        A(f"ds_write_b128 v53, v[{acc(0,1)}:{acc(0,1)+3}] offset:4096")
        for pair in (1, 0):
            for e in range(2):
                tb = 2 * pair + e
                A.ds(f"ds_read_b128 v[{112+8*e}:{115+8*e}], v55 offset:{tb*128}", f"S{e}")
                A.ds(f"ds_read_b128 v[{116+8*e}:{119+8*e}], v55 offset:{tb*128+16}", f"S{e}")
            for e in range(2):
                tb = 2 * pair + e
                A.wait_lgkm(["CV", f"S{e}"])
                for db in range(2):
                    a = acc(2 + db, tb)
                    for r in range(4): A(f"v_fma_f32 v{a+r}, v{CR+8+db}, v{112+8*e+2*r}, v{a+r}")
                    for r in range(4): A(f"v_mul_f32 v{a+r}, v{a+r}, v{113+8*e+2*r}")
                    d = acc(2 + db, 2 * pair) + 2 * e
                    cvt(A, d, a); cvt(A, d + 1, a + 2)
            A("s_nop 0")
            o_ = 2048 if pair == 1 else 5120
            A(f"ds_write_b128 v53, v[{acc(2,2*pair)}:{acc(2,2*pair)+3}] offset:{o_}")
            A(f"ds_write_b128 v53, v[{acc(3,2*pair)}:{acc(3,2*pair)+3}] offset:{o_+1024}")
        A("s_waitcnt lgkmcnt(0)")
        A.lgkm = []
        A("s_barrier                ; B2")
        if opt("edbg"): A("s_memrealtime s[84:85]")
        off_h(A, T + 3, 0)
        A("v_mov_b32 v58, 1")
        A("v_mov_b32 v59, 0")
        A("s_waitcnt vmcnt(0)")
        A("s_mov_b64 exec, 1")
        put(A, T + 3, 58, 59)
        A("s_mov_b64 exec, -1")
        A(f"s_lshr_b32 s{T+2}, s{S_J}, 1")
        A(f"s_add_u32 s{T+2}, s{T+2}, 96")
        A(f"s_lshl_b32 s{T+2}, s{T+2}, 17")
        A(f"s_add_u32 s{T+2}, s{T+2}, s{T}")
        A(f"s_and_b32 s{T+3}, s{S_J}, 1")
        A(f"s_lshl_b32 s{T+3}, s{T+3}, 3")
        A(f"s_add_u32 s{T+2}, s{T+2}, s{T+3}")
        for tb in range(4):
            d = acc(8, tb)
            gu(A, 8, 9, tb, d, TMP + 4 * (tb & 1))
            A(f"buffer_store_dwordx2 v[{d}:{d+1}], v{L16}, {WS}, s{T+2} offen offset:{tb*1024} {st}")
        for db in range(2):
            for r in range(4): A(f"v_mov_b32 v{20+4*db+r}, v{acc(2+db,0)+r}")
        groups = [(20, {0: acc(0, 0)})]
    if opt("edbg"): A("s_memrealtime s[86:87]")
    for fb in range(2):
        for t in range(2):
            A(f"ds_read_b64_tr_b16 v[{WPK+4*fb+2*t}:{WPK+4*fb+2*t+1}], v56 offset:{t*1024 + fb*32}")
    A("s_waitcnt lgkmcnt(0)")
    KV = kwork(A, groups, WPK, 124)
    A(f"s_mul_i32 s{T+1}, s{S_W}, {12*1024}")
    A(f"v_add_u32 v20, s{T+1}, v{L16}")
    for blk in range(12): A(f"ds_write_b128 v20, v[{KV+blk*4}:{KV+blk*4+3}] offset:{blk*1024}")
    if opt("edbg"): A("s_memrealtime s[88:89]"); A("s_memrealtime s[90:91]")
    A("s_waitcnt lgkmcnt(0)")
    A("s_barrier                ; B3")
    if opt("edbg"): A("s_memrealtime s[92:93]")
    A(f"s_lshr_b32 s{T}, s{S_W}, 1")
    A(f"s_mul_i32 s{T}, s{T}, 3")
    A(f"s_and_b32 s{T+1}, s{S_W}, 1")
    A(f"s_add_u32 s{T}, s{T}, s{T+1}")
    A(f"s_lshl_b32 s{T}, s{T}, 10")
    A(f"v_add_u32 v20, s{T}, v{L16}")
    A(f"v_add_u32 v22, {4*12*1024}, v20")
    for p in range(8): A(f"ds_read_b128 v[{124+4*p}:{127+4*p}], v{20 if p < 4 else 22} offset:{(p%4)*12*1024}")
    if wn == 0:
        A(f"s_mul_i32 s{T}, s{S_W}, 3072")
        A(f"v_add_u32 v21, s{T}, v{L16}")
        A(f"v_add_u32 v23, {4*12*1024}, v21")
        for p in range(8): A(f"ds_read_b128 v[{156+4*p}:{159+4*p}], v{21 if p < 4 else 23} offset:{(p%4)*12*1024 + 2048}")
    A(f"s_lshl_b32 s{T}, s{S_J}, 3")
    A(f"s_add_u32 s{T}, s{T}, s{S_MT}")
    A(f"s_mul_i32 s{T}, s{T}, {KVP_SZ}")
    A(f"s_add_u32 s{T}, s{T}, {WS_KVP}")
    A(f"s_lshl_b32 s{T+1}, s{S_W}, 10")
    A(f"s_add_u32 s{T+1}, s{T+1}, s{T}")
    A("s_waitcnt lgkmcnt(0)")
    for base in ((124, 156) if wn == 0 else (124,)):
        for s_ in (16, 8, 4):
            for r in range(0, s_, 2):
                A(f"v_pk_add_f32 v[{base+r}:{base+r+1}], v[{base+r}:{base+r+1}], v[{base+s_+r}:{base+s_+r+1}]")
    A(f"buffer_store_dwordx4 v[124:127], v{L16}, {WS}, s{T+1} offen {st}")
    if wn == 0:
        A(f"s_lshl_b32 s{T+1}, s{S_W}, 6")
        A(f"s_add_u32 s{T+1}, s{T+1}, s{T}")
        A(f"s_add_u32 s{T+1}, s{T+1}, 8192")
        A(f"v_lshrrev_b32 v21, 4, v{L16}")
        A("v_and_b32 v22, 15, v21")
        A("v_cmp_eq_u32 vcc, 0, v22")
        A(f"s_and_saveexec_b64 s[{T+2}:{T+3}], vcc")
        A(f"buffer_store_dwordx4 v[156:159], v21, {WS}, s{T+1} offen {st}")
        A("s_mov_b64 exec, -1")
    stamp(A, 3)
    stamp_store(A, WS_STAMP)
    A(f"s_branch L_p2_{'prod' if wn == 0 else 'cons'}")

def p1_prologue(A):
    A("s_cmp_ge_u32 s2, 256")
    A("s_cbranch_scc1 L_done")
    stamp(A, 0)
    A(f"s_load_dwordx8 s[{P}:{P+7}], s[0:1], 0")
    A(f"s_load_dwordx4 s[{P+8}:{P+11}], s[0:1], 40")
    A(f"s_load_dwordx4 s[96:99], s[0:1], 72")
    A(f"s_load_dwordx2 s[100:101], s[0:1], 56")
    A(f"s_load_dwordx2 s[{P+12}:{P+13}], s[0:1], 64")
    A("v_lshrrev_b32 v1, 6, v0")
    A("v_and_b32 v10, 63, v0             ; lane")
    A(f"v_readfirstlane_b32 s{S_W}, v1")
    A(f"s_lshl_b32 s{T}, s2, 3")
    A(f"v_add_u32 v60, s{T}, v1")
    A("v_lshlrev_b32 v61, 11, v60")
    A("v_lshl_add_u32 v61, v10, 4, v61")
    A(f"v_lshlrev_b32 v{L16}, 4, v10")
    A(f"s_and_b32 s{S_WM}, s{S_W}, 3")
    A(f"s_lshr_b32 s{S_WN}, s{S_W}, 2")
    A(f"s_and_b32 s{T}, s2, 7")
    A(f"s_lshr_b32 s{T+1}, s2, 3")
    A(f"s_and_b32 s{S_J}, s{T+1}, 3")
    A(f"s_lshl_b32 s{T}, s{T}, 2")
    A(f"s_add_u32 s{S_J}, s{S_J}, s{T}")
    A(f"s_lshr_b32 s{S_MT}, s{T+1}, 2")
    lin(A, T, [(S_MT, 8), (S_WN, 6), (S_WM, 2)], 0)
    A("v_bfe_u32 v11, v10, 3, 1")
    A("v_lshrrev_b32 v12, 4, v10         ; g")
    A("v_lshl_add_u32 v11, v12, 4, v11")
    A(f"v_add_u32 v11, s{T}, v11")
    A("v_lshlrev_b32 v11, 11, v11")
    A("v_and_b32 v13, 7, v10")
    A(f"v_lshl_add_u32 v{V_A}, v13, 4, v11")
    A(f"s_mul_i32 s{S_APAGE}, s{S_W}, {2 * A_PAGE}")
    A(f"s_lshl_b32 s{T}, s{S_W}, 6")
    A(f"v_add_u32 v13, s{T}, v10")
    A("v_mul_u32_u24 v14, 4682, v13")
    A("v_lshrrev_b32 v14, 16, v14")
    A("v_mul_u32_u24 v15, 14, v14")
    A("v_sub_u32 v15, v13, v15")
    A("v_mul_u32_u24 v14, 7168, v14")
    A("v_lshl_add_u32 v14, v15, 4, v14")
    A(f"s_mul_i32 s{T}, s{S_J}, 224")
    A(f"v_add_u32 v{V_B0}, s{T}, v14")
    A(f"v_mov_b32 v{V_B1}, v{V_B0}")
    A("v_lshrrev_b32 v15, 2, v10")
    A("v_mul_u32_u24 v15, 6144, v15")
    A("v_lshrrev_b32 v16, 3, v10")
    A("v_and_b32 v16, 2, v16")
    A("v_and_b32 v17, 3, v10")
    A("v_xor_b32 v16, v16, v17")
    A("v_lshl_add_u32 v15, v16, 4, v15")
    A(f"s_lshr_b32 s{T}, s{S_W}, 1")
    A(f"s_lshl_b32 s{T}, s{T}, 11")
    A(f"s_and_b32 s{T+1}, s{S_W}, 1")
    A(f"s_mul_i32 s{T+1}, s{T+1}, {16*6144}")
    A(f"s_add_u32 s{T}, s{T}, s{T+1}")
    A(f"s_lshl_b32 s{T+1}, s{S_J}, 6")
    A(f"s_add_u32 s{T}, s{T}, s{T+1}")
    A(f"v_add_u32 v{V_B2}, s{T}, v15")
    A(f"s_lshl_b32 s{S_BLDS[2]}, s{S_W}, 10")
    A(f"s_add_u32 s{S_BLDS[0]}, s{S_BLDS[2]}, 6144")
    A(f"s_add_u32 s{S_BLDS[1]}, s{S_BLDS[2]}, 13312")
    for k in range(3):
        A(f"s_mov_b32 s{S_BOFF[k]}, 0")
        A(f"s_mov_b32 s{S_BINC[k]}, {32 * (6144 if k == 2 else 7168)}")
    A("s_waitcnt lgkmcnt(0)")
    if opt("pdbg"): A("s_memrealtime s[86:87]")
    make_srd(A, SRD_A, P, P + 1, 4 * MB)
    make_srd(A, SRD_B0, P + 8, P + 9, 1024 * 7168)
    make_srd(A, SRD_B1, P + 10, P + 11, 1024 * 7168)
    make_srd(A, SRD_B2, P + 2, P + 3, 1024 * 6144)
    A(f"s_cmp_eq_u32 s{S_W}, 7")
    A("s_cbranch_scc1 L_pro7")
    A(f"s_cmp_eq_u32 s{S_W}, 6")
    A("s_cbranch_scc1 L_pro6")
    NPF = int(opt("npf", 0))
    PF0 = int(opt("pf0", 5))
    def run(ops):
        for f0, f1 in ops:
            f0(A); A("s_nop 0"); f1(A)
    pa = lambda w, stage: [adma(h, e, stage & 1, stage * 128) for h in range(2) for e in range(nA(w))]
    pb = lambda w, stage: [bdma(k, stage) for k in range(nB(w))]
    for cls, w in (("", 0), ("L_pro6", 6)):
        if cls: A.label(cls)
        run(pa(w, 0)); run(pb(w, 0)); run(pb(w, 1))
        A("s_branch L_pro_common")
    A.label("L_pro7")
    A(f"buffer_load_dwordx4 v[80:83], v61, {srd(SRD_A)}, 0 offen")
    A(f"buffer_load_dwordx4 v[84:87], v61, {srd(SRD_A)}, 0 offen offset:1024")
    if opt("pfx"):
        A("v_lshlrev_b32 v13, 7, v10")
        A(f"s_lshl_b32 s{T}, s2, 14")
        A(f"buffer_load_dword v{V_A}, v13, {srd(SRD_A)}, s{T} offen")
        A(f"s_add_u32 s{T}, s{T}, 8192")
        A(f"buffer_load_dword v{V_A}, v13, {srd(SRD_A)}, s{T} offen")
    A("v_min_u32 v13, 13, v10")
    A(f"s_mul_i32 s{T}, s2, 14")
    A(f"v_add_u32 v13, s{T}, v13")
    A(f"v_lshlrev_b32 v{V_B0}, 7, v13")
    A(f"v_mov_b32 v{V_B1}, v{V_B0}")
    A("v_min_u32 v13, 11, v10")
    A(f"s_mul_i32 s{T}, s2, 12")
    A(f"v_add_u32 v13, s{T}, v13")
    A(f"v_lshlrev_b32 v{V_B2}, 7, v13")
    for k in range(3):
        A(f"s_mov_b32 s{S_BOFF[k]}, {PF0 * 32 * (6144 if k == 2 else 7168)}")
        A(f"s_mov_b32 s{S_BINC[k]}, {64 * (6144 if k == 2 else 7168)}")
    for i in range(NPF):
        for k in range(3): pfload(A, k)
    A.label("L_pro_common")
    make_srd(A, SRD_WS, 98, 99, WS_BYTES)
    make_srd(A, SRD_D, 96, 97, 256)
    make_srd(A, SRD_WP, P + 4, P + 5, 65536)
    A(f"s_mov_b32 s{S_C}, {NLOG2E}")
    A(f"s_mov_b32 s{S_C+1}, {LOG2E}")
    A(f"s_mov_b32 s{S_ONES}, 0x3f803f80")
    A(f"s_mov_b32 s{S_HI}, 0xffff0000")
    A("v_and_b32 v16, 15, v10")
    A("v_lshrrev_b32 v17, 2, v16")
    A("v_lshl_add_u32 v17, v12, 2, v17   ; 4g + (i>>2)")
    A("v_and_b32 v18, 3, v16")
    A("v_lshlrev_b32 v18, 3, v18")
    A("v_mul_u32_u24 v19, 224, v17")
    A("v_add_u32 v19, v19, v18")
    A(f"v_add_u32 v{V_BG}, {LDS_B}, v19")
    A("v_lshl_add_u32 v19, v17, 6, v18")
    A("v_and_b32 v20, 1, v12")
    A("v_lshl_add_u32 v19, v20, 5, v19")
    A(f"v_add_u32 v{V_BQ0}, {LDS_B}, v19")
    A(f"v_xor_b32 v{V_BQ1}, 32, v{V_BQ0}")
    for a_, b_ in ((V_BG2, V_BG), (V_BQ02, V_BQ0), (V_BQ12, V_BQ1)): A(f"v_add_u32 v{a_}, {2*B_STAGE}, v{b_}")
    A("v_lshrrev_b32 v19, 1, v16")
    A(f"s_lshl_b32 s{T}, s{S_WM}, 3")
    A(f"v_add_u32 v19, s{T}, v19")
    A(f"v_mul_u32_u24 v19, {A_PAGE}, v19")
    A("v_and_b32 v20, 1, v16")
    A("v_lshl_add_u32 v19, v20, 7, v19")
    A(f"v_lshl_add_u32 v{V_AR}, v12, 3, v19")
    A(f"s_mov_b32 s{S_AK}, 256")
    A(f"s_mov_b32 s{S_AKE}, 256")
    for r in range(ACC, 256): A(f"v_mov_b32 v{r}, 0")
    for r in range(3): A(f"v_mov_b32 v{V_CS+r}, 0")
    for r in range(4): A(f"v_mov_b32 v{WR+16+r}, 0")
    A("v_mov_b32 v0, 0")
    off_h(A, T, 0)
    A(f"v_mov_b32 v40, s{T}")
    A(f"s_add_u32 s{T}, s{T}, 1024")
    A(f"v_writelane_b32 v40, s{T}, 1")
    off_k(A, T)
    A(f"v_writelane_b32 v40, s{T}, 2")
    off_o(A, T)
    tile_ids(A, 76, 77, 75, 74, T + 1)
    off_p(A, T + 1, 74)
    A(f"s_cmp_eq_u32 s{S_WN}, 0")
    A(f"s_cselect_b32 s{T}, s{T}, s{T+1}")
    A(f"v_writelane_b32 v40, s{T}, 3")
    A(f"s_cselect_b32 s{T+2}, 15, 7")
    A("s_cmp_eq_u32 s76, 1")
    A(f"s_cselect_b32 s{T+2}, 15, s{T+2}")
    A(f"s_cmp_eq_u32 s{S_W}, 7")
    A("s_cbranch_scc1 L_pro_b7")
    A("s_waitcnt vmcnt(0)")
    if opt("pdbg"): A("s_memrealtime s[90:91]")
    A("s_barrier")
    A(f"s_cmp_eq_u32 s{S_W}, 6")
    A("s_cbranch_scc1 L_pro_g6")
    for cls, w in (("", 0), ("L_pro_g6", 6)):
        if cls: A.label(cls)
        run(pb(w, 2)); run(pa(w, 1))
        A(f"buffer_load_dwordx4 v[80:83], v61, {srd(SRD_A)}, 0 offen")
        A(f"buffer_load_dwordx4 v[84:87], v61, {srd(SRD_A)}, 0 offen offset:1024")
        A("s_branch L_pro_c2")
    A.label("L_pro_b7")
    if opt("pdbg"): A("s_memrealtime s[90:91]")
    A("s_barrier")
    A.label("L_pro_c2")
    A(f"s_mov_b32 exec_lo, s{T+2}")
    A("s_mov_b32 exec_hi, 0")
    A(f"buffer_store_dword v0, v40, {WS}, 0 offen sc1")
    A("s_mov_b64 exec, -1")
    if opt("pdbg"): A("s_memrealtime s[94:95]")
    for ts, ks in ((T0, 0), (T1A, 1)):
        for tb in range(4):
            for t in range(2): tread(A, 0, ks, tb, ts, "T", t)
    A(f"s_cmp_eq_u32 s{S_WN}, 1")
    A("s_cbranch_scc1 L_pro_w1")
    for wn in range(2):
        if wn: A.label("L_pro_w1")
        for b in range(4):
            for t in range(2): wread(A, wn, b, 0, WR + b * 4, "W", t)
        A("s_waitcnt lgkmcnt(8)")
        A("s_barrier")
        stamp(A, 1)
        A("s_waitcnt lgkmcnt(0)")
        A(f"s_mov_b32 s{S_ITER}, 8")
        for wm in range(1, 4):
            A(f"s_cmp_eq_u32 s{S_WM}, {wm}")
            A(f"s_cbranch_scc1 L_loop{wn*4+wm}")
        for wm in range(4):
            w = wn * 4 + wm
            B = Asm(); p1_body(B, w); entry = list(B.lgkm)
            A.lgkm = list(entry)
            A.label(f"L_loop{w}")
            p1_body(A, w)
            assert A.lgkm == entry
            A(f"s_sub_u32 s{S_ITER}, s{S_ITER}, 1")
            A(f"s_cmp_lg_u32 s{S_ITER}, 0")
            A(f"s_cbranch_scc1 L_loop{w}")
            if wm == 1:
                for f in cs_ops(9, 1): f(A)
            A(f"s_branch L_epi{wn}")
            p1_extras(A, w)
        p1_epilogue(A, wn)

def o_tb(e, soff):
    B = Asm()
    PK, PP, PM, SC, O, N0, N1, DN = 64, 72, 76, 96, 24, 80, 84, 88
    q = 120 + 4 * e
    MF(B, PK, 56, q); MF(B, PK + 4, 60, q)
    B("s_nop 7")
    softmax(B, PK, PP, PM, SC)
    B("s_waitcnt lgkmcnt(0)")
    B("s_nop 1")
    MF(B, DN, 48, PP); MF(B, N0, 32, PP); MF(B, N1, 40, PP)
    MF(B, DN, 52, PM, DN); MF(B, N0, 36, PM, N0); MF(B, N1, 44, PM, N1)
    B("s_nop 7")
    B(f"v_add_f32 v{DN}, 0x358637bd, v{DN}")
    B(f"v_rcp_f32 v{DN}, v{DN}")
    B("s_nop 0")
    for r in range(8): B(f"v_mul_f32 v{N0+r}, v{N0+r}, v{DN}")
    d = O + 4 * (e & 1)
    for r in range(4): cvt(B, d + r, N0 + 2 * r)
    B(f"buffer_store_dwordx4 v[{d}:{d+3}], v4, {WS}, s{soff} offen offset:{e*1024} sc1")
    n = int(opt("opc", 3))
    cost = [2 if ("v_exp" in l or "v_rcp" in l) else 1 for l in B.lines]
    tot = sum(cost); out = [[] for _ in range(n)]; c = 0
    for l, k in zip(B.lines, cost):
        out[min(n - 1, c * n // tot)].append(l); c += k
    return out

def phase2(A):
    A.p2 = True
    SPL = int(opt("h1n", 64)); NB1 = min(SPL - 32, 32); K1O = SPL - 32 - NB1; NB0 = 32 - NB1; N0 = 144 - SPL; OST = N0 - 32
    assert NB0 % 2 == 0 and NB0 >= 0
    H, M, N, TILE = 20, 21, 22, 23
    SRD_X, SRD_B, SRD_OUT = 8, 12, 16
    S_SLOT, S_DELTA = 24, 25
    AOFF, BOFF, AINC, BINC, POS, EVT, LDS, B2, LA, LB = 26, 27, 28, 29, 30, 31, 32, 33, 34, 35
    NIT, T2, S_OO, RET = 60, 56, 58, 76
    VT, VW = 1, 2
    TS = [8, 24]; WSR = [40, 56]; AC = 72; XR = 136; KG = 160
    KI = [int(x) for x in opt("ki", "0,2,4").split(",")]
    OS = KI[2] + 1
    def ac(cb, tb): return AC + (cb * 4 + tb) * 4
    def common(A):
        stamp(A, 0)
        A(f"v_mov_b32 v4, v{L16}")
        A("v_lshrrev_b32 v3, 4, v4")
        A("v_lshrrev_b32 v5, 4, v3           ; g")
        A("v_and_b32 v6, 15, v3")
        A("v_lshlrev_b32 v12, 2, v3          ; lane*4")
        A("v_mov_b32 v13, 0")
        A("v_mov_b32 v14, 1")
        tile_ids(A, H, M, N, TILE, T)
        A(f"s_cmp_eq_u32 s{H}, 1")
        A(f"s_cselect_b32 s{NIT}, {SPL // 2}, {N0 // 2}")
    def own_flags(A):
        off_h(A, T, 1); off_k(A, T + 1)
        A("s_waitcnt vmcnt(0)")
        A("s_mov_b64 exec, 1")
        put(A, T, 14, 13); put(A, T + 1, 14, 13)
        if opt("edbg"):
            A("s_memrealtime s[94:95]")
            A("s_waitcnt lgkmcnt(0)")
            lin(A, T, [(2, 9), (S_W, 6)], WS_STAMP + MB)
            for i in range(8):
                A(f"v_mov_b32 v15, s{80+2*i}")
                A(f"buffer_store_dword v15, v13, {WS}, s{T} offen offset:{4*i}")
                A("s_nop 1")
        A("s_mov_b64 exec, -1")
    def poll64(A, soff, lab, vaddr, vdst):
        A.label(lab)
        A(f"buffer_load_dword v{vdst}, v{vaddr}, {WS}, s{soff} offen sc1")
        A("s_waitcnt vmcnt(0)")
        A(f"v_cmp_ne_u32 vcc, 1, v{vdst}")
        A("s_nop 4")
        A(f"s_cbranch_vccz {lab}_ok")
        A("s_sleep 1")
        A(f"s_branch {lab}")
        A.label(lab + "_ok")
    def hf_query(A, d, ph, wn):
        A(f"s_lshr_b32 s{d}, s{M}, 1")
        A(f"s_lshl_b32 s{d}, s{d}, 11")
        A(f"s_and_b32 s{d+1}, s{M}, 1")
        A(f"s_lshl_b32 s{d+1}, s{d+1}, 8")
        A(f"s_add_u32 s{d}, s{d}, s{d+1}")
        A(f"s_add_u32 s{d}, s{d}, {F_H + ph * 1024 + wn * 512}")
    A.label("L_p2_cons")
    common(A)
    A("s_barrier                 ; B4")
    make_srd(A, SRD_OUT, P + 12, P + 13, 4 * MB)
    A("v_mov_b32 v158, v12")
    S_CM, S_CN, CI = 26, 27, 28
    A(f"s_and_b32 s{S_CM}, s{S_WM}, 1")
    A(f"s_lshr_b32 s{S_CN}, s{S_WM}, 1")
    A(f"s_lshl_b32 s{T}, s{S_CM}, 12")
    A(f"v_add_u32 v{VT}, s{T}, v4")
    A("v_and_b32 v7, 1, v5")
    A("v_lshrrev_b32 v8, 2, v6")
    A("v_lshl_add_u32 v7, v7, 2, v8")
    A("v_mul_u32_u24 v7, 1056, v7")
    A("v_lshrrev_b32 v8, 1, v5")
    A("v_lshl_add_u32 v7, v8, 8, v7")
    A("v_and_b32 v8, 3, v6")
    A("v_lshl_add_u32 v7, v8, 3, v7")
    lin(A, T, [(S_CN, 7)], 8192)
    A(f"v_add_u32 v{VW}, s{T}, v7")
    lin(A, T, [(M, 7), (S_CM, 6)], 0)
    A(f"v_add_u32 v7, s{T}, v6")
    A("v_lshlrev_b32 v7, 11, v7")
    lin(A, T, [(N, 8), (S_CN, 7)], 0)
    A(f"v_add_u32 v7, s{T}, v7")
    for tb in range(1, 4): A(f"s_mov_b32 s{60+tb}, {tb * 32768}")
    sof = lambda tb: "0" if tb == 0 else f"s{60+tb}"
    for r in range(64): A(f"v_mov_b32 v{AC+r}, 0")
    A(f"s_mov_b32 s{S_SLOT}, 0")
    A(f"s_mov_b32 s{CI}, 0")
    A(f"s_mov_b32 s{EVT}, {KI[0]}")
    own_flags(A)
    if opt("prio"): A("s_setprio 1")
    A("s_barrier")
    A.lgkm = []
    def reads(st):
        out = []
        for k in range(4):
            out.append(lambda A, k=k: A.ds(f"ds_read_b128 v[{TS[st]+4*k}:{TS[st]+4*k+3}], v{VT} offset:{k*1024}", f"S{st}"))
            for tt in range(2):
                out.append(lambda A, k=k, tt=tt: A.ds(f"ds_read_b64_tr_b16 v[{WSR[st]+4*k+2*tt}:{WSR[st]+4*k+2*tt+1}], v{VW} offset:{tt*512 + k*32}", f"S{st}"))
        return out
    def adv0(A):
        A(f"s_add_u32 s{S_SLOT}, s{S_SLOT}, 1")
        A(f"s_cmp_eq_u32 s{S_SLOT}, {NSLOT}")
        A(f"s_cselect_b32 s{S_SLOT}, 0, s{S_SLOT}")
        A(f"s_mov_b32 s{S_DELTA}, {SLOT}")
        A(f"s_cselect_b32 s{S_DELTA}, {(-(NSLOT-1) * SLOT) & 0xffffffff}, s{S_DELTA}")
    def adv1(A):
        A(f"v_add_u32 v{VT}, s{S_DELTA}, v{VT}")
        A(f"v_add_u32 v{VW}, s{S_DELTA}, v{VW}")
    for f in reads(0): f(A)
    adv0(A); adv1(A)
    stamp(A, 1)
    if opt("stamp"): A("s_waitcnt lgkmcnt(0)")
    entry = list(A.lgkm)
    A.label("L_p2_cloop")
    for e in range(2):
        A.wait_lgkm(f"S{e}")
        fill = reads(1 - e) + [adv0, adv1]
        m = 0
        for cb in range(4):
            for tb in (range(4) if cb % 2 == 0 else range(3, -1, -1)):
                MF(A, ac(cb, tb), WSR[e] + 4 * cb, TS[e] + 4 * tb, ac(cb, tb))
                if m < len(fill): fill[m](A)
                m += 1
    assert A.lgkm == entry[len(entry)-len(A.lgkm):]
    A(f"s_cmp_eq_u32 s{CI}, s{EVT}")
    A("s_cbranch_scc1 L_p2_cevt")
    A.label("L_p2_cevt_ret")
    A(f"s_add_u32 s{CI}, s{CI}, 1")
    A(f"s_cmp_lg_u32 s{CI}, s{NIT}")
    A("s_barrier")
    A("s_cbranch_scc1 L_p2_cloop")
    A("s_waitcnt vmcnt(0) lgkmcnt(0)")
    stamp(A, 2)
    A(f"s_cmp_eq_u32 s{H}, 1")
    A("s_cbranch_scc0 L_p2_fin")
    lin(A, T, [(TILE, 16), (S_WM, 14)], WS_PART)
    A("v_lshrrev_b32 v8, 2, v6")
    A("v_mul_u32_u24 v8, 1056, v8")
    A("v_and_b32 v9, 3, v6")
    A("v_lshl_add_u32 v8, v9, 8, v8")
    A("v_lshl_add_u32 v8, v5, 3, v8")
    for h in range(2):
        A(f"s_lshl_b32 s{T+1}, s{S_CM}, 1")
        A(f"s_add_u32 s{T+1}, s{T+1}, {(SPL + h) % NSLOT}")
        A(f"s_cmp_ge_u32 s{T+1}, {NSLOT}")
        A(f"s_cselect_b32 s{T+2}, {NSLOT}, 0")
        A(f"s_sub_u32 s{T+1}, s{T+1}, s{T+2}")
        A(f"s_mul_i32 s{T+1}, s{T+1}, {SLOT}")
        A(f"s_lshl_b32 s{T+2}, s{S_CN}, 7")
        A(f"s_add_u32 s{T+1}, s{T+1}, s{T+2}")
        A(f"v_add_u32 v{1+h}, s{T+1}, v8")
    A("s_barrier            ; x landed")
    for blk in range(16):
        cb, tb = blk // 4, blk % 4
        A.ds(f"ds_read_b64 v[{XR+2*blk}:{XR+2*blk+1}], v{1 + (tb >> 1)} offset:{8192 + (tb & 1) * 4 * 1056 + cb * 32}", f"X{blk}")
    for blk in range(16):
        d = XR + blk * 2; a = AC + blk * 4
        A.wait_lgkm(f"X{blk}")
        A(f"v_lshlrev_b32 v8, 16, v{d}")
        A(f"v_and_b32 v9, s{S_HI}, v{d}")
        A(f"v_lshlrev_b32 v10, 16, v{d+1}")
        A(f"v_and_b32 v11, s{S_HI}, v{d+1}")
        for r in range(4): A(f"v_add_f32 v{a+r}, v{a+r}, v{8+r}")
        if blk and blk % 4 == 0: A(f"s_add_u32 s{T}, s{T}, 4096")
        A(f"buffer_store_dwordx4 v[{a}:{a+3}], v4, {WS}, s{T} offen offset:{(blk%4)*1024} sc1")
    off_p(A, T, TILE)
    A("v_mov_b32 v13, 0")
    A("v_mov_b32 v14, 1")
    A("s_waitcnt vmcnt(0)")
    A("s_mov_b64 exec, 1")
    put(A, T, 14, 13)
    A("s_branch L_p2_end")
    A.label("L_p2_fin")
    A(f"s_add_u32 s{T}, s{S_WM}, {N0 % NSLOT}")
    A(f"s_cmp_ge_u32 s{T}, {NSLOT}")
    A(f"s_cselect_b32 s{T+1}, {NSLOT}, 0")
    A(f"s_sub_u32 s{T}, s{T}, s{T+1}")
    A(f"s_mul_i32 s{T}, s{T}, {SLOT}")
    A(f"v_add_u32 v1, s{T}, v4")
    A("v_and_b32 v8, 1, v5")
    A("v_lshlrev_b32 v8, 5, v8")
    A("v_lshrrev_b32 v9, 1, v5")
    A("v_lshl_add_u32 v8, v9, 4, v8")
    A("v_add_u32 v7, v7, v8")
    A("s_barrier")
    for blk in range(16):
        A.ds(f"ds_read_b128 v[{XR+4*blk}:{XR+4*blk+3}], v1 offset:{blk * 1024 if blk < 8 else 8192 + (blk - 8) * 1056}", f"P{blk}")
    for q in range(2):
        for tb in range(4):
            d = 8 + (q * 4 + tb) * 4
            A.wait_lgkm([f"P{(2*q)*4+tb}", f"P{(2*q+1)*4+tb}"])
            for e in range(2):
                cb = 2 * q + e; a = ac(cb, tb); p = XR + (cb * 4 + tb) * 4
                for r in range(4): A(f"v_add_f32 v{a+r}, v{a+r}, v{p+r}")
                cvt(A, d + 2 * e, a); cvt(A, d + 2 * e + 1, a + 2)
            A("s_nop 1")
            A(f"v_permlane16_swap_b32 v{d}, v{d+2}")
            A(f"v_permlane16_swap_b32 v{d+1}, v{d+3}")
            A(f"buffer_store_dwordx4 v[{d}:{d+3}], v7, {srd(SRD_OUT)}, {sof(tb)} offen offset:{q*64}")
    A("s_branch L_p2_end")
    A.label("L_p2_cevt")
    A(f"s_cmp_eq_u32 s{CI}, {KI[1]}")
    A("s_cbranch_scc1 L_p2_c1")
    A(f"s_cmp_eq_u32 s{CI}, {KI[2]}")
    A("s_cbranch_scc1 L_p2_c2")
    lin(A, T2, [(S_J, 8)], F_K)
    A(f"buffer_load_dword v159, v158, {WS}, s{T2} offen sc1")
    A(f"s_mov_b32 s{EVT}, {KI[1]}")
    A("s_branch L_p2_cevt_ret")
    A.label("L_p2_c1")
    A("s_waitcnt vmcnt(0)")
    A("v_cmp_ne_u32 vcc, 1, v159")
    A("s_nop 4")
    A("s_cbranch_vccz L_p2_c1_ok")
    poll64(A, T2, "L_p2_c1", 158, 159) if False else None
    A("s_sleep 1")
    A(f"buffer_load_dword v159, v158, {WS}, s{T2} offen sc1")
    A("s_branch L_p2_c1")
    A.label("L_p2_c1_ok")
    A("v_lshlrev_b32 v159, 4, v5          ; g*16")
    A(f"s_mul_i32 s{T}, s{S_J}, {8 * KVP_SZ}")
    A(f"s_add_u32 s{T}, s{T}, {WS_KVP}")
    A(f"s_lshl_b32 s{T+1}, s{S_WM}, 11")
    A(f"s_add_u32 s{T+1}, s{T+1}, s{T}")
    for p in range(8):
        A(f"buffer_load_dwordx4 v[{KG+4*p}:{KG+3+4*p}], v4, {WS}, s{T+1} offen sc1")
        A(f"buffer_load_dwordx4 v[{KG+32+4*p}:{KG+35+4*p}], v4, {WS}, s{T+1} offen offset:1024 sc1")
        if p < 7: A(f"s_add_u32 s{T+1}, s{T+1}, {KVP_SZ}")
    A(f"s_lshl_b32 s{T+1}, s{S_WM}, 6")
    A(f"s_add_u32 s{T+1}, s{T+1}, s{T}")
    A(f"s_add_u32 s{T+1}, s{T+1}, 8192")
    for p in range(8):
        A(f"buffer_load_dwordx4 v[{KG+64+4*p}:{KG+67+4*p}], v159, {WS}, s{T+1} offen sc1")
        if p < 7: A(f"s_add_u32 s{T+1}, s{T+1}, {KVP_SZ}")
    A(f"s_mov_b32 s{EVT}, {KI[2]}")
    A("s_branch L_p2_cevt_ret")
    A.label("L_p2_c2")
    A("s_waitcnt vmcnt(0)")
    for base in (KG, KG + 32, KG + 64):
        for s_ in (16, 8, 4):
            for r in range(s_): A(f"v_add_f32 v{base+r}, v{base+r}, v{base+s_+r}")
    for k, base in enumerate((KG, KG + 32, KG + 64)):
        cvt(A, KG + 4 + 2 * k, base); cvt(A, KG + 5 + 2 * k, base + 2)
    lin(A, T, [(S_WM, 10)], RING)
    A(f"v_lshl_add_u32 v159, v158, 1, s{T}")
    A(f"ds_write_b64 v159, v[{KG+4}:{KG+5}]")
    A(f"ds_write_b64 v159, v[{KG+6}:{KG+7}] offset:512")
    lin(A, T, [(S_WM, 9)], RING + 4096)
    A(f"v_lshl_add_u32 v157, v158, 1, s{T}")
    A(f"ds_write_b64 v157, v[{KG+8}:{KG+9}]")
    A(f"s_mov_b32 s{EVT}, -1")
    A("s_waitcnt lgkmcnt(0)")
    A("s_branch L_p2_cevt_ret")
    A.label("L_p2_prod")
    for r in range(16): A(f"v_mov_b32 v{120+r}, v{96+r}")
    for r in range(8): A(f"v_mov_b32 v{56+r}, v{WPK+r}")
    common(A)
    A("s_barrier                 ; B4")
    make_srd(A, SRD_B, 100, 101, 3584 * 2048)
    A("v_lshlrev_b32 v22, 3, v3")
    A(f"v_add_u32 v22, {RING}, v22")
    lin(A, T, [(M, 13), (S_WM, 11)], 0)
    A(f"v_add_u32 v8, s{T}, v4")
    A(f"s_lshl_b32 s{T+1}, s{S_WM}, 1")
    A(f"v_lshlrev_b32 v9, 3, v5")
    A(f"v_add_u32 v9, s{T+1}, v9")
    A("v_lshlrev_b32 v9, 11, v9")
    A("v_lshl_add_u32 v9, v6, 4, v9")
    A(f"s_lshl_b32 s{T}, s{N}, 8")
    A(f"v_add_u32 v9, s{T}, v9              ; regular")
    A("v_lshrrev_b32 v10, 1, v5")
    A(f"v_mul_u32_u24 v10, {96*2048}, v10")
    A("v_add_u32 v10, v10, v9               ; odd")
    A("v_mov_b32 v11, v9")
    A(f"s_lshl_b32 s{LA}, s{S_WM}, 11")
    A(f"s_mul_i32 s{LB}, s{S_WM}, {2*1056}")
    A(f"s_add_u32 s{LB}, s{LB}, 8192")
    lin(A, S_OO, [(S_J, 17), (S_MT, 14), (S_WM, 12)], WS_ACT + 112 * 131072)
    A(f"s_cmp_eq_u32 s{H}, 1")
    A(f"s_cselect_b32 s{AOFF}, 0, {2 * 131072}")
    A(f"s_cselect_b32 s{BOFF}, 0, {64 * 2048}")
    A(f"s_cselect_b32 s{POS}, 1000, 0")
    A(f"s_add_u32 s{AOFF}, s{AOFF}, {WS_ACT}")
    A(f"s_add_u32 s{EVT}, s{POS}, 24")
    A(f"s_mov_b32 s{AINC}, {3 * 131072}")
    A(f"s_mov_b32 s{BINC}, {112 * 2048}")
    A(f"s_mov_b32 s{B2}, 2048")
    def issue_a(A):
        A(f"s_add_u32 m0, s{LDS}, s{LA}")
        A(f"s_add_u32 s{T2}, s{BOFF}, s{B2}")
        A(f"buffer_load_dwordx4 v8, {WS}, s{AOFF} offen sc1 lds")
        A(f"buffer_load_dwordx4 v8, {WS}, s{AOFF} offen offset:1024 sc1 lds")
        A(f"s_add_u32 s{AOFF}, s{AOFF}, s{AINC}")
    def issue_b(A, own_t2=False):
        A(f"s_add_u32 m0, s{LDS}, s{LB}")
        if own_t2: A(f"s_add_u32 s{T2}, s{BOFF}, s{B2}")
        else: A("s_nop 0")
        A(f"buffer_load_dwordx4 v11, {srd(SRD_B)}, s{BOFF} offen sc1 lds")
        A(f"s_add_u32 m0, m0, 1056")
        A(f"s_add_u32 s{BOFF}, s{BOFF}, s{BINC}")
        A(f"buffer_load_dwordx4 v11, {srd(SRD_B)}, s{T2} offen sc1 lds")
    def nxt(A):
        A(f"s_add_u32 s{LDS}, s{LDS}, {SLOT}")
        A(f"s_cmp_eq_u32 s{LDS}, {RING}")
        A(f"s_cselect_b32 s{LDS}, 0, s{LDS}")
    def issue_kb(A):
        issue_a(A); issue_b(A)
        A(f"s_add_u32 s{POS}, s{POS}, 1")
        nxt(A)
    A(f"s_mov_b32 s{LDS}, 0")
    for k in range(7): issue_b(A, True); nxt(A)
    own_flags(A)
    hf_query(A, T, 0, 0)
    A(f"s_cmp_eq_u32 s{H}, 1")
    A(f"s_cselect_b32 s{T+1}, 0, 512")
    A(f"s_add_u32 s{T}, s{T}, s{T+1}")
    poll64(A, T, "L_p2_poll0", 12, 15)
    A(f"s_mov_b32 s{LDS}, 0")
    for k in range(7): issue_a(A); nxt(A)
    A(f"s_add_u32 s{POS}, s{POS}, 7")
    A("s_waitcnt vmcnt(8)")
    A("s_barrier")
    stamp(A, 1)
    def mid(A):
        lab = A.newlabel("L_p2_ne")
        A(f"s_cmp_eq_u32 s{POS}, s{EVT}")
        A(f"s_cbranch_scc0 {lab}")
        A(f"s_call_b64 s[{RET}:{RET+1}], L_p2_evt")
        A.label(lab)
    OPC = int(opt('opc', 3)); NO = 4 * OPC
    NPEEL = OS + NO + 1
    assert OST - 2 >= 8 + 2 * NPEEL - 2 + 2, (OST, NPEEL)
    for ss in range(NPEEL):
        issue_kb(A); mid(A); issue_kb(A)
        if ss == OS:
            for db in range(2):
                for hf in range(2):
                    for e in range(2):
                        d = 32 + (db * 2 + hf) * 4 + 2 * e
                        A(f"ds_read_b64 v[{d}:{d+1}], v22 offset:{((2 * hf + e) * 2 + db)*512}")
            for hf in range(2):
                for e in range(2):
                    A(f"ds_read_b64 v[{48+hf*4+2*e}:{49+hf*4+2*e}], v22 offset:{4096 + (2*hf+e)*512}")
        if OS <= ss < OS + NO:
            for l in o_tb((ss - OS) // OPC, S_OO)[(ss - OS) % OPC]: A.raw(l)
        if ss == OS + NO:
            off_o(A, T2)
            A("s_waitcnt vmcnt(0)")
            A("s_mov_b64 exec, 1")
            put(A, T2, 14, 13)
            A("s_mov_b64 exec, -1")
        elif ss == 0: A("s_waitcnt vmcnt(12)")
        else: A("s_waitcnt vmcnt(16)")
        A("s_barrier")
        if opt("p2dbg"):
            k = {0: 80, 3: 82, 6: 84, 10: 86, 16: 88}.get(ss)
            if k: A(f"s_memrealtime s[{k}:{k+1}]")
    A(f"s_sub_u32 s{NIT}, s{NIT}, {NPEEL}")
    A.label("L_p2_ploop")
    issue_kb(A); mid(A); issue_kb(A)
    A(f"s_sub_u32 s{NIT}, s{NIT}, 1")
    A(f"s_cmp_lg_u32 s{NIT}, 0")
    A("s_waitcnt vmcnt(16)")
    A("s_barrier")
    A("s_cbranch_scc1 L_p2_ploop")
    if opt("p2dbg"): A("s_memrealtime s[92:93]")
    stamp(A, 2)
    A("s_waitcnt vmcnt(0)")
    A("s_barrier")
    A("s_branch L_p2_end")
    ev = []
    def seg(aoff, ainc, boff, binc, vsel=None, wo=False):
        def f(A):
            A(f"s_mov_b32 s{AOFF}, {aoff}")
            A(f"s_mov_b32 s{AINC}, {ainc}")
            A(f"s_mov_b32 s{BOFF}, {boff}")
            A(f"s_mov_b32 s{BINC}, {binc}")
            if vsel is not None: A(f"v_mov_b32 v11, v{vsel}")
            if wo:
                A(f"s_mov_b32 s{SRD_B}, s{P+6}")
                A(f"s_and_b32 s{SRD_B+1}, s{P+7}, 0xffff")
                A(f"s_mov_b32 s{SRD_B+2}, {1024*2048}")
        return f
    def only0(body):
        def f(A):
            lab = A.newlabel("L_p2_w0")
            A(f"s_cmp_lg_u32 s{S_W}, 0")
            A(f"s_cbranch_scc1 {lab}")
            body(A, lab)
            A.label(lab)
        return f
    def pollh1(both):
        def b(A, lab):
            hf_query(A, T, 1, 0)
            poll64(A, T, lab + "_a", 12, 15)
            if both:
                A(f"s_add_u32 s{T}, s{T}, 512")
                poll64(A, T, lab + "_b", 12, 15)
        return only0(b)
    def pollo(A, lab):
        lin(A, T, [(M, 8)], F_O)
        poll64(A, T, lab + "_a", 12, 15)
    def pollp(A, lab):
        if opt("p2dbg"): A("s_memrealtime s[90:91]")
        lin(A, T, [(TILE, 7)], F_P)
        A("v_and_b32 v16, 12, v12")
        poll64(A, T, lab + "_a", 16, 15)
    def part(A):
        for k in range(3): A(f"s_mov_b32 s{SRD_B+k}, s{SRD_WS+k}")
        lin(A, AOFF, [(TILE, 16)], WS_PART)
        A(f"s_add_u32 s{BOFF}, s{AOFF}, 8192")
        A(f"s_mov_b32 s{AINC}, 16384")
        A(f"s_mov_b32 s{BINC}, 16384")
        A(f"s_mov_b32 s{B2}, 1024")
        A(f"v_add_u32 v8, s{LA}, v4")
        A("v_mov_b32 v11, v8")
    oob = seg(0x40000000, 0, 0x40000000, 0)
    ev.append((24, pollh1(True)))
    if NB0: ev.append((32, seg(WS_ACT + (3 * NB1 + 1) * 131072, 3 * 131072, (112 * NB1 + 32) * 2048, 112 * 2048)))
    ev.append((32 + NB0, seg(WS_ACT + (96 + K1O) * 131072, 131072, (96 + 224 * K1O) * 2048, 224 * 2048, vsel=10)))
    ev.append((OST - 2, only0(pollo)))
    ev.append((OST, seg(WS_ACT + 112 * 131072, 131072, 0, 32 * 2048, vsel=9, wo=True)))
    ev.append((N0 - 2, only0(pollp)))
    ev.append((N0, part))
    ev.append((N0 + 4, oob))
    ev.append((1024, pollh1(K1O > 0)))
    ev.append((1032, seg(WS_ACT + 131072, 3 * 131072, 32 * 2048, 112 * 2048)))
    if K1O: ev.append((1064, seg(WS_ACT + 96 * 131072, 131072, 96 * 2048, 224 * 2048, vsel=10)))
    def xseg(A):
        A(f"s_mov_b32 s{AOFF}, 0x40000000")
        A(f"s_mov_b32 s{AINC}, 0")
        A(f"s_mov_b32 s{SRD_B}, s{P}")
        A(f"s_and_b32 s{SRD_B+1}, s{P+1}, 0xffff")
        A(f"s_mov_b32 s{SRD_B+2}, {4*MB}")
        lin(A, BOFF, [(M, 18), (N, 8), (S_WM, 14)], 0)
        A(f"s_mov_b32 s{BINC}, {32*2048}")
        A(f"s_mov_b32 s{B2}, {4*2048}")
        A("v_lshlrev_b32 v11, 11, v5")
        A("v_lshl_add_u32 v11, v6, 4, v11")
    ev.append((1000 + SPL, xseg))
    ev.append((1004 + SPL, oob))
    A.label("L_p2_evt")
    for k, (pos, f) in enumerate(ev[1:], 1):
        A(f"s_cmp_eq_u32 s{POS}, {pos}")
        A(f"s_cbranch_scc1 L_p2_ev{k}")
    for k, (pos, f) in enumerate(ev):
        A.label(f"L_p2_ev{k}")
        f(A)
        nx = ev[k + 1][0] if k + 1 < len(ev) and (ev[k + 1][0] >= 1000) == (pos >= 1000) else -1
        A(f"s_mov_b32 s{EVT}, {nx}")
        A(f"s_setpc_b64 s[{RET}:{RET+1}]")
    A.label("L_p2_end")
    if opt("p2dbg"):
        A("s_memrealtime s[94:95]")
        A("s_mov_b64 exec, 1")
        A("s_waitcnt lgkmcnt(0)")
        lin(A, T, [(2, 9), (S_W, 6)], WS_STAMP + MB)
        A("v_mov_b32 v1, 0")
        for i in range(8):
            A(f"v_mov_b32 v2, s{80+2*i}")
            A(f"buffer_store_dword v2, v1, {WS}, s{T} offen offset:{4*i}")
            A("s_nop 1")
    if opt("stamp"):
        A("s_waitcnt vmcnt(0)")
        stamp(A, 3)
        stamp_store(A, WS_STAMP + MB)

def build():
    A = Asm()
    for l in open("cdna_kernels/" + NAME + ".s.ref").read().split("\n"):
        if l.startswith(";") and "@launch" not in l and "Override" not in l and "grid=ceil" not in l: A.raw(l)
    A.raw(f"; @launch kernel=fused_kernel grid=(256,1,1) block=(512,1,1) lds={max(P1_LDS, P2_LDS)}")
    A.raw('.amdgcn_target "amdgcn-amd-amdhsa--gfx950"')
    A.raw(".text")
    kernel_header(A, "fused_kernel")
    p1_prologue(A)
    phase2(A)
    A.label("L_done")
    A("s_endpgm")
    A.raw('.section .rodata,"a"')
    kernel_desc(A, "fused_kernel", 256)
    return A.text()

if __name__ == "__main__":
    for o in sys.argv[2:]:
        if "=" in o: k, v = o.split("=", 1); OPT[k] = v
        else: OPT[o] = True
    open(sys.argv[1], "w").write(build())
```

```python
import sys
from asmlib import *

NAME = "parallel_sum__linear_kernel_hedgehog__glu_gated_glu__prompt"
MB = 1 << 20
WS_BYTES = 268435456
WS_ACT = 8 * MB
WS_KVP = 28 * MB
KVP_SZ = 8448
WS_PART = 32 * MB
WS_FLAG = 48 * MB
WS_STATS = 49 * MB
WS_STAMP = 52 * MB
F_H = WS_FLAG
F_K = WS_FLAG + 16384
F_O = WS_FLAG + 24576
F_P = WS_FLAG + 28672
LOG2E, NLOG2E = 0x3fb8aa3b, 0xbfb8aa3b
OPT = {}
def opt(k, d=None): return OPT.get(k, d)

A_PAGE = 1040; A_BUF = 32 * A_PAGE; LDS_B = 2 * A_BUF; B_STAGE = 20480
X_LDS = LDS_B + 4 * B_STAGE
CSL = X_LDS; STL = X_LDS + 1536; WPL = STL + 4096; P1_LDS = WPL + 2048
HOFF = 100 * 1024
SLOT = 16640; NSLOT = 9; RING = SLOT * NSLOT; P2_LDS = RING + 6144
V_A, V_B0, V_B1, V_B2, V_AR, V_BG, V_BQ0, V_BQ1, L16, V_CT = 1, 2, 3, 4, 5, 6, 7, 8, 9, 10
T0, T1A, T1B, WR = 12, 28, 44, 60
V_ST, V_POLL, V_PA, V_CS = 80, 88, 89, 90
V_BG2, V_BQ02, V_BQ12 = 93, 94, 95
ACC = 96
def acc(b, tb): return ACC + (b * 4 + tb) * 4
S_W, S_WM, S_WN, S_J, S_MT = 3, 4, 5, 6, 7
SRD_A, SRD_B0, SRD_B1, SRD_B2 = 8, 12, 16, 20
S_APAGE, S_AK, S_AKE = 24, 25, 26
S_BOFF, S_BINC, S_BLDS = (27, 28, 29), (30, 31, 32), (33, 34, 35)
P = 36
T = 50
SRD_D = 56
S_ITER = 60
SRD_WS, SRD_WP = 64, 68
S_C = 72; S_ONES = 78; S_HI = 79
S_ST = 80
SRD_PF = 96
WS = f"s[{SRD_WS}:{SRD_WS+3}]"
def srd(n): return f"s[{n}:{n+3}]"

def stamp(A, i):
    if opt("odbg"):
        k = i + (4 if getattr(A, "p2", False) else 0)
        A(f"s_memrealtime s[{80+2*k}:{81+2*k}]")
        return
    if opt("pdbg") and i > 0 and not getattr(A, "p2", False): return
    if opt("stamp"):
        A(f"s_memtime s[{S_ST+4*i}:{S_ST+4*i+1}]")
        A(f"s_memrealtime s[{S_ST+4*i+2}:{S_ST+4*i+3}]")
def stamp_store(A, base):
    if not opt("stamp"): return
    A("s_mov_b64 exec, 1")
    A("s_waitcnt lgkmcnt(0)")
    A(f"s_lshl_b32 s{T}, s2, 3")
    A(f"s_add_u32 s{T}, s{T}, s{S_W}")
    A(f"s_lshl_b32 s{T}, s{T}, 6")
    A(f"s_add_u32 s{T}, s{T}, {base}")
    A("v_mov_b32 v1, 0")
    for i in range(4):
        A(f"v_mov_b32 v2, s{S_ST+4*i}")
        A(f"v_mov_b32 v3, s{S_ST+4*i+2}")
        A(f"buffer_store_dwordx2 v[2:3], v1, {WS}, s{T} offen offset:{8*i}")
        A("s_nop 1")
    A("s_mov_b64 exec, -1")

def xreduce_g(A, vs, tmps, op):
    ops = op if isinstance(op, list) else [op] * len(vs)
    for sw in ("v_permlane16_swap_b32", "v_permlane32_swap_b32"):
        for v, t in zip(vs, tmps): A(f"v_mov_b32 v{t}, v{v}")
        A("s_nop 1")
        for v, t in zip(vs, tmps): A(f"{sw} v{v}, v{t}")
        if len(vs) == 1: A("s_nop 0")
        for v, t, o in zip(vs, tmps, ops): A(f"v_{o}_f32 v{v}, v{v}, v{t}")
def wave_allreduce(A, v, tmp):
    for dpp in ("quad_perm:[1,0,3,2]", "quad_perm:[2,3,0,1]", "row_half_mirror", "row_mirror"):
        A("s_nop 1")
        A(f"v_add_f32_dpp v{v}, v{v}, v{v} {dpp} row_mask:0xf bank_mask:0xf")
    xreduce_g(A, [v], [tmp], "add")
def MF(A, d, a, b, c=None):
    cs = "0" if c is None else f"v[{c}:{c+3}]"
    A(f"v_mfma_f32_16x16x32_bf16 v[{d}:{d+3}], v[{a}:{a+3}], v[{b}:{b+3}], {cs}")
def cvt(A, d, a): A(f"v_cvt_pk_bf16_f32 v{d}, v{a}, v{a+1}")

def softmax(A, pk, Pp, Pm, t):
    mx, mn, x0, x1, ep, em, sp, sm = t, t + 1, t + 2, t + 3, t + 4, t + 12, t + 20, t + 21
    A(f"v_max3_f32 v{mx}, v{pk}, v{pk+1}, v{pk+2}")
    A(f"v_min3_f32 v{mn}, v{pk}, v{pk+1}, v{pk+2}")
    for r in (3, 5):
        A(f"v_max3_f32 v{mx}, v{mx}, v{pk+r}, v{pk+r+1}")
        A(f"v_min3_f32 v{mn}, v{mn}, v{pk+r}, v{pk+r+1}")
    A(f"v_max_f32 v{mx}, v{mx}, v{pk+7}")
    A(f"v_min_f32 v{mn}, v{mn}, v{pk+7}")
    xreduce_g(A, [mx, mn], [x0, x1], ["max", "min"])
    A(f"v_mul_f32 v{mx}, s{S_C}, v{mx}")
    A(f"v_mul_f32 v{mn}, s{S_C+1}, v{mn}")
    for r in range(8):
        A(f"v_fma_f32 v{ep+r}, v{pk+r}, s{S_C+1}, v{mx}")
        A(f"v_fma_f32 v{em+r}, v{pk+r}, s{S_C}, v{mn}")
    for r in range(8):
        A(f"v_exp_f32 v{ep+r}, v{ep+r}")
        A(f"v_exp_f32 v{em+r}, v{em+r}")
    A(f"v_add_f32 v{sp}, v{ep}, v{ep+1}")
    A(f"v_add_f32 v{sm}, v{em}, v{em+1}")
    for r in range(2, 8):
        A(f"v_add_f32 v{sp}, v{sp}, v{ep+r}")
        A(f"v_add_f32 v{sm}, v{sm}, v{em+r}")
    xreduce_g(A, [sp, sm], [x0, x1], "add")
    A(f"v_rcp_f32 v{sp}, v{sp}")
    A(f"v_rcp_f32 v{sm}, v{sm}")
    A("s_nop 0")
    for r in range(8):
        A(f"v_mul_f32 v{ep+r}, v{ep+r}, v{sp}")
        A(f"v_mul_f32 v{em+r}, v{em+r}, v{sm}")
    for r in range(4):
        cvt(A, Pp + r, ep + 2 * r); cvt(A, Pm + r, em + 2 * r)

def blocks_of(wn):
    if wn == 0: return [("q", 0), ("q", 1)] + [x for b in range(4) for x in (("g", b), ("u", b))]
    return [("k", 0), ("k", 1), ("v", 0), ("v", 1)] + [x for b in range(4, 7) for x in (("g", b), ("u", b))]
def wread(A, wn, blk, stage, dst, tag, t):
    kind, idx = blocks_of(wn)[blk]
    so = (stage & 1) * B_STAGE; hi = stage >> 1
    if kind in "qkv":
        off = so + (2 * "qkv".index(kind) + t) * 1024
        va = ((V_BQ0, V_BQ1), (V_BQ02, V_BQ12))[hi][idx]
    else:
        off = so + (6144 if kind == "g" else 13312) + t * 3584 + idx * 32
        va = (V_BG, V_BG2)[hi]
    A.ds(f"ds_read_b64_tr_b16 v[{dst+2*t}:{dst+2*t+1}], v{va} offset:{off}", tag)
def tread(A, abuf, ks, tb, dst, tag, t):
    A.ds(f"ds_read_b64 v[{dst+tb*4+2*t}:{dst+tb*4+2*t+1}], v{V_AR} offset:{abuf * A_BUF + tb * 256 + ks * 64 + t * 32}", tag)
def nB(w): return 0 if w == 7 else (2 if w == 6 else 3)
def nA(w): return 0 if w == 7 else (4 if w == 6 else 2)
BS = ((V_B0, SRD_B0), (V_B1, SRD_B1), (V_B2, SRD_B2))
def bdma(k, slot):
    def f0(A): A(f"s_add_u32 m0, s{S_BLDS[k]}, {LDS_B + slot * B_STAGE}")
    def f1(A):
        A(f"buffer_load_dwordx4 v{BS[k][0]}, {srd(BS[k][1])}, s{S_BOFF[k]} offen lds")
        A(f"s_add_u32 s{S_BOFF[k]}, s{S_BOFF[k]}, s{S_BINC[k]}")
    return f0, f1
def adma(h, e, abuf, kconst=None):
    def f0(A):
        if kconst is None: A(f"s_add_u32 s{T}, s{S_AKE}, {h * 128 * 2048 + e * 4096}")
        else: A(f"s_mov_b32 s{T}, {kconst + h * 128 * 2048 + e * 4096}")
        A(f"s_add_u32 m0, s{S_APAGE}, {abuf * A_BUF + (16 * h + e) * A_PAGE}")
    def f1(A): A(f"buffer_load_dwordx4 v{V_A}, {srd(SRD_A)}, s{T} offen lds")
    return f0, f1
def pfload(A, k):
    A(f"buffer_load_dword v{V_A}, v{BS[k][0]}, {srd(BS[k][1])}, s{S_BOFF[k]} offen")
    A(f"s_add_u32 s{S_BOFF[k]}, s{S_BOFF[k]}, s{S_BINC[k]}")
def cs_ops(b, half):
    out = []
    c = V_CS + (b // 4)
    for r in (2 * half, 2 * half + 1):
        w = WR + (b % 5) * 4 + r
        def f0(A, w=w):
            A(f"v_lshlrev_b32 v{V_CT}, 16, v{w}")
            A(f"v_and_b32 v{V_CT+1}, s{S_HI}, v{w}")
        def f1(A, c=c):
            A(f"v_add_f32 v{c}, v{c}, v{V_CT}")
            A(f"v_add_f32 v{c}, v{c}, v{V_CT+1}")
        out += [f0, f1]
    return out
def extras_of(w, u):
    if w == 7: return {0: [(2, "poll"), (4, "drain")], 1: [(4, "sig")], 2: [(2, "stat"), (4, "pfd"), (8, "rows")], 3: [(int(opt("pfc")), "pfc")] if opt("pfc") else []}[u]
    return {0: [(2, "poll"), (6, "drain")], 1: [(3, "wphi")] if w == 4 else [], 2: [(2, "stat"), (8, "rows")], 3: []}[u]

def p1_body(A, w):
    wn, wm = w >> 2, w & 3
    blocks = blocks_of(wn)
    G_ = [[] for _ in range(160)]
    def gap(u, i): return G_[(40 * u + i) % 160]
    for u in range(4):
        odd = u & 1
        for c in range(10):
            tgt = c + 4
            blk, st = (tgt, u) if tgt < 10 else (tgt - 10, (u + 1) & 3)
            sl = tgt % 5
            delayed = ((c - 1) % 10) % 4 == wm
            for t in range(2):
                pos = 4 * (c + 1) + 2 + t if delayed else 4 * c + t
                gap(u, pos).append(lambda A, blk=blk, st=st, sl=sl, t=t: wread(A, wn, blk, st, WR + sl * 4, f"W{sl}", t))
        if odd:
            nb = ((u + 1) >> 1) & 1
            Tn1 = T1B if u == 1 else T1A
            tr = [(nb, 0, tb, T0, "T0") for tb in range(4)] + [(nb, 1, tb, Tn1, "T1") for tb in range(4)]
            for k, x in enumerate(tr):
                for t in range(2):
                    gap(u, 4 * [0, 1, 2, 3, 4, 6, 7, 8][k] + 2 + t).append(lambda A, x=x, t=t: tread(A, *x, t))
            def adv(A):
                A(f"s_add_u32 s{S_AK}, s{S_AK}, 128")
                A(f"s_cmp_ge_u32 s{S_AK}, 2048")
                A(f"s_cselect_b32 s{S_AKE}, 0x10000000, s{S_AK}")
            if nA(w): gap(u, 4 * 9 + 2).append(adv)
        dm = [bdma(k, (u + 3) & 3) for k in range(nB(w))] + [adma(u & 1, e, (u >> 1) & 1) for e in range(nA(w))]
        for k, (f0, f1) in enumerate(dm):
            gap(u, 4 * k + 2).insert(0, f0)
            gap(u, 4 * k + 3).insert(0, f1)
        if w == 7:
            for k in range(3): gap(u, 4 * k + 3).append(lambda A, k=k: pfload(A, k))
        for b in range(wm, 10, 4):
            for k, f in enumerate(cs_ops(b, 0) + cs_ops(b, 1)): gap(u, 4 * b + k).append(f)
        for it, nm in extras_of(w, u):
            def g(A, it=it, nm=nm):
                A(f"s_cmp_eq_u32 s{S_ITER}, {it}")
                A(f"s_cbranch_scc1 L_x_{nm}_{w}")
                A.label(f"L_x_{nm}_{w}_ret")
            gap(u, 4 * 8 + 3).append(g)
    for u in range(4):
        odd = u & 1
        Tuse = T0 if not odd else (T1A if u == 1 else T1B)
        for b in range(10):
            A.wait_lgkm([f"W{b % 5}"] + ([("T1" if odd else "T0")] if b == 0 else []))
            wr = WR + (b % 5) * 4
            for k, tb in enumerate(range(4) if b % 2 == 0 else range(3, -1, -1)):
                a = acc(b, tb)
                if blocks[b][0] == "v": MF(A, a, Tuse + tb * 4, wr, a)
                else: MF(A, a, wr, Tuse + tb * 4, a)
                for f in G_[40 * u + 4 * b + k]: f(A)
        nv = nA(w) + nB(w)
        ws_ = [f"vmcnt({nv})"] if nv else []
        n = A.lgkm_count_for(["T0", "T1"]) if odd else None
        if n is not None:
            ws_.append(f"lgkmcnt({n})"); A.lgkm_retire(n)
        if ws_: A("s_waitcnt " + " ".join(ws_))
        A("s_barrier")

ROWS7 = 0
def p1_extras(A, w):
    global ROWS7
    ROWS7 = 3 * int(opt("npf", 0)) + 9 + (2 if opt("pfx") else 0)
    wm = w & 3
    dbg = srd(SRD_D)
    A.label(f"L_x_drain_{w}")
    A("s_waitcnt vmcnt(0)")
    A(f"s_branch L_x_drain_{w}_ret")
    A.label(f"L_x_rows_{w}")
    A(f"s_waitcnt vmcnt({ROWS7 if w == 7 else 0})")
    a0, a1, t0, t1 = 88, 89, 10, 11
    for i in range(8):
        A(f"v_lshlrev_b32 v{t0}, 16, v{80+i}")
        A(f"v_and_b32 v{t1}, s{S_HI}, v{80+i}")
        if i == 0:
            A(f"v_mov_b32 v{a0}, v{t0}"); A(f"v_mov_b32 v{a1}, v{t1}")
        else:
            A(f"v_add_f32 v{a0}, v{a0}, v{t0}"); A(f"v_add_f32 v{a1}, v{a1}, v{t1}")
    A(f"v_add_f32 v{a0}, v{a0}, v{a1}")
    wave_allreduce(A, a0, t0)
    A(f"v_mul_f32 v{a0}, 0xba800000, v{a0}     ; -mean")
    for i in range(8):
        A(f"v_lshlrev_b32 v{t0}, 16, v{80+i}")
        A(f"v_and_b32 v{t1}, s{S_HI}, v{80+i}")
        A(f"v_add_f32 v{t0}, v{t0}, v{a0}")
        A(f"v_add_f32 v{t1}, v{t1}, v{a0}")
        if i == 0: A(f"v_mul_f32 v{a1}, v{t0}, v{t0}")
        else: A(f"v_fmac_f32 v{a1}, v{t0}, v{t0}")
        A(f"v_fmac_f32 v{a1}, v{t1}, v{t1}")
    wave_allreduce(A, a1, t0)
    A(f"v_mul_f32 v{a1}, 0x3a800000, v{a1}     ; var")
    A(f"v_cvt_pk_bf16_f32 v{t0}, v{a0}, v{a1}")
    A(f"v_lshlrev_b32 v80, 16, v{t0}")
    A(f"v_and_b32 v{a1}, s{S_HI}, v{t0}")
    A(f"v_add_f32 v{a1}, 0x3727c5ac, v{a1}")
    A(f"v_cvt_pk_bf16_f32 v{a1}, v{a1}, v{a1}")
    A(f"v_lshlrev_b32 v{a1}, 16, v{a1}")
    A(f"v_sqrt_f32 v{a1}, v{a1}")
    A(f"s_lshl_b32 s{T+1}, s2, 6")
    A(f"v_cvt_pk_bf16_f32 v{a1}, v{a1}, v{a1}")
    A(f"s_add_u32 s{T+1}, s{T+1}, {WS_STATS + w * 8}")
    A(f"v_lshlrev_b32 v81, 16, v{a1}")
    A("s_mov_b64 exec, 1")
    A(f"buffer_store_dwordx2 v[80:81], v0, {WS}, s{T+1} offen sc1")
    A("s_mov_b64 exec, -1")
    A(f"s_branch L_x_rows_{w}_ret")
    def paddr(A):
        A(f"v_and_b32 v{V_PA}, 0x70, v{L16}")
        A(f"v_lshlrev_b32 v{V_PA}, 1, v{V_PA}")
        A(f"buffer_load_dword v{V_POLL}, v{V_PA}, {dbg}, 0 offen sc1")
    A.label(f"L_x_poll_{w}")
    paddr(A)
    A(f"s_branch L_x_poll_{w}_ret")
    A.label(f"L_x_stat_{w}")
    A("s_waitcnt vmcnt(0)")
    A(f"v_cmp_ne_u32 vcc, 32, v{V_POLL}")
    A("s_nop 4")
    A(f"s_cbranch_vccz L_x_stat_{w}_go")
    A("s_sleep 2")
    paddr(A)
    A(f"s_branch L_x_stat_{w}")
    A.label(f"L_x_stat_{w}_go")
    A(f"v_and_b32 v{V_POLL}, 0xf0, v{L16}")
    A(f"v_lshrrev_b32 v{V_POLL}, 1, v{V_POLL}")
    A(f"s_lshl_b32 s{T+1}, s{S_MT}, 11")
    A(f"s_add_u32 s{T+1}, s{T+1}, {WS_STATS + wm * 512}")
    for tb in range(4):
        A(f"buffer_load_dwordx2 v[{V_ST+2*tb}:{V_ST+2*tb+1}], v{V_POLL}, {WS}, s{T+1} offen offset:{tb*128} sc1")
    A(f"s_branch L_x_stat_{w}_ret")
    if w == 4:
        A.label(f"L_x_wphi_{w}")
        A(f"s_mov_b32 m0, {WPL}")
        A(f"s_lshl_b32 s{T+1}, s{S_J}, 11")
        A(f"buffer_load_dwordx4 v{L16}, {srd(SRD_WP)}, s{T+1} offen lds")
        A(f"buffer_load_dwordx4 v{L16}, {srd(SRD_WP)}, s{T+1} offen offset:1024 lds")
        A(f"s_branch L_x_wphi_{w}_ret")
    if w == 7:
        A.label(f"L_x_sig_{w}")
        A(f"s_lshr_b32 s{T+1}, s2, 5")
        A(f"s_lshl_b32 s{T+1}, s{T+1}, 5")
        A(f"v_mov_b32 v{V_POLL}, 1")
        A("s_mov_b64 exec, 1")
        A(f"buffer_atomic_add v{V_POLL}, v0, {dbg}, s{T+1} offen sc1")
        A("s_mov_b64 exec, -1")
        A(f"s_branch L_x_sig_{w}_ret")
        if opt("pfc"):
            A.label(f"L_x_pfc_{w}")
            A(f"s_getpc_b64 s[{SRD_PF}:{SRD_PF+1}]")
            A.label("L_pc_ref")
            A(f"s_sub_u32 s{SRD_PF}, s{SRD_PF}, L_pc_ref - fused_kernel")
            A(f"s_subb_u32 s{SRD_PF+1}, s{SRD_PF+1}, 0")
            A(f"s_and_b32 s{SRD_PF+1}, s{SRD_PF+1}, 0xffff")
            A(f"s_mov_b32 s{SRD_PF+2}, L_done - fused_kernel")
            A(f"s_mov_b32 s{SRD_PF+3}, 0x00020000")
            A(f"v_lshrrev_b32 v{V_POLL}, 4, v{L16}")
            A(f"v_min_u32 v{V_POLL}, 23, v{V_POLL}")
            A(f"v_lshlrev_b32 v{V_POLL}, 7, v{V_POLL}")
            A(f"s_lshr_b32 s{T+1}, s2, 3")
            A(f"s_mul_i32 s{T+1}, s{T+1}, {24*128}")
            A(f"buffer_load_dword v{V_A}, v{V_POLL}, {srd(SRD_PF)}, s{T+1} offen")
            A(f"s_branch L_x_pfc_{w}_ret")
        A.label(f"L_x_pfd_{w}")
        make_srd(A, SRD_PF, 100, 101, 3584 * 2048)
        A(f"v_lshrrev_b32 v{V_POLL}, 4, v{L16}")
        A(f"v_min_u32 v{V_POLL}, 55, v{V_POLL}")
        A(f"v_lshlrev_b32 v{V_POLL}, 7, v{V_POLL}")
        A(f"s_mul_i32 s{T+1}, s2, {224*128}")
        for k in range(4):
            A(f"buffer_load_dword v{V_A}, v{V_POLL}, {srd(SRD_PF)}, s{T+1} offen")
            A(f"s_add_u32 s{T+1}, s{T+1}, {56*128}")
        A(f"s_mov_b32 s{SRD_PF}, s{P+6}")
        A(f"s_and_b32 s{SRD_PF+1}, s{P+7}, 0xffff")
        A(f"s_mov_b32 s{SRD_PF+2}, {1024*2048}")
        A(f"v_lshlrev_b32 v{V_POLL}, 3, v{L16}")
        A(f"s_lshl_b32 s{T+1}, s2, 13")
        A(f"buffer_load_dword v{V_A}, v{V_POLL}, {srd(SRD_PF)}, s{T+1} offen")
        A(f"s_branch L_x_pfd_{w}_ret")

def tile_ids(A, H, M, N, TILE, t):
    A(f"s_and_b32 s{t}, s2, 7")
    A(f"s_lshr_b32 s{t+1}, s2, 3")
    A(f"s_and_b32 s{H}, s{t}, 1")
    A(f"s_lshr_b32 s{M}, s{t}, 1")
    A(f"s_lshl_b32 s{M}, s{M}, 2")
    A(f"s_and_b32 s{t}, s{t+1}, 3")
    A(f"s_add_u32 s{M}, s{M}, s{t}")
    A(f"s_lshr_b32 s{N}, s{t+1}, 2")
    A(f"s_lshl_b32 s{TILE}, s{M}, 3")
    A(f"s_add_u32 s{TILE}, s{TILE}, s{N}")
def lin(A, d, terms, base):
    first = True
    for r, sh in terms:
        if first: A(f"s_lshl_b32 s{d}, s{r}, {sh}"); first = False
        else:
            A(f"s_lshl_b32 s{T+5}, s{r}, {sh}")
            A(f"s_add_u32 s{d}, s{d}, s{T+5}")
    A(f"s_add_u32 s{d}, s{d}, {base}")
def off_h(A, d, ph): lin(A, d, [(S_MT, 11), (S_W, 7), (S_J, 2)], F_H + ph * 1024)
def off_k(A, d): lin(A, d, [(S_J, 8), (S_MT, 5), (S_W, 2)], F_K)
def off_o(A, d): lin(A, d, [(S_MT, 9), (S_WM, 7), (S_J, 2)], F_O)
def off_p(A, d, tile): lin(A, d, [(tile, 7), (S_WM, 2)], F_P)
def put(A, soff, vval, vzero): A(f"buffer_store_dword v{vval}, v{vzero}, {WS}, s{soff} offen sc1")

CR, NM, RR, RL, WPR, WPK, TMP = 12, 80, 2, [0, 1, 10, 11], 56, 88, 72
def pk_fma_bc(A, d, a, bc, c):
    p, s = bc & ~1, bc & 1
    A(f"v_pk_fma_f32 v[{d}:{d+1}], v[{a}:{a+1}], v[{p}:{p+1}], v[{c}:{c+1}] op_sel:[0,{s},0] op_sel_hi:[1,{s},1]")
def pk_mul_bc(A, d, a, bc):
    p, s = bc & ~1, bc & 1
    A(f"v_pk_mul_f32 v[{d}:{d+1}], v[{a}:{a+1}], v[{p}:{p+1}] op_sel:[0,{s}] op_sel_hi:[1,{s}]")
def corr(A, a, b, tb):
    for r in (0, 2): pk_fma_bc(A, a + r, CR + 4 * b + r, NM + 2 * tb, a + r)
def gu(A, bg, bu, tb, dst, tmp):
    g = acc(bg, tb); u = acc(bu, tb)
    corr(A, g, bg, tb); corr(A, u, bu, tb)
    for r in range(4): A(f"v_mul_f32 v{tmp+r}, v{g+r}, v{RL[tb]}")
    for r in range(4): A(f"v_exp_f32 v{tmp+r}, v{tmp+r}")
    for r in range(4): A(f"v_fma_f32 v{tmp+r}, v{tmp+r}, v{NM+2*tb+1}, v{NM+2*tb+1}")
    for r in range(4): A(f"v_rcp_f32 v{tmp+r}, v{tmp+r}")
    for r in range(4): A(f"v_mul_f32 v{tmp+r}, v{tmp+r}, v{u+r}")
    cvt(A, dst, tmp); cvt(A, dst + 1, tmp + 2)
def qk_pack(A, tb):
    d = acc(0, tb)
    for hb in range(2):
        a = acc(hb, tb)
        corr(A, a, hb, tb)
        for r in (0, 2): pk_mul_bc(A, a + r, a + r, RR + tb)
        cvt(A, d + 2 * hb, a); cvt(A, d + 2 * hb + 1, a + 2)
def kwork(A, groups, WP, S):
    KV, D, ISEL, ONES, PP, PM, PK, SC = S, S + 48, S + 80, S + 88, S + 92, S + 96, S + 100, S + 108
    PT = PK
    A(f"v_lshrrev_b32 v{SC}, 4, v{L16}")
    A(f"v_lshrrev_b32 v{SC+1}, 4, v{SC}         ; g")
    A(f"v_and_b32 v{SC}, 15, v{SC}              ; c")
    A(f"v_lshrrev_b32 v{SC+2}, 2, v{SC}")
    A(f"v_and_b32 v{SC+3}, 3, v{SC}")
    A(f"v_cmp_eq_u32 vcc, v{SC+2}, v{SC+1}")
    A(f"v_and_b32 v{SC+4}, 1, v{SC+3}")
    A(f"v_lshlrev_b32 v{SC+4}, 4, v{SC+4}")
    A(f"v_mov_b32 v{SC+5}, 0x3f80")
    A(f"v_lshlrev_b32 v{SC+5}, v{SC+4}, v{SC+5}")
    A(f"v_cndmask_b32 v{SC+5}, 0, v{SC+5}, vcc")
    A(f"v_cmp_gt_u32 vcc, 2, v{SC+3}")
    A(f"v_mov_b32 v{ISEL}, 0")
    A(f"v_mov_b32 v{ISEL+1}, 0")
    A(f"v_cndmask_b32 v{ISEL+2}, 0, v{SC+5}, vcc")
    A(f"v_cndmask_b32 v{ISEL+3}, v{SC+5}, 0, vcc")
    A(f"v_mov_b32 v{ISEL+4}, 0")
    A(f"v_mov_b32 v{ISEL+5}, 0")
    for r in range(4): A(f"v_mov_b32 v{ONES+r}, s{S_ONES}")
    for gi, (VF, kfs) in enumerate(groups):
        if gi: A("s_nop 3")
        for e, kf in kfs.items():
            MF(A, PK, WP, kf); MF(A, PK + 4, WP + 4, kf)
            A("s_nop 7")
            softmax(A, PK, PP, PM, SC)
            A("s_nop 1")
            dd = D + e * 16
            MF(A, dd, PP, ISEL + 2); MF(A, dd + 4, PP, ISEL); MF(A, dd + 8, PM, ISEL + 2); MF(A, dd + 12, PM, ISEL)
        es = list(kfs)
        for e in range(2):
            if e not in kfs:
                for fb in range(4):
                    A(f"v_mov_b32 v{PT+fb*4+2*e}, 0"); A(f"v_mov_b32 v{PT+fb*4+2*e+1}, 0")
        for e in es:
            if e == es[-1] and len(es) == 2: pass
            for fb in range(4):
                dd = D + e * 16 + fb * 4
                cvt(A, PT + fb * 4 + 2 * e, dd); cvt(A, PT + fb * 4 + 2 * e + 1, dd + 2)
        A("s_nop 1")
        for fb in range(4):
            for db in range(3):
                c = KV + (fb * 3 + db) * 4
                MF(A, c, PT + fb * 4, VF + db * 4 if db < 2 else ONES, c if gi else None)
    A("s_nop 7")
    return KV

def p1_epilogue(A, wn):
    st = "sc1"
    A.label(f"L_epi{wn}")
    A.lgkm = []
    A("s_waitcnt vmcnt(0) lgkmcnt(0)")
    stamp(A, 2)
    if opt("edbg"): A("s_memrealtime s[80:81]")
    A(f"v_lshrrev_b32 v54, 8, v{L16}")
    A("v_lshlrev_b32 v52, 4, v54                ; g*16")
    A(f"v_and_b32 v55, 0xf0, v{L16}")
    A("v_lshrrev_b32 v12, 2, v55                ; c*4")
    A("v_lshrrev_b32 v56, 6, v55                ; i>>2")
    A("v_lshl_add_u32 v56, v54, 2, v56")
    A("v_lshlrev_b32 v56, 6, v56")
    A("v_and_b32 v57, 12, v12")
    A("v_lshl_add_u32 v56, v57, 1, v56")
    A(f"v_add_u32 v56, {WPL}, v56")
    xreduce_g(A, [V_CS, V_CS + 1, V_CS + 2], [13, 14, 15], "add")
    A(f"s_lshl_b32 s{T}, s{S_WM}, 6")
    A(f"s_add_u32 s{T}, s{T}, {CSL + wn * 640}")
    A(f"v_add_u32 v13, s{T}, v12")
    A(f"ds_write_b32 v13, v{V_CS}")
    A(f"ds_write_b32 v13, v{V_CS+1} offset:256")
    A(f"s_cmp_lt_u32 s{S_WM}, 2")
    A(f"s_cselect_b32 s{T}, s{T}, {CSL + 1280 - 512}")
    A(f"v_add_u32 v14, s{T}, v12")
    A(f"ds_write_b32 v14, v{V_CS+2} offset:512")
    for tb in range(4): A(f"v_rcp_f32 v{RR+tb}, v{NM+2*tb+1}")
    A("s_nop 0")
    for tb in range(4): A(f"v_mul_f32 v{RL[tb]}, s{S_C}, v{RR+tb}")
    if wn == 1:
        A(f"s_lshl_b32 s{T}, s{S_W}, 9")
        A(f"s_add_u32 s{T}, s{T}, {STL}")
        A(f"v_lshl_add_u32 v15, v12, 1, s{T}")
        for tb in range(4):
            A(f"v_mov_b32 v{16+2*tb}, v{NM+2*tb}")
            A(f"v_mov_b32 v{17+2*tb}, v{RR+tb}")
            A(f"ds_write_b64 v15, v[{16+2*tb}:{17+2*tb}] offset:{tb*128}")
        A(f"v_lshl_add_u32 v55, v52, 1, s{T}")
        A(f"v_add_u32 v54, {CSL + 640}, v12")
    A(f"v_add_u32 v52, {CSL + wn * 640}, v52")
    lin(A, T + 4, [(S_WM, 13)], HOFF)
    A(f"v_add_u32 v53, s{T+4}, v{L16}")
    lin(A, T, [(S_MT, 14), (S_WM, 12)], WS_ACT)
    A(f"s_mul_i32 s{T+1}, s{S_J}, {3 * 131072}")
    A(f"s_add_u32 s{T+1}, s{T+1}, s{T}")
    A("s_waitcnt lgkmcnt(0)")
    A("s_barrier                ; B1")
    if opt("edbg"): A("s_memrealtime s[82:83]")
    order = [2, 3, 4, 5, 0, 1, 6, 7, 8, 9] if wn == 0 else [4, 5, 6, 7, 0, 1, 8, 9]
    for b in order: A.ds(f"ds_read_b128 v[{CR+4*b}:{CR+4*b+3}], v52 offset:{b*64}", f"C{b}")
    def gupair(b0, soff):
        A.wait_lgkm([f"C{b}" for b in range(b0, b0 + 4)])
        for tb in range(4):
            d = acc(b0, tb)
            gu(A, b0 + 2, b0 + 3, tb, acc(b0 + 2, tb), TMP + 4)
            gu(A, b0, b0 + 1, tb, d, TMP)
            A(f"v_mov_b32 v{d+2}, v{acc(b0+2, tb)}")
            A(f"v_mov_b32 v{d+3}, v{acc(b0+2, tb)+1}")
            A(f"buffer_store_dwordx4 v[{d}:{d+3}], v{L16}, {WS}, s{soff} offen offset:{tb*1024} {st}")
    if wn == 0:
        gupair(2, T + 1)
        A(f"s_add_u32 s{T+1}, s{T+1}, 131072")
        gupair(6, T + 1)
        for tb in range(4): qk_pack(A, tb)
        A("s_barrier                ; B2")
        if opt("edbg"): A("s_memrealtime s[84:85]")
        for k in range(7): A(f"ds_read_b128 v[{12+4*k}:{15+4*k}], v53 offset:{k*1024}")
        off_h(A, T + 3, 0)
        A("v_mov_b32 v58, 1")
        A("v_mov_b32 v59, 0")
        A("s_waitcnt vmcnt(4)")
        A("s_mov_b64 exec, 1")
        put(A, T + 3, 58, 59)
        A("s_mov_b64 exec, -1")
        groups = [(20, {0: 12, 1: 16}), (32, {1: 28})]
    else:
        A.ds(f"ds_read_b32 v{CR+8}, v54 offset:128", "CV")
        A.ds(f"ds_read_b32 v{CR+9}, v54 offset:192", "CV")
        A(f"s_add_u32 s{T+1}, s{T+1}, {2*131072}")
        gupair(4, T + 1)
        A.wait_lgkm(["C0", "C1"])
        for tb in (2, 3, 0, 1): qk_pack(A, tb)
        A(f"ds_write_b128 v53, v[{acc(0,2)}:{acc(0,2)+3}]")
        A(f"ds_write_b128 v53, v[{acc(0,3)}:{acc(0,3)+3}] offset:1024")
        A(f"ds_write_b128 v53, v[{acc(0,1)}:{acc(0,1)+3}] offset:4096")
        for pair in (1, 0):
            for e in range(2):
                tb = 2 * pair + e
                A.ds(f"ds_read_b128 v[{112+8*e}:{115+8*e}], v55 offset:{tb*128}", f"S{e}")
                A.ds(f"ds_read_b128 v[{116+8*e}:{119+8*e}], v55 offset:{tb*128+16}", f"S{e}")
            for e in range(2):
                tb = 2 * pair + e
                A.wait_lgkm(["CV", f"S{e}"])
                for db in range(2):
                    a = acc(2 + db, tb)
                    for r in range(4): A(f"v_fma_f32 v{a+r}, v{CR+8+db}, v{112+8*e+2*r}, v{a+r}")
                    for r in range(4): A(f"v_mul_f32 v{a+r}, v{a+r}, v{113+8*e+2*r}")
                    d = acc(2 + db, 2 * pair) + 2 * e
                    cvt(A, d, a); cvt(A, d + 1, a + 2)
            A("s_nop 0")
            o_ = 2048 if pair == 1 else 5120
            A(f"ds_write_b128 v53, v[{acc(2,2*pair)}:{acc(2,2*pair)+3}] offset:{o_}")
            A(f"ds_write_b128 v53, v[{acc(3,2*pair)}:{acc(3,2*pair)+3}] offset:{o_+1024}")
        A("s_waitcnt lgkmcnt(0)")
        A.lgkm = []
        A("s_barrier                ; B2")
        if opt("edbg"): A("s_memrealtime s[84:85]")
        off_h(A, T + 3, 0)
        A("v_mov_b32 v58, 1")
        A("v_mov_b32 v59, 0")
        A("s_waitcnt vmcnt(0)")
        A("s_mov_b64 exec, 1")
        put(A, T + 3, 58, 59)
        A("s_mov_b64 exec, -1")
        A(f"s_lshr_b32 s{T+2}, s{S_J}, 1")
        A(f"s_add_u32 s{T+2}, s{T+2}, 96")
        A(f"s_lshl_b32 s{T+2}, s{T+2}, 17")
        A(f"s_add_u32 s{T+2}, s{T+2}, s{T}")
        A(f"s_and_b32 s{T+3}, s{S_J}, 1")
        A(f"s_lshl_b32 s{T+3}, s{T+3}, 3")
        A(f"s_add_u32 s{T+2}, s{T+2}, s{T+3}")
        for tb in range(4):
            d = acc(8, tb)
            gu(A, 8, 9, tb, d, TMP + 4 * (tb & 1))
            A(f"buffer_store_dwordx2 v[{d}:{d+1}], v{L16}, {WS}, s{T+2} offen offset:{tb*1024} {st}")
        for db in range(2):
            for r in range(4): A(f"v_mov_b32 v{20+4*db+r}, v{acc(2+db,0)+r}")
        groups = [(20, {0: acc(0, 0)})]
    if opt("edbg"): A("s_memrealtime s[86:87]")
    for fb in range(2):
        for t in range(2):
            A(f"ds_read_b64_tr_b16 v[{WPK+4*fb+2*t}:{WPK+4*fb+2*t+1}], v56 offset:{t*1024 + fb*32}")
    A("s_waitcnt lgkmcnt(0)")
    KV = kwork(A, groups, WPK, 124)
    A(f"s_mul_i32 s{T+1}, s{S_W}, {12*1024}")
    A(f"v_add_u32 v20, s{T+1}, v{L16}")
    for blk in range(12): A(f"ds_write_b128 v20, v[{KV+blk*4}:{KV+blk*4+3}] offset:{blk*1024}")
    if opt("edbg"): A("s_memrealtime s[88:89]"); A("s_memrealtime s[90:91]")
    A("s_waitcnt lgkmcnt(0)")
    A("s_barrier                ; B3")
    if opt("edbg"): A("s_memrealtime s[92:93]")
    A(f"s_lshr_b32 s{T}, s{S_W}, 1")
    A(f"s_mul_i32 s{T}, s{T}, 3")
    A(f"s_and_b32 s{T+1}, s{S_W}, 1")
    A(f"s_add_u32 s{T}, s{T}, s{T+1}")
    A(f"s_lshl_b32 s{T}, s{T}, 10")
    A(f"v_add_u32 v20, s{T}, v{L16}")
    A(f"v_add_u32 v22, {4*12*1024}, v20")
    for p in range(8): A(f"ds_read_b128 v[{124+4*p}:{127+4*p}], v{20 if p < 4 else 22} offset:{(p%4)*12*1024}")
    if wn == 0:
        A(f"s_mul_i32 s{T}, s{S_W}, 3072")
        A(f"v_add_u32 v21, s{T}, v{L16}")
        A(f"v_add_u32 v23, {4*12*1024}, v21")
        for p in range(8): A(f"ds_read_b128 v[{156+4*p}:{159+4*p}], v{21 if p < 4 else 23} offset:{(p%4)*12*1024 + 2048}")
    A(f"s_lshl_b32 s{T}, s{S_J}, 3")
    A(f"s_add_u32 s{T}, s{T}, s{S_MT}")
    A(f"s_mul_i32 s{T}, s{T}, {KVP_SZ}")
    A(f"s_add_u32 s{T}, s{T}, {WS_KVP}")
    A(f"s_lshl_b32 s{T+1}, s{S_W}, 10")
    A(f"s_add_u32 s{T+1}, s{T+1}, s{T}")
    A("s_waitcnt lgkmcnt(0)")
    for base in ((124, 156) if wn == 0 else (124,)):
        for s_ in (16, 8, 4):
            for r in range(0, s_, 2):
                A(f"v_pk_add_f32 v[{base+r}:{base+r+1}], v[{base+r}:{base+r+1}], v[{base+s_+r}:{base+s_+r+1}]")
    A(f"buffer_store_dwordx4 v[124:127], v{L16}, {WS}, s{T+1} offen {st}")
    if wn == 0:
        A(f"s_lshl_b32 s{T+1}, s{S_W}, 6")
        A(f"s_add_u32 s{T+1}, s{T+1}, s{T}")
        A(f"s_add_u32 s{T+1}, s{T+1}, 8192")
        A(f"v_lshrrev_b32 v21, 4, v{L16}")
        A("v_and_b32 v22, 15, v21")
        A("v_cmp_eq_u32 vcc, 0, v22")
        A(f"s_and_saveexec_b64 s[{T+2}:{T+3}], vcc")
        A(f"buffer_store_dwordx4 v[156:159], v21, {WS}, s{T+1} offen {st}")
        A("s_mov_b64 exec, -1")
    stamp(A, 3)
    stamp_store(A, WS_STAMP)
    A(f"s_branch L_p2_{'prod' if wn == 0 else 'cons'}")

def p1_prologue(A):
    A("s_cmp_ge_u32 s2, 256")
    A("s_cbranch_scc1 L_done")
    stamp(A, 0)
    A(f"s_load_dwordx8 s[{P}:{P+7}], s[0:1], 0")
    A(f"s_load_dwordx4 s[{P+8}:{P+11}], s[0:1], 40")
    A(f"s_load_dwordx4 s[96:99], s[0:1], 72")
    A(f"s_load_dwordx2 s[100:101], s[0:1], 56")
    A(f"s_load_dwordx2 s[{P+12}:{P+13}], s[0:1], 64")
    A("v_lshrrev_b32 v1, 6, v0")
    A("v_and_b32 v10, 63, v0             ; lane")
    A(f"v_readfirstlane_b32 s{S_W}, v1")
    A(f"s_lshl_b32 s{T}, s2, 3")
    A(f"v_add_u32 v60, s{T}, v1")
    A("v_lshlrev_b32 v61, 11, v60")
    A("v_lshl_add_u32 v61, v10, 4, v61")
    A(f"v_lshlrev_b32 v{L16}, 4, v10")
    A(f"s_and_b32 s{S_WM}, s{S_W}, 3")
    A(f"s_lshr_b32 s{S_WN}, s{S_W}, 2")
    A(f"s_and_b32 s{T}, s2, 7")
    A(f"s_lshr_b32 s{T+1}, s2, 3")
    A(f"s_and_b32 s{S_J}, s{T+1}, 3")
    A(f"s_lshl_b32 s{T}, s{T}, 2")
    A(f"s_add_u32 s{S_J}, s{S_J}, s{T}")
    A(f"s_lshr_b32 s{S_MT}, s{T+1}, 2")
    lin(A, T, [(S_MT, 8), (S_WN, 6), (S_WM, 2)], 0)
    A("v_bfe_u32 v11, v10, 3, 1")
    A("v_lshrrev_b32 v12, 4, v10         ; g")
    A("v_lshl_add_u32 v11, v12, 4, v11")
    A(f"v_add_u32 v11, s{T}, v11")
    A("v_lshlrev_b32 v11, 11, v11")
    A("v_and_b32 v13, 7, v10")
    A(f"v_lshl_add_u32 v{V_A}, v13, 4, v11")
    A(f"s_mul_i32 s{S_APAGE}, s{S_W}, {2 * A_PAGE}")
    A(f"s_lshl_b32 s{T}, s{S_W}, 6")
    A(f"v_add_u32 v13, s{T}, v10")
    A("v_mul_u32_u24 v14, 4682, v13")
    A("v_lshrrev_b32 v14, 16, v14")
    A("v_mul_u32_u24 v15, 14, v14")
    A("v_sub_u32 v15, v13, v15")
    A("v_mul_u32_u24 v14, 7168, v14")
    A("v_lshl_add_u32 v14, v15, 4, v14")
    A(f"s_mul_i32 s{T}, s{S_J}, 224")
    A(f"v_add_u32 v{V_B0}, s{T}, v14")
    A(f"v_mov_b32 v{V_B1}, v{V_B0}")
    A("v_lshrrev_b32 v15, 2, v10")
    A("v_mul_u32_u24 v15, 6144, v15")
    A("v_lshrrev_b32 v16, 3, v10")
    A("v_and_b32 v16, 2, v16")
    A("v_and_b32 v17, 3, v10")
    A("v_xor_b32 v16, v16, v17")
    A("v_lshl_add_u32 v15, v16, 4, v15")
    A(f"s_lshr_b32 s{T}, s{S_W}, 1")
    A(f"s_lshl_b32 s{T}, s{T}, 11")
    A(f"s_and_b32 s{T+1}, s{S_W}, 1")
    A(f"s_mul_i32 s{T+1}, s{T+1}, {16*6144}")
    A(f"s_add_u32 s{T}, s{T}, s{T+1}")
    A(f"s_lshl_b32 s{T+1}, s{S_J}, 6")
    A(f"s_add_u32 s{T}, s{T}, s{T+1}")
    A(f"v_add_u32 v{V_B2}, s{T}, v15")
    A(f"s_lshl_b32 s{S_BLDS[2]}, s{S_W}, 10")
    A(f"s_add_u32 s{S_BLDS[0]}, s{S_BLDS[2]}, 6144")
    A(f"s_add_u32 s{S_BLDS[1]}, s{S_BLDS[2]}, 13312")
    for k in range(3):
        A(f"s_mov_b32 s{S_BOFF[k]}, 0")
        A(f"s_mov_b32 s{S_BINC[k]}, {32 * (6144 if k == 2 else 7168)}")
    A("s_waitcnt lgkmcnt(0)")
    if opt("pdbg"): A("s_memrealtime s[86:87]")
    make_srd(A, SRD_A, P, P + 1, 4 * MB)
    make_srd(A, SRD_B0, P + 8, P + 9, 1024 * 7168)
    make_srd(A, SRD_B1, P + 10, P + 11, 1024 * 7168)
    make_srd(A, SRD_B2, P + 2, P + 3, 1024 * 6144)
    A(f"s_cmp_eq_u32 s{S_W}, 7")
    A("s_cbranch_scc1 L_pro7")
    A(f"s_cmp_eq_u32 s{S_W}, 6")
    A("s_cbranch_scc1 L_pro6")
    NPF = int(opt("npf", 0))
    PF0 = int(opt("pf0", 5))
    def run(ops):
        for f0, f1 in ops:
            f0(A); A("s_nop 0"); f1(A)
    pa = lambda w, stage: [adma(h, e, stage & 1, stage * 128) for h in range(2) for e in range(nA(w))]
    pb = lambda w, stage: [bdma(k, stage) for k in range(nB(w))]
    for cls, w in (("", 0), ("L_pro6", 6)):
        if cls: A.label(cls)
        run(pa(w, 0)); run(pb(w, 0)); run(pb(w, 1))
        A("s_branch L_pro_common")
    A.label("L_pro7")
    A(f"buffer_load_dwordx4 v[80:83], v61, {srd(SRD_A)}, 0 offen")
    A(f"buffer_load_dwordx4 v[84:87], v61, {srd(SRD_A)}, 0 offen offset:1024")
    if opt("pfx"):
        A("v_lshlrev_b32 v13, 7, v10")
        A(f"s_lshl_b32 s{T}, s2, 14")
        A(f"buffer_load_dword v{V_A}, v13, {srd(SRD_A)}, s{T} offen")
        A(f"s_add_u32 s{T}, s{T}, 8192")
        A(f"buffer_load_dword v{V_A}, v13, {srd(SRD_A)}, s{T} offen")
    A("v_min_u32 v13, 13, v10")
    A(f"s_mul_i32 s{T}, s2, 14")
    A(f"v_add_u32 v13, s{T}, v13")
    A(f"v_lshlrev_b32 v{V_B0}, 7, v13")
    A(f"v_mov_b32 v{V_B1}, v{V_B0}")
    A("v_min_u32 v13, 11, v10")
    A(f"s_mul_i32 s{T}, s2, 12")
    A(f"v_add_u32 v13, s{T}, v13")
    A(f"v_lshlrev_b32 v{V_B2}, 7, v13")
    for k in range(3):
        A(f"s_mov_b32 s{S_BOFF[k]}, {PF0 * 32 * (6144 if k == 2 else 7168)}")
        A(f"s_mov_b32 s{S_BINC[k]}, {64 * (6144 if k == 2 else 7168)}")
    for i in range(NPF):
        for k in range(3): pfload(A, k)
    A.label("L_pro_common")
    make_srd(A, SRD_WS, 98, 99, WS_BYTES)
    make_srd(A, SRD_D, 96, 97, 256)
    make_srd(A, SRD_WP, P + 4, P + 5, 65536)
    A(f"s_mov_b32 s{S_C}, {NLOG2E}")
    A(f"s_mov_b32 s{S_C+1}, {LOG2E}")
    A(f"s_mov_b32 s{S_ONES}, 0x3f803f80")
    A(f"s_mov_b32 s{S_HI}, 0xffff0000")
    A("v_and_b32 v16, 15, v10")
    A("v_lshrrev_b32 v17, 2, v16")
    A("v_lshl_add_u32 v17, v12, 2, v17   ; 4g + (i>>2)")
    A("v_and_b32 v18, 3, v16")
    A("v_lshlrev_b32 v18, 3, v18")
    A("v_mul_u32_u24 v19, 224, v17")
    A("v_add_u32 v19, v19, v18")
    A(f"v_add_u32 v{V_BG}, {LDS_B}, v19")
    A("v_lshl_add_u32 v19, v17, 6, v18")
    A("v_and_b32 v20, 1, v12")
    A("v_lshl_add_u32 v19, v20, 5, v19")
    A(f"v_add_u32 v{V_BQ0}, {LDS_B}, v19")
    A(f"v_xor_b32 v{V_BQ1}, 32, v{V_BQ0}")
    for a_, b_ in ((V_BG2, V_BG), (V_BQ02, V_BQ0), (V_BQ12, V_BQ1)): A(f"v_add_u32 v{a_}, {2*B_STAGE}, v{b_}")
    A("v_lshrrev_b32 v19, 1, v16")
    A(f"s_lshl_b32 s{T}, s{S_WM}, 3")
    A(f"v_add_u32 v19, s{T}, v19")
    A(f"v_mul_u32_u24 v19, {A_PAGE}, v19")
    A("v_and_b32 v20, 1, v16")
    A("v_lshl_add_u32 v19, v20, 7, v19")
    A(f"v_lshl_add_u32 v{V_AR}, v12, 3, v19")
    A(f"s_mov_b32 s{S_AK}, 256")
    A(f"s_mov_b32 s{S_AKE}, 256")
    for r in range(ACC, 256): A(f"v_mov_b32 v{r}, 0")
    for r in range(3): A(f"v_mov_b32 v{V_CS+r}, 0")
    for r in range(4): A(f"v_mov_b32 v{WR+16+r}, 0")
    A("v_mov_b32 v0, 0")
    off_h(A, T, 0)
    A(f"v_mov_b32 v40, s{T}")
    A(f"s_add_u32 s{T}, s{T}, 1024")
    A(f"v_writelane_b32 v40, s{T}, 1")
    off_k(A, T)
    A(f"v_writelane_b32 v40, s{T}, 2")
    off_o(A, T)
    tile_ids(A, 76, 77, 75, 74, T + 1)
    off_p(A, T + 1, 74)
    A(f"s_cmp_eq_u32 s{S_WN}, 0")
    A(f"s_cselect_b32 s{T}, s{T}, s{T+1}")
    A(f"v_writelane_b32 v40, s{T}, 3")
    A(f"s_cselect_b32 s{T+2}, 15, 7")
    A("s_cmp_eq_u32 s76, 1")
    A(f"s_cselect_b32 s{T+2}, 15, s{T+2}")
    A(f"s_cmp_eq_u32 s{S_W}, 7")
    A("s_cbranch_scc1 L_pro_b7")
    A("s_waitcnt vmcnt(0)")
    if opt("pdbg"): A("s_memrealtime s[90:91]")
    A("s_barrier")
    A(f"s_cmp_eq_u32 s{S_W}, 6")
    A("s_cbranch_scc1 L_pro_g6")
    for cls, w in (("", 0), ("L_pro_g6", 6)):
        if cls: A.label(cls)
        run(pb(w, 2)); run(pa(w, 1))
        A(f"buffer_load_dwordx4 v[80:83], v61, {srd(SRD_A)}, 0 offen")
        A(f"buffer_load_dwordx4 v[84:87], v61, {srd(SRD_A)}, 0 offen offset:1024")
        A("s_branch L_pro_c2")
    A.label("L_pro_b7")
    if opt("pdbg"): A("s_memrealtime s[90:91]")
    A("s_barrier")
    A.label("L_pro_c2")
    A(f"s_mov_b32 exec_lo, s{T+2}")
    A("s_mov_b32 exec_hi, 0")
    A(f"buffer_store_dword v0, v40, {WS}, 0 offen sc1")
    A("s_mov_b64 exec, -1")
    if opt("pdbg"): A("s_memrealtime s[94:95]")
    for ts, ks in ((T0, 0), (T1A, 1)):
        for tb in range(4):
            for t in range(2): tread(A, 0, ks, tb, ts, "T", t)
    A(f"s_cmp_eq_u32 s{S_WN}, 1")
    A("s_cbranch_scc1 L_pro_w1")
    for wn in range(2):
        if wn: A.label("L_pro_w1")
        for b in range(4):
            for t in range(2): wread(A, wn, b, 0, WR + b * 4, "W", t)
        A("s_waitcnt lgkmcnt(8)")
        A("s_barrier")
        stamp(A, 1)
        A("s_waitcnt lgkmcnt(0)")
        A(f"s_mov_b32 s{S_ITER}, 8")
        for wm in range(1, 4):
            A(f"s_cmp_eq_u32 s{S_WM}, {wm}")
            A(f"s_cbranch_scc1 L_loop{wn*4+wm}")
        for wm in range(4):
            w = wn * 4 + wm
            B = Asm(); p1_body(B, w); entry = list(B.lgkm)
            A.lgkm = list(entry)
            A.label(f"L_loop{w}")
            p1_body(A, w)
            assert A.lgkm == entry
            A(f"s_sub_u32 s{S_ITER}, s{S_ITER}, 1")
            A(f"s_cmp_lg_u32 s{S_ITER}, 0")
            A(f"s_cbranch_scc1 L_loop{w}")
            if wm == 1:
                for f in cs_ops(9, 1): f(A)
            A(f"s_branch L_epi{wn}")
            p1_extras(A, w)
        p1_epilogue(A, wn)

PPB = 136
def o_soft(A, e):
    PK, SC = 64, 96
    q = 120 + 4 * e
    MF(A, PK, 56, q); MF(A, PK + 4, 60, q)
    A("s_nop 7")
    softmax(A, PK, PPB + 8 * e, PPB + 8 * e + 4, SC)
def o_fin(A, e, soff):
    O, N0, N1, DN = 24, 80, 84, 88
    PP, PM = PPB + 8 * e, PPB + 8 * e + 4
    MF(A, DN, 48, PP); MF(A, N0, 32, PP); MF(A, N1, 40, PP)
    MF(A, DN, 52, PM, DN); MF(A, N0, 36, PM, N0); MF(A, N1, 44, PM, N1)
    A("s_nop 7")
    A(f"v_add_f32 v{DN}, 0x358637bd, v{DN}")
    A(f"v_rcp_f32 v{DN}, v{DN}")
    A("s_nop 0")
    for r in range(8): A(f"v_mul_f32 v{N0+r}, v{N0+r}, v{DN}")
    d = O + 4 * (e & 1)
    for r in range(4): cvt(A, d + r, N0 + 2 * r)
    A(f"buffer_store_dwordx4 v[{d}:{d+3}], v4, {WS}, s{soff} offen offset:{e*1024} sc1")

def phase2(A):
    A.p2 = True
    SPL = int(opt("h1n", 64)); NB1 = min(SPL - 32, 32); K1O = SPL - 32 - NB1; NB0 = 32 - NB1; N0 = 144 - SPL; OST = N0 - 32
    assert NB0 % 2 == 0 and NB0 >= 0
    H, M, N, TILE = 20, 21, 22, 23
    SRD_X, SRD_B, SRD_OUT = 8, 12, 16
    S_SLOT, S_DELTA = 24, 25
    AOFF, BOFF, AINC, BINC, POS, EVT, LDS, B2, LA, LB = 26, 27, 28, 29, 30, 31, 32, 33, 34, 35
    NIT, T2, S_OO, RET = 60, 56, 58, 76
    VT, VW = 1, 2
    TS = [8, 24]; WSR = [40, 56]; AC = 72; XR = 136; KG = 160
    KI = [int(opt("kc", 1))]
    OS = KI[0] + int(opt("kd", 6))
    KO1, KO2 = 33, 34
    def ac(cb, tb): return AC + (cb * 4 + tb) * 4
    def common(A):
        stamp(A, 0)
        A(f"v_mov_b32 v4, v{L16}")
        A("v_lshrrev_b32 v3, 4, v4")
        A("v_lshrrev_b32 v5, 4, v3           ; g")
        A("v_and_b32 v6, 15, v3")
        A("v_lshlrev_b32 v12, 2, v3          ; lane*4")
        A("v_mov_b32 v13, 0")
        A("v_mov_b32 v14, 1")
        tile_ids(A, H, M, N, TILE, T)
        A(f"s_cmp_eq_u32 s{H}, 1")
        A(f"s_cselect_b32 s{NIT}, {SPL // 2}, {N0 // 2}")
    def own_flags(A):
        off_h(A, T, 1); off_k(A, T + 1)
        A("s_waitcnt vmcnt(0)")
        A("s_mov_b64 exec, 1")
        put(A, T, 14, 13); put(A, T + 1, 14, 13)
        if opt("edbg"):
            A("s_memrealtime s[94:95]")
            A("s_waitcnt lgkmcnt(0)")
            lin(A, T, [(2, 9), (S_W, 6)], WS_STAMP + MB)
            for i in range(8):
                A(f"v_mov_b32 v15, s{80+2*i}")
                A(f"buffer_store_dword v15, v13, {WS}, s{T} offen offset:{4*i}")
                A("s_nop 1")
        A("s_mov_b64 exec, -1")
    def poll64(A, soff, lab, vaddr, vdst):
        A.label(lab)
        A(f"buffer_load_dword v{vdst}, v{vaddr}, {WS}, s{soff} offen sc1")
        A("s_waitcnt vmcnt(0)")
        A(f"v_cmp_ne_u32 vcc, 1, v{vdst}")
        A("s_nop 4")
        A(f"s_cbranch_vccz {lab}_ok")
        A("s_sleep 1")
        A(f"s_branch {lab}")
        A.label(lab + "_ok")
    def hf_query(A, d, ph, wn):
        A(f"s_lshr_b32 s{d}, s{M}, 1")
        A(f"s_lshl_b32 s{d}, s{d}, 11")
        A(f"s_and_b32 s{d+1}, s{M}, 1")
        A(f"s_lshl_b32 s{d+1}, s{d+1}, 8")
        A(f"s_add_u32 s{d}, s{d}, s{d+1}")
        A(f"s_add_u32 s{d}, s{d}, {F_H + ph * 1024 + wn * 512}")
    A.label("L_p2_cons")
    common(A)
    A("s_barrier                 ; B4")
    make_srd(A, SRD_OUT, P + 12, P + 13, 4 * MB)
    A("v_mov_b32 v158, v12")
    S_CM, S_CN, CI = 26, 27, 28
    A(f"s_and_b32 s{S_CM}, s{S_WM}, 1")
    A(f"s_lshr_b32 s{S_CN}, s{S_WM}, 1")
    A(f"s_lshl_b32 s{T}, s{S_CM}, 12")
    A(f"v_add_u32 v{VT}, s{T}, v4")
    A("v_and_b32 v7, 1, v5")
    A("v_lshrrev_b32 v8, 2, v6")
    A("v_lshl_add_u32 v7, v7, 2, v8")
    A("v_mul_u32_u24 v7, 1056, v7")
    A("v_lshrrev_b32 v8, 1, v5")
    A("v_lshl_add_u32 v7, v8, 8, v7")
    A("v_and_b32 v8, 3, v6")
    A("v_lshl_add_u32 v7, v8, 3, v7")
    lin(A, T, [(S_CN, 7)], 8192)
    A(f"v_add_u32 v{VW}, s{T}, v7")
    lin(A, T, [(M, 7), (S_CM, 6)], 0)
    A(f"v_add_u32 v7, s{T}, v6")
    A("v_lshlrev_b32 v7, 11, v7")
    lin(A, T, [(N, 8), (S_CN, 7)], 0)
    A(f"v_add_u32 v7, s{T}, v7")
    for tb in range(1, 4): A(f"s_mov_b32 s{60+tb}, {tb * 32768}")
    sof = lambda tb: "0" if tb == 0 else f"s{60+tb}"
    for r in range(64): A(f"v_mov_b32 v{AC+r}, 0")
    A(f"s_mov_b32 s{S_SLOT}, 0")
    own_flags(A)
    lin(A, T2, [(S_J, 8)], F_K)
    A("v_lshlrev_b32 v156, 4, v5          ; g*16")
    A(f"s_mul_i32 s{T}, s{S_J}, {8 * KVP_SZ}")
    A(f"s_add_u32 s{T}, s{T}, {WS_KVP}")
    A(f"s_lshl_b32 s{KO1}, s{S_WM}, 11")
    A(f"s_add_u32 s{KO1}, s{KO1}, s{T}")
    A(f"s_lshl_b32 s{KO2}, s{S_WM}, 6")
    A(f"s_add_u32 s{KO2}, s{KO2}, s{T}")
    A(f"s_add_u32 s{KO2}, s{KO2}, 8192")
    if opt("prio"): A("s_setprio 1")
    A("s_barrier")
    A.lgkm = []
    def reads(st):
        out = []
        for k in range(4):
            out.append(lambda A, k=k: A.ds(f"ds_read_b128 v[{TS[st]+4*k}:{TS[st]+4*k+3}], v{VT} offset:{k*1024}", f"S{st}"))
            for tt in range(2):
                out.append(lambda A, k=k, tt=tt: A.ds(f"ds_read_b64_tr_b16 v[{WSR[st]+4*k+2*tt}:{WSR[st]+4*k+2*tt+1}], v{VW} offset:{tt*512 + k*32}", f"S{st}"))
        return out
    def adv0(A):
        A(f"s_add_u32 s{S_SLOT}, s{S_SLOT}, 1")
        A(f"s_cmp_eq_u32 s{S_SLOT}, {NSLOT}")
        A(f"s_cselect_b32 s{S_SLOT}, 0, s{S_SLOT}")
        A(f"s_mov_b32 s{S_DELTA}, {SLOT}")
        A(f"s_cselect_b32 s{S_DELTA}, {(-(NSLOT-1) * SLOT) & 0xffffffff}, s{S_DELTA}")
    def adv1(A):
        A(f"v_add_u32 v{VT}, s{S_DELTA}, v{VT}")
        A(f"v_add_u32 v{VW}, s{S_DELTA}, v{VW}")
    for f in reads(0): f(A)
    adv0(A); adv1(A)
    stamp(A, 1)
    if opt("stamp"): A("s_waitcnt lgkmcnt(0)")
    entry = list(A.lgkm)
    def citer(extra):
        per = [[] for _ in range(32)]
        for k, f in enumerate(extra): per[(k * 32) // len(extra)].append(f)
        for e in range(2):
            A.wait_lgkm(f"S{e}")
            fill = reads(1 - e) + [adv0, adv1]
            m = 0
            for cb in range(4):
                for tb in (range(4) if cb % 2 == 0 else range(3, -1, -1)):
                    MF(A, ac(cb, tb), WSR[e] + 4 * cb, TS[e] + 4 * tb, ac(cb, tb))
                    if m < len(fill): fill[m](A)
                    for f in per[16 * e + m]: f(A)
                    m += 1
        assert A.lgkm == entry[len(entry)-len(A.lgkm):]
    def check(A, lab, vd, soff, vaddr):
        A.label(lab)
        A("s_waitcnt vmcnt(0)")
        A(f"v_cmp_ne_u32 vcc, 1, v{vd}")
        A("s_nop 4")
        A(f"s_cbranch_vccz {lab}_ok")
        A("s_sleep 1")
        A(f"buffer_load_dword v{vd}, v{vaddr}, {WS}, s{soff} offen sc1")
        A(f"s_branch {lab}")
        A.label(lab + "_ok")
    lds_ = []
    for p in range(8):
        def l1(A, p=p): A(f"buffer_load_dwordx4 v[{KG+4*p}:{KG+3+4*p}], v4, {WS}, s{KO1} offen sc1")
        def l2(A, p=p):
            A(f"buffer_load_dwordx4 v[{KG+32+4*p}:{KG+35+4*p}], v4, {WS}, s{KO1} offen offset:1024 sc1")
            A(f"s_add_u32 s{KO1}, s{KO1}, {KVP_SZ}")
        def l3(A, p=p):
            A(f"buffer_load_dwordx4 v[{KG+64+4*p}:{KG+67+4*p}], v156, {WS}, s{KO2} offen sc1")
            A(f"s_add_u32 s{KO2}, s{KO2}, {KVP_SZ}")
        lds_ += [l1, l2, l3]
    adds = []
    for s_ in (16, 8, 4):
        for base in (KG, KG + 32, KG + 64):
            for r in range(s_): adds.append(lambda A, base=base, r=r, s_=s_: A(f"v_add_f32 v{base+r}, v{base+r}, v{base+s_+r}"))
    for k, base in enumerate((KG, KG + 32, KG + 64)):
        adds.append(lambda A, k=k, base=base: cvt(A, KG + 4 + 2 * k, base))
        adds.append(lambda A, k=k, base=base: cvt(A, KG + 5 + 2 * k, base + 2))
    for ci in range(OS):
        ex = []
        if ci in (KI[0] + 1, KI[0] + 2): ex = lds_[12 * (ci - KI[0] - 1):12 * (ci - KI[0])]
        if ci == OS - 2: A("s_waitcnt vmcnt(0)"); ex = adds[:48]
        if ci == OS - 1: ex = adds[48:]
        citer(ex)
        if ci == 0: A(f"buffer_load_dword v159, v158, {WS}, s{T2} offen sc1")
        if ci == KI[0]: check(A, "L_p2_ck", 159, T2, 158)
        if ci == OS - 1:
            lin(A, T, [(S_WM, 10)], RING)
            A(f"v_lshl_add_u32 v159, v158, 1, s{T}")
            A(f"ds_write_b64 v159, v[{KG+4}:{KG+5}]")
            A(f"ds_write_b64 v159, v[{KG+6}:{KG+7}] offset:512")
            lin(A, T, [(S_WM, 9)], RING + 4096)
            A(f"v_lshl_add_u32 v157, v158, 1, s{T}")
            A(f"ds_write_b64 v157, v[{KG+8}:{KG+9}]")
            A("s_waitcnt lgkmcnt(0)")
        A("s_barrier")
    A(f"s_mov_b32 s{CI}, {OS}")
    cev = []
    def pissue(calc, vaddr=158):
        def f(A):
            calc(A)
            A(f"buffer_load_dword v159, v{vaddr}, {WS}, s{T2} offen sc1")
        return f
    def pcheck(vaddr=158):
        def f(A): check(A, A.newlabel("L_p2_cc"), 159, T2, vaddr)
        return f
    def q_h(wn): return lambda A: hf_query(A, T2, 1, wn)
    def q_o(A): lin(A, T2, [(M, 8)], F_O)
    def q_p(A):
        lin(A, T2, [(TILE, 7)], F_P)
        A("v_and_b32 v157, 12, v158")
    ss_of = lambda pos: (pos - 8) // 2
    def both(f, g): return lambda A: (f(A), g(A))
    PD = int(opt("pd", 2))
    cev.append((OS, pissue(q_h(1))))
    if NB0:
        cev.append((OS + 2, both(pcheck(), pissue(q_h(0)))))
        cev.append((OS + 4, pcheck()))
    else: cev.append((OS + 2, pcheck()))
    assert OS + 4 < ss_of(32)
    cev.append((ss_of(OST) - 1 - PD, pissue(q_o)))
    cev.append((ss_of(OST) - 1, pcheck()))
    cev.append((ss_of(N0) - 1 - PD, pissue(q_p, 157)))
    cev.append((ss_of(N0) - 1, pcheck(157)))
    cev.append((1000 + OS, pissue(q_h(0))))
    if K1O:
        cev.append((1000 + OS + 2, both(pcheck(), pissue(q_h(1)))))
        cev.append((1000 + OS + 4, pcheck()))
    else: cev.append((1000 + OS + 2, pcheck()))
    HB = 29
    A(f"s_mul_i32 s{HB}, s{H}, 1000")
    A(f"s_cmp_eq_u32 s{S_W}, 4")
    A(f"s_cselect_b32 s{EVT}, {OS}, -1")
    A.label("L_p2_cloop")
    citer([])
    A(f"s_cmp_eq_u32 s{CI}, s{EVT}")
    A("s_cbranch_scc1 L_p2_cevt")
    A.label("L_p2_cevt_ret")
    A(f"s_add_u32 s{CI}, s{CI}, 1")
    A(f"s_cmp_lg_u32 s{CI}, s{NIT}")
    A("s_barrier")
    A("s_cbranch_scc1 L_p2_cloop")
    A("s_waitcnt vmcnt(0) lgkmcnt(0)")
    stamp(A, 2)
    A(f"s_cmp_eq_u32 s{H}, 1")
    A("s_cbranch_scc0 L_p2_fin")
    lin(A, T, [(TILE, 16), (S_WM, 14)], WS_PART)
    A("v_lshrrev_b32 v8, 2, v6")
    A("v_mul_u32_u24 v8, 1056, v8")
    A("v_and_b32 v9, 3, v6")
    A("v_lshl_add_u32 v8, v9, 8, v8")
    A("v_lshl_add_u32 v8, v5, 3, v8")
    for h in range(2):
        A(f"s_lshl_b32 s{T+1}, s{S_CM}, 1")
        A(f"s_add_u32 s{T+1}, s{T+1}, {(SPL + h) % NSLOT}")
        A(f"s_cmp_ge_u32 s{T+1}, {NSLOT}")
        A(f"s_cselect_b32 s{T+2}, {NSLOT}, 0")
        A(f"s_sub_u32 s{T+1}, s{T+1}, s{T+2}")
        A(f"s_mul_i32 s{T+1}, s{T+1}, {SLOT}")
        A(f"s_lshl_b32 s{T+2}, s{S_CN}, 7")
        A(f"s_add_u32 s{T+1}, s{T+1}, s{T+2}")
        A(f"v_add_u32 v{1+h}, s{T+1}, v8")
    A("s_barrier            ; x landed")
    for blk in range(16):
        cb, tb = blk // 4, blk % 4
        A.ds(f"ds_read_b64 v[{XR+2*blk}:{XR+2*blk+1}], v{1 + (tb >> 1)} offset:{8192 + (tb & 1) * 4 * 1056 + cb * 32}", f"X{blk}")
    for blk in range(16):
        d = XR + blk * 2; a = AC + blk * 4
        A.wait_lgkm(f"X{blk}")
        A(f"v_lshlrev_b32 v8, 16, v{d}")
        A(f"v_and_b32 v9, s{S_HI}, v{d}")
        A(f"v_lshlrev_b32 v10, 16, v{d+1}")
        A(f"v_and_b32 v11, s{S_HI}, v{d+1}")
        for r in range(4): A(f"v_add_f32 v{a+r}, v{a+r}, v{8+r}")
        if blk and blk % 4 == 0: A(f"s_add_u32 s{T}, s{T}, 4096")
        A(f"buffer_store_dwordx4 v[{a}:{a+3}], v4, {WS}, s{T} offen offset:{(blk%4)*1024} sc1")
    off_p(A, T, TILE)
    A("v_mov_b32 v13, 0")
    A("v_mov_b32 v14, 1")
    A("s_waitcnt vmcnt(0)")
    A("s_mov_b64 exec, 1")
    put(A, T, 14, 13)
    A("s_branch L_p2_end")
    A.label("L_p2_fin")
    A(f"s_add_u32 s{T}, s{S_WM}, {N0 % NSLOT}")
    A(f"s_cmp_ge_u32 s{T}, {NSLOT}")
    A(f"s_cselect_b32 s{T+1}, {NSLOT}, 0")
    A(f"s_sub_u32 s{T}, s{T}, s{T+1}")
    A(f"s_mul_i32 s{T}, s{T}, {SLOT}")
    A(f"v_add_u32 v1, s{T}, v4")
    A("v_and_b32 v8, 1, v5")
    A("v_lshlrev_b32 v8, 5, v8")
    A("v_lshrrev_b32 v9, 1, v5")
    A("v_lshl_add_u32 v8, v9, 4, v8")
    A("v_add_u32 v7, v7, v8")
    A("s_barrier")
    for blk in range(16):
        A.ds(f"ds_read_b128 v[{XR+4*blk}:{XR+4*blk+3}], v1 offset:{blk * 1024 if blk < 8 else 8192 + (blk - 8) * 1056}", f"P{blk}")
    for q in range(2):
        for tb in range(4):
            d = 8 + (q * 4 + tb) * 4
            A.wait_lgkm([f"P{(2*q)*4+tb}", f"P{(2*q+1)*4+tb}"])
            for e in range(2):
                cb = 2 * q + e; a = ac(cb, tb); p = XR + (cb * 4 + tb) * 4
                for r in range(4): A(f"v_add_f32 v{a+r}, v{a+r}, v{p+r}")
                cvt(A, d + 2 * e, a); cvt(A, d + 2 * e + 1, a + 2)
            A("s_nop 1")
            A(f"v_permlane16_swap_b32 v{d}, v{d+2}")
            A(f"v_permlane16_swap_b32 v{d+1}, v{d+3}")
            A(f"buffer_store_dwordx4 v[{d}:{d+3}], v7, {srd(SRD_OUT)}, {sof(tb)} offen offset:{q*64} {opt('osc', 'sc1')}")
    A("s_branch L_p2_end")
    A.label("L_p2_cevt")
    A(f"s_add_u32 s{T}, s{CI}, s{HB}")
    for k, (pos, f) in enumerate(cev[1:], 1):
        A(f"s_cmp_eq_u32 s{T}, {pos}")
        A(f"s_cbranch_scc1 L_p2_cev{k}")
    for k, (pos, f) in enumerate(cev):
        A.label(f"L_p2_cev{k}")
        f(A)
        nx = cev[k + 1][0] % 1000 if k + 1 < len(cev) and (cev[k + 1][0] >= 1000) == (pos >= 1000) else -1
        A(f"s_mov_b32 s{EVT}, {nx}")
        A("s_branch L_p2_cevt_ret")
    A.label("L_p2_prod")
    for r in range(16): A(f"v_mov_b32 v{120+r}, v{96+r}")
    for r in range(8): A(f"v_mov_b32 v{56+r}, v{WPK+r}")
    common(A)
    A("s_barrier                 ; B4")
    make_srd(A, SRD_B, 100, 101, 3584 * 2048)
    A("v_lshlrev_b32 v22, 3, v3")
    A(f"v_add_u32 v22, {RING}, v22")
    lin(A, T, [(M, 13), (S_WM, 11)], 0)
    A(f"v_add_u32 v8, s{T}, v4")
    A(f"s_lshl_b32 s{T+1}, s{S_WM}, 1")
    A(f"v_lshlrev_b32 v9, 3, v5")
    A(f"v_add_u32 v9, s{T+1}, v9")
    A("v_lshlrev_b32 v9, 11, v9")
    A("v_lshl_add_u32 v9, v6, 4, v9")
    A(f"s_lshl_b32 s{T}, s{N}, 8")
    A(f"v_add_u32 v9, s{T}, v9              ; regular")
    A("v_lshrrev_b32 v10, 1, v5")
    A(f"v_mul_u32_u24 v10, {96*2048}, v10")
    A("v_add_u32 v10, v10, v9               ; odd")
    A("v_mov_b32 v11, v9")
    A(f"s_lshl_b32 s{LA}, s{S_WM}, 11")
    A(f"s_mul_i32 s{LB}, s{S_WM}, {2*1056}")
    A(f"s_add_u32 s{LB}, s{LB}, 8192")
    lin(A, S_OO, [(S_J, 17), (S_MT, 14), (S_WM, 12)], WS_ACT + 112 * 131072)
    A(f"s_cmp_eq_u32 s{H}, 1")
    A(f"s_cselect_b32 s{AOFF}, 0, {2 * 131072}")
    A(f"s_cselect_b32 s{BOFF}, 0, {64 * 2048}")
    A(f"s_cselect_b32 s{POS}, 1000, 0")
    A(f"s_add_u32 s{AOFF}, s{AOFF}, {WS_ACT}")
    A(f"s_add_u32 s{EVT}, s{POS}, 32")
    A(f"s_mov_b32 s{AINC}, {3 * 131072}")
    A(f"s_mov_b32 s{BINC}, {112 * 2048}")
    A(f"s_mov_b32 s{B2}, 2048")
    o_soft(A, 0)
    own_flags(A)
    def issue_a(A):
        A(f"s_add_u32 m0, s{LDS}, s{LA}")
        A(f"s_add_u32 s{T2}, s{BOFF}, s{B2}")
        A(f"buffer_load_dwordx4 v8, {WS}, s{AOFF} offen sc1 lds")
        A(f"buffer_load_dwordx4 v8, {WS}, s{AOFF} offen offset:1024 sc1 lds")
        if not opt("hitA"): A(f"s_add_u32 s{AOFF}, s{AOFF}, s{AINC}")
    def issue_b(A, own_t2=False):
        A(f"s_add_u32 m0, s{LDS}, s{LB}")
        if own_t2: A(f"s_add_u32 s{T2}, s{BOFF}, s{B2}")
        else: A("s_nop 0")
        A(f"buffer_load_dwordx4 v11, {srd(SRD_B)}, s{BOFF} offen {opt('bsc', 'sc1')} lds")
        A(f"s_add_u32 m0, m0, 1056")
        if not opt("hitB"): A(f"s_add_u32 s{BOFF}, s{BOFF}, s{BINC}")
        else: A("s_nop 0")
        A(f"buffer_load_dwordx4 v11, {srd(SRD_B)}, s{T2} offen {opt('bsc', 'sc1')} lds")
    def nxt(A):
        A(f"s_add_u32 s{LDS}, s{LDS}, {SLOT}")
        A(f"s_cmp_eq_u32 s{LDS}, {RING}")
        A(f"s_cselect_b32 s{LDS}, 0, s{LDS}")
    def issue_kb(A):
        issue_a(A); issue_b(A)
        A(f"s_add_u32 s{POS}, s{POS}, 1")
        nxt(A)
    A(f"s_mov_b32 s{LDS}, 0")
    for k in range(7): issue_b(A, True); nxt(A)
    hf_query(A, T, 0, 0)
    A(f"s_cmp_eq_u32 s{H}, 1")
    A(f"s_cselect_b32 s{T+1}, 0, 512")
    A(f"s_add_u32 s{T}, s{T}, s{T+1}")
    A(f"buffer_load_dword v15, v12, {WS}, s{T} offen sc1")
    o_soft(A, 1)
    check(A, "L_p2_poll0", 15, T, 12)
    A(f"s_mov_b32 s{LDS}, 0")
    for k in range(7): issue_a(A); nxt(A)
    A(f"s_add_u32 s{POS}, s{POS}, 7")
    o_soft(A, 2)
    A("s_waitcnt vmcnt(8)")
    A("s_barrier")
    stamp(A, 1)
    def mid(A):
        lab = A.newlabel("L_p2_ne")
        A(f"s_cmp_eq_u32 s{POS}, s{EVT}")
        A(f"s_cbranch_scc0 {lab}")
        A(f"s_call_b64 s[{RET}:{RET+1}], L_p2_evt")
        A.label(lab)
    NO = 2
    NPEEL = OS + NO + 1
    assert ss_of(OST) - 1 >= OS + NO, (OST, NPEEL)
    for ss in range(NPEEL):
        if ss == OS + NO:
            off_o(A, T2)
            A("s_waitcnt vmcnt(0)")
            A("s_mov_b64 exec, 1")
            put(A, T2, 14, 13)
            A("s_mov_b64 exec, -1")
        issue_kb(A); mid(A); issue_kb(A)
        if ss == OS:
            for db in range(2):
                for hf in range(2):
                    for e in range(2):
                        d = 32 + (db * 2 + hf) * 4 + 2 * e
                        A(f"ds_read_b64 v[{d}:{d+1}], v22 offset:{((2 * hf + e) * 2 + db)*512}")
            for hf in range(2):
                for e in range(2):
                    A(f"ds_read_b64 v[{48+hf*4+2*e}:{49+hf*4+2*e}], v22 offset:{4096 + (2*hf+e)*512}")
        if ss in (1, 4):
            B = Asm(); o_soft(B, 3); h = len(B.lines) // 2
            for l in (B.lines[:h] if ss == 1 else B.lines[h:]): A.raw(l)
        if OS <= ss < OS + NO:
            if ss == OS: A("s_waitcnt lgkmcnt(0)")
            o_fin(A, 2 * (ss - OS), S_OO); o_fin(A, 2 * (ss - OS) + 1, S_OO)
        if ss == 0: A("s_waitcnt vmcnt(12)")
        else: A("s_waitcnt vmcnt(16)")
        A("s_barrier")
        if opt("p2dbg"):
            k = {int(x): 80 + 2 * i for i, x in enumerate(opt('p2dbg').split(','))}.get(ss)
            if k: A(f"s_memrealtime s[{k}:{k+1}]")
    A(f"s_sub_u32 s{NIT}, s{NIT}, {NPEEL}")
    A.label("L_p2_ploop")
    issue_kb(A); mid(A); issue_kb(A)
    A(f"s_sub_u32 s{NIT}, s{NIT}, 1")
    A(f"s_cmp_lg_u32 s{NIT}, 0")
    A("s_waitcnt vmcnt(16)")
    A("s_barrier")
    A("s_cbranch_scc1 L_p2_ploop")
    stamp(A, 2)
    A("s_waitcnt vmcnt(0)")
    A("s_barrier")
    A("s_branch L_p2_end")
    ev = []
    def seg(aoff, ainc, boff, binc, vsel=None, wo=False):
        def f(A):
            A(f"s_mov_b32 s{AOFF}, {aoff}")
            A(f"s_mov_b32 s{AINC}, {ainc}")
            A(f"s_mov_b32 s{BOFF}, {boff}")
            A(f"s_mov_b32 s{BINC}, {binc}")
            if vsel is not None: A(f"v_mov_b32 v11, v{vsel}")
            if wo:
                A(f"s_mov_b32 s{SRD_B}, s{P+6}")
                A(f"s_and_b32 s{SRD_B+1}, s{P+7}, 0xffff")
                A(f"s_mov_b32 s{SRD_B+2}, {1024*2048}")
        return f
    def only0(body):
        def f(A):
            lab = A.newlabel("L_p2_w0")
            A(f"s_cmp_lg_u32 s{S_W}, 0")
            A(f"s_cbranch_scc1 {lab}")
            body(A, lab)
            A.label(lab)
        return f
    def pollh1(both):
        def b(A, lab):
            hf_query(A, T, 1, 0)
            poll64(A, T, lab + "_a", 12, 15)
            if both:
                A(f"s_add_u32 s{T}, s{T}, 512")
                poll64(A, T, lab + "_b", 12, 15)
        return only0(b)
    def pollo(A, lab):
        lin(A, T, [(M, 8)], F_O)
        poll64(A, T, lab + "_a", 12, 15)
    def pollp(A, lab):
        lin(A, T, [(TILE, 7)], F_P)
        A("v_and_b32 v16, 12, v12")
        poll64(A, T, lab + "_a", 16, 15)
    def part(A):
        for k in range(3): A(f"s_mov_b32 s{SRD_B+k}, s{SRD_WS+k}")
        lin(A, AOFF, [(TILE, 16)], WS_PART)
        A(f"s_add_u32 s{BOFF}, s{AOFF}, 8192")
        A(f"s_mov_b32 s{AINC}, 16384")
        A(f"s_mov_b32 s{BINC}, 16384")
        A(f"s_mov_b32 s{B2}, 1024")
        A(f"v_add_u32 v8, s{LA}, v4")
        A("v_mov_b32 v11, v8")
    oob = seg(0x40000000, 0, 0x40000000, 0)
    if NB0: ev.append((32, seg(WS_ACT + (3 * NB1 + 1) * 131072, 3 * 131072, (112 * NB1 + 32) * 2048, 112 * 2048)))
    ev.append((32 + NB0, seg(WS_ACT + (96 + K1O) * 131072, 131072, (96 + 224 * K1O) * 2048, 224 * 2048, vsel=10)))
    ev.append((OST, seg(WS_ACT + 112 * 131072, 131072, 0, 32 * 2048, vsel=9, wo=True)))
    ev.append((N0, part))
    ev.append((N0 + 4, oob))
    ev.append((1032, seg(WS_ACT + 131072, 3 * 131072, 32 * 2048, 112 * 2048)))
    if K1O: ev.append((1064, seg(WS_ACT + 96 * 131072, 131072, 96 * 2048, 224 * 2048, vsel=10)))
    def xseg(A):
        A(f"s_mov_b32 s{AOFF}, 0x40000000")
        A(f"s_mov_b32 s{AINC}, 0")
        A(f"s_mov_b32 s{SRD_B}, s{P}")
        A(f"s_and_b32 s{SRD_B+1}, s{P+1}, 0xffff")
        A(f"s_mov_b32 s{SRD_B+2}, {4*MB}")
        lin(A, BOFF, [(M, 18), (N, 8), (S_WM, 14)], 0)
        A(f"s_mov_b32 s{BINC}, {32*2048}")
        A(f"s_mov_b32 s{B2}, {4*2048}")
        A("v_lshlrev_b32 v11, 11, v5")
        A("v_lshl_add_u32 v11, v6, 4, v11")
    ev.append((1000 + SPL, xseg))
    ev.append((1004 + SPL, oob))
    A.label("L_p2_evt")
    for k, (pos, f) in enumerate(ev[1:], 1):
        A(f"s_cmp_eq_u32 s{POS}, {pos}")
        A(f"s_cbranch_scc1 L_p2_ev{k}")
    for k, (pos, f) in enumerate(ev):
        A.label(f"L_p2_ev{k}")
        f(A)
        nx = ev[k + 1][0] if k + 1 < len(ev) and (ev[k + 1][0] >= 1000) == (pos >= 1000) else -1
        A(f"s_mov_b32 s{EVT}, {nx}")
        A(f"s_setpc_b64 s[{RET}:{RET+1}]")
    A.label("L_p2_end")
    if opt("odbg"):
        A("s_waitcnt vmcnt(0)")
        A("s_memrealtime s[94:95]")
        A("s_load_dwordx2 s[96:97], s[0:1], 72")
        A("s_waitcnt lgkmcnt(0)")
        A("s_cmp_gt_u32 s2, 1")
        A("s_cbranch_scc1 L_done")
        A(f"s_cmp_lg_u32 s{S_W}, 4")
        A("s_cbranch_scc1 L_done")
        make_srd(A, SRD_D, 96, 97, 256)
        A("s_mov_b64 exec, 1")
        A("v_mov_b32 v1, 0")
        A(f"s_lshl_b32 s{T}, s2, 5")
        for i in range(1, 8):
            A(f"s_sub_u32 s{T+1}, s{80+2*i}, s80")
            A(f"v_mov_b32 v2, s{T+1}")
            A(f"buffer_store_dword v2, v1, {srd(SRD_D)}, s{T} offen offset:{4*i}")
            A("s_nop 1")
        A("s_branch L_done")
    if opt("p2dbg"):
        A("s_memrealtime s[94:95]")
        A("s_mov_b64 exec, 1")
        A("s_waitcnt lgkmcnt(0)")
        lin(A, T, [(2, 9), (S_W, 6)], WS_STAMP + MB)
        A("v_mov_b32 v1, 0")
        for i in range(8):
            A(f"v_mov_b32 v2, s{80+2*i}")
            A(f"buffer_store_dword v2, v1, {WS}, s{T} offen offset:{4*i}")
            A("s_nop 1")
    if opt("stamp"):
        A("s_waitcnt vmcnt(0)")
        stamp(A, 3)
        stamp_store(A, WS_STAMP + MB)

def build():
    A = Asm()
    for l in open("cdna_kernels/" + NAME + ".s.ref").read().split("\n"):
        if l.startswith(";") and "@launch" not in l and "Override" not in l and "grid=ceil" not in l: A.raw(l)
    A.raw(f"; @launch kernel=fused_kernel grid=(256,1,1) block=(512,1,1) lds={max(P1_LDS, P2_LDS)}")
    A.raw('.amdgcn_target "amdgcn-amd-amdhsa--gfx950"')
    A.raw(".text")
    kernel_header(A, "fused_kernel")
    p1_prologue(A)
    phase2(A)
    A.label("L_done")
    A("s_endpgm")
    A.raw('.section .rodata,"a"')
    kernel_desc(A, "fused_kernel", 256)
    return A.text()

if __name__ == "__main__":
    for o in sys.argv[2:]:
        if "=" in o: k, v = o.split("=", 1); OPT[k] = v
        else: OPT[o] = True
    open(sys.argv[1], "w").write(build())
```

```python
import sys
from asmlib import *

NAME = "parallel_sum__linear_kernel_hedgehog__glu_gated_glu__prompt"
MB = 1 << 20
WS_BYTES = 268435456
WS_ACT = 8 * MB
WS_KVP = 28 * MB
KVP_SZ = 8448
WS_PART = 32 * MB
WS_FLAG = 48 * MB
WS_STATS = 49 * MB
WS_STAMP = 52 * MB
F_H = WS_FLAG
F_K = WS_FLAG + 16384
F_O = WS_FLAG + 24576
F_P = WS_FLAG + 28672
F_C = WS_FLAG + 45056
WS_CSP = 50 * MB
LOG2E, NLOG2E = 0x3fb8aa3b, 0xbfb8aa3b
OPT = {}
def opt(k, d=None): return OPT.get(k, d)

A_PAGE = 1040; A_BUF = 32 * A_PAGE; LDS_B = 2 * A_BUF; B_STAGE = 20480
X_LDS = LDS_B + 4 * B_STAGE
CSL = X_LDS; STL = X_LDS + 1536; WPL = STL + 4096; CSPL = WPL + 2048; P1_LDS = CSPL + 7680
HOFF = 100 * 1024
SLOT = 16640; NSLOT = 9; RING = SLOT * NSLOT; P2_LDS = RING + 6144
V_A, V_B0, V_B1, V_B2, V_AR, V_BG, V_BQ0, V_BQ1, L16, V_CT = 1, 2, 3, 4, 5, 6, 7, 8, 9, 10
T0, T1A, T1B, WR = 12, 28, 44, 60
V_ST, V_POLL, V_PA, V_CS = 80, 88, 89, 90
V_BG2, V_BQ02, V_BQ12 = 93, 94, 95
ACC = 96
def acc(b, tb): return ACC + (b * 4 + tb) * 4
S_W, S_WM, S_WN, S_J, S_MT = 3, 4, 5, 6, 7
SRD_A, SRD_B0, SRD_B1, SRD_B2 = 8, 12, 16, 20
S_APAGE, S_AK, S_AKE = 24, 25, 26
S_BOFF, S_BINC, S_BLDS = (27, 28, 29), (30, 31, 32), (33, 34, 35)
P = 36
T = 50
SRD_D = 56
S_ITER = 60
S_MYIT = 61
S_RET = 74
SRD_WS, SRD_WP = 64, 68
S_C = 72; S_ONES = 78; S_HI = 79
S_ST = 80
SRD_PF = 96
WS = f"s[{SRD_WS}:{SRD_WS+3}]"
def srd(n): return f"s[{n}:{n+3}]"

def stamp(A, i):
    if opt("odbg"):
        k = i + (4 if getattr(A, "p2", False) else 0)
        A(f"s_memrealtime s[{80+2*k}:{81+2*k}]")
        return
    if opt("pdbg") and i > 0 and not getattr(A, "p2", False): return
    if opt("stamp"):
        A(f"s_memtime s[{S_ST+4*i}:{S_ST+4*i+1}]")
        A(f"s_memrealtime s[{S_ST+4*i+2}:{S_ST+4*i+3}]")
def stamp_store(A, base):
    if not opt("stamp"): return
    A("s_mov_b64 exec, 1")
    A("s_waitcnt lgkmcnt(0)")
    A(f"s_lshl_b32 s{T}, s2, 3")
    A(f"s_add_u32 s{T}, s{T}, s{S_W}")
    A(f"s_lshl_b32 s{T}, s{T}, 6")
    A(f"s_add_u32 s{T}, s{T}, {base}")
    A("v_mov_b32 v1, 0")
    for i in range(4):
        A(f"v_mov_b32 v2, s{S_ST+4*i}")
        A(f"v_mov_b32 v3, s{S_ST+4*i+2}")
        A(f"buffer_store_dwordx2 v[2:3], v1, {WS}, s{T} offen offset:{8*i}")
        A("s_nop 1")
    A(f"s_getreg_b32 s{T+1}, hwreg(HW_REG_XCC_ID)")
    A(f"v_mov_b32 v2, s{T+1}")
    A(f"buffer_store_dword v2, v1, {WS}, s{T} offen offset:32")
    A("s_mov_b64 exec, -1")

def xreduce_g(A, vs, tmps, op):
    ops = op if isinstance(op, list) else [op] * len(vs)
    for sw in ("v_permlane16_swap_b32", "v_permlane32_swap_b32"):
        for v, t in zip(vs, tmps): A(f"v_mov_b32 v{t}, v{v}")
        A("s_nop 1")
        for v, t in zip(vs, tmps): A(f"{sw} v{v}, v{t}")
        if len(vs) == 1: A("s_nop 0")
        for v, t, o in zip(vs, tmps, ops): A(f"v_{o}_f32 v{v}, v{v}, v{t}")
def wave_allreduce(A, v, tmp):
    for dpp in ("quad_perm:[1,0,3,2]", "quad_perm:[2,3,0,1]", "row_half_mirror", "row_mirror"):
        A("s_nop 1")
        A(f"v_add_f32_dpp v{v}, v{v}, v{v} {dpp} row_mask:0xf bank_mask:0xf")
    xreduce_g(A, [v], [tmp], "add")
def MF(A, d, a, b, c=None):
    cs = "0" if c is None else f"v[{c}:{c+3}]"
    A(f"v_mfma_f32_16x16x32_bf16 v[{d}:{d+3}], v[{a}:{a+3}], v[{b}:{b+3}], {cs}")
def cvt(A, d, a): A(f"v_cvt_pk_bf16_f32 v{d}, v{a}, v{a+1}")

def softmax(A, pk, Pp, Pm, t):
    mx, mn, x0, x1, ep, em, sp, sm = t, t + 1, t + 2, t + 3, t + 4, t + 12, t + 20, t + 21
    A(f"v_max3_f32 v{mx}, v{pk}, v{pk+1}, v{pk+2}")
    A(f"v_min3_f32 v{mn}, v{pk}, v{pk+1}, v{pk+2}")
    for r in (3, 5):
        A(f"v_max3_f32 v{mx}, v{mx}, v{pk+r}, v{pk+r+1}")
        A(f"v_min3_f32 v{mn}, v{mn}, v{pk+r}, v{pk+r+1}")
    A(f"v_max_f32 v{mx}, v{mx}, v{pk+7}")
    A(f"v_min_f32 v{mn}, v{mn}, v{pk+7}")
    xreduce_g(A, [mx, mn], [x0, x1], ["max", "min"])
    A(f"v_mul_f32 v{mx}, s{S_C}, v{mx}")
    A(f"v_mul_f32 v{mn}, s{S_C+1}, v{mn}")
    for r in range(8):
        A(f"v_fma_f32 v{ep+r}, v{pk+r}, s{S_C+1}, v{mx}")
        A(f"v_fma_f32 v{em+r}, v{pk+r}, s{S_C}, v{mn}")
    for r in range(8):
        A(f"v_exp_f32 v{ep+r}, v{ep+r}")
        A(f"v_exp_f32 v{em+r}, v{em+r}")
    A(f"v_add_f32 v{sp}, v{ep}, v{ep+1}")
    A(f"v_add_f32 v{sm}, v{em}, v{em+1}")
    for r in range(2, 8):
        A(f"v_add_f32 v{sp}, v{sp}, v{ep+r}")
        A(f"v_add_f32 v{sm}, v{sm}, v{em+r}")
    xreduce_g(A, [sp, sm], [x0, x1], "add")
    A(f"v_rcp_f32 v{sp}, v{sp}")
    A(f"v_rcp_f32 v{sm}, v{sm}")
    A("s_nop 0")
    for r in range(8):
        A(f"v_mul_f32 v{ep+r}, v{ep+r}, v{sp}")
        A(f"v_mul_f32 v{em+r}, v{em+r}, v{sm}")
    for r in range(4):
        cvt(A, Pp + r, ep + 2 * r); cvt(A, Pm + r, em + 2 * r)

def blocks_of(wn):
    if wn == 0: return [("q", 0), ("q", 1)] + [x for b in range(4) for x in (("g", b), ("u", b))]
    return [("k", 0), ("k", 1), ("v", 0), ("v", 1)] + [x for b in range(4, 7) for x in (("g", b), ("u", b))]
def wread(A, wn, blk, stage, dst, tag, t):
    kind, idx = blocks_of(wn)[blk]
    so = (stage & 1) * B_STAGE; hi = stage >> 1
    if kind in "qkv":
        off = so + (2 * "qkv".index(kind) + t) * 1024
        va = ((V_BQ0, V_BQ1), (V_BQ02, V_BQ12))[hi][idx]
    else:
        off = so + (6144 if kind == "g" else 13312) + t * 3584 + idx * 32
        va = (V_BG, V_BG2)[hi]
    A.ds(f"ds_read_b64_tr_b16 v[{dst+2*t}:{dst+2*t+1}], v{va} offset:{off}", tag)
def tread(A, abuf, ks, tb, dst, tag, t):
    A.ds(f"ds_read_b64 v[{dst+tb*4+2*t}:{dst+tb*4+2*t+1}], v{V_AR} offset:{abuf * A_BUF + tb * 256 + ks * 64 + t * 32}", tag)
def nB(w): return 0 if w == 7 else (2 if w == 6 else 3)
def nA(w): return 0 if w == 7 else (4 if w == 6 else 2)
BS = ((V_B0, SRD_B0), (V_B1, SRD_B1), (V_B2, SRD_B2))
def bdma(k, slot):
    def f0(A): A(f"s_add_u32 m0, s{S_BLDS[k]}, {LDS_B + slot * B_STAGE}")
    def f1(A):
        A(f"buffer_load_dwordx4 v{BS[k][0]}, {srd(BS[k][1])}, s{S_BOFF[k]} offen lds")
        A(f"s_add_u32 s{S_BOFF[k]}, s{S_BOFF[k]}, s{S_BINC[k]}")
    return f0, f1
def adma(h, e, abuf, kconst=None):
    def f0(A):
        if kconst is None: A(f"s_add_u32 s{T}, s{S_AKE}, {h * 128 * 2048 + e * 4096}")
        else: A(f"s_mov_b32 s{T}, {kconst + h * 128 * 2048 + e * 4096}")
        A(f"s_add_u32 m0, s{S_APAGE}, {abuf * A_BUF + (16 * h + e) * A_PAGE}")
    def f1(A): A(f"buffer_load_dwordx4 v{V_A}, {srd(SRD_A)}, s{T} offen lds")
    return f0, f1
def pfload(A, k):
    A(f"buffer_load_dword v{V_A}, v{BS[k][0]}, {srd(BS[k][1])}, s{S_BOFF[k]} offen")
    A(f"s_add_u32 s{S_BOFF[k]}, s{S_BOFF[k]}, s{S_BINC[k]}")
def cs_ops(b, half):
    out = []
    c = V_CS + (b // 4)
    for r in (2 * half, 2 * half + 1):
        w = WR + (b % 5) * 4 + r
        def f0(A, w=w):
            A(f"v_lshlrev_b32 v{V_CT}, 16, v{w}")
            A(f"v_and_b32 v{V_CT+1}, s{S_HI}, v{w}")
        def f1(A, c=c):
            A(f"v_add_f32 v{c}, v{c}, v{V_CT}")
            A(f"v_add_f32 v{c}, v{c}, v{V_CT+1}")
        out += [f0, f1]
    return out
def extras_of(w, u):
    if w == 7: return {0: [(2, "poll"), (4, "drain")], 1: [(4, "sig")], 2: [(2, "stat"), (4, "pfd"), (8, "rows")], 3: [(int(opt("pfc")), "pfc")] if opt("pfc") else []}[u]
    return {0: [(2, "poll"), (6, "drain")] + ([(1, "cpoll")] if w == 5 else []), 1: [(3, "wphi")] if w == 4 else [],
            2: [(2, "stat"), (8, "rows")] + ([(1, "cload")] if w == 5 else []), 3: []}[u]

def p1_body(A, w, cs=True):
    wn, wm = w >> 2, w & 3
    blocks = blocks_of(wn)
    G_ = [[] for _ in range(160)]
    def gap(u, i): return G_[(40 * u + i) % 160]
    for u in range(4):
        odd = u & 1
        for c in range(10):
            tgt = c + 4
            blk, st = (tgt, u) if tgt < 10 else (tgt - 10, (u + 1) & 3)
            sl = tgt % 5
            delayed = ((c - 1) % 10) % 4 == wm
            for t in range(2):
                pos = 4 * (c + 1) + 2 + t if delayed else 4 * c + t
                gap(u, pos).append(lambda A, blk=blk, st=st, sl=sl, t=t: wread(A, wn, blk, st, WR + sl * 4, f"W{sl}", t))
        if odd:
            nb = ((u + 1) >> 1) & 1
            Tn1 = T1B if u == 1 else T1A
            tr = [(nb, 0, tb, T0, "T0") for tb in range(4)] + [(nb, 1, tb, Tn1, "T1") for tb in range(4)]
            for k, x in enumerate(tr):
                for t in range(2):
                    gap(u, 4 * [0, 1, 2, 3, 4, 6, 7, 8][k] + 2 + t).append(lambda A, x=x, t=t: tread(A, *x, t))
            def adv(A):
                A(f"s_add_u32 s{S_AK}, s{S_AK}, 128")
                A(f"s_cmp_ge_u32 s{S_AK}, 2048")
                A(f"s_cselect_b32 s{S_AKE}, 0x10000000, s{S_AK}")
            if nA(w): gap(u, 4 * 9 + 2).append(adv)
        dm = [bdma(k, (u + 3) & 3) for k in range(nB(w))] + [adma(u & 1, e, (u >> 1) & 1) for e in range(nA(w))]
        for k, (f0, f1) in enumerate(dm):
            gap(u, 4 * k + 2).insert(0, f0)
            gap(u, 4 * k + 3).insert(0, f1)
        if w == 7:
            for k in range(3): gap(u, 4 * k + 3).append(lambda A, k=k: pfload(A, k))
        for b in (range(wm, 10, 4) if cs else []):
            for k, f in enumerate(cs_ops(b, 0) + cs_ops(b, 1)): gap(u, 4 * b + (k if b < 9 else k // 2)).append(f)
        for it, nm in extras_of(w, u):
            def g(A, it=it, nm=nm):
                lab = A.newlabel("L_nx")
                A(f"s_cmp_eq_u32 s{S_ITER}, {it}")
                A(f"s_cbranch_scc0 {lab}")
                A(f"s_call_b64 s[{S_RET}:{S_RET+1}], L_x_{nm}_{w}")
                A.label(lab)
            gap(u, 4 * 8 + 3).append(g)
    for u in range(4):
        odd = u & 1
        Tuse = T0 if not odd else (T1A if u == 1 else T1B)
        for b in range(10):
            A.wait_lgkm([f"W{b % 5}"] + ([("T1" if odd else "T0")] if b == 0 else []))
            wr = WR + (b % 5) * 4
            for k, tb in enumerate(range(4) if b % 2 == 0 else range(3, -1, -1)):
                a = acc(b, tb)
                if blocks[b][0] == "v": MF(A, a, Tuse + tb * 4, wr, a)
                else: MF(A, a, wr, Tuse + tb * 4, a)
                for f in G_[40 * u + 4 * b + k]: f(A)
        nv = nA(w) + nB(w)
        ws_ = [f"vmcnt({nv})"] if nv else []
        n = A.lgkm_count_for(["T0", "T1"]) if odd else None
        if n is not None:
            ws_.append(f"lgkmcnt({n})"); A.lgkm_retire(n)
        if ws_: A("s_waitcnt " + " ".join(ws_))
        A("s_barrier")

ROWS7 = 0
def p1_extras(A, w):
    global ROWS7
    ROWS7 = 3 * int(opt("npf", 0)) + 9 + (2 if opt("pfx") else 0)
    wm = w & 3
    dbg = srd(SRD_D)
    A.label(f"L_x_drain_{w}")
    A("s_waitcnt vmcnt(0)")
    A(f"s_setpc_b64 s[{S_RET}:{S_RET+1}]")
    A.label(f"L_x_rows_{w}")
    A(f"s_waitcnt vmcnt({ROWS7 if w == 7 else 0})")
    a0, a1, t0, t1 = 88, 89, 10, 11
    for i in range(8):
        A(f"v_lshlrev_b32 v{t0}, 16, v{80+i}")
        A(f"v_and_b32 v{t1}, s{S_HI}, v{80+i}")
        if i == 0:
            A(f"v_mov_b32 v{a0}, v{t0}"); A(f"v_mov_b32 v{a1}, v{t1}")
        else:
            A(f"v_add_f32 v{a0}, v{a0}, v{t0}"); A(f"v_add_f32 v{a1}, v{a1}, v{t1}")
    A(f"v_add_f32 v{a0}, v{a0}, v{a1}")
    wave_allreduce(A, a0, t0)
    A(f"v_mul_f32 v{a0}, 0xba800000, v{a0}     ; -mean")
    for i in range(8):
        A(f"v_lshlrev_b32 v{t0}, 16, v{80+i}")
        A(f"v_and_b32 v{t1}, s{S_HI}, v{80+i}")
        A(f"v_add_f32 v{t0}, v{t0}, v{a0}")
        A(f"v_add_f32 v{t1}, v{t1}, v{a0}")
        if i == 0: A(f"v_mul_f32 v{a1}, v{t0}, v{t0}")
        else: A(f"v_fmac_f32 v{a1}, v{t0}, v{t0}")
        A(f"v_fmac_f32 v{a1}, v{t1}, v{t1}")
    wave_allreduce(A, a1, t0)
    A(f"v_mul_f32 v{a1}, 0x3a800000, v{a1}     ; var")
    A(f"v_cvt_pk_bf16_f32 v{t0}, v{a0}, v{a1}")
    A(f"v_lshlrev_b32 v80, 16, v{t0}")
    A(f"v_and_b32 v{a1}, s{S_HI}, v{t0}")
    A(f"v_add_f32 v{a1}, 0x3727c5ac, v{a1}")
    A(f"v_cvt_pk_bf16_f32 v{a1}, v{a1}, v{a1}")
    A(f"v_lshlrev_b32 v{a1}, 16, v{a1}")
    A(f"v_sqrt_f32 v{a1}, v{a1}")
    A(f"s_lshl_b32 s{T+1}, s2, 6")
    A(f"v_cvt_pk_bf16_f32 v{a1}, v{a1}, v{a1}")
    A(f"s_add_u32 s{T+1}, s{T+1}, {WS_STATS + w * 8}")
    A(f"v_lshlrev_b32 v81, 16, v{a1}")
    A("s_mov_b64 exec, 1")
    A(f"buffer_store_dwordx2 v[80:81], v0, {WS}, s{T+1} offen sc1")
    A("s_mov_b64 exec, -1")
    A(f"s_setpc_b64 s[{S_RET}:{S_RET+1}]")
    def paddr(A):
        A(f"v_and_b32 v{V_PA}, 0x70, v{L16}")
        A(f"v_lshlrev_b32 v{V_PA}, 1, v{V_PA}")
        A(f"buffer_load_dword v{V_POLL}, v{V_PA}, {dbg}, 0 offen sc1")
    A.label(f"L_x_poll_{w}")
    paddr(A)
    A(f"s_setpc_b64 s[{S_RET}:{S_RET+1}]")
    A.label(f"L_x_stat_{w}")
    A("s_waitcnt vmcnt(0)")
    A(f"v_cmp_ne_u32 vcc, 32, v{V_POLL}")
    A("s_nop 4")
    A(f"s_cbranch_vccz L_x_stat_{w}_go")
    A("s_sleep 2")
    paddr(A)
    A(f"s_branch L_x_stat_{w}")
    A.label(f"L_x_stat_{w}_go")
    off_c(A, T + 1)
    A(f"v_mov_b32 v{V_POLL}, 1")
    A("s_mov_b64 exec, 1")
    put(A, T + 1, V_POLL, 0)
    A("s_mov_b64 exec, -1")
    A(f"v_and_b32 v{V_POLL}, 0xf0, v{L16}")
    A(f"v_lshrrev_b32 v{V_POLL}, 1, v{V_POLL}")
    A(f"s_lshl_b32 s{T+1}, s{S_MT}, 11")
    A(f"s_add_u32 s{T+1}, s{T+1}, {WS_STATS + wm * 512}")
    for tb in range(4):
        A(f"buffer_load_dwordx2 v[{V_ST+2*tb}:{V_ST+2*tb+1}], v{V_POLL}, {WS}, s{T+1} offen offset:{tb*128} sc1")
    A(f"s_setpc_b64 s[{S_RET}:{S_RET+1}]")
    A.label(f"L_x_cpub_{w}")
    xreduce_g(A, [V_CS, V_CS + 1, V_CS + 2], [10, 11, V_POLL], "add")
    A(f"v_and_b32 v{V_PA}, 0xf0, v{L16}")
    A(f"v_lshrrev_b32 v{V_PA}, 2, v{V_PA}")
    A(f"s_mul_i32 s{T+1}, s{S_J}, 7680")
    A(f"s_mul_i32 s{T+2}, s{S_MT}, 1280")
    A(f"s_add_u32 s{T+1}, s{T+1}, s{T+2}")
    A(f"s_add_u32 s{T+1}, s{T+1}, {WS_CSP + (w >> 2) * 640 + wm * 64}")
    A("s_mov_b64 exec, 0xffff")
    for i in range(3 if wm < 2 else 2):
        A(f"buffer_store_dword v{V_CS+i}, v{V_PA}, {WS}, s{T+1} offen offset:{256*i} sc1")
    A("s_mov_b64 exec, -1")
    A("s_nop 1")
    for i in range(3): A(f"v_mov_b32 v{V_CS+i}, 0")
    A(f"s_setpc_b64 s[{S_RET}:{S_RET+1}]")
    if w == 5:
        A.label(f"L_x_cpoll_{w}")
        A(f"v_lshrrev_b32 v{V_PA}, 2, v{L16}")
        lin(A, T + 1, [(S_J, 8)], F_C)
        A(f"buffer_load_dword v{V_POLL}, v{V_PA}, {WS}, s{T+1} offen sc1")
        A(f"s_setpc_b64 s[{S_RET}:{S_RET+1}]")
        A.label(f"L_x_cload_{w}")
        A("s_waitcnt vmcnt(0)")
        A(f"v_cmp_ne_u32 vcc, 1, v{V_POLL}")
        A("s_nop 4")
        A(f"s_cbranch_vccz L_x_cload_go")
        A("s_sleep 1")
        A(f"v_lshrrev_b32 v{V_PA}, 2, v{L16}")
        lin(A, T + 1, [(S_J, 8)], F_C)
        A(f"buffer_load_dword v{V_POLL}, v{V_PA}, {WS}, s{T+1} offen sc1")
        A(f"s_branch L_x_cload_{w}")
        A.label("L_x_cload_go")
        A(f"s_mul_i32 s{T+1}, s{S_J}, 7680")
        A(f"s_add_u32 s{T+1}, s{T+1}, {WS_CSP}")
        for h in range(2):
            A(f"s_mov_b32 m0, {CSPL + h * 4096}")
            A("s_nop 0")
            for k in range(4):
                A(f"buffer_load_dwordx4 v{L16}, {WS}, s{T+1} offen offset:{k*1024} sc1 lds")
            A(f"s_add_u32 s{T+1}, s{T+1}, 4096")
        A(f"s_setpc_b64 s[{S_RET}:{S_RET+1}]")
    if w == 4:
        A.label(f"L_x_wphi_{w}")
        A(f"s_mov_b32 m0, {WPL}")
        A(f"s_lshl_b32 s{T+1}, s{S_J}, 11")
        A(f"buffer_load_dwordx4 v{L16}, {srd(SRD_WP)}, s{T+1} offen lds")
        A(f"buffer_load_dwordx4 v{L16}, {srd(SRD_WP)}, s{T+1} offen offset:1024 lds")
        A(f"s_setpc_b64 s[{S_RET}:{S_RET+1}]")
    if w == 7:
        A.label(f"L_x_sig_{w}")
        A(f"s_lshr_b32 s{T+1}, s2, 5")
        A(f"s_lshl_b32 s{T+1}, s{T+1}, 5")
        A(f"v_mov_b32 v{V_POLL}, 1")
        A("s_mov_b64 exec, 1")
        A(f"buffer_atomic_add v{V_POLL}, v0, {dbg}, s{T+1} offen sc1")
        A("s_mov_b64 exec, -1")
        A(f"s_setpc_b64 s[{S_RET}:{S_RET+1}]")
        if opt("pfc"):
            A.label(f"L_x_pfc_{w}")
            A(f"s_getpc_b64 s[{SRD_PF}:{SRD_PF+1}]")
            A.label("L_pc_ref")
            A(f"s_sub_u32 s{SRD_PF}, s{SRD_PF}, L_pc_ref - fused_kernel")
            A(f"s_subb_u32 s{SRD_PF+1}, s{SRD_PF+1}, 0")
            A(f"s_and_b32 s{SRD_PF+1}, s{SRD_PF+1}, 0xffff")
            A(f"s_mov_b32 s{SRD_PF+2}, L_done - fused_kernel")
            A(f"s_mov_b32 s{SRD_PF+3}, 0x00020000")
            A(f"v_lshrrev_b32 v{V_POLL}, 4, v{L16}")
            A(f"v_min_u32 v{V_POLL}, 23, v{V_POLL}")
            A(f"v_lshlrev_b32 v{V_POLL}, 7, v{V_POLL}")
            A(f"s_lshr_b32 s{T+1}, s2, 3")
            A(f"s_mul_i32 s{T+1}, s{T+1}, {24*128}")
            A(f"buffer_load_dword v{V_A}, v{V_POLL}, {srd(SRD_PF)}, s{T+1} offen")
            A(f"s_setpc_b64 s[{S_RET}:{S_RET+1}]")
        A.label(f"L_x_pfd_{w}")
        make_srd(A, SRD_PF, 100, 101, 3584 * 2048)
        A(f"v_lshrrev_b32 v{V_POLL}, 4, v{L16}")
        A(f"v_min_u32 v{V_POLL}, 55, v{V_POLL}")
        A(f"v_lshlrev_b32 v{V_POLL}, 7, v{V_POLL}")
        A(f"s_mul_i32 s{T+1}, s2, {224*128}")
        for k in range(4):
            A(f"buffer_load_dword v{V_A}, v{V_POLL}, {srd(SRD_PF)}, s{T+1} offen")
            A(f"s_add_u32 s{T+1}, s{T+1}, {56*128}")
        A(f"s_mov_b32 s{SRD_PF}, s{P+6}")
        A(f"s_and_b32 s{SRD_PF+1}, s{P+7}, 0xffff")
        A(f"s_mov_b32 s{SRD_PF+2}, {1024*2048}")
        A(f"v_lshlrev_b32 v{V_POLL}, 3, v{L16}")
        A(f"s_lshl_b32 s{T+1}, s2, 13")
        A(f"buffer_load_dword v{V_A}, v{V_POLL}, {srd(SRD_PF)}, s{T+1} offen")
        A(f"s_setpc_b64 s[{S_RET}:{S_RET+1}]")

def tile_ids(A, H, M, N, TILE, t):
    A(f"s_and_b32 s{t}, s2, 7")
    A(f"s_lshr_b32 s{t+1}, s2, 3")
    A(f"s_and_b32 s{H}, s{t}, 1")
    A(f"s_lshr_b32 s{M}, s{t}, 1")
    A(f"s_lshl_b32 s{M}, s{M}, 2")
    A(f"s_and_b32 s{t}, s{t+1}, 3")
    A(f"s_add_u32 s{M}, s{M}, s{t}")
    A(f"s_lshr_b32 s{N}, s{t+1}, 2")
    A(f"s_lshl_b32 s{TILE}, s{M}, 3")
    A(f"s_add_u32 s{TILE}, s{TILE}, s{N}")
def lin(A, d, terms, base):
    first = True
    for r, sh in terms:
        if first: A(f"s_lshl_b32 s{d}, s{r}, {sh}"); first = False
        else:
            A(f"s_lshl_b32 s{T+5}, s{r}, {sh}")
            A(f"s_add_u32 s{d}, s{d}, s{T+5}")
    A(f"s_add_u32 s{d}, s{d}, {base}")
def off_h(A, d, ph): lin(A, d, [(S_MT, 11), (S_W, 7), (S_J, 2)], F_H + ph * 1024)
def off_k(A, d): lin(A, d, [(S_J, 8), (S_MT, 5), (S_W, 2)], F_K)
def off_c(A, d): lin(A, d, [(S_J, 8), (S_MT, 5), (S_W, 2)], F_C)
def off_o(A, d): lin(A, d, [(S_MT, 9), (S_WM, 7), (S_J, 2)], F_O)
def off_p(A, d, tile): lin(A, d, [(tile, 7), (S_WM, 2)], F_P)
def put(A, soff, vval, vzero): A(f"buffer_store_dword v{vval}, v{vzero}, {WS}, s{soff} offen sc1")

CR, NM, RR, RL, WPR, WPK, TMP = 12, 80, 2, [0, 1, 10, 11], 56, 88, 72
def pk_fma_bc(A, d, a, bc, c):
    p, s = bc & ~1, bc & 1
    A(f"v_pk_fma_f32 v[{d}:{d+1}], v[{a}:{a+1}], v[{p}:{p+1}], v[{c}:{c+1}] op_sel:[0,{s},0] op_sel_hi:[1,{s},1]")
def pk_mul_bc(A, d, a, bc):
    p, s = bc & ~1, bc & 1
    A(f"v_pk_mul_f32 v[{d}:{d+1}], v[{a}:{a+1}], v[{p}:{p+1}] op_sel:[0,{s}] op_sel_hi:[1,{s}]")
def corr(A, a, b, tb):
    for r in (0, 2): pk_fma_bc(A, a + r, CR + 4 * b + r, NM + 2 * tb, a + r)
def gu(A, bg, bu, tb, dst, tmp):
    g = acc(bg, tb); u = acc(bu, tb)
    corr(A, g, bg, tb); corr(A, u, bu, tb)
    for r in range(4): A(f"v_mul_f32 v{tmp+r}, v{g+r}, v{RL[tb]}")
    for r in range(4): A(f"v_exp_f32 v{tmp+r}, v{tmp+r}")
    for r in range(4): A(f"v_fma_f32 v{tmp+r}, v{tmp+r}, v{NM+2*tb+1}, v{NM+2*tb+1}")
    for r in range(4): A(f"v_rcp_f32 v{tmp+r}, v{tmp+r}")
    for r in range(4): A(f"v_mul_f32 v{tmp+r}, v{tmp+r}, v{u+r}")
    cvt(A, dst, tmp); cvt(A, dst + 1, tmp + 2)
def qk_pack(A, tb):
    d = acc(0, tb)
    for hb in range(2):
        a = acc(hb, tb)
        corr(A, a, hb, tb)
        for r in (0, 2): pk_mul_bc(A, a + r, a + r, RR + tb)
        cvt(A, d + 2 * hb, a); cvt(A, d + 2 * hb + 1, a + 2)
def kwork(A, groups, WP, S):
    KV, D, ISEL, ONES, PP, PM, PK, SC = S, S + 48, S + 80, S + 88, S + 92, S + 96, S + 100, S + 108
    PT = PK
    A(f"v_lshrrev_b32 v{SC}, 4, v{L16}")
    A(f"v_lshrrev_b32 v{SC+1}, 4, v{SC}         ; g")
    A(f"v_and_b32 v{SC}, 15, v{SC}              ; c")
    A(f"v_lshrrev_b32 v{SC+2}, 2, v{SC}")
    A(f"v_and_b32 v{SC+3}, 3, v{SC}")
    A(f"v_cmp_eq_u32 vcc, v{SC+2}, v{SC+1}")
    A(f"v_and_b32 v{SC+4}, 1, v{SC+3}")
    A(f"v_lshlrev_b32 v{SC+4}, 4, v{SC+4}")
    A(f"v_mov_b32 v{SC+5}, 0x3f80")
    A(f"v_lshlrev_b32 v{SC+5}, v{SC+4}, v{SC+5}")
    A(f"v_cndmask_b32 v{SC+5}, 0, v{SC+5}, vcc")
    A(f"v_cmp_gt_u32 vcc, 2, v{SC+3}")
    A(f"v_mov_b32 v{ISEL}, 0")
    A(f"v_mov_b32 v{ISEL+1}, 0")
    A(f"v_cndmask_b32 v{ISEL+2}, 0, v{SC+5}, vcc")
    A(f"v_cndmask_b32 v{ISEL+3}, v{SC+5}, 0, vcc")
    A(f"v_mov_b32 v{ISEL+4}, 0")
    A(f"v_mov_b32 v{ISEL+5}, 0")
    for r in range(4): A(f"v_mov_b32 v{ONES+r}, s{S_ONES}")
    for gi, (VF, kfs) in enumerate(groups):
        if gi: A("s_nop 3")
        for e, kf in kfs.items():
            MF(A, PK, WP, kf); MF(A, PK + 4, WP + 4, kf)
            A("s_nop 7")
            softmax(A, PK, PP, PM, SC)
            A("s_nop 1")
            dd = D + e * 16
            MF(A, dd, PP, ISEL + 2); MF(A, dd + 4, PP, ISEL); MF(A, dd + 8, PM, ISEL + 2); MF(A, dd + 12, PM, ISEL)
        es = list(kfs)
        for e in range(2):
            if e not in kfs:
                for fb in range(4):
                    A(f"v_mov_b32 v{PT+fb*4+2*e}, 0"); A(f"v_mov_b32 v{PT+fb*4+2*e+1}, 0")
        for e in es:
            if e == es[-1] and len(es) == 2: pass
            for fb in range(4):
                dd = D + e * 16 + fb * 4
                cvt(A, PT + fb * 4 + 2 * e, dd); cvt(A, PT + fb * 4 + 2 * e + 1, dd + 2)
        A("s_nop 1")
        for fb in range(4):
            for db in range(3):
                c = KV + (fb * 3 + db) * 4
                MF(A, c, PT + fb * 4, VF + db * 4 if db < 2 else ONES, c if gi else None)
    A("s_nop 7")
    return KV

def p1_epilogue(A, wn):
    st = "sc1"
    A.label(f"L_epi{wn}")
    A.lgkm = []
    A("s_waitcnt vmcnt(0) lgkmcnt(0)")
    stamp(A, 2)
    if opt("edbg"): A("s_memrealtime s[80:81]")
    A(f"v_lshrrev_b32 v54, 8, v{L16}")
    A("v_lshlrev_b32 v52, 4, v54                ; g*16")
    A(f"v_and_b32 v55, 0xf0, v{L16}")
    A("v_lshrrev_b32 v12, 2, v55                ; c*4")
    A("v_lshrrev_b32 v56, 6, v55                ; i>>2")
    A("v_lshl_add_u32 v56, v54, 2, v56")
    A("v_lshlrev_b32 v56, 6, v56")
    A("v_and_b32 v57, 12, v12")
    A("v_lshl_add_u32 v56, v57, 1, v56")
    A(f"v_add_u32 v56, {WPL}, v56")
    A("v_mul_u32_u24 v13, 1280, v54")
    A(f"s_lshl_b32 s{T}, s{S_WM}, 6")
    A(f"s_add_u32 s{T}, s{T}, {CSPL + wn * 640}")
    A(f"v_add3_u32 v13, v13, v12, s{T}")
    A("v_cmp_gt_u32 vcc, 2, v54")
    for i in range(3):
        A(f"ds_read_b32 v{16+2*i}, v13 offset:{256*i}")
        A(f"ds_read_b32 v{17+2*i}, v13 offset:{256*i + 5120}")
    A("s_waitcnt lgkmcnt(0)")
    for i in range(3):
        A(f"v_cndmask_b32 v{17+2*i}, 0, v{17+2*i}, vcc")
        A(f"v_add_f32 v{V_CS+i}, v{V_CS+i}, v{16+2*i}")
        A(f"v_add_f32 v{V_CS+i}, v{V_CS+i}, v{17+2*i}")
    xreduce_g(A, [V_CS, V_CS + 1, V_CS + 2], [13, 14, 15], "add")
    A(f"s_lshl_b32 s{T}, s{S_WM}, 6")
    A(f"s_add_u32 s{T}, s{T}, {CSL + wn * 640}")
    A(f"v_add_u32 v13, s{T}, v12")
    A(f"ds_write_b32 v13, v{V_CS}")
    A(f"ds_write_b32 v13, v{V_CS+1} offset:256")
    A(f"s_cmp_lt_u32 s{S_WM}, 2")
    A(f"s_cselect_b32 s{T}, s{T}, {CSL + 1280 - 512}")
    A(f"v_add_u32 v14, s{T}, v12")
    A(f"ds_write_b32 v14, v{V_CS+2} offset:512")
    for tb in range(4): A(f"v_rcp_f32 v{RR+tb}, v{NM+2*tb+1}")
    A("s_nop 0")
    for tb in range(4): A(f"v_mul_f32 v{RL[tb]}, s{S_C}, v{RR+tb}")
    if wn == 1:
        A(f"s_lshl_b32 s{T}, s{S_W}, 9")
        A(f"s_add_u32 s{T}, s{T}, {STL}")
        A(f"v_lshl_add_u32 v15, v12, 1, s{T}")
        for tb in range(4):
            A(f"v_mov_b32 v{16+2*tb}, v{NM+2*tb}")
            A(f"v_mov_b32 v{17+2*tb}, v{RR+tb}")
            A(f"ds_write_b64 v15, v[{16+2*tb}:{17+2*tb}] offset:{tb*128}")
        A(f"v_lshl_add_u32 v55, v52, 1, s{T}")
        A(f"v_add_u32 v54, {CSL + 640}, v12")
    A(f"v_add_u32 v52, {CSL + wn * 640}, v52")
    lin(A, T + 4, [(S_WM, 13)], HOFF)
    A(f"v_add_u32 v53, s{T+4}, v{L16}")
    lin(A, T, [(S_MT, 14), (S_WM, 12)], WS_ACT)
    A(f"s_mul_i32 s{T+1}, s{S_J}, {3 * 131072}")
    A(f"s_add_u32 s{T+1}, s{T+1}, s{T}")
    A("s_waitcnt lgkmcnt(0)")
    A("s_barrier                ; B1")
    if opt("edbg"): A("s_memrealtime s[82:83]")
    order = [2, 3, 4, 5, 0, 1, 6, 7, 8, 9] if wn == 0 else [4, 5, 6, 7, 0, 1, 8, 9]
    for b in order: A.ds(f"ds_read_b128 v[{CR+4*b}:{CR+4*b+3}], v52 offset:{b*64}", f"C{b}")
    def gupair(b0, soff):
        A.wait_lgkm([f"C{b}" for b in range(b0, b0 + 4)])
        for tb in range(4):
            d = acc(b0, tb)
            gu(A, b0 + 2, b0 + 3, tb, acc(b0 + 2, tb), TMP + 4)
            gu(A, b0, b0 + 1, tb, d, TMP)
            A(f"v_mov_b32 v{d+2}, v{acc(b0+2, tb)}")
            A(f"v_mov_b32 v{d+3}, v{acc(b0+2, tb)+1}")
            A(f"buffer_store_dwordx4 v[{d}:{d+3}], v{L16}, {WS}, s{soff} offen offset:{tb*1024} {st}")
    if wn == 0:
        gupair(2, T + 1)
        A(f"s_add_u32 s{T+1}, s{T+1}, 131072")
        gupair(6, T + 1)
        for tb in range(4): qk_pack(A, tb)
        A("s_barrier                ; B2")
        if opt("edbg"): A("s_memrealtime s[84:85]")
        for k in range(7): A(f"ds_read_b128 v[{12+4*k}:{15+4*k}], v53 offset:{k*1024}")
        off_h(A, T + 3, 0)
        A("v_mov_b32 v58, 1")
        A("v_mov_b32 v59, 0")
        A("s_waitcnt vmcnt(4)")
        A("s_mov_b64 exec, 1")
        put(A, T + 3, 58, 59)
        A("s_mov_b64 exec, -1")
        groups = [(20, {0: 12, 1: 16}), (32, {1: 28})]
    else:
        A.ds(f"ds_read_b32 v{CR+8}, v54 offset:128", "CV")
        A.ds(f"ds_read_b32 v{CR+9}, v54 offset:192", "CV")
        A(f"s_add_u32 s{T+1}, s{T+1}, {2*131072}")
        gupair(4, T + 1)
        A.wait_lgkm(["C0", "C1"])
        for tb in (2, 3, 0, 1): qk_pack(A, tb)
        A(f"ds_write_b128 v53, v[{acc(0,2)}:{acc(0,2)+3}]")
        A(f"ds_write_b128 v53, v[{acc(0,3)}:{acc(0,3)+3}] offset:1024")
        A(f"ds_write_b128 v53, v[{acc(0,1)}:{acc(0,1)+3}] offset:4096")
        for pair in (1, 0):
            for e in range(2):
                tb = 2 * pair + e
                A.ds(f"ds_read_b128 v[{112+8*e}:{115+8*e}], v55 offset:{tb*128}", f"S{e}")
                A.ds(f"ds_read_b128 v[{116+8*e}:{119+8*e}], v55 offset:{tb*128+16}", f"S{e}")
            for e in range(2):
                tb = 2 * pair + e
                A.wait_lgkm(["CV", f"S{e}"])
                for db in range(2):
                    a = acc(2 + db, tb)
                    for r in range(4): A(f"v_fma_f32 v{a+r}, v{CR+8+db}, v{112+8*e+2*r}, v{a+r}")
                    for r in range(4): A(f"v_mul_f32 v{a+r}, v{a+r}, v{113+8*e+2*r}")
                    d = acc(2 + db, 2 * pair) + 2 * e
                    cvt(A, d, a); cvt(A, d + 1, a + 2)
            A("s_nop 0")
            o_ = 2048 if pair == 1 else 5120
            A(f"ds_write_b128 v53, v[{acc(2,2*pair)}:{acc(2,2*pair)+3}] offset:{o_}")
            A(f"ds_write_b128 v53, v[{acc(3,2*pair)}:{acc(3,2*pair)+3}] offset:{o_+1024}")
        A("s_waitcnt lgkmcnt(0)")
        A.lgkm = []
        A("s_barrier                ; B2")
        if opt("edbg"): A("s_memrealtime s[84:85]")
        off_h(A, T + 3, 0)
        A("v_mov_b32 v58, 1")
        A("v_mov_b32 v59, 0")
        A("s_waitcnt vmcnt(0)")
        A("s_mov_b64 exec, 1")
        put(A, T + 3, 58, 59)
        A("s_mov_b64 exec, -1")
        A(f"s_lshr_b32 s{T+2}, s{S_J}, 1")
        A(f"s_add_u32 s{T+2}, s{T+2}, 96")
        A(f"s_lshl_b32 s{T+2}, s{T+2}, 17")
        A(f"s_add_u32 s{T+2}, s{T+2}, s{T}")
        A(f"s_and_b32 s{T+3}, s{S_J}, 1")
        A(f"s_lshl_b32 s{T+3}, s{T+3}, 3")
        A(f"s_add_u32 s{T+2}, s{T+2}, s{T+3}")
        for tb in range(4):
            d = acc(8, tb)
            gu(A, 8, 9, tb, d, TMP + 4 * (tb & 1))
            A(f"buffer_store_dwordx2 v[{d}:{d+1}], v{L16}, {WS}, s{T+2} offen offset:{tb*1024} {st}")
        for db in range(2):
            for r in range(4): A(f"v_mov_b32 v{20+4*db+r}, v{acc(2+db,0)+r}")
        groups = [(20, {0: acc(0, 0)})]
    if opt("edbg"): A("s_memrealtime s[86:87]")
    for fb in range(2):
        for t in range(2):
            A(f"ds_read_b64_tr_b16 v[{WPK+4*fb+2*t}:{WPK+4*fb+2*t+1}], v56 offset:{t*1024 + fb*32}")
    A("s_waitcnt lgkmcnt(0)")
    KV = kwork(A, groups, WPK, 124)
    A(f"s_mul_i32 s{T+1}, s{S_W}, {12*1024}")
    A(f"v_add_u32 v20, s{T+1}, v{L16}")
    for blk in range(12): A(f"ds_write_b128 v20, v[{KV+blk*4}:{KV+blk*4+3}] offset:{blk*1024}")
    if opt("edbg"): A("s_memrealtime s[88:89]"); A("s_memrealtime s[90:91]")
    A("s_waitcnt lgkmcnt(0)")
    A("s_barrier                ; B3")
    if opt("edbg"): A("s_memrealtime s[92:93]")
    A(f"s_lshr_b32 s{T}, s{S_W}, 1")
    A(f"s_mul_i32 s{T}, s{T}, 3")
    A(f"s_and_b32 s{T+1}, s{S_W}, 1")
    A(f"s_add_u32 s{T}, s{T}, s{T+1}")
    A(f"s_lshl_b32 s{T}, s{T}, 10")
    A(f"v_add_u32 v20, s{T}, v{L16}")
    A(f"v_add_u32 v22, {4*12*1024}, v20")
    for p in range(8): A(f"ds_read_b128 v[{124+4*p}:{127+4*p}], v{20 if p < 4 else 22} offset:{(p%4)*12*1024}")
    if wn == 0:
        A(f"s_mul_i32 s{T}, s{S_W}, 3072")
        A(f"v_add_u32 v21, s{T}, v{L16}")
        A(f"v_add_u32 v23, {4*12*1024}, v21")
        for p in range(8): A(f"ds_read_b128 v[{156+4*p}:{159+4*p}], v{21 if p < 4 else 23} offset:{(p%4)*12*1024 + 2048}")
    A(f"s_lshl_b32 s{T}, s{S_J}, 3")
    A(f"s_add_u32 s{T}, s{T}, s{S_MT}")
    A(f"s_mul_i32 s{T}, s{T}, {KVP_SZ}")
    A(f"s_add_u32 s{T}, s{T}, {WS_KVP}")
    A(f"s_lshl_b32 s{T+1}, s{S_W}, 10")
    A(f"s_add_u32 s{T+1}, s{T+1}, s{T}")
    A("s_waitcnt lgkmcnt(0)")
    for base in ((124, 156) if wn == 0 else (124,)):
        for s_ in (16, 8, 4):
            for r in range(0, s_, 2):
                A(f"v_pk_add_f32 v[{base+r}:{base+r+1}], v[{base+r}:{base+r+1}], v[{base+s_+r}:{base+s_+r+1}]")
    A(f"buffer_store_dwordx4 v[124:127], v{L16}, {WS}, s{T+1} offen {st}")
    if wn == 0:
        A(f"s_lshl_b32 s{T+1}, s{S_W}, 6")
        A(f"s_add_u32 s{T+1}, s{T+1}, s{T}")
        A(f"s_add_u32 s{T+1}, s{T+1}, 8192")
        A(f"v_lshrrev_b32 v21, 4, v{L16}")
        A("v_and_b32 v22, 15, v21")
        A("v_cmp_eq_u32 vcc, 0, v22")
        A(f"s_and_saveexec_b64 s[{T+2}:{T+3}], vcc")
        A(f"buffer_store_dwordx4 v[156:159], v21, {WS}, s{T+1} offen {st}")
        A("s_mov_b64 exec, -1")
    stamp(A, 3)
    stamp_store(A, WS_STAMP)
    A(f"s_branch L_p2_{'prod' if wn == 0 else 'cons'}")

def p1_prologue(A):
    A("s_cmp_ge_u32 s2, 256")
    A("s_cbranch_scc1 L_done")
    stamp(A, 0)
    A(f"s_load_dwordx8 s[{P}:{P+7}], s[0:1], 0")
    A(f"s_load_dwordx4 s[{P+8}:{P+11}], s[0:1], 40")
    A(f"s_load_dwordx4 s[96:99], s[0:1], 72")
    A(f"s_load_dwordx2 s[100:101], s[0:1], 56")
    A(f"s_load_dwordx2 s[{P+12}:{P+13}], s[0:1], 64")
    A("v_lshrrev_b32 v1, 6, v0")
    A("v_and_b32 v10, 63, v0             ; lane")
    A(f"v_readfirstlane_b32 s{S_W}, v1")
    A(f"s_lshl_b32 s{T}, s2, 3")
    A(f"v_add_u32 v60, s{T}, v1")
    A("v_lshlrev_b32 v61, 11, v60")
    A("v_lshl_add_u32 v61, v10, 4, v61")
    A(f"v_lshlrev_b32 v{L16}, 4, v10")
    A(f"s_and_b32 s{S_WM}, s{S_W}, 3")
    A(f"s_lshr_b32 s{S_WN}, s{S_W}, 2")
    A(f"s_and_b32 s{T}, s2, 7")
    A(f"s_lshr_b32 s{T+1}, s2, 3")
    jm = int(opt("jm", 0))
    if jm == 4:
        A(f"s_xor_b32 s{T}, s{T}, 1")
    if jm in (0, 4):
        A(f"s_and_b32 s{S_J}, s{T+1}, 3")
        A(f"s_lshl_b32 s{T}, s{T}, 2")
        A(f"s_add_u32 s{S_J}, s{S_J}, s{T}")
        A(f"s_lshr_b32 s{S_MT}, s{T+1}, 2")
    elif jm == 1:
        A(f"s_and_b32 s{S_J}, s{T+1}, 3")
        A(f"s_lshl_b32 s{S_J}, s{S_J}, 3")
        A(f"s_add_u32 s{S_J}, s{S_J}, s{T}")
        A(f"s_lshr_b32 s{S_MT}, s{T+1}, 2")
    elif jm == 2:
        A(f"s_and_b32 s{S_J}, s{T}, 3")
        A(f"s_lshl_b32 s{S_J}, s{S_J}, 3")
        A(f"s_and_b32 s{T+2}, s{T+1}, 7")
        A(f"s_add_u32 s{S_J}, s{S_J}, s{T+2}")
        A(f"s_lshr_b32 s{S_MT}, s{T}, 2")
        A(f"s_lshl_b32 s{S_MT}, s{S_MT}, 2")
        A(f"s_lshr_b32 s{T+2}, s{T+1}, 3")
        A(f"s_add_u32 s{S_MT}, s{S_MT}, s{T+2}")
    elif jm == 3:
        A(f"s_and_b32 s{S_J}, s{T}, 1")
        A(f"s_lshl_b32 s{S_J}, s{S_J}, 4")
        A(f"s_and_b32 s{T+2}, s{T+1}, 15")
        A(f"s_add_u32 s{S_J}, s{S_J}, s{T+2}")
        A(f"s_lshr_b32 s{S_MT}, s{T}, 1")
        A(f"s_lshl_b32 s{S_MT}, s{S_MT}, 1")
        A(f"s_lshr_b32 s{T+2}, s{T+1}, 4")
        A(f"s_add_u32 s{S_MT}, s{S_MT}, s{T+2}")
    lin(A, T, [(S_MT, 8), (S_WN, 6), (S_WM, 2)], 0)
    A("v_bfe_u32 v11, v10, 3, 1")
    A("v_lshrrev_b32 v12, 4, v10         ; g")
    A("v_lshl_add_u32 v11, v12, 4, v11")
    A(f"v_add_u32 v11, s{T}, v11")
    A("v_lshlrev_b32 v11, 11, v11")
    A("v_and_b32 v13, 7, v10")
    A(f"v_lshl_add_u32 v{V_A}, v13, 4, v11")
    A(f"s_mul_i32 s{S_APAGE}, s{S_W}, {2 * A_PAGE}")
    A(f"s_lshl_b32 s{T}, s{S_W}, 6")
    A(f"v_add_u32 v13, s{T}, v10")
    A("v_mul_u32_u24 v14, 4682, v13")
    A("v_lshrrev_b32 v14, 16, v14")
    A("v_mul_u32_u24 v15, 14, v14")
    A("v_sub_u32 v15, v13, v15")
    A("v_mul_u32_u24 v14, 7168, v14")
    A("v_lshl_add_u32 v14, v15, 4, v14")
    A(f"s_mul_i32 s{T}, s{S_J}, 224")
    A(f"v_add_u32 v{V_B0}, s{T}, v14")
    A(f"v_mov_b32 v{V_B1}, v{V_B0}")
    A("v_lshrrev_b32 v15, 2, v10")
    A("v_mul_u32_u24 v15, 6144, v15")
    A("v_lshrrev_b32 v16, 3, v10")
    A("v_and_b32 v16, 2, v16")
    A("v_and_b32 v17, 3, v10")
    A("v_xor_b32 v16, v16, v17")
    A("v_lshl_add_u32 v15, v16, 4, v15")
    A(f"s_lshr_b32 s{T}, s{S_W}, 1")
    A(f"s_lshl_b32 s{T}, s{T}, 11")
    A(f"s_and_b32 s{T+1}, s{S_W}, 1")
    A(f"s_mul_i32 s{T+1}, s{T+1}, {16*6144}")
    A(f"s_add_u32 s{T}, s{T}, s{T+1}")
    A(f"s_lshl_b32 s{T+1}, s{S_J}, 6")
    A(f"s_add_u32 s{T}, s{T}, s{T+1}")
    A(f"v_add_u32 v{V_B2}, s{T}, v15")
    A(f"s_lshl_b32 s{S_BLDS[2]}, s{S_W}, 10")
    A(f"s_add_u32 s{S_BLDS[0]}, s{S_BLDS[2]}, 6144")
    A(f"s_add_u32 s{S_BLDS[1]}, s{S_BLDS[2]}, 13312")
    for k in range(3):
        A(f"s_mov_b32 s{S_BOFF[k]}, 0")
        A(f"s_mov_b32 s{S_BINC[k]}, {32 * (6144 if k == 2 else 7168)}")
    A("s_waitcnt lgkmcnt(0)")
    if opt("pdbg"): A("s_memrealtime s[86:87]")
    make_srd(A, SRD_A, P, P + 1, 4 * MB)
    make_srd(A, SRD_B0, P + 8, P + 9, 1024 * 7168)
    make_srd(A, SRD_B1, P + 10, P + 11, 1024 * 7168)
    make_srd(A, SRD_B2, P + 2, P + 3, 1024 * 6144)
    A(f"s_cmp_eq_u32 s{S_W}, 7")
    A("s_cbranch_scc1 L_pro7")
    A(f"s_cmp_eq_u32 s{S_W}, 6")
    A("s_cbranch_scc1 L_pro6")
    NPF = int(opt("npf", 0))
    PF0 = int(opt("pf0", 5))
    def run(ops):
        for f0, f1 in ops:
            f0(A); A("s_nop 0"); f1(A)
    pa = lambda w, stage: [adma(h, e, stage & 1, stage * 128) for h in range(2) for e in range(nA(w))]
    pb = lambda w, stage: [bdma(k, stage) for k in range(nB(w))]
    for cls, w in (("", 0), ("L_pro6", 6)):
        if cls: A.label(cls)
        run(pa(w, 0)); run(pb(w, 0)); run(pb(w, 1))
        A("s_branch L_pro_common")
    A.label("L_pro7")
    A(f"buffer_load_dwordx4 v[80:83], v61, {srd(SRD_A)}, 0 offen")
    A(f"buffer_load_dwordx4 v[84:87], v61, {srd(SRD_A)}, 0 offen offset:1024")
    if opt("pfx"):
        A("v_lshlrev_b32 v13, 7, v10")
        A(f"s_lshl_b32 s{T}, s2, 14")
        A(f"buffer_load_dword v{V_A}, v13, {srd(SRD_A)}, s{T} offen")
        A(f"s_add_u32 s{T}, s{T}, 8192")
        A(f"buffer_load_dword v{V_A}, v13, {srd(SRD_A)}, s{T} offen")
    A("v_min_u32 v13, 13, v10")
    A(f"s_mul_i32 s{T}, s2, 14")
    A(f"v_add_u32 v13, s{T}, v13")
    A(f"v_lshlrev_b32 v{V_B0}, 7, v13")
    A(f"v_mov_b32 v{V_B1}, v{V_B0}")
    A("v_min_u32 v13, 11, v10")
    A(f"s_mul_i32 s{T}, s2, 12")
    A(f"v_add_u32 v13, s{T}, v13")
    A(f"v_lshlrev_b32 v{V_B2}, 7, v13")
    for k in range(3):
        A(f"s_mov_b32 s{S_BOFF[k]}, {PF0 * 32 * (6144 if k == 2 else 7168)}")
        A(f"s_mov_b32 s{S_BINC[k]}, {64 * (6144 if k == 2 else 7168)}")
    for i in range(NPF):
        for k in range(3): pfload(A, k)
    A.label("L_pro_common")
    make_srd(A, SRD_WS, 98, 99, WS_BYTES)
    make_srd(A, SRD_D, 96, 97, 256)
    make_srd(A, SRD_WP, P + 4, P + 5, 65536)
    A(f"s_mov_b32 s{S_C}, {NLOG2E}")
    A(f"s_mov_b32 s{S_C+1}, {LOG2E}")
    A(f"s_mov_b32 s{S_ONES}, 0x3f803f80")
    A(f"s_mov_b32 s{S_HI}, 0xffff0000")
    A("v_and_b32 v16, 15, v10")
    A("v_lshrrev_b32 v17, 2, v16")
    A("v_lshl_add_u32 v17, v12, 2, v17   ; 4g + (i>>2)")
    A("v_and_b32 v18, 3, v16")
    A("v_lshlrev_b32 v18, 3, v18")
    A("v_mul_u32_u24 v19, 224, v17")
    A("v_add_u32 v19, v19, v18")
    A(f"v_add_u32 v{V_BG}, {LDS_B}, v19")
    A("v_lshl_add_u32 v19, v17, 6, v18")
    A("v_and_b32 v20, 1, v12")
    A("v_lshl_add_u32 v19, v20, 5, v19")
    A(f"v_add_u32 v{V_BQ0}, {LDS_B}, v19")
    A(f"v_xor_b32 v{V_BQ1}, 32, v{V_BQ0}")
    for a_, b_ in ((V_BG2, V_BG), (V_BQ02, V_BQ0), (V_BQ12, V_BQ1)): A(f"v_add_u32 v{a_}, {2*B_STAGE}, v{b_}")
    A("v_lshrrev_b32 v19, 1, v16")
    A(f"s_lshl_b32 s{T}, s{S_WM}, 3")
    A(f"v_add_u32 v19, s{T}, v19")
    A(f"v_mul_u32_u24 v19, {A_PAGE}, v19")
    A("v_and_b32 v20, 1, v16")
    A("v_lshl_add_u32 v19, v20, 7, v19")
    A(f"v_lshl_add_u32 v{V_AR}, v12, 3, v19")
    A(f"s_mov_b32 s{S_AK}, 256")
    A(f"s_mov_b32 s{S_AKE}, 256")
    for r in range(ACC, 256): A(f"v_mov_b32 v{r}, 0")
    for r in range(3): A(f"v_mov_b32 v{V_CS+r}, 0")
    for r in range(4): A(f"v_mov_b32 v{WR+16+r}, 0")
    A("v_mov_b32 v0, 0")
    off_h(A, T, 0)
    A(f"v_mov_b32 v40, s{T}")
    A(f"s_add_u32 s{T}, s{T}, 1024")
    A(f"v_writelane_b32 v40, s{T}, 1")
    off_k(A, T)
    A(f"v_writelane_b32 v40, s{T}, 2")
    off_o(A, T)
    tile_ids(A, 76, 77, 75, 74, T + 1)
    off_p(A, T + 1, 74)
    A(f"s_cmp_eq_u32 s{S_WN}, 0")
    A(f"s_cselect_b32 s{T}, s{T}, s{T+1}")
    A(f"v_writelane_b32 v40, s{T}, 3")
    A(f"s_cselect_b32 s{T+2}, 31, 23")
    A("s_cmp_eq_u32 s76, 1")
    A(f"s_cselect_b32 s{T+2}, 31, s{T+2}")
    off_c(A, T)
    A(f"v_writelane_b32 v40, s{T}, 4")
    A(f"s_sub_u32 s{S_MYIT}, 8, s{S_MT}")
    A(f"s_cmp_eq_u32 s{S_W}, 7")
    A("s_cbranch_scc1 L_pro_b7")
    A("s_waitcnt vmcnt(0)")
    if opt("pdbg"): A("s_memrealtime s[90:91]")
    A("s_barrier")
    A(f"s_cmp_eq_u32 s{S_W}, 6")
    A("s_cbranch_scc1 L_pro_g6")
    for cls, w in (("", 0), ("L_pro_g6", 6)):
        if cls: A.label(cls)
        run(pb(w, 2)); run(pa(w, 1))
        A(f"buffer_load_dwordx4 v[80:83], v61, {srd(SRD_A)}, 0 offen")
        A(f"buffer_load_dwordx4 v[84:87], v61, {srd(SRD_A)}, 0 offen offset:1024")
        A("s_branch L_pro_c2")
    A.label("L_pro_b7")
    if opt("pdbg"): A("s_memrealtime s[90:91]")
    A("s_barrier")
    A.label("L_pro_c2")
    A(f"s_mov_b32 exec_lo, s{T+2}")
    A("s_mov_b32 exec_hi, 0")
    A(f"buffer_store_dword v0, v40, {WS}, 0 offen sc1")
    A("s_mov_b64 exec, -1")
    if opt("pdbg"): A("s_memrealtime s[94:95]")
    for ts, ks in ((T0, 0), (T1A, 1)):
        for tb in range(4):
            for t in range(2): tread(A, 0, ks, tb, ts, "T", t)
    A(f"s_cmp_eq_u32 s{S_WN}, 1")
    A("s_cbranch_scc1 L_pro_w1")
    for wn in range(2):
        if wn: A.label("L_pro_w1")
        for b in range(4):
            for t in range(2): wread(A, wn, b, 0, WR + b * 4, "W", t)
        A("s_waitcnt lgkmcnt(8)")
        A("s_barrier")
        stamp(A, 1)
        A("s_waitcnt lgkmcnt(0)")
        A(f"s_mov_b32 s{S_ITER}, 8")
        for wm in range(1, 4):
            A(f"s_cmp_eq_u32 s{S_WM}, {wm}")
            A(f"s_cbranch_scc1 L_loop{wn*4+wm}")
        for wm in range(4):
            w = wn * 4 + wm
            B = Asm(); p1_body(B, w); entry = list(B.lgkm)
            A.label(f"L_loop{w}")
            A(f"s_cmp_eq_u32 s{S_ITER}, s{S_MYIT}")
            A(f"s_cbranch_scc1 L_loopc{w}")
            A.lgkm = list(entry)
            A.label(f"L_loopp{w}")
            p1_body(A, w, False)
            assert A.lgkm == entry
            A(f"s_sub_u32 s{S_ITER}, s{S_ITER}, 1")
            A(f"s_cmp_gt_u32 s{S_ITER}, 2")
            A(f"s_cbranch_scc1 L_loop{w}")
            A.label(f"L_loopc{w}")
            p1_body(A, w, True)
            assert A.lgkm == entry
            A(f"s_sub_u32 s{S_ITER}, s{S_ITER}, 1")
            A(f"s_cmp_lt_u32 s{S_ITER}, 2")
            A(f"s_cbranch_scc1 L_loopt{w}")
            A(f"s_call_b64 s[{S_RET}:{S_RET+1}], L_x_cpub_{w}")
            A(f"s_cmp_gt_u32 s{S_ITER}, 2")
            A(f"s_cbranch_scc1 L_loopp{w}")
            A.label(f"L_loopt{w}")
            A(f"s_cmp_lg_u32 s{S_ITER}, 0")
            A(f"s_cbranch_scc1 L_loopc{w}")
            A(f"s_branch L_epi{wn}")
            p1_extras(A, w)
        p1_epilogue(A, wn)

PPB = 136
def o_soft(A, e):
    PK, SC = 64, 96
    q = 120 + 4 * e
    MF(A, PK, 56, q); MF(A, PK + 4, 60, q)
    A("s_nop 7")
    softmax(A, PK, PPB + 8 * e, PPB + 8 * e + 4, SC)
def o_fin(A, e, soff):
    O, N0, N1, DN = 24, 80, 84, 88
    PP, PM = PPB + 8 * e, PPB + 8 * e + 4
    MF(A, DN, 48, PP); MF(A, N0, 32, PP); MF(A, N1, 40, PP)
    MF(A, DN, 52, PM, DN); MF(A, N0, 36, PM, N0); MF(A, N1, 44, PM, N1)
    A("s_nop 7")
    A(f"v_add_f32 v{DN}, 0x358637bd, v{DN}")
    A(f"v_rcp_f32 v{DN}, v{DN}")
    A("s_nop 0")
    for r in range(8): A(f"v_mul_f32 v{N0+r}, v{N0+r}, v{DN}")
    d = O + 4 * (e & 1)
    for r in range(4): cvt(A, d + r, N0 + 2 * r)
    A(f"buffer_store_dwordx4 v[{d}:{d+3}], v4, {WS}, s{soff} offen offset:{e*1024} sc1")

def phase2(A):
    A.p2 = True
    SPL = int(opt("h1n", 64)); NB1 = min(SPL - 32, 32); K1O = SPL - 32 - NB1; NB0 = 32 - NB1; N0 = 144 - SPL; OST = N0 - 32
    assert NB0 % 2 == 0 and NB0 >= 0
    H, M, N, TILE = 20, 21, 22, 23
    SRD_X, SRD_B, SRD_OUT = 8, 12, 16
    S_SLOT, S_DELTA = 24, 25
    AOFF, BOFF, AINC, BINC, POS, EVT, LDS, B2, LA, LB = 26, 27, 28, 29, 30, 31, 32, 33, 34, 35
    NIT, T2, S_OO, RET = 60, 56, 58, 76
    VT, VW = 1, 2
    TS = [8, 24]; WSR = [40, 56]; AC = 72; XR = 136; KG = 160
    KI = [int(opt("kc", 1))]
    OS = KI[0] + int(opt("kd", 6))
    KO1, KO2 = 33, 34
    def ac(cb, tb): return AC + (cb * 4 + tb) * 4
    def common(A):
        stamp(A, 0)
        A(f"v_mov_b32 v4, v{L16}")
        A("v_lshrrev_b32 v3, 4, v4")
        A("v_lshrrev_b32 v5, 4, v3           ; g")
        A("v_and_b32 v6, 15, v3")
        A("v_lshlrev_b32 v12, 2, v3          ; lane*4")
        A("v_mov_b32 v13, 0")
        A("v_mov_b32 v14, 1")
        tile_ids(A, H, M, N, TILE, T)
        A(f"s_cmp_eq_u32 s{H}, 1")
        A(f"s_cselect_b32 s{NIT}, {SPL // 2}, {N0 // 2}")
    def own_flags(A):
        off_h(A, T, 1); off_k(A, T + 1)
        A("s_waitcnt vmcnt(0)")
        A("s_mov_b64 exec, 1")
        put(A, T, 14, 13); put(A, T + 1, 14, 13)
        if opt("edbg"):
            A("s_memrealtime s[94:95]")
            A("s_waitcnt lgkmcnt(0)")
            lin(A, T, [(2, 9), (S_W, 6)], WS_STAMP + MB)
            for i in range(8):
                A(f"v_mov_b32 v15, s{80+2*i}")
                A(f"buffer_store_dword v15, v13, {WS}, s{T} offen offset:{4*i}")
                A("s_nop 1")
        A("s_mov_b64 exec, -1")
    def poll64(A, soff, lab, vaddr, vdst):
        A.label(lab)
        A(f"buffer_load_dword v{vdst}, v{vaddr}, {WS}, s{soff} offen sc1")
        A("s_waitcnt vmcnt(0)")
        A(f"v_cmp_ne_u32 vcc, 1, v{vdst}")
        A("s_nop 4")
        A(f"s_cbranch_vccz {lab}_ok")
        A("s_sleep 1")
        A(f"s_branch {lab}")
        A.label(lab + "_ok")
    def hf_query(A, d, ph, wn):
        A(f"s_lshr_b32 s{d}, s{M}, 1")
        A(f"s_lshl_b32 s{d}, s{d}, 11")
        A(f"s_and_b32 s{d+1}, s{M}, 1")
        A(f"s_lshl_b32 s{d+1}, s{d+1}, 8")
        A(f"s_add_u32 s{d}, s{d}, s{d+1}")
        A(f"s_add_u32 s{d}, s{d}, {F_H + ph * 1024 + wn * 512}")
    A.label("L_p2_cons")
    common(A)
    A("s_barrier                 ; B4")
    make_srd(A, SRD_OUT, P + 12, P + 13, 4 * MB)
    A("v_mov_b32 v158, v12")
    S_CM, S_CN, CI = 26, 27, 28
    A(f"s_and_b32 s{S_CM}, s{S_WM}, 1")
    A(f"s_lshr_b32 s{S_CN}, s{S_WM}, 1")
    A(f"s_lshl_b32 s{T}, s{S_CM}, 12")
    A(f"v_add_u32 v{VT}, s{T}, v4")
    A("v_and_b32 v7, 1, v5")
    A("v_lshrrev_b32 v8, 2, v6")
    A("v_lshl_add_u32 v7, v7, 2, v8")
    A("v_mul_u32_u24 v7, 1056, v7")
    A("v_lshrrev_b32 v8, 1, v5")
    A("v_lshl_add_u32 v7, v8, 8, v7")
    A("v_and_b32 v8, 3, v6")
    A("v_lshl_add_u32 v7, v8, 3, v7")
    lin(A, T, [(S_CN, 7)], 8192)
    A(f"v_add_u32 v{VW}, s{T}, v7")
    lin(A, T, [(M, 7), (S_CM, 6)], 0)
    A(f"v_add_u32 v7, s{T}, v6")
    A("v_lshlrev_b32 v7, 11, v7")
    lin(A, T, [(N, 8), (S_CN, 7)], 0)
    A(f"v_add_u32 v7, s{T}, v7")
    for tb in range(1, 4): A(f"s_mov_b32 s{60+tb}, {tb * 32768}")
    sof = lambda tb: "0" if tb == 0 else f"s{60+tb}"
    for r in range(64): A(f"v_mov_b32 v{AC+r}, 0")
    A(f"s_mov_b32 s{S_SLOT}, 0")
    own_flags(A)
    lin(A, T2, [(S_J, 8)], F_K)
    A("v_lshlrev_b32 v156, 4, v5          ; g*16")
    A(f"s_mul_i32 s{T}, s{S_J}, {8 * KVP_SZ}")
    A(f"s_add_u32 s{T}, s{T}, {WS_KVP}")
    A(f"s_lshl_b32 s{KO1}, s{S_WM}, 11")
    A(f"s_add_u32 s{KO1}, s{KO1}, s{T}")
    A(f"s_lshl_b32 s{KO2}, s{S_WM}, 6")
    A(f"s_add_u32 s{KO2}, s{KO2}, s{T}")
    A(f"s_add_u32 s{KO2}, s{KO2}, 8192")
    if opt("prio"): A("s_setprio 1")
    A("s_barrier")
    A.lgkm = []
    def reads(st):
        out = []
        for k in range(4):
            out.append(lambda A, k=k: A.ds(f"ds_read_b128 v[{TS[st]+4*k}:{TS[st]+4*k+3}], v{VT} offset:{k*1024}", f"S{st}"))
            for tt in range(2):
                out.append(lambda A, k=k, tt=tt: A.ds(f"ds_read_b64_tr_b16 v[{WSR[st]+4*k+2*tt}:{WSR[st]+4*k+2*tt+1}], v{VW} offset:{tt*512 + k*32}", f"S{st}"))
        return out
    def adv0(A):
        A(f"s_add_u32 s{S_SLOT}, s{S_SLOT}, 1")
        A(f"s_cmp_eq_u32 s{S_SLOT}, {NSLOT}")
        A(f"s_cselect_b32 s{S_SLOT}, 0, s{S_SLOT}")
        A(f"s_mov_b32 s{S_DELTA}, {SLOT}")
        A(f"s_cselect_b32 s{S_DELTA}, {(-(NSLOT-1) * SLOT) & 0xffffffff}, s{S_DELTA}")
    def adv1(A):
        A(f"v_add_u32 v{VT}, s{S_DELTA}, v{VT}")
        A(f"v_add_u32 v{VW}, s{S_DELTA}, v{VW}")
    for f in reads(0): f(A)
    adv0(A); adv1(A)
    stamp(A, 1)
    if opt("stamp"): A("s_waitcnt lgkmcnt(0)")
    entry = list(A.lgkm)
    def citer(extra):
        per = [[] for _ in range(32)]
        for k, f in enumerate(extra): per[(k * 32) // len(extra)].append(f)
        for e in range(2):
            A.wait_lgkm(f"S{e}")
            fill = reads(1 - e) + [adv0, adv1]
            m = 0
            for cb in range(4):
                for tb in (range(4) if cb % 2 == 0 else range(3, -1, -1)):
                    MF(A, ac(cb, tb), WSR[e] + 4 * cb, TS[e] + 4 * tb, ac(cb, tb))
                    if m < len(fill): fill[m](A)
                    for f in per[16 * e + m]: f(A)
                    m += 1
        assert A.lgkm == entry[len(entry)-len(A.lgkm):]
    def check(A, lab, vd, soff, vaddr):
        A.label(lab)
        A("s_waitcnt vmcnt(0)")
        A(f"v_cmp_ne_u32 vcc, 1, v{vd}")
        A("s_nop 4")
        A(f"s_cbranch_vccz {lab}_ok")
        A("s_sleep 1")
        A(f"buffer_load_dword v{vd}, v{vaddr}, {WS}, s{soff} offen sc1")
        A(f"s_branch {lab}")
        A.label(lab + "_ok")
    lds_ = []
    for p in range(8):
        def l1(A, p=p): A(f"buffer_load_dwordx4 v[{KG+4*p}:{KG+3+4*p}], v4, {WS}, s{KO1} offen sc1")
        def l2(A, p=p):
            A(f"buffer_load_dwordx4 v[{KG+32+4*p}:{KG+35+4*p}], v4, {WS}, s{KO1} offen offset:1024 sc1")
            A(f"s_add_u32 s{KO1}, s{KO1}, {KVP_SZ}")
        def l3(A, p=p):
            A(f"buffer_load_dwordx4 v[{KG+64+4*p}:{KG+67+4*p}], v156, {WS}, s{KO2} offen sc1")
            A(f"s_add_u32 s{KO2}, s{KO2}, {KVP_SZ}")
        lds_ += [l1, l2, l3]
    adds = []
    for s_ in (16, 8, 4):
        for base in (KG, KG + 32, KG + 64):
            for r in range(s_): adds.append(lambda A, base=base, r=r, s_=s_: A(f"v_add_f32 v{base+r}, v{base+r}, v{base+s_+r}"))
    for k, base in enumerate((KG, KG + 32, KG + 64)):
        adds.append(lambda A, k=k, base=base: cvt(A, KG + 4 + 2 * k, base))
        adds.append(lambda A, k=k, base=base: cvt(A, KG + 5 + 2 * k, base + 2))
    for ci in range(OS):
        ex = []
        if ci in (KI[0] + 1, KI[0] + 2): ex = lds_[12 * (ci - KI[0] - 1):12 * (ci - KI[0])]
        if ci == OS - 2: A("s_waitcnt vmcnt(0)"); ex = adds[:48]
        if ci == OS - 1: ex = adds[48:]
        citer(ex)
        if ci == 0: A(f"buffer_load_dword v159, v158, {WS}, s{T2} offen sc1")
        if ci == KI[0]: check(A, "L_p2_ck", 159, T2, 158)
        if ci == OS - 1:
            lin(A, T, [(S_WM, 10)], RING)
            A(f"v_lshl_add_u32 v159, v158, 1, s{T}")
            A(f"ds_write_b64 v159, v[{KG+4}:{KG+5}]")
            A(f"ds_write_b64 v159, v[{KG+6}:{KG+7}] offset:512")
            lin(A, T, [(S_WM, 9)], RING + 4096)
            A(f"v_lshl_add_u32 v157, v158, 1, s{T}")
            A(f"ds_write_b64 v157, v[{KG+8}:{KG+9}]")
            A("s_waitcnt lgkmcnt(0)")
        A("s_barrier")
    A(f"s_mov_b32 s{CI}, {OS}")
    cev = []
    def pissue(calc, vaddr=158):
        def f(A):
            calc(A)
            A(f"buffer_load_dword v159, v{vaddr}, {WS}, s{T2} offen sc1")
        return f
    def pcheck(vaddr=158):
        def f(A): check(A, A.newlabel("L_p2_cc"), 159, T2, vaddr)
        return f
    def q_h(wn): return lambda A: hf_query(A, T2, 1, wn)
    def q_o(A): lin(A, T2, [(M, 8)], F_O)
    def q_p(A):
        lin(A, T2, [(TILE, 7)], F_P)
        A("v_and_b32 v157, 12, v158")
    ss_of = lambda pos: (pos - 8) // 2
    def both(f, g): return lambda A: (f(A), g(A))
    PD = int(opt("pd", 2))
    cev.append((OS, pissue(q_h(1))))
    if NB0:
        cev.append((OS + 2, both(pcheck(), pissue(q_h(0)))))
        cev.append((OS + 4, pcheck()))
    else: cev.append((OS + 2, pcheck()))
    assert OS + 4 < ss_of(32)
    cev.append((ss_of(OST) - 1 - PD, pissue(q_o)))
    cev.append((ss_of(OST) - 1, pcheck()))
    cev.append((ss_of(N0) - 1 - PD, pissue(q_p, 157)))
    cev.append((ss_of(N0) - 1, pcheck(157)))
    cev.append((1000 + OS, pissue(q_h(0))))
    if K1O:
        cev.append((1000 + OS + 2, both(pcheck(), pissue(q_h(1)))))
        cev.append((1000 + OS + 4, pcheck()))
    else: cev.append((1000 + OS + 2, pcheck()))
    HB = 29
    A(f"s_mul_i32 s{HB}, s{H}, 1000")
    A(f"s_cmp_eq_u32 s{S_W}, 4")
    A(f"s_cselect_b32 s{EVT}, {OS}, -1")
    A.label("L_p2_cloop")
    citer([])
    A(f"s_cmp_eq_u32 s{CI}, s{EVT}")
    A("s_cbranch_scc1 L_p2_cevt")
    A.label("L_p2_cevt_ret")
    A(f"s_add_u32 s{CI}, s{CI}, 1")
    A(f"s_cmp_lg_u32 s{CI}, s{NIT}")
    A("s_barrier")
    A("s_cbranch_scc1 L_p2_cloop")
    A("s_waitcnt vmcnt(0) lgkmcnt(0)")
    stamp(A, 2)
    A(f"s_cmp_eq_u32 s{H}, 1")
    A("s_cbranch_scc0 L_p2_fin")
    lin(A, T, [(TILE, 16), (S_WM, 14)], WS_PART)
    A("v_lshrrev_b32 v8, 2, v6")
    A("v_mul_u32_u24 v8, 1056, v8")
    A("v_and_b32 v9, 3, v6")
    A("v_lshl_add_u32 v8, v9, 8, v8")
    A("v_lshl_add_u32 v8, v5, 3, v8")
    for h in range(2):
        A(f"s_lshl_b32 s{T+1}, s{S_CM}, 1")
        A(f"s_add_u32 s{T+1}, s{T+1}, {(SPL + h) % NSLOT}")
        A(f"s_cmp_ge_u32 s{T+1}, {NSLOT}")
        A(f"s_cselect_b32 s{T+2}, {NSLOT}, 0")
        A(f"s_sub_u32 s{T+1}, s{T+1}, s{T+2}")
        A(f"s_mul_i32 s{T+1}, s{T+1}, {SLOT}")
        A(f"s_lshl_b32 s{T+2}, s{S_CN}, 7")
        A(f"s_add_u32 s{T+1}, s{T+1}, s{T+2}")
        A(f"v_add_u32 v{1+h}, s{T+1}, v8")
    A("s_barrier            ; x landed")
    for blk in range(16):
        cb, tb = blk // 4, blk % 4
        A.ds(f"ds_read_b64 v[{XR+2*blk}:{XR+2*blk+1}], v{1 + (tb >> 1)} offset:{8192 + (tb & 1) * 4 * 1056 + cb * 32}", f"X{blk}")
    for blk in range(16):
        d = XR + blk * 2; a = AC + blk * 4
        A.wait_lgkm(f"X{blk}")
        A(f"v_lshlrev_b32 v8, 16, v{d}")
        A(f"v_and_b32 v9, s{S_HI}, v{d}")
        A(f"v_lshlrev_b32 v10, 16, v{d+1}")
        A(f"v_and_b32 v11, s{S_HI}, v{d+1}")
        for r in range(4): A(f"v_add_f32 v{a+r}, v{a+r}, v{8+r}")
        if blk and blk % 4 == 0: A(f"s_add_u32 s{T}, s{T}, 4096")
        A(f"buffer_store_dwordx4 v[{a}:{a+3}], v4, {WS}, s{T} offen offset:{(blk%4)*1024} sc1")
    off_p(A, T, TILE)
    A("v_mov_b32 v13, 0")
    A("v_mov_b32 v14, 1")
    A("s_waitcnt vmcnt(0)")
    A("s_mov_b64 exec, 1")
    put(A, T, 14, 13)
    A("s_branch L_p2_end")
    A.label("L_p2_fin")
    A(f"s_add_u32 s{T}, s{S_WM}, {N0 % NSLOT}")
    A(f"s_cmp_ge_u32 s{T}, {NSLOT}")
    A(f"s_cselect_b32 s{T+1}, {NSLOT}, 0")
    A(f"s_sub_u32 s{T}, s{T}, s{T+1}")
    A(f"s_mul_i32 s{T}, s{T}, {SLOT}")
    A(f"v_add_u32 v1, s{T}, v4")
    A("v_and_b32 v8, 1, v5")
    A("v_lshlrev_b32 v8, 5, v8")
    A("v_lshrrev_b32 v9, 1, v5")
    A("v_lshl_add_u32 v8, v9, 4, v8")
    A("v_add_u32 v7, v7, v8")
    A("s_barrier")
    for blk in range(16):
        A.ds(f"ds_read_b128 v[{XR+4*blk}:{XR+4*blk+3}], v1 offset:{blk * 1024 if blk < 8 else 8192 + (blk - 8) * 1056}", f"P{blk}")
    for q in range(2):
        for tb in range(4):
            d = 8 + (q * 4 + tb) * 4
            A.wait_lgkm([f"P{(2*q)*4+tb}", f"P{(2*q+1)*4+tb}"])
            for e in range(2):
                cb = 2 * q + e; a = ac(cb, tb); p = XR + (cb * 4 + tb) * 4
                for r in range(4): A(f"v_add_f32 v{a+r}, v{a+r}, v{p+r}")
                cvt(A, d + 2 * e, a); cvt(A, d + 2 * e + 1, a + 2)
            A("s_nop 1")
            A(f"v_permlane16_swap_b32 v{d}, v{d+2}")
            A(f"v_permlane16_swap_b32 v{d+1}, v{d+3}")
            A(f"buffer_store_dwordx4 v[{d}:{d+3}], v7, {srd(SRD_OUT)}, {sof(tb)} offen offset:{q*64} {opt('osc', 'sc1')}")
    A("s_branch L_p2_end")
    A.label("L_p2_cevt")
    A(f"s_add_u32 s{T}, s{CI}, s{HB}")
    for k, (pos, f) in enumerate(cev[1:], 1):
        A(f"s_cmp_eq_u32 s{T}, {pos}")
        A(f"s_cbranch_scc1 L_p2_cev{k}")
    for k, (pos, f) in enumerate(cev):
        A.label(f"L_p2_cev{k}")
        f(A)
        nx = cev[k + 1][0] % 1000 if k + 1 < len(cev) and (cev[k + 1][0] >= 1000) == (pos >= 1000) else -1
        A(f"s_mov_b32 s{EVT}, {nx}")
        A("s_branch L_p2_cevt_ret")
    A.label("L_p2_prod")
    for r in range(16): A(f"v_mov_b32 v{120+r}, v{96+r}")
    for r in range(8): A(f"v_mov_b32 v{56+r}, v{WPK+r}")
    common(A)
    A("s_barrier                 ; B4")
    make_srd(A, SRD_B, 100, 101, 3584 * 2048)
    A("v_lshlrev_b32 v22, 3, v3")
    A(f"v_add_u32 v22, {RING}, v22")
    lin(A, T, [(M, 13), (S_WM, 11)], 0)
    A(f"v_add_u32 v8, s{T}, v4")
    A(f"s_lshl_b32 s{T+1}, s{S_WM}, 1")
    A(f"v_lshlrev_b32 v9, 3, v5")
    A(f"v_add_u32 v9, s{T+1}, v9")
    A("v_lshlrev_b32 v9, 11, v9")
    A("v_lshl_add_u32 v9, v6, 4, v9")
    A(f"s_lshl_b32 s{T}, s{N}, 8")
    A(f"v_add_u32 v9, s{T}, v9              ; regular")
    A("v_lshrrev_b32 v10, 1, v5")
    A(f"v_mul_u32_u24 v10, {96*2048}, v10")
    A("v_add_u32 v10, v10, v9               ; odd")
    A("v_mov_b32 v11, v9")
    A(f"s_lshl_b32 s{LA}, s{S_WM}, 11")
    A(f"s_mul_i32 s{LB}, s{S_WM}, {2*1056}")
    A(f"s_add_u32 s{LB}, s{LB}, 8192")
    lin(A, S_OO, [(S_J, 17), (S_MT, 14), (S_WM, 12)], WS_ACT + 112 * 131072)
    A(f"s_cmp_eq_u32 s{H}, 1")
    A(f"s_cselect_b32 s{AOFF}, 0, {2 * 131072}")
    A(f"s_cselect_b32 s{BOFF}, 0, {64 * 2048}")
    A(f"s_cselect_b32 s{POS}, 1000, 0")
    A(f"s_add_u32 s{AOFF}, s{AOFF}, {WS_ACT}")
    A(f"s_add_u32 s{EVT}, s{POS}, 32")
    A(f"s_mov_b32 s{AINC}, {3 * 131072}")
    A(f"s_mov_b32 s{BINC}, {112 * 2048}")
    A(f"s_mov_b32 s{B2}, 2048")
    o_soft(A, 0)
    own_flags(A)
    def issue_a(A):
        A(f"s_add_u32 m0, s{LDS}, s{LA}")
        A(f"s_add_u32 s{T2}, s{BOFF}, s{B2}")
        A(f"buffer_load_dwordx4 v8, {WS}, s{AOFF} offen sc1 lds")
        A(f"buffer_load_dwordx4 v8, {WS}, s{AOFF} offen offset:1024 sc1 lds")
        if not opt("hitA"): A(f"s_add_u32 s{AOFF}, s{AOFF}, s{AINC}")
    def issue_b(A, own_t2=False):
        A(f"s_add_u32 m0, s{LDS}, s{LB}")
        if own_t2: A(f"s_add_u32 s{T2}, s{BOFF}, s{B2}")
        else: A("s_nop 0")
        A(f"buffer_load_dwordx4 v11, {srd(SRD_B)}, s{BOFF} offen {opt('bsc', 'sc1')} lds")
        A(f"s_add_u32 m0, m0, 1056")
        if not opt("hitB"): A(f"s_add_u32 s{BOFF}, s{BOFF}, s{BINC}")
        else: A("s_nop 0")
        A(f"buffer_load_dwordx4 v11, {srd(SRD_B)}, s{T2} offen {opt('bsc', 'sc1')} lds")
    def nxt(A):
        A(f"s_add_u32 s{LDS}, s{LDS}, {SLOT}")
        A(f"s_cmp_eq_u32 s{LDS}, {RING}")
        A(f"s_cselect_b32 s{LDS}, 0, s{LDS}")
    def issue_kb(A):
        issue_a(A); issue_b(A)
        A(f"s_add_u32 s{POS}, s{POS}, 1")
        nxt(A)
    A(f"s_mov_b32 s{LDS}, 0")
    for k in range(7): issue_b(A, True); nxt(A)
    hf_query(A, T, 0, 0)
    A(f"s_cmp_eq_u32 s{H}, 1")
    A(f"s_cselect_b32 s{T+1}, 0, 512")
    A(f"s_add_u32 s{T}, s{T}, s{T+1}")
    A(f"buffer_load_dword v15, v12, {WS}, s{T} offen sc1")
    o_soft(A, 1)
    check(A, "L_p2_poll0", 15, T, 12)
    A(f"s_mov_b32 s{LDS}, 0")
    for k in range(7): issue_a(A); nxt(A)
    A(f"s_add_u32 s{POS}, s{POS}, 7")
    o_soft(A, 2)
    A("s_waitcnt vmcnt(8)")
    A("s_barrier")
    stamp(A, 1)
    def mid(A):
        lab = A.newlabel("L_p2_ne")
        A(f"s_cmp_eq_u32 s{POS}, s{EVT}")
        A(f"s_cbranch_scc0 {lab}")
        A(f"s_call_b64 s[{RET}:{RET+1}], L_p2_evt")
        A.label(lab)
    NO = 2
    NPEEL = OS + NO + 1
    assert ss_of(OST) - 1 >= OS + NO, (OST, NPEEL)
    for ss in range(NPEEL):
        if ss == OS + NO:
            off_o(A, T2)
            A("s_waitcnt vmcnt(0)")
            A("s_mov_b64 exec, 1")
            put(A, T2, 14, 13)
            A("s_mov_b64 exec, -1")
        issue_kb(A); mid(A); issue_kb(A)
        if ss == OS:
            for db in range(2):
                for hf in range(2):
                    for e in range(2):
                        d = 32 + (db * 2 + hf) * 4 + 2 * e
                        A(f"ds_read_b64 v[{d}:{d+1}], v22 offset:{((2 * hf + e) * 2 + db)*512}")
            for hf in range(2):
                for e in range(2):
                    A(f"ds_read_b64 v[{48+hf*4+2*e}:{49+hf*4+2*e}], v22 offset:{4096 + (2*hf+e)*512}")
        if ss in (1, 4):
            B = Asm(); o_soft(B, 3); h = len(B.lines) // 2
            for l in (B.lines[:h] if ss == 1 else B.lines[h:]): A.raw(l)
        if OS <= ss < OS + NO:
            if ss == OS: A("s_waitcnt lgkmcnt(0)")
            o_fin(A, 2 * (ss - OS), S_OO); o_fin(A, 2 * (ss - OS) + 1, S_OO)
        if ss == 0: A("s_waitcnt vmcnt(12)")
        else: A("s_waitcnt vmcnt(16)")
        A("s_barrier")
        if opt("p2dbg"):
            k = {int(x): 80 + 2 * i for i, x in enumerate(opt('p2dbg').split(','))}.get(ss)
            if k: A(f"s_memrealtime s[{k}:{k+1}]")
    A(f"s_sub_u32 s{NIT}, s{NIT}, {NPEEL}")
    A.label("L_p2_ploop")
    issue_kb(A); mid(A); issue_kb(A)
    A(f"s_sub_u32 s{NIT}, s{NIT}, 1")
    A(f"s_cmp_lg_u32 s{NIT}, 0")
    A("s_waitcnt vmcnt(16)")
    A("s_barrier")
    A("s_cbranch_scc1 L_p2_ploop")
    stamp(A, 2)
    A("s_waitcnt vmcnt(0)")
    A("s_barrier")
    A("s_branch L_p2_end")
    ev = []
    def seg(aoff, ainc, boff, binc, vsel=None, wo=False):
        def f(A):
            A(f"s_mov_b32 s{AOFF}, {aoff}")
            A(f"s_mov_b32 s{AINC}, {ainc}")
            A(f"s_mov_b32 s{BOFF}, {boff}")
            A(f"s_mov_b32 s{BINC}, {binc}")
            if vsel is not None: A(f"v_mov_b32 v11, v{vsel}")
            if wo:
                A(f"s_mov_b32 s{SRD_B}, s{P+6}")
                A(f"s_and_b32 s{SRD_B+1}, s{P+7}, 0xffff")
                A(f"s_mov_b32 s{SRD_B+2}, {1024*2048}")
        return f
    def only0(body):
        def f(A):
            lab = A.newlabel("L_p2_w0")
            A(f"s_cmp_lg_u32 s{S_W}, 0")
            A(f"s_cbranch_scc1 {lab}")
            body(A, lab)
            A.label(lab)
        return f
    def pollh1(both):
        def b(A, lab):
            hf_query(A, T, 1, 0)
            poll64(A, T, lab + "_a", 12, 15)
            if both:
                A(f"s_add_u32 s{T}, s{T}, 512")
                poll64(A, T, lab + "_b", 12, 15)
        return only0(b)
    def pollo(A, lab):
        lin(A, T, [(M, 8)], F_O)
        poll64(A, T, lab + "_a", 12, 15)
    def pollp(A, lab):
        lin(A, T, [(TILE, 7)], F_P)
        A("v_and_b32 v16, 12, v12")
        poll64(A, T, lab + "_a", 16, 15)
    def part(A):
        for k in range(3): A(f"s_mov_b32 s{SRD_B+k}, s{SRD_WS+k}")
        lin(A, AOFF, [(TILE, 16)], WS_PART)
        A(f"s_add_u32 s{BOFF}, s{AOFF}, 8192")
        A(f"s_mov_b32 s{AINC}, 16384")
        A(f"s_mov_b32 s{BINC}, 16384")
        A(f"s_mov_b32 s{B2}, 1024")
        A(f"v_add_u32 v8, s{LA}, v4")
        A("v_mov_b32 v11, v8")
    oob = seg(0x40000000, 0, 0x40000000, 0)
    if NB0: ev.append((32, seg(WS_ACT + (3 * NB1 + 1) * 131072, 3 * 131072, (112 * NB1 + 32) * 2048, 112 * 2048)))
    ev.append((32 + NB0, seg(WS_ACT + (96 + K1O) * 131072, 131072, (96 + 224 * K1O) * 2048, 224 * 2048, vsel=10)))
    ev.append((OST, seg(WS_ACT + 112 * 131072, 131072, 0, 32 * 2048, vsel=9, wo=True)))
    ev.append((N0, part))
    ev.append((N0 + 4, oob))
    ev.append((1032, seg(WS_ACT + 131072, 3 * 131072, 32 * 2048, 112 * 2048)))
    if K1O: ev.append((1064, seg(WS_ACT + 96 * 131072, 131072, 96 * 2048, 224 * 2048, vsel=10)))
    def xseg(A):
        A(f"s_mov_b32 s{AOFF}, 0x40000000")
        A(f"s_mov_b32 s{AINC}, 0")
        A(f"s_mov_b32 s{SRD_B}, s{P}")
        A(f"s_and_b32 s{SRD_B+1}, s{P+1}, 0xffff")
        A(f"s_mov_b32 s{SRD_B+2}, {4*MB}")
        lin(A, BOFF, [(M, 18), (N, 8), (S_WM, 14)], 0)
        A(f"s_mov_b32 s{BINC}, {32*2048}")
        A(f"s_mov_b32 s{B2}, {4*2048}")
        A("v_lshlrev_b32 v11, 11, v5")
        A("v_lshl_add_u32 v11, v6, 4, v11")
    ev.append((1000 + SPL, xseg))
    ev.append((1004 + SPL, oob))
    A.label("L_p2_evt")
    for k, (pos, f) in enumerate(ev[1:], 1):
        A(f"s_cmp_eq_u32 s{POS}, {pos}")
        A(f"s_cbranch_scc1 L_p2_ev{k}")
    for k, (pos, f) in enumerate(ev):
        A.label(f"L_p2_ev{k}")
        f(A)
        nx = ev[k + 1][0] if k + 1 < len(ev) and (ev[k + 1][0] >= 1000) == (pos >= 1000) else -1
        A(f"s_mov_b32 s{EVT}, {nx}")
        A(f"s_setpc_b64 s[{RET}:{RET+1}]")
    A.label("L_p2_end")
    if opt("odbg"):
        A("s_waitcnt vmcnt(0)")
        A("s_memrealtime s[94:95]")
        A("s_load_dwordx2 s[96:97], s[0:1], 72")
        A("s_waitcnt lgkmcnt(0)")
        A("s_cmp_gt_u32 s2, 1")
        A("s_cbranch_scc1 L_done")
        A(f"s_cmp_lg_u32 s{S_W}, 4")
        A("s_cbranch_scc1 L_done")
        make_srd(A, SRD_D, 96, 97, 256)
        A("s_mov_b64 exec, 1")
        A("v_mov_b32 v1, 0")
        A(f"s_lshl_b32 s{T}, s2, 5")
        for i in range(1, 8):
            A(f"s_sub_u32 s{T+1}, s{80+2*i}, s80")
            A(f"v_mov_b32 v2, s{T+1}")
            A(f"buffer_store_dword v2, v1, {srd(SRD_D)}, s{T} offen offset:{4*i}")
            A("s_nop 1")
        A("s_branch L_done")
    if opt("p2dbg"):
        A("s_memrealtime s[94:95]")
        A("s_mov_b64 exec, 1")
        A("s_waitcnt lgkmcnt(0)")
        lin(A, T, [(2, 9), (S_W, 6)], WS_STAMP + MB)
        A("v_mov_b32 v1, 0")
        for i in range(8):
            A(f"v_mov_b32 v2, s{80+2*i}")
            A(f"buffer_store_dword v2, v1, {WS}, s{T} offen offset:{4*i}")
            A("s_nop 1")
    if opt("stamp"):
        A("s_waitcnt vmcnt(0)")
        stamp(A, 3)
        stamp_store(A, WS_STAMP + MB)

def build():
    A = Asm()
    for l in open("cdna_kernels/" + NAME + ".s.ref").read().split("\n"):
        if l.startswith(";") and "@launch" not in l and "Override" not in l and "grid=ceil" not in l: A.raw(l)
    A.raw(f"; @launch kernel=fused_kernel grid=(256,1,1) block=(512,1,1) lds={max(P1_LDS, P2_LDS)}")
    A.raw('.amdgcn_target "amdgcn-amd-amdhsa--gfx950"')
    A.raw(".text")
    kernel_header(A, "fused_kernel")
    p1_prologue(A)
    phase2(A)
    A.label("L_done")
    A("s_endpgm")
    A.raw('.section .rodata,"a"')
    kernel_desc(A, "fused_kernel", 256)
    return A.text()

if __name__ == "__main__":
    for o in sys.argv[2:]:
        if "=" in o: k, v = o.split("=", 1); OPT[k] = v
        else: OPT[o] = True
    open(sys.argv[1], "w").write(build())
```

```python
import sys
from asmlib import *

NAME = "parallel_sum__linear_kernel_hedgehog__glu_gated_glu__prompt"
MB = 1 << 20
WS_BYTES = 268435456
WS_ACT = 8 * MB
WS_KVP = 28 * MB
KVP_SZ = 8448
WS_PART = 32 * MB
WS_FLAG = 48 * MB
WS_STATS = 49 * MB
WS_STAMP = 52 * MB
F_H = WS_FLAG
F_K = WS_FLAG + 16384
F_O = WS_FLAG + 24576
F_P = WS_FLAG + 28672
F_C = WS_FLAG + 45056
WS_CSP = 50 * MB
LOG2E, NLOG2E = 0x3fb8aa3b, 0xbfb8aa3b
OPT = {}
def opt(k, d=None): return OPT.get(k, d)

A_PAGE = 1040; A_BUF = 32 * A_PAGE; LDS_B = 2 * A_BUF; B_STAGE = 20480
X_LDS = LDS_B + 4 * B_STAGE
CSL = X_LDS; STL = X_LDS + 1536; WPL = STL + 4096; CSPL = WPL + 2048; P1_LDS = CSPL + 7680
HOFF = 100 * 1024
SLOT = 16640; NSLOT = 9; RING = SLOT * NSLOT; P2_LDS = RING + 6144
V_A, V_B0, V_B1, V_B2, V_AR, V_BG, V_BQ0, V_BQ1, L16, V_CT = 1, 2, 3, 4, 5, 6, 7, 8, 9, 10
T0, T1A, T1B, WR = 12, 28, 44, 60
V_ST, V_POLL, V_PA, V_CS = 80, 88, 89, 90
V_BG2, V_BQ02, V_BQ12 = 93, 94, 95
ACC = 96
def acc(b, tb): return ACC + (b * 4 + tb) * 4
S_W, S_WM, S_WN, S_J, S_MT = 3, 4, 5, 6, 7
SRD_A, SRD_B0, SRD_B1, SRD_B2 = 8, 12, 16, 20
S_APAGE, S_AK, S_AKE = 24, 25, 26
S_BOFF, S_BINC, S_BLDS = (27, 28, 29), (30, 31, 32), (33, 34, 35)
P = 36
T = 50
SRD_D = 56
S_ITER = 60
S_MYIT = 61
S_RET = 74
SRD_WS, SRD_WP = 64, 68
S_C = 72; S_ONES = 78; S_HI = 79
S_ST = 80
SRD_PF = 96
WS = f"s[{SRD_WS}:{SRD_WS+3}]"
def srd(n): return f"s[{n}:{n+3}]"

def stamp(A, i):
    if opt("odbg"):
        k = i + (4 if getattr(A, "p2", False) else 0)
        A(f"s_memrealtime s[{80+2*k}:{81+2*k}]")
        return
    if opt("pdbg") and i > 0 and not getattr(A, "p2", False): return
    if opt("stamp"):
        A(f"s_memtime s[{S_ST+4*i}:{S_ST+4*i+1}]")
        A(f"s_memrealtime s[{S_ST+4*i+2}:{S_ST+4*i+3}]")
def stamp_store(A, base):
    if not opt("stamp"): return
    A("s_mov_b64 exec, 1")
    A("s_waitcnt lgkmcnt(0)")
    A(f"s_lshl_b32 s{T}, s2, 3")
    A(f"s_add_u32 s{T}, s{T}, s{S_W}")
    A(f"s_lshl_b32 s{T}, s{T}, 6")
    A(f"s_add_u32 s{T}, s{T}, {base}")
    A("v_mov_b32 v1, 0")
    for i in range(4):
        A(f"v_mov_b32 v2, s{S_ST+4*i}")
        A(f"v_mov_b32 v3, s{S_ST+4*i+2}")
        A(f"buffer_store_dwordx2 v[2:3], v1, {WS}, s{T} offen offset:{8*i}")
        A("s_nop 1")
    A(f"s_getreg_b32 s{T+1}, hwreg(HW_REG_XCC_ID)")
    A(f"v_mov_b32 v2, s{T+1}")
    A(f"buffer_store_dword v2, v1, {WS}, s{T} offen offset:32")
    A("s_mov_b64 exec, -1")

def xreduce_g(A, vs, tmps, op):
    ops = op if isinstance(op, list) else [op] * len(vs)
    for sw in ("v_permlane16_swap_b32", "v_permlane32_swap_b32"):
        for v, t in zip(vs, tmps): A(f"v_mov_b32 v{t}, v{v}")
        A("s_nop 1")
        for v, t in zip(vs, tmps): A(f"{sw} v{v}, v{t}")
        if len(vs) == 1: A("s_nop 0")
        for v, t, o in zip(vs, tmps, ops): A(f"v_{o}_f32 v{v}, v{v}, v{t}")
def wave_allreduce(A, v, tmp):
    for dpp in ("quad_perm:[1,0,3,2]", "quad_perm:[2,3,0,1]", "row_half_mirror", "row_mirror"):
        A("s_nop 1")
        A(f"v_add_f32_dpp v{v}, v{v}, v{v} {dpp} row_mask:0xf bank_mask:0xf")
    xreduce_g(A, [v], [tmp], "add")
def MF(A, d, a, b, c=None):
    cs = "0" if c is None else f"v[{c}:{c+3}]"
    A(f"v_mfma_f32_16x16x32_bf16 v[{d}:{d+3}], v[{a}:{a+3}], v[{b}:{b+3}], {cs}")
def cvt(A, d, a): A(f"v_cvt_pk_bf16_f32 v{d}, v{a}, v{a+1}")

def softmax(A, pk, Pp, Pm, t):
    mx, mn, x0, x1, ep, em, sp, sm = t, t + 1, t + 2, t + 3, t + 4, t + 12, t + 20, t + 21
    A(f"v_max3_f32 v{mx}, v{pk}, v{pk+1}, v{pk+2}")
    A(f"v_min3_f32 v{mn}, v{pk}, v{pk+1}, v{pk+2}")
    for r in (3, 5):
        A(f"v_max3_f32 v{mx}, v{mx}, v{pk+r}, v{pk+r+1}")
        A(f"v_min3_f32 v{mn}, v{mn}, v{pk+r}, v{pk+r+1}")
    A(f"v_max_f32 v{mx}, v{mx}, v{pk+7}")
    A(f"v_min_f32 v{mn}, v{mn}, v{pk+7}")
    xreduce_g(A, [mx, mn], [x0, x1], ["max", "min"])
    A(f"v_mul_f32 v{mx}, s{S_C}, v{mx}")
    A(f"v_mul_f32 v{mn}, s{S_C+1}, v{mn}")
    for r in range(8):
        A(f"v_fma_f32 v{ep+r}, v{pk+r}, s{S_C+1}, v{mx}")
        A(f"v_fma_f32 v{em+r}, v{pk+r}, s{S_C}, v{mn}")
    for r in range(8):
        A(f"v_exp_f32 v{ep+r}, v{ep+r}")
        A(f"v_exp_f32 v{em+r}, v{em+r}")
    A(f"v_add_f32 v{sp}, v{ep}, v{ep+1}")
    A(f"v_add_f32 v{sm}, v{em}, v{em+1}")
    for r in range(2, 8):
        A(f"v_add_f32 v{sp}, v{sp}, v{ep+r}")
        A(f"v_add_f32 v{sm}, v{sm}, v{em+r}")
    xreduce_g(A, [sp, sm], [x0, x1], "add")
    A(f"v_rcp_f32 v{sp}, v{sp}")
    A(f"v_rcp_f32 v{sm}, v{sm}")
    A("s_nop 0")
    for r in range(8):
        A(f"v_mul_f32 v{ep+r}, v{ep+r}, v{sp}")
        A(f"v_mul_f32 v{em+r}, v{em+r}, v{sm}")
    for r in range(4):
        cvt(A, Pp + r, ep + 2 * r); cvt(A, Pm + r, em + 2 * r)

def blocks_of(wn):
    if wn == 0: return [("q", 0), ("q", 1)] + [x for b in range(4) for x in (("g", b), ("u", b))]
    return [("k", 0), ("k", 1), ("v", 0), ("v", 1)] + [x for b in range(4, 7) for x in (("g", b), ("u", b))]
def wread(A, wn, blk, stage, dst, tag, t):
    kind, idx = blocks_of(wn)[blk]
    so = (stage & 1) * B_STAGE; hi = stage >> 1
    if kind in "qkv":
        off = so + (2 * "qkv".index(kind) + t) * 1024
        va = ((V_BQ0, V_BQ1), (V_BQ02, V_BQ12))[hi][idx]
    else:
        off = so + (6144 if kind == "g" else 13312) + t * 3584 + idx * 32
        va = (V_BG, V_BG2)[hi]
    A.ds(f"ds_read_b64_tr_b16 v[{dst+2*t}:{dst+2*t+1}], v{va} offset:{off}", tag)
def tread(A, abuf, ks, tb, dst, tag, t):
    A.ds(f"ds_read_b64 v[{dst+tb*4+2*t}:{dst+tb*4+2*t+1}], v{V_AR} offset:{abuf * A_BUF + tb * 256 + ks * 64 + t * 32}", tag)
def nB(w): return 0 if w == 7 else (2 if w == 6 else 3)
def nA(w): return 0 if w == 7 else (4 if w == 6 else 2)
BS = ((V_B0, SRD_B0), (V_B1, SRD_B1), (V_B2, SRD_B2))
def bdma(k, slot):
    def f0(A): A(f"s_add_u32 m0, s{S_BLDS[k]}, {LDS_B + slot * B_STAGE}")
    def f1(A):
        A(f"buffer_load_dwordx4 v{BS[k][0]}, {srd(BS[k][1])}, s{S_BOFF[k]} offen lds")
        A(f"s_add_u32 s{S_BOFF[k]}, s{S_BOFF[k]}, s{S_BINC[k]}")
    return f0, f1
def adma(h, e, abuf, kconst=None):
    def f0(A):
        if kconst is None: A(f"s_add_u32 s{T}, s{S_AKE}, {h * 128 * 2048 + e * 4096}")
        else: A(f"s_mov_b32 s{T}, {kconst + h * 128 * 2048 + e * 4096}")
        A(f"s_add_u32 m0, s{S_APAGE}, {abuf * A_BUF + (16 * h + e) * A_PAGE}")
    def f1(A): A(f"buffer_load_dwordx4 v{V_A}, {srd(SRD_A)}, s{T} offen lds")
    return f0, f1
def pfload(A, k):
    A(f"buffer_load_dword v{V_A}, v{BS[k][0]}, {srd(BS[k][1])}, s{S_BOFF[k]} offen")
    A(f"s_add_u32 s{S_BOFF[k]}, s{S_BOFF[k]}, s{S_BINC[k]}")
def cs_ops(b, half):
    out = []
    c = V_CS + (b // 4)
    for r in (2 * half, 2 * half + 1):
        w = WR + (b % 5) * 4 + r
        def f0(A, w=w):
            A(f"v_lshlrev_b32 v{V_CT}, 16, v{w}")
            A(f"v_and_b32 v{V_CT+1}, s{S_HI}, v{w}")
        def f1(A, c=c):
            A(f"v_add_f32 v{c}, v{c}, v{V_CT}")
            A(f"v_add_f32 v{c}, v{c}, v{V_CT+1}")
        out += [f0, f1]
    return out
def extras_of(w, u):
    if w == 7: return {0: [(2, "poll"), (4, "drain")], 1: [(4, "sig")], 2: [(2, "stat"), (4, "pfd"), (8, "rows")], 3: [(int(opt("pfc")), "pfc")] if opt("pfc") else []}[u]
    return {0: [(2, "poll"), (6, "drain")] + ([(1, "cpoll")] if w == 5 else []), 1: [(3, "wphi")] if w == 4 else [],
            2: [(2, "stat"), (8, "rows")] + ([(1, "cload")] if w == 5 else []), 3: []}[u]

def p1_body(A, w, cs=True):
    wn, wm = w >> 2, w & 3
    blocks = blocks_of(wn)
    G_ = [[] for _ in range(160)]
    def gap(u, i): return G_[(40 * u + i) % 160]
    for u in range(4):
        odd = u & 1
        for c in range(10):
            tgt = c + 4
            blk, st = (tgt, u) if tgt < 10 else (tgt - 10, (u + 1) & 3)
            sl = tgt % 5
            delayed = ((c - 1) % 10) % 4 == wm
            for t in range(2):
                pos = 4 * (c + 1) + 2 + t if delayed else 4 * c + t
                gap(u, pos).append(lambda A, blk=blk, st=st, sl=sl, t=t: wread(A, wn, blk, st, WR + sl * 4, f"W{sl}", t))
        if odd:
            nb = ((u + 1) >> 1) & 1
            Tn1 = T1B if u == 1 else T1A
            tr = [(nb, 0, tb, T0, "T0") for tb in range(4)] + [(nb, 1, tb, Tn1, "T1") for tb in range(4)]
            for k, x in enumerate(tr):
                for t in range(2):
                    gap(u, 4 * [0, 1, 2, 3, 4, 6, 7, 8][k] + 2 + t).append(lambda A, x=x, t=t: tread(A, *x, t))
            def adv(A):
                A(f"s_add_u32 s{S_AK}, s{S_AK}, 128")
                A(f"s_cmp_ge_u32 s{S_AK}, 2048")
                A(f"s_cselect_b32 s{S_AKE}, 0x10000000, s{S_AK}")
            if nA(w): gap(u, 4 * 9 + 2).append(adv)
        dm = [bdma(k, (u + 3) & 3) for k in range(nB(w))] + [adma(u & 1, e, (u >> 1) & 1) for e in range(nA(w))]
        for k, (f0, f1) in enumerate(dm):
            gap(u, 4 * k + 2).insert(0, f0)
            gap(u, 4 * k + 3).insert(0, f1)
        if w == 7:
            for k in range(3): gap(u, 4 * k + 3).append(lambda A, k=k: pfload(A, k))
        for b in (range(wm, 10, 4) if cs else []):
            for k, f in enumerate(cs_ops(b, 0) + cs_ops(b, 1)): gap(u, 4 * b + (k if b < 9 else k // 2)).append(f)
        for it, nm in extras_of(w, u):
            def g(A, it=it, nm=nm):
                lab = A.newlabel("L_nx")
                A(f"s_cmp_eq_u32 s{S_ITER}, {it}")
                A(f"s_cbranch_scc0 {lab}")
                A(f"s_call_b64 s[{S_RET}:{S_RET+1}], L_x_{nm}_{w}")
                A.label(lab)
            gap(u, 4 * 8 + 3).append(g)
    for u in range(4):
        odd = u & 1
        Tuse = T0 if not odd else (T1A if u == 1 else T1B)
        for b in range(10):
            A.wait_lgkm([f"W{b % 5}"] + ([("T1" if odd else "T0")] if b == 0 else []))
            wr = WR + (b % 5) * 4
            for k, tb in enumerate(range(4) if b % 2 == 0 else range(3, -1, -1)):
                a = acc(b, tb)
                if blocks[b][0] == "v": MF(A, a, Tuse + tb * 4, wr, a)
                else: MF(A, a, wr, Tuse + tb * 4, a)
                for f in G_[40 * u + 4 * b + k]: f(A)
        nv = nA(w) + nB(w)
        ws_ = [f"vmcnt({nv})"] if nv else []
        n = A.lgkm_count_for(["T0", "T1"]) if odd else None
        if n is not None:
            ws_.append(f"lgkmcnt({n})"); A.lgkm_retire(n)
        if ws_: A("s_waitcnt " + " ".join(ws_))
        A("s_barrier")

ROWS7 = 0
def p1_extras(A, w):
    global ROWS7
    ROWS7 = 3 * int(opt("npf", 0)) + 9 + (2 if opt("pfx") else 0)
    wm = w & 3
    dbg = srd(SRD_D)
    A.label(f"L_x_drain_{w}")
    A("s_waitcnt vmcnt(0)")
    A(f"s_setpc_b64 s[{S_RET}:{S_RET+1}]")
    A.label(f"L_x_rows_{w}")
    A(f"s_waitcnt vmcnt({ROWS7 if w == 7 else 0})")
    a0, a1, t0, t1 = 88, 89, 10, 11
    for i in range(8):
        A(f"v_lshlrev_b32 v{t0}, 16, v{80+i}")
        A(f"v_and_b32 v{t1}, s{S_HI}, v{80+i}")
        if i == 0:
            A(f"v_mov_b32 v{a0}, v{t0}"); A(f"v_mov_b32 v{a1}, v{t1}")
        else:
            A(f"v_add_f32 v{a0}, v{a0}, v{t0}"); A(f"v_add_f32 v{a1}, v{a1}, v{t1}")
    A(f"v_add_f32 v{a0}, v{a0}, v{a1}")
    wave_allreduce(A, a0, t0)
    A(f"v_mul_f32 v{a0}, 0xba800000, v{a0}     ; -mean")
    for i in range(8):
        A(f"v_lshlrev_b32 v{t0}, 16, v{80+i}")
        A(f"v_and_b32 v{t1}, s{S_HI}, v{80+i}")
        A(f"v_add_f32 v{t0}, v{t0}, v{a0}")
        A(f"v_add_f32 v{t1}, v{t1}, v{a0}")
        if i == 0: A(f"v_mul_f32 v{a1}, v{t0}, v{t0}")
        else: A(f"v_fmac_f32 v{a1}, v{t0}, v{t0}")
        A(f"v_fmac_f32 v{a1}, v{t1}, v{t1}")
    wave_allreduce(A, a1, t0)
    A(f"v_mul_f32 v{a1}, 0x3a800000, v{a1}     ; var")
    A(f"v_cvt_pk_bf16_f32 v{t0}, v{a0}, v{a1}")
    A(f"v_lshlrev_b32 v80, 16, v{t0}")
    A(f"v_and_b32 v{a1}, s{S_HI}, v{t0}")
    A(f"v_add_f32 v{a1}, 0x3727c5ac, v{a1}")
    A(f"v_cvt_pk_bf16_f32 v{a1}, v{a1}, v{a1}")
    A(f"v_lshlrev_b32 v{a1}, 16, v{a1}")
    A(f"v_sqrt_f32 v{a1}, v{a1}")
    A(f"s_lshl_b32 s{T+1}, s2, 6")
    A(f"v_cvt_pk_bf16_f32 v{a1}, v{a1}, v{a1}")
    A(f"s_add_u32 s{T+1}, s{T+1}, {WS_STATS + w * 8}")
    A(f"v_lshlrev_b32 v81, 16, v{a1}")
    A("s_mov_b64 exec, 1")
    A(f"buffer_store_dwordx2 v[80:81], v0, {WS}, s{T+1} offen sc1")
    A("s_mov_b64 exec, -1")
    A(f"s_setpc_b64 s[{S_RET}:{S_RET+1}]")
    def paddr(A):
        A(f"v_and_b32 v{V_PA}, 0x70, v{L16}")
        A(f"v_lshlrev_b32 v{V_PA}, 1, v{V_PA}")
        A(f"buffer_load_dword v{V_POLL}, v{V_PA}, {dbg}, 0 offen sc1")
    A.label(f"L_x_poll_{w}")
    paddr(A)
    A(f"s_setpc_b64 s[{S_RET}:{S_RET+1}]")
    A.label(f"L_x_stat_{w}")
    A("s_waitcnt vmcnt(0)")
    A(f"v_cmp_ne_u32 vcc, 32, v{V_POLL}")
    A("s_nop 4")
    A(f"s_cbranch_vccz L_x_stat_{w}_go")
    A("s_sleep 2")
    paddr(A)
    A(f"s_branch L_x_stat_{w}")
    A.label(f"L_x_stat_{w}_go")
    off_c(A, T + 1)
    A(f"v_mov_b32 v{V_POLL}, 1")
    A("s_mov_b64 exec, 1")
    put(A, T + 1, V_POLL, 0)
    A("s_mov_b64 exec, -1")
    A(f"v_and_b32 v{V_POLL}, 0xf0, v{L16}")
    A(f"v_lshrrev_b32 v{V_POLL}, 1, v{V_POLL}")
    A(f"s_lshl_b32 s{T+1}, s{S_MT}, 11")
    A(f"s_add_u32 s{T+1}, s{T+1}, {WS_STATS + wm * 512}")
    for tb in range(4):
        A(f"buffer_load_dwordx2 v[{V_ST+2*tb}:{V_ST+2*tb+1}], v{V_POLL}, {WS}, s{T+1} offen offset:{tb*128} sc1")
    A(f"s_setpc_b64 s[{S_RET}:{S_RET+1}]")
    A.label(f"L_x_cpub_{w}")
    xreduce_g(A, [V_CS, V_CS + 1, V_CS + 2], [10, 11, V_POLL], "add")
    A(f"v_and_b32 v{V_PA}, 0xf0, v{L16}")
    A(f"v_lshrrev_b32 v{V_PA}, 2, v{V_PA}")
    A(f"s_mul_i32 s{T+1}, s{S_J}, 7680")
    A(f"s_mul_i32 s{T+2}, s{S_MT}, 1280")
    A(f"s_add_u32 s{T+1}, s{T+1}, s{T+2}")
    A(f"s_add_u32 s{T+1}, s{T+1}, {WS_CSP + (w >> 2) * 640 + wm * 64}")
    A("s_mov_b64 exec, 0xffff")
    for i in range(3 if wm < 2 else 2):
        A(f"buffer_store_dword v{V_CS+i}, v{V_PA}, {WS}, s{T+1} offen offset:{256*i} sc1")
    A("s_mov_b64 exec, -1")
    A("s_nop 1")
    for i in range(3): A(f"v_mov_b32 v{V_CS+i}, 0")
    A(f"s_setpc_b64 s[{S_RET}:{S_RET+1}]")
    if w == 5:
        A.label(f"L_x_cpoll_{w}")
        A(f"v_lshrrev_b32 v{V_PA}, 2, v{L16}")
        lin(A, T + 1, [(S_J, 8)], F_C)
        A(f"buffer_load_dword v{V_POLL}, v{V_PA}, {WS}, s{T+1} offen sc1")
        A(f"s_setpc_b64 s[{S_RET}:{S_RET+1}]")
        A.label(f"L_x_cload_{w}")
        A("s_waitcnt vmcnt(0)")
        A(f"v_cmp_ne_u32 vcc, 1, v{V_POLL}")
        A("s_nop 4")
        A(f"s_cbranch_vccz L_x_cload_go")
        A("s_sleep 1")
        A(f"v_lshrrev_b32 v{V_PA}, 2, v{L16}")
        lin(A, T + 1, [(S_J, 8)], F_C)
        A(f"buffer_load_dword v{V_POLL}, v{V_PA}, {WS}, s{T+1} offen sc1")
        A(f"s_branch L_x_cload_{w}")
        A.label("L_x_cload_go")
        A(f"s_mul_i32 s{T+1}, s{S_J}, 7680")
        A(f"s_add_u32 s{T+1}, s{T+1}, {WS_CSP}")
        for h in range(2):
            A(f"s_mov_b32 m0, {CSPL + h * 4096}")
            A("s_nop 0")
            for k in range(4):
                A(f"buffer_load_dwordx4 v{L16}, {WS}, s{T+1} offen offset:{k*1024} sc1 lds")
            A(f"s_add_u32 s{T+1}, s{T+1}, 4096")
        A(f"s_setpc_b64 s[{S_RET}:{S_RET+1}]")
    if w == 4:
        A.label(f"L_x_wphi_{w}")
        A(f"s_mov_b32 m0, {WPL}")
        A(f"s_lshl_b32 s{T+1}, s{S_J}, 11")
        A(f"buffer_load_dwordx4 v{L16}, {srd(SRD_WP)}, s{T+1} offen lds")
        A(f"buffer_load_dwordx4 v{L16}, {srd(SRD_WP)}, s{T+1} offen offset:1024 lds")
        A(f"s_setpc_b64 s[{S_RET}:{S_RET+1}]")
    if w == 7:
        A.label(f"L_x_sig_{w}")
        A(f"s_lshr_b32 s{T+1}, s2, 5")
        A(f"s_lshl_b32 s{T+1}, s{T+1}, 5")
        A(f"v_mov_b32 v{V_POLL}, 1")
        A("s_mov_b64 exec, 1")
        A(f"buffer_atomic_add v{V_POLL}, v0, {dbg}, s{T+1} offen sc1")
        A("s_mov_b64 exec, -1")
        A(f"s_setpc_b64 s[{S_RET}:{S_RET+1}]")
        if opt("pfc"):
            A.label(f"L_x_pfc_{w}")
            A(f"s_getpc_b64 s[{SRD_PF}:{SRD_PF+1}]")
            A.label("L_pc_ref")
            A(f"s_sub_u32 s{SRD_PF}, s{SRD_PF}, L_pc_ref - fused_kernel")
            A(f"s_subb_u32 s{SRD_PF+1}, s{SRD_PF+1}, 0")
            A(f"s_and_b32 s{SRD_PF+1}, s{SRD_PF+1}, 0xffff")
            A(f"s_mov_b32 s{SRD_PF+2}, L_done - fused_kernel")
            A(f"s_mov_b32 s{SRD_PF+3}, 0x00020000")
            A(f"v_lshrrev_b32 v{V_POLL}, 4, v{L16}")
            A(f"v_min_u32 v{V_POLL}, 23, v{V_POLL}")
            A(f"v_lshlrev_b32 v{V_POLL}, 7, v{V_POLL}")
            A(f"s_lshr_b32 s{T+1}, s2, 3")
            A(f"s_mul_i32 s{T+1}, s{T+1}, {24*128}")
            A(f"buffer_load_dword v{V_A}, v{V_POLL}, {srd(SRD_PF)}, s{T+1} offen")
            A(f"s_setpc_b64 s[{S_RET}:{S_RET+1}]")
        A.label(f"L_x_pfd_{w}")
        make_srd(A, SRD_PF, 100, 101, 3584 * 2048)
        A(f"v_lshrrev_b32 v{V_POLL}, 4, v{L16}")
        A(f"v_min_u32 v{V_POLL}, 55, v{V_POLL}")
        A(f"v_lshlrev_b32 v{V_POLL}, 7, v{V_POLL}")
        A(f"s_mul_i32 s{T+1}, s2, {224*128}")
        for k in range(4):
            A(f"buffer_load_dword v{V_A}, v{V_POLL}, {srd(SRD_PF)}, s{T+1} offen")
            A(f"s_add_u32 s{T+1}, s{T+1}, {56*128}")
        A(f"s_mov_b32 s{SRD_PF}, s{P+6}")
        A(f"s_and_b32 s{SRD_PF+1}, s{P+7}, 0xffff")
        A(f"s_mov_b32 s{SRD_PF+2}, {1024*2048}")
        A(f"v_lshlrev_b32 v{V_POLL}, 3, v{L16}")
        A(f"s_lshl_b32 s{T+1}, s2, 13")
        A(f"buffer_load_dword v{V_A}, v{V_POLL}, {srd(SRD_PF)}, s{T+1} offen")
        A(f"s_setpc_b64 s[{S_RET}:{S_RET+1}]")

def tile_ids(A, H, M, N, TILE, t):
    A(f"s_and_b32 s{t}, s2, 7")
    A(f"s_lshr_b32 s{t+1}, s2, 3")
    A(f"s_and_b32 s{H}, s{t}, 1")
    A(f"s_lshr_b32 s{M}, s{t}, 1")
    A(f"s_lshl_b32 s{M}, s{M}, 2")
    A(f"s_and_b32 s{t}, s{t+1}, 3")
    A(f"s_add_u32 s{M}, s{M}, s{t}")
    A(f"s_lshr_b32 s{N}, s{t+1}, 2")
    A(f"s_lshl_b32 s{TILE}, s{M}, 3")
    A(f"s_add_u32 s{TILE}, s{TILE}, s{N}")
def lin(A, d, terms, base):
    first = True
    for r, sh in terms:
        if first: A(f"s_lshl_b32 s{d}, s{r}, {sh}"); first = False
        else:
            A(f"s_lshl_b32 s{T+5}, s{r}, {sh}")
            A(f"s_add_u32 s{d}, s{d}, s{T+5}")
    A(f"s_add_u32 s{d}, s{d}, {base}")
def off_h(A, d, ph): lin(A, d, [(S_MT, 11), (S_W, 7), (S_J, 2)], F_H + ph * 1024)
def off_k(A, d): lin(A, d, [(S_J, 8), (S_MT, 5), (S_W, 2)], F_K)
def off_c(A, d): lin(A, d, [(S_J, 8), (S_MT, 5), (S_W, 2)], F_C)
def off_o(A, d): lin(A, d, [(S_MT, 9), (S_WM, 7), (S_J, 2)], F_O)
def off_p(A, d, tile): lin(A, d, [(tile, 7), (S_WM, 2)], F_P)
def put(A, soff, vval, vzero): A(f"buffer_store_dword v{vval}, v{vzero}, {WS}, s{soff} offen sc1")

CR, NM, RR, RL, WPR, WPK, TMP = 12, 80, 2, [0, 1, 10, 11], 56, 88, 72
def pk_fma_bc(A, d, a, bc, c):
    p, s = bc & ~1, bc & 1
    A(f"v_pk_fma_f32 v[{d}:{d+1}], v[{a}:{a+1}], v[{p}:{p+1}], v[{c}:{c+1}] op_sel:[0,{s},0] op_sel_hi:[1,{s},1]")
def pk_mul_bc(A, d, a, bc):
    p, s = bc & ~1, bc & 1
    A(f"v_pk_mul_f32 v[{d}:{d+1}], v[{a}:{a+1}], v[{p}:{p+1}] op_sel:[0,{s}] op_sel_hi:[1,{s}]")
def corr(A, a, b, tb):
    for r in (0, 2): pk_fma_bc(A, a + r, CR + 4 * b + r, NM + 2 * tb, a + r)
def gu(A, bg, bu, tb, dst, tmp):
    g = acc(bg, tb); u = acc(bu, tb)
    corr(A, g, bg, tb); corr(A, u, bu, tb)
    for r in range(4): A(f"v_mul_f32 v{tmp+r}, v{g+r}, v{RL[tb]}")
    for r in range(4): A(f"v_exp_f32 v{tmp+r}, v{tmp+r}")
    for r in range(4): A(f"v_fma_f32 v{tmp+r}, v{tmp+r}, v{NM+2*tb+1}, v{NM+2*tb+1}")
    for r in range(4): A(f"v_rcp_f32 v{tmp+r}, v{tmp+r}")
    for r in range(4): A(f"v_mul_f32 v{tmp+r}, v{tmp+r}, v{u+r}")
    cvt(A, dst, tmp); cvt(A, dst + 1, tmp + 2)
def qk_pack(A, tb):
    d = acc(0, tb)
    for hb in range(2):
        a = acc(hb, tb)
        corr(A, a, hb, tb)
        for r in (0, 2): pk_mul_bc(A, a + r, a + r, RR + tb)
        cvt(A, d + 2 * hb, a); cvt(A, d + 2 * hb + 1, a + 2)
def kwork(A, groups, WP, S):
    KV, D, ISEL, ONES, PP, PM, PK, SC = S, S + 48, S + 80, S + 88, S + 92, S + 96, S + 100, S + 108
    PT = PK
    A(f"v_lshrrev_b32 v{SC}, 4, v{L16}")
    A(f"v_lshrrev_b32 v{SC+1}, 4, v{SC}         ; g")
    A(f"v_and_b32 v{SC}, 15, v{SC}              ; c")
    A(f"v_lshrrev_b32 v{SC+2}, 2, v{SC}")
    A(f"v_and_b32 v{SC+3}, 3, v{SC}")
    A(f"v_cmp_eq_u32 vcc, v{SC+2}, v{SC+1}")
    A(f"v_and_b32 v{SC+4}, 1, v{SC+3}")
    A(f"v_lshlrev_b32 v{SC+4}, 4, v{SC+4}")
    A(f"v_mov_b32 v{SC+5}, 0x3f80")
    A(f"v_lshlrev_b32 v{SC+5}, v{SC+4}, v{SC+5}")
    A(f"v_cndmask_b32 v{SC+5}, 0, v{SC+5}, vcc")
    A(f"v_cmp_gt_u32 vcc, 2, v{SC+3}")
    A(f"v_mov_b32 v{ISEL}, 0")
    A(f"v_mov_b32 v{ISEL+1}, 0")
    A(f"v_cndmask_b32 v{ISEL+2}, 0, v{SC+5}, vcc")
    A(f"v_cndmask_b32 v{ISEL+3}, v{SC+5}, 0, vcc")
    A(f"v_mov_b32 v{ISEL+4}, 0")
    A(f"v_mov_b32 v{ISEL+5}, 0")
    for r in range(4): A(f"v_mov_b32 v{ONES+r}, s{S_ONES}")
    for gi, (VF, kfs) in enumerate(groups):
        if gi: A("s_nop 3")
        for e, kf in kfs.items():
            MF(A, PK, WP, kf); MF(A, PK + 4, WP + 4, kf)
            A("s_nop 7")
            softmax(A, PK, PP, PM, SC)
            A("s_nop 1")
            dd = D + e * 16
            MF(A, dd, PP, ISEL + 2); MF(A, dd + 4, PP, ISEL); MF(A, dd + 8, PM, ISEL + 2); MF(A, dd + 12, PM, ISEL)
        es = list(kfs)
        for e in range(2):
            if e not in kfs:
                for fb in range(4):
                    A(f"v_mov_b32 v{PT+fb*4+2*e}, 0"); A(f"v_mov_b32 v{PT+fb*4+2*e+1}, 0")
        for e in es:
            if e == es[-1] and len(es) == 2: pass
            for fb in range(4):
                dd = D + e * 16 + fb * 4
                cvt(A, PT + fb * 4 + 2 * e, dd); cvt(A, PT + fb * 4 + 2 * e + 1, dd + 2)
        A("s_nop 1")
        for fb in range(4):
            for db in range(3):
                c = KV + (fb * 3 + db) * 4
                MF(A, c, PT + fb * 4, VF + db * 4 if db < 2 else ONES, c if gi else None)
    A("s_nop 7")
    return KV

def p1_epilogue(A, wn):
    st = "sc1"
    A.label(f"L_epi{wn}")
    A.lgkm = []
    A("s_waitcnt vmcnt(0) lgkmcnt(0)")
    stamp(A, 2)
    if opt("edbg"): A("s_memrealtime s[80:81]")
    A(f"v_lshrrev_b32 v54, 8, v{L16}")
    A("v_lshlrev_b32 v52, 4, v54                ; g*16")
    A(f"v_and_b32 v55, 0xf0, v{L16}")
    A("v_lshrrev_b32 v12, 2, v55                ; c*4")
    A("v_lshrrev_b32 v56, 6, v55                ; i>>2")
    A("v_lshl_add_u32 v56, v54, 2, v56")
    A("v_lshlrev_b32 v56, 6, v56")
    A("v_and_b32 v57, 12, v12")
    A("v_lshl_add_u32 v56, v57, 1, v56")
    A(f"v_add_u32 v56, {WPL}, v56")
    A("v_mul_u32_u24 v13, 1280, v54")
    A(f"s_lshl_b32 s{T}, s{S_WM}, 6")
    A(f"s_add_u32 s{T}, s{T}, {CSPL + wn * 640}")
    A(f"v_add3_u32 v13, v13, v12, s{T}")
    A("v_cmp_gt_u32 vcc, 2, v54")
    for i in range(3):
        A(f"ds_read_b32 v{16+2*i}, v13 offset:{256*i}")
        A(f"ds_read_b32 v{17+2*i}, v13 offset:{256*i + 5120}")
    A("s_waitcnt lgkmcnt(0)")
    for i in range(3):
        A(f"v_cndmask_b32 v{17+2*i}, 0, v{17+2*i}, vcc")
        A(f"v_add_f32 v{V_CS+i}, v{V_CS+i}, v{16+2*i}")
        A(f"v_add_f32 v{V_CS+i}, v{V_CS+i}, v{17+2*i}")
    xreduce_g(A, [V_CS, V_CS + 1, V_CS + 2], [13, 14, 15], "add")
    A(f"s_lshl_b32 s{T}, s{S_WM}, 6")
    A(f"s_add_u32 s{T}, s{T}, {CSL + wn * 640}")
    A(f"v_add_u32 v13, s{T}, v12")
    A(f"ds_write_b32 v13, v{V_CS}")
    A(f"ds_write_b32 v13, v{V_CS+1} offset:256")
    A(f"s_cmp_lt_u32 s{S_WM}, 2")
    A(f"s_cselect_b32 s{T}, s{T}, {CSL + 1280 - 512}")
    A(f"v_add_u32 v14, s{T}, v12")
    A(f"ds_write_b32 v14, v{V_CS+2} offset:512")
    for tb in range(4): A(f"v_rcp_f32 v{RR+tb}, v{NM+2*tb+1}")
    A("s_nop 0")
    for tb in range(4): A(f"v_mul_f32 v{RL[tb]}, s{S_C}, v{RR+tb}")
    if wn == 1:
        A(f"s_lshl_b32 s{T}, s{S_W}, 9")
        A(f"s_add_u32 s{T}, s{T}, {STL}")
        A(f"v_lshl_add_u32 v15, v12, 1, s{T}")
        for tb in range(4):
            A(f"v_mov_b32 v{16+2*tb}, v{NM+2*tb}")
            A(f"v_mov_b32 v{17+2*tb}, v{RR+tb}")
            A(f"ds_write_b64 v15, v[{16+2*tb}:{17+2*tb}] offset:{tb*128}")
        A(f"v_lshl_add_u32 v55, v52, 1, s{T}")
        A(f"v_add_u32 v54, {CSL + 640}, v12")
    A(f"v_add_u32 v52, {CSL + wn * 640}, v52")
    lin(A, T + 4, [(S_WM, 13)], HOFF)
    A(f"v_add_u32 v53, s{T+4}, v{L16}")
    lin(A, T, [(S_MT, 14), (S_WM, 12)], WS_ACT)
    A(f"s_mul_i32 s{T+1}, s{S_J}, {3 * 131072}")
    A(f"s_add_u32 s{T+1}, s{T+1}, s{T}")
    A("s_waitcnt lgkmcnt(0)")
    A("s_barrier                ; B1")
    if opt("edbg"): A("s_memrealtime s[82:83]")
    order = [2, 3, 4, 5, 0, 1, 6, 7, 8, 9] if wn == 0 else [4, 5, 6, 7, 0, 1, 8, 9]
    for b in order: A.ds(f"ds_read_b128 v[{CR+4*b}:{CR+4*b+3}], v52 offset:{b*64}", f"C{b}")
    def gupair(b0, soff):
        A.wait_lgkm([f"C{b}" for b in range(b0, b0 + 4)])
        for tb in range(4):
            d = acc(b0, tb)
            gu(A, b0 + 2, b0 + 3, tb, acc(b0 + 2, tb), TMP + 4)
            gu(A, b0, b0 + 1, tb, d, TMP)
            A(f"v_mov_b32 v{d+2}, v{acc(b0+2, tb)}")
            A(f"v_mov_b32 v{d+3}, v{acc(b0+2, tb)+1}")
            A(f"buffer_store_dwordx4 v[{d}:{d+3}], v{L16}, {WS}, s{soff} offen offset:{tb*1024} {st}")
    if wn == 0:
        gupair(2, T + 1)
        A(f"s_add_u32 s{T+1}, s{T+1}, 131072")
        gupair(6, T + 1)
        for tb in range(4): qk_pack(A, tb)
        A("s_barrier                ; B2")
        if opt("edbg"): A("s_memrealtime s[84:85]")
        for k in range(7): A(f"ds_read_b128 v[{12+4*k}:{15+4*k}], v53 offset:{k*1024}")
        off_h(A, T + 3, 0)
        A("v_mov_b32 v58, 1")
        A("v_mov_b32 v59, 0")
        A("s_waitcnt vmcnt(4)")
        A("s_mov_b64 exec, 1")
        put(A, T + 3, 58, 59)
        A("s_mov_b64 exec, -1")
        groups = [(20, {0: 12, 1: 16}), (32, {1: 28})]
    else:
        A.ds(f"ds_read_b32 v{CR+8}, v54 offset:128", "CV")
        A.ds(f"ds_read_b32 v{CR+9}, v54 offset:192", "CV")
        A(f"s_add_u32 s{T+1}, s{T+1}, {2*131072}")
        gupair(4, T + 1)
        A.wait_lgkm(["C0", "C1"])
        for tb in (2, 3, 0, 1): qk_pack(A, tb)
        A(f"ds_write_b128 v53, v[{acc(0,2)}:{acc(0,2)+3}]")
        A(f"ds_write_b128 v53, v[{acc(0,3)}:{acc(0,3)+3}] offset:1024")
        A(f"ds_write_b128 v53, v[{acc(0,1)}:{acc(0,1)+3}] offset:4096")
        for pair in (1, 0):
            for e in range(2):
                tb = 2 * pair + e
                A.ds(f"ds_read_b128 v[{112+8*e}:{115+8*e}], v55 offset:{tb*128}", f"S{e}")
                A.ds(f"ds_read_b128 v[{116+8*e}:{119+8*e}], v55 offset:{tb*128+16}", f"S{e}")
            for e in range(2):
                tb = 2 * pair + e
                A.wait_lgkm(["CV", f"S{e}"])
                for db in range(2):
                    a = acc(2 + db, tb)
                    for r in range(4): A(f"v_fma_f32 v{a+r}, v{CR+8+db}, v{112+8*e+2*r}, v{a+r}")
                    for r in range(4): A(f"v_mul_f32 v{a+r}, v{a+r}, v{113+8*e+2*r}")
                    d = acc(2 + db, 2 * pair) + 2 * e
                    cvt(A, d, a); cvt(A, d + 1, a + 2)
            A("s_nop 0")
            o_ = 2048 if pair == 1 else 5120
            A(f"ds_write_b128 v53, v[{acc(2,2*pair)}:{acc(2,2*pair)+3}] offset:{o_}")
            A(f"ds_write_b128 v53, v[{acc(3,2*pair)}:{acc(3,2*pair)+3}] offset:{o_+1024}")
        A("s_waitcnt lgkmcnt(0)")
        A.lgkm = []
        A("s_barrier                ; B2")
        if opt("edbg"): A("s_memrealtime s[84:85]")
        off_h(A, T + 3, 0)
        A("v_mov_b32 v58, 1")
        A("v_mov_b32 v59, 0")
        A("s_waitcnt vmcnt(0)")
        A("s_mov_b64 exec, 1")
        put(A, T + 3, 58, 59)
        A("s_mov_b64 exec, -1")
        A(f"s_lshr_b32 s{T+2}, s{S_J}, 1")
        A(f"s_add_u32 s{T+2}, s{T+2}, 96")
        A(f"s_lshl_b32 s{T+2}, s{T+2}, 17")
        A(f"s_add_u32 s{T+2}, s{T+2}, s{T}")
        A(f"s_and_b32 s{T+3}, s{S_J}, 1")
        A(f"s_lshl_b32 s{T+3}, s{T+3}, 3")
        A(f"s_add_u32 s{T+2}, s{T+2}, s{T+3}")
        for tb in range(4):
            d = acc(8, tb)
            gu(A, 8, 9, tb, d, TMP + 4 * (tb & 1))
            A(f"buffer_store_dwordx2 v[{d}:{d+1}], v{L16}, {WS}, s{T+2} offen offset:{tb*1024} {st}")
        for db in range(2):
            for r in range(4): A(f"v_mov_b32 v{20+4*db+r}, v{acc(2+db,0)+r}")
        groups = [(20, {0: acc(0, 0)})]
    if opt("edbg"): A("s_memrealtime s[86:87]")
    for fb in range(2):
        for t in range(2):
            A(f"ds_read_b64_tr_b16 v[{WPK+4*fb+2*t}:{WPK+4*fb+2*t+1}], v56 offset:{t*1024 + fb*32}")
    A("s_waitcnt lgkmcnt(0)")
    KV = kwork(A, groups, WPK, 124)
    A(f"s_mul_i32 s{T+1}, s{S_W}, {12*1024}")
    A(f"v_add_u32 v20, s{T+1}, v{L16}")
    for blk in range(12): A(f"ds_write_b128 v20, v[{KV+blk*4}:{KV+blk*4+3}] offset:{blk*1024}")
    if opt("edbg"): A("s_memrealtime s[88:89]"); A("s_memrealtime s[90:91]")
    A("s_waitcnt lgkmcnt(0)")
    A("s_barrier                ; B3")
    if opt("edbg"): A("s_memrealtime s[92:93]")
    A(f"s_lshr_b32 s{T}, s{S_W}, 1")
    A(f"s_mul_i32 s{T}, s{T}, 3")
    A(f"s_and_b32 s{T+1}, s{S_W}, 1")
    A(f"s_add_u32 s{T}, s{T}, s{T+1}")
    A(f"s_lshl_b32 s{T}, s{T}, 10")
    A(f"v_add_u32 v20, s{T}, v{L16}")
    A(f"v_add_u32 v22, {4*12*1024}, v20")
    for p in range(8): A(f"ds_read_b128 v[{124+4*p}:{127+4*p}], v{20 if p < 4 else 22} offset:{(p%4)*12*1024}")
    if wn == 0:
        A(f"s_mul_i32 s{T}, s{S_W}, 3072")
        A(f"v_add_u32 v21, s{T}, v{L16}")
        A(f"v_add_u32 v23, {4*12*1024}, v21")
        for p in range(8): A(f"ds_read_b128 v[{156+4*p}:{159+4*p}], v{21 if p < 4 else 23} offset:{(p%4)*12*1024 + 2048}")
    A(f"s_lshl_b32 s{T}, s{S_J}, 3")
    A(f"s_add_u32 s{T}, s{T}, s{S_MT}")
    A(f"s_mul_i32 s{T}, s{T}, {KVP_SZ}")
    A(f"s_add_u32 s{T}, s{T}, {WS_KVP}")
    A(f"s_lshl_b32 s{T+1}, s{S_W}, 10")
    A(f"s_add_u32 s{T+1}, s{T+1}, s{T}")
    A("s_waitcnt lgkmcnt(0)")
    for base in ((124, 156) if wn == 0 else (124,)):
        for s_ in (16, 8, 4):
            for r in range(0, s_, 2):
                A(f"v_pk_add_f32 v[{base+r}:{base+r+1}], v[{base+r}:{base+r+1}], v[{base+s_+r}:{base+s_+r+1}]")
    A(f"buffer_store_dwordx4 v[124:127], v{L16}, {WS}, s{T+1} offen {st}")
    if wn == 0:
        A(f"s_lshl_b32 s{T+1}, s{S_W}, 6")
        A(f"s_add_u32 s{T+1}, s{T+1}, s{T}")
        A(f"s_add_u32 s{T+1}, s{T+1}, 8192")
        A(f"v_lshrrev_b32 v21, 4, v{L16}")
        A("v_and_b32 v22, 15, v21")
        A("v_cmp_eq_u32 vcc, 0, v22")
        A(f"s_and_saveexec_b64 s[{T+2}:{T+3}], vcc")
        A(f"buffer_store_dwordx4 v[156:159], v21, {WS}, s{T+1} offen {st}")
        A("s_mov_b64 exec, -1")
    stamp(A, 3)
    stamp_store(A, WS_STAMP)
    A(f"s_branch L_p2_{'prod' if wn == 0 else 'cons'}")

def p1_prologue(A):
    A("s_cmp_ge_u32 s2, 256")
    A("s_cbranch_scc1 L_done")
    stamp(A, 0)
    if opt("pfc0"):
        A(f"s_getpc_b64 s[{SRD_B2}:{SRD_B2+1}]")
        A.label("L_pc_ref0")
        A(f"s_sub_u32 s{SRD_B2}, s{SRD_B2}, L_pc_ref0 - fused_kernel")
        A(f"s_subb_u32 s{SRD_B2+1}, s{SRD_B2+1}, 0")
        A(f"s_and_b32 s{SRD_B2+1}, s{SRD_B2+1}, 0xffff")
        A(f"s_mov_b32 s{SRD_B2+2}, L_done - fused_kernel")
        A(f"s_mov_b32 s{SRD_B2+3}, 0x00020000")
        A("v_subrev_u32 v13, 448, v0")
        A("v_cmp_gt_u32 vcc, 24, v13")
        A("v_lshlrev_b32 v13, 7, v13")
        A(f"s_lshr_b32 s{T+1}, s2, 3")
        A(f"s_mul_i32 s{T+1}, s{T+1}, {24*128}")
        A(f"s_and_saveexec_b64 s[{T+2}:{T+3}], vcc")
        A("s_cbranch_execz L_pc_skip")
        A(f"buffer_load_dword v{V_A}, v13, {srd(SRD_B2)}, s{T+1} offen")
        A.label("L_pc_skip")
        A("s_mov_b64 exec, -1")
    A(f"s_load_dwordx8 s[{P}:{P+7}], s[0:1], 0")
    A(f"s_load_dwordx4 s[{P+8}:{P+11}], s[0:1], 40")
    A(f"s_load_dwordx4 s[96:99], s[0:1], 72")
    A(f"s_load_dwordx2 s[100:101], s[0:1], 56")
    A(f"s_load_dwordx2 s[{P+12}:{P+13}], s[0:1], 64")
    A("v_lshrrev_b32 v11, 6, v0")
    A("v_and_b32 v10, 63, v0             ; lane")
    A(f"v_readfirstlane_b32 s{S_W}, v11")
    A(f"s_lshl_b32 s{T}, s2, 3")
    A(f"v_add_u32 v60, s{T}, v11")
    A("v_lshlrev_b32 v61, 11, v60")
    A("v_lshl_add_u32 v61, v10, 4, v61")
    A(f"v_lshlrev_b32 v{L16}, 4, v10")
    A(f"s_and_b32 s{S_WM}, s{S_W}, 3")
    A(f"s_lshr_b32 s{S_WN}, s{S_W}, 2")
    A(f"s_and_b32 s{T}, s2, 7")
    A(f"s_lshr_b32 s{T+1}, s2, 3")
    jm = int(opt("jm", 0))
    if jm == 4:
        A(f"s_xor_b32 s{T}, s{T}, 1")
    if jm in (0, 4):
        A(f"s_and_b32 s{S_J}, s{T+1}, 3")
        A(f"s_lshl_b32 s{T}, s{T}, 2")
        A(f"s_add_u32 s{S_J}, s{S_J}, s{T}")
        A(f"s_lshr_b32 s{S_MT}, s{T+1}, 2")
    elif jm == 1:
        A(f"s_and_b32 s{S_J}, s{T+1}, 3")
        A(f"s_lshl_b32 s{S_J}, s{S_J}, 3")
        A(f"s_add_u32 s{S_J}, s{S_J}, s{T}")
        A(f"s_lshr_b32 s{S_MT}, s{T+1}, 2")
    elif jm == 2:
        A(f"s_and_b32 s{S_J}, s{T}, 3")
        A(f"s_lshl_b32 s{S_J}, s{S_J}, 3")
        A(f"s_and_b32 s{T+2}, s{T+1}, 7")
        A(f"s_add_u32 s{S_J}, s{S_J}, s{T+2}")
        A(f"s_lshr_b32 s{S_MT}, s{T}, 2")
        A(f"s_lshl_b32 s{S_MT}, s{S_MT}, 2")
        A(f"s_lshr_b32 s{T+2}, s{T+1}, 3")
        A(f"s_add_u32 s{S_MT}, s{S_MT}, s{T+2}")
    elif jm == 3:
        A(f"s_and_b32 s{S_J}, s{T}, 1")
        A(f"s_lshl_b32 s{S_J}, s{S_J}, 4")
        A(f"s_and_b32 s{T+2}, s{T+1}, 15")
        A(f"s_add_u32 s{S_J}, s{S_J}, s{T+2}")
        A(f"s_lshr_b32 s{S_MT}, s{T}, 1")
        A(f"s_lshl_b32 s{S_MT}, s{S_MT}, 1")
        A(f"s_lshr_b32 s{T+2}, s{T+1}, 4")
        A(f"s_add_u32 s{S_MT}, s{S_MT}, s{T+2}")
    lin(A, T, [(S_MT, 8), (S_WN, 6), (S_WM, 2)], 0)
    A("v_bfe_u32 v11, v10, 3, 1")
    A("v_lshrrev_b32 v12, 4, v10         ; g")
    A("v_lshl_add_u32 v11, v12, 4, v11")
    A(f"v_add_u32 v11, s{T}, v11")
    A("v_lshlrev_b32 v11, 11, v11")
    A("v_and_b32 v13, 7, v10")
    A(f"v_lshl_add_u32 v{V_A}, v13, 4, v11")
    A(f"s_mul_i32 s{S_APAGE}, s{S_W}, {2 * A_PAGE}")
    A(f"s_lshl_b32 s{T}, s{S_W}, 6")
    A(f"v_add_u32 v13, s{T}, v10")
    A("v_mul_u32_u24 v14, 4682, v13")
    A("v_lshrrev_b32 v14, 16, v14")
    A("v_mul_u32_u24 v15, 14, v14")
    A("v_sub_u32 v15, v13, v15")
    A("v_mul_u32_u24 v14, 7168, v14")
    A("v_lshl_add_u32 v14, v15, 4, v14")
    A(f"s_mul_i32 s{T}, s{S_J}, 224")
    A(f"v_add_u32 v{V_B0}, s{T}, v14")
    A(f"v_mov_b32 v{V_B1}, v{V_B0}")
    A("v_lshrrev_b32 v15, 2, v10")
    A("v_mul_u32_u24 v15, 6144, v15")
    A("v_lshrrev_b32 v16, 3, v10")
    A("v_and_b32 v16, 2, v16")
    A("v_and_b32 v17, 3, v10")
    A("v_xor_b32 v16, v16, v17")
    A("v_lshl_add_u32 v15, v16, 4, v15")
    A(f"s_lshr_b32 s{T}, s{S_W}, 1")
    A(f"s_lshl_b32 s{T}, s{T}, 11")
    A(f"s_and_b32 s{T+1}, s{S_W}, 1")
    A(f"s_mul_i32 s{T+1}, s{T+1}, {16*6144}")
    A(f"s_add_u32 s{T}, s{T}, s{T+1}")
    A(f"s_lshl_b32 s{T+1}, s{S_J}, 6")
    A(f"s_add_u32 s{T}, s{T}, s{T+1}")
    A(f"v_add_u32 v{V_B2}, s{T}, v15")
    A(f"s_lshl_b32 s{S_BLDS[2]}, s{S_W}, 10")
    A(f"s_add_u32 s{S_BLDS[0]}, s{S_BLDS[2]}, 6144")
    A(f"s_add_u32 s{S_BLDS[1]}, s{S_BLDS[2]}, 13312")
    for k in range(3):
        A(f"s_mov_b32 s{S_BOFF[k]}, 0")
        A(f"s_mov_b32 s{S_BINC[k]}, {32 * (6144 if k == 2 else 7168)}")
    A("s_waitcnt lgkmcnt(0)")
    if opt("pdbg"): A("s_memrealtime s[86:87]")
    make_srd(A, SRD_A, P, P + 1, 4 * MB)
    make_srd(A, SRD_B0, P + 8, P + 9, 1024 * 7168)
    make_srd(A, SRD_B1, P + 10, P + 11, 1024 * 7168)
    make_srd(A, SRD_B2, P + 2, P + 3, 1024 * 6144)
    A(f"s_cmp_eq_u32 s{S_W}, 7")
    A("s_cbranch_scc1 L_pro7")
    A(f"s_cmp_eq_u32 s{S_W}, 6")
    A("s_cbranch_scc1 L_pro6")
    NPF = int(opt("npf", 0))
    PF0 = int(opt("pf0", 5))
    def run(ops):
        for f0, f1 in ops:
            f0(A); A("s_nop 0"); f1(A)
    pa = lambda w, stage: [adma(h, e, stage & 1, stage * 128) for h in range(2) for e in range(nA(w))]
    pb = lambda w, stage: [bdma(k, stage) for k in range(nB(w))]
    for cls, w in (("", 0), ("L_pro6", 6)):
        if cls: A.label(cls)
        run(pa(w, 0)); run(pb(w, 0)); run(pb(w, 1))
        A("s_branch L_pro_common")
    A.label("L_pro7")
    A(f"buffer_load_dwordx4 v[80:83], v61, {srd(SRD_A)}, 0 offen")
    A(f"buffer_load_dwordx4 v[84:87], v61, {srd(SRD_A)}, 0 offen offset:1024")
    if opt("pfx"):
        A("v_lshlrev_b32 v13, 7, v10")
        A(f"s_lshl_b32 s{T}, s2, 14")
        A(f"buffer_load_dword v{V_A}, v13, {srd(SRD_A)}, s{T} offen")
        A(f"s_add_u32 s{T}, s{T}, 8192")
        A(f"buffer_load_dword v{V_A}, v13, {srd(SRD_A)}, s{T} offen")
    A("v_min_u32 v13, 13, v10")
    A(f"s_mul_i32 s{T}, s2, 14")
    A(f"v_add_u32 v13, s{T}, v13")
    A(f"v_lshlrev_b32 v{V_B0}, 7, v13")
    A(f"v_mov_b32 v{V_B1}, v{V_B0}")
    A("v_min_u32 v13, 11, v10")
    A(f"s_mul_i32 s{T}, s2, 12")
    A(f"v_add_u32 v13, s{T}, v13")
    A(f"v_lshlrev_b32 v{V_B2}, 7, v13")
    for k in range(3):
        A(f"s_mov_b32 s{S_BOFF[k]}, {PF0 * 32 * (6144 if k == 2 else 7168)}")
        A(f"s_mov_b32 s{S_BINC[k]}, {64 * (6144 if k == 2 else 7168)}")
    for i in range(NPF):
        for k in range(3): pfload(A, k)
    A.label("L_pro_common")
    make_srd(A, SRD_WS, 98, 99, WS_BYTES)
    make_srd(A, SRD_D, 96, 97, 256)
    make_srd(A, SRD_WP, P + 4, P + 5, 65536)
    A(f"s_mov_b32 s{S_C}, {NLOG2E}")
    A(f"s_mov_b32 s{S_C+1}, {LOG2E}")
    A(f"s_mov_b32 s{S_ONES}, 0x3f803f80")
    A(f"s_mov_b32 s{S_HI}, 0xffff0000")
    A("v_and_b32 v16, 15, v10")
    A("v_lshrrev_b32 v17, 2, v16")
    A("v_lshl_add_u32 v17, v12, 2, v17   ; 4g + (i>>2)")
    A("v_and_b32 v18, 3, v16")
    A("v_lshlrev_b32 v18, 3, v18")
    A("v_mul_u32_u24 v19, 224, v17")
    A("v_add_u32 v19, v19, v18")
    A(f"v_add_u32 v{V_BG}, {LDS_B}, v19")
    A("v_lshl_add_u32 v19, v17, 6, v18")
    A("v_and_b32 v20, 1, v12")
    A("v_lshl_add_u32 v19, v20, 5, v19")
    A(f"v_add_u32 v{V_BQ0}, {LDS_B}, v19")
    A(f"v_xor_b32 v{V_BQ1}, 32, v{V_BQ0}")
    for a_, b_ in ((V_BG2, V_BG), (V_BQ02, V_BQ0), (V_BQ12, V_BQ1)): A(f"v_add_u32 v{a_}, {2*B_STAGE}, v{b_}")
    A("v_lshrrev_b32 v19, 1, v16")
    A(f"s_lshl_b32 s{T}, s{S_WM}, 3")
    A(f"v_add_u32 v19, s{T}, v19")
    A(f"v_mul_u32_u24 v19, {A_PAGE}, v19")
    A("v_and_b32 v20, 1, v16")
    A("v_lshl_add_u32 v19, v20, 7, v19")
    A(f"v_lshl_add_u32 v{V_AR}, v12, 3, v19")
    A(f"s_mov_b32 s{S_AK}, 256")
    A(f"s_mov_b32 s{S_AKE}, 256")
    for r in range(ACC, 256): A(f"v_mov_b32 v{r}, 0")
    for r in range(3): A(f"v_mov_b32 v{V_CS+r}, 0")
    for r in range(4): A(f"v_mov_b32 v{WR+16+r}, 0")
    A("v_mov_b32 v0, 0")
    off_h(A, T, 0)
    A(f"v_mov_b32 v40, s{T}")
    A(f"s_add_u32 s{T}, s{T}, 1024")
    A(f"v_writelane_b32 v40, s{T}, 1")
    off_k(A, T)
    A(f"v_writelane_b32 v40, s{T}, 2")
    off_o(A, T)
    tile_ids(A, 76, 77, 75, 74, T + 1)
    off_p(A, T + 1, 74)
    A(f"s_cmp_eq_u32 s{S_WN}, 0")
    A(f"s_cselect_b32 s{T}, s{T}, s{T+1}")
    A(f"v_writelane_b32 v40, s{T}, 3")
    A(f"s_cselect_b32 s{T+2}, 31, 23")
    A("s_cmp_eq_u32 s76, 1")
    A(f"s_cselect_b32 s{T+2}, 31, s{T+2}")
    off_c(A, T)
    A(f"v_writelane_b32 v40, s{T}, 4")
    A(f"s_sub_u32 s{S_MYIT}, 8, s{S_MT}")
    A(f"s_cmp_eq_u32 s{S_W}, 7")
    A("s_cbranch_scc1 L_pro_b7")
    A("s_waitcnt vmcnt(0)")
    if opt("pdbg"): A("s_memrealtime s[90:91]")
    A("s_barrier")
    A(f"s_cmp_eq_u32 s{S_W}, 6")
    A("s_cbranch_scc1 L_pro_g6")
    for cls, w in (("", 0), ("L_pro_g6", 6)):
        if cls: A.label(cls)
        run(pb(w, 2)); run(pa(w, 1))
        A(f"buffer_load_dwordx4 v[80:83], v61, {srd(SRD_A)}, 0 offen")
        A(f"buffer_load_dwordx4 v[84:87], v61, {srd(SRD_A)}, 0 offen offset:1024")
        A("s_branch L_pro_c2")
    A.label("L_pro_b7")
    if opt("pdbg"): A("s_memrealtime s[90:91]")
    A("s_barrier")
    A.label("L_pro_c2")
    A(f"s_mov_b32 exec_lo, s{T+2}")
    A("s_mov_b32 exec_hi, 0")
    A(f"buffer_store_dword v0, v40, {WS}, 0 offen sc1")
    A("s_mov_b64 exec, -1")
    if opt("pdbg"): A("s_memrealtime s[94:95]")
    for ts, ks in ((T0, 0), (T1A, 1)):
        for tb in range(4):
            for t in range(2): tread(A, 0, ks, tb, ts, "T", t)
    A(f"s_cmp_eq_u32 s{S_WN}, 1")
    A("s_cbranch_scc1 L_pro_w1")
    for wn in range(2):
        if wn: A.label("L_pro_w1")
        for b in range(4):
            for t in range(2): wread(A, wn, b, 0, WR + b * 4, "W", t)
        A("s_waitcnt lgkmcnt(8)")
        A("s_barrier")
        stamp(A, 1)
        A("s_waitcnt lgkmcnt(0)")
        A(f"s_mov_b32 s{S_ITER}, 8")
        for wm in range(1, 4):
            A(f"s_cmp_eq_u32 s{S_WM}, {wm}")
            A(f"s_cbranch_scc1 L_loop{wn*4+wm}")
        for wm in range(4):
            w = wn * 4 + wm
            B = Asm(); p1_body(B, w); entry = list(B.lgkm)
            A.label(f"L_loop{w}")
            A(f"s_cmp_eq_u32 s{S_ITER}, s{S_MYIT}")
            A(f"s_cbranch_scc1 L_loopc{w}")
            A.lgkm = list(entry)
            A.label(f"L_loopp{w}")
            p1_body(A, w, False)
            assert A.lgkm == entry
            A(f"s_sub_u32 s{S_ITER}, s{S_ITER}, 1")
            A(f"s_cmp_gt_u32 s{S_ITER}, 2")
            A(f"s_cbranch_scc1 L_loop{w}")
            A.label(f"L_loopc{w}")
            p1_body(A, w, True)
            assert A.lgkm == entry
            A(f"s_sub_u32 s{S_ITER}, s{S_ITER}, 1")
            A(f"s_cmp_lt_u32 s{S_ITER}, 2")
            A(f"s_cbranch_scc1 L_loopt{w}")
            A(f"s_call_b64 s[{S_RET}:{S_RET+1}], L_x_cpub_{w}")
            A(f"s_cmp_gt_u32 s{S_ITER}, 2")
            A(f"s_cbranch_scc1 L_loopp{w}")
            A.label(f"L_loopt{w}")
            A(f"s_cmp_lg_u32 s{S_ITER}, 0")
            A(f"s_cbranch_scc1 L_loopc{w}")
            A(f"s_branch L_epi{wn}")
            p1_extras(A, w)
        p1_epilogue(A, wn)

PPB = 136
def o_soft(A, e):
    PK, SC = 64, 96
    q = 120 + 4 * e
    MF(A, PK, 56, q); MF(A, PK + 4, 60, q)
    A("s_nop 7")
    softmax(A, PK, PPB + 8 * e, PPB + 8 * e + 4, SC)
def o_fin(A, e, soff):
    O, N0, N1, DN = 24, 80, 84, 88
    PP, PM = PPB + 8 * e, PPB + 8 * e + 4
    MF(A, DN, 48, PP); MF(A, N0, 32, PP); MF(A, N1, 40, PP)
    MF(A, DN, 52, PM, DN); MF(A, N0, 36, PM, N0); MF(A, N1, 44, PM, N1)
    A("s_nop 7")
    A(f"v_add_f32 v{DN}, 0x358637bd, v{DN}")
    A(f"v_rcp_f32 v{DN}, v{DN}")
    A("s_nop 0")
    for r in range(8): A(f"v_mul_f32 v{N0+r}, v{N0+r}, v{DN}")
    d = O + 4 * (e & 1)
    for r in range(4): cvt(A, d + r, N0 + 2 * r)
    A(f"buffer_store_dwordx4 v[{d}:{d+3}], v4, {WS}, s{soff} offen offset:{e*1024} sc1")

def phase2(A):
    A.p2 = True
    SPL = int(opt("h1n", 64)); NB1 = min(SPL - 32, 32); K1O = SPL - 32 - NB1; NB0 = 32 - NB1; N0 = 144 - SPL; OST = N0 - 32
    assert NB0 % 2 == 0 and NB0 >= 0
    H, M, N, TILE = 20, 21, 22, 23
    SRD_X, SRD_B, SRD_OUT = 8, 12, 16
    S_SLOT, S_DELTA = 24, 25
    AOFF, BOFF, AINC, BINC, POS, EVT, LDS, B2, LA, LB = 26, 27, 28, 29, 30, 31, 32, 33, 34, 35
    NIT, T2, S_OO, RET = 60, 56, 58, 76
    VT, VW = 1, 2
    TS = [8, 24]; WSR = [40, 56]; AC = 72; XR = 136; KG = 160
    KI = [int(opt("kc", 1))]
    OS = KI[0] + int(opt("kd", 6))
    KO1, KO2 = 33, 34
    def ac(cb, tb): return AC + (cb * 4 + tb) * 4
    def common(A):
        stamp(A, 0)
        A(f"v_mov_b32 v4, v{L16}")
        A("v_lshrrev_b32 v3, 4, v4")
        A("v_lshrrev_b32 v5, 4, v3           ; g")
        A("v_and_b32 v6, 15, v3")
        A("v_lshlrev_b32 v12, 2, v3          ; lane*4")
        A("v_mov_b32 v13, 0")
        A("v_mov_b32 v14, 1")
        tile_ids(A, H, M, N, TILE, T)
        A(f"s_cmp_eq_u32 s{H}, 1")
        A(f"s_cselect_b32 s{NIT}, {SPL // 2}, {N0 // 2}")
    def own_flags(A):
        off_h(A, T, 1); off_k(A, T + 1)
        A("s_waitcnt vmcnt(0)")
        A("s_mov_b64 exec, 1")
        put(A, T, 14, 13); put(A, T + 1, 14, 13)
        if opt("edbg"):
            A("s_memrealtime s[94:95]")
            A("s_waitcnt lgkmcnt(0)")
            lin(A, T, [(2, 9), (S_W, 6)], WS_STAMP + MB)
            for i in range(8):
                A(f"v_mov_b32 v15, s{80+2*i}")
                A(f"buffer_store_dword v15, v13, {WS}, s{T} offen offset:{4*i}")
                A("s_nop 1")
        A("s_mov_b64 exec, -1")
    def poll64(A, soff, lab, vaddr, vdst):
        A.label(lab)
        A(f"buffer_load_dword v{vdst}, v{vaddr}, {WS}, s{soff} offen sc1")
        A("s_waitcnt vmcnt(0)")
        A(f"v_cmp_ne_u32 vcc, 1, v{vdst}")
        A("s_nop 4")
        A(f"s_cbranch_vccz {lab}_ok")
        A("s_sleep 1")
        A(f"s_branch {lab}")
        A.label(lab + "_ok")
    def hf_query(A, d, ph, wn):
        A(f"s_lshr_b32 s{d}, s{M}, 1")
        A(f"s_lshl_b32 s{d}, s{d}, 11")
        A(f"s_and_b32 s{d+1}, s{M}, 1")
        A(f"s_lshl_b32 s{d+1}, s{d+1}, 8")
        A(f"s_add_u32 s{d}, s{d}, s{d+1}")
        A(f"s_add_u32 s{d}, s{d}, {F_H + ph * 1024 + wn * 512}")
    A.label("L_p2_cons")
    common(A)
    A("s_barrier                 ; B4")
    make_srd(A, SRD_OUT, P + 12, P + 13, 4 * MB)
    A("v_mov_b32 v158, v12")
    S_CM, S_CN, CI = 26, 27, 28
    A(f"s_and_b32 s{S_CM}, s{S_WM}, 1")
    A(f"s_lshr_b32 s{S_CN}, s{S_WM}, 1")
    A(f"s_lshl_b32 s{T}, s{S_CM}, 12")
    A(f"v_add_u32 v{VT}, s{T}, v4")
    A("v_and_b32 v7, 1, v5")
    A("v_lshrrev_b32 v8, 2, v6")
    A("v_lshl_add_u32 v7, v7, 2, v8")
    A("v_mul_u32_u24 v7, 1056, v7")
    A("v_lshrrev_b32 v8, 1, v5")
    A("v_lshl_add_u32 v7, v8, 8, v7")
    A("v_and_b32 v8, 3, v6")
    A("v_lshl_add_u32 v7, v8, 3, v7")
    lin(A, T, [(S_CN, 7)], 8192)
    A(f"v_add_u32 v{VW}, s{T}, v7")
    lin(A, T, [(M, 7), (S_CM, 6)], 0)
    A(f"v_add_u32 v7, s{T}, v6")
    A("v_lshlrev_b32 v7, 11, v7")
    lin(A, T, [(N, 8), (S_CN, 7)], 0)
    A(f"v_add_u32 v7, s{T}, v7")
    for tb in range(1, 4): A(f"s_mov_b32 s{60+tb}, {tb * 32768}")
    sof = lambda tb: "0" if tb == 0 else f"s{60+tb}"
    for r in range(64): A(f"v_mov_b32 v{AC+r}, 0")
    A(f"s_mov_b32 s{S_SLOT}, 0")
    own_flags(A)
    lin(A, T2, [(S_J, 8)], F_K)
    A("v_lshlrev_b32 v156, 4, v5          ; g*16")
    A(f"s_mul_i32 s{T}, s{S_J}, {8 * KVP_SZ}")
    A(f"s_add_u32 s{T}, s{T}, {WS_KVP}")
    A(f"s_lshl_b32 s{KO1}, s{S_WM}, 11")
    A(f"s_add_u32 s{KO1}, s{KO1}, s{T}")
    A(f"s_lshl_b32 s{KO2}, s{S_WM}, 6")
    A(f"s_add_u32 s{KO2}, s{KO2}, s{T}")
    A(f"s_add_u32 s{KO2}, s{KO2}, 8192")
    if opt("prio"): A("s_setprio 1")
    A("s_barrier")
    A.lgkm = []
    def reads(st):
        out = []
        for k in range(4):
            out.append(lambda A, k=k: A.ds(f"ds_read_b128 v[{TS[st]+4*k}:{TS[st]+4*k+3}], v{VT} offset:{k*1024}", f"S{st}"))
            for tt in range(2):
                out.append(lambda A, k=k, tt=tt: A.ds(f"ds_read_b64_tr_b16 v[{WSR[st]+4*k+2*tt}:{WSR[st]+4*k+2*tt+1}], v{VW} offset:{tt*512 + k*32}", f"S{st}"))
        return out
    def adv0(A):
        A(f"s_add_u32 s{S_SLOT}, s{S_SLOT}, 1")
        A(f"s_cmp_eq_u32 s{S_SLOT}, {NSLOT}")
        A(f"s_cselect_b32 s{S_SLOT}, 0, s{S_SLOT}")
        A(f"s_mov_b32 s{S_DELTA}, {SLOT}")
        A(f"s_cselect_b32 s{S_DELTA}, {(-(NSLOT-1) * SLOT) & 0xffffffff}, s{S_DELTA}")
    def adv1(A):
        A(f"v_add_u32 v{VT}, s{S_DELTA}, v{VT}")
        A(f"v_add_u32 v{VW}, s{S_DELTA}, v{VW}")
    for f in reads(0): f(A)
    adv0(A); adv1(A)
    stamp(A, 1)
    if opt("stamp"): A("s_waitcnt lgkmcnt(0)")
    entry = list(A.lgkm)
    def citer(extra):
        per = [[] for _ in range(32)]
        for k, f in enumerate(extra): per[(k * 32) // len(extra)].append(f)
        for e in range(2):
            A.wait_lgkm(f"S{e}")
            fill = reads(1 - e) + [adv0, adv1]
            m = 0
            for cb in range(4):
                for tb in (range(4) if cb % 2 == 0 else range(3, -1, -1)):
                    MF(A, ac(cb, tb), WSR[e] + 4 * cb, TS[e] + 4 * tb, ac(cb, tb))
                    if m < len(fill): fill[m](A)
                    for f in per[16 * e + m]: f(A)
                    m += 1
        assert A.lgkm == entry[len(entry)-len(A.lgkm):]
    def check(A, lab, vd, soff, vaddr):
        A.label(lab)
        A("s_waitcnt vmcnt(0)")
        A(f"v_cmp_ne_u32 vcc, 1, v{vd}")
        A("s_nop 4")
        A(f"s_cbranch_vccz {lab}_ok")
        A("s_sleep 1")
        A(f"buffer_load_dword v{vd}, v{vaddr}, {WS}, s{soff} offen sc1")
        A(f"s_branch {lab}")
        A.label(lab + "_ok")
    lds_ = []
    for p in range(8):
        def l1(A, p=p): A(f"buffer_load_dwordx4 v[{KG+4*p}:{KG+3+4*p}], v4, {WS}, s{KO1} offen sc1")
        def l2(A, p=p):
            A(f"buffer_load_dwordx4 v[{KG+32+4*p}:{KG+35+4*p}], v4, {WS}, s{KO1} offen offset:1024 sc1")
            A(f"s_add_u32 s{KO1}, s{KO1}, {KVP_SZ}")
        def l3(A, p=p):
            A(f"buffer_load_dwordx4 v[{KG+64+4*p}:{KG+67+4*p}], v156, {WS}, s{KO2} offen sc1")
            A(f"s_add_u32 s{KO2}, s{KO2}, {KVP_SZ}")
        lds_ += [l1, l2, l3]
    adds = []
    for s_ in (16, 8, 4):
        for base in (KG, KG + 32, KG + 64):
            for r in range(s_): adds.append(lambda A, base=base, r=r, s_=s_: A(f"v_add_f32 v{base+r}, v{base+r}, v{base+s_+r}"))
    for k, base in enumerate((KG, KG + 32, KG + 64)):
        adds.append(lambda A, k=k, base=base: cvt(A, KG + 4 + 2 * k, base))
        adds.append(lambda A, k=k, base=base: cvt(A, KG + 5 + 2 * k, base + 2))
    for ci in range(OS):
        ex = []
        if ci in (KI[0] + 1, KI[0] + 2): ex = lds_[12 * (ci - KI[0] - 1):12 * (ci - KI[0])]
        if ci == OS - 2: A("s_waitcnt vmcnt(0)"); ex = adds[:48]
        if ci == OS - 1: ex = adds[48:]
        citer(ex)
        if ci == 0: A(f"buffer_load_dword v159, v158, {WS}, s{T2} offen sc1")
        if ci == KI[0]: check(A, "L_p2_ck", 159, T2, 158)
        if ci == OS - 1:
            lin(A, T, [(S_WM, 10)], RING)
            A(f"v_lshl_add_u32 v159, v158, 1, s{T}")
            A(f"ds_write_b64 v159, v[{KG+4}:{KG+5}]")
            A(f"ds_write_b64 v159, v[{KG+6}:{KG+7}] offset:512")
            lin(A, T, [(S_WM, 9)], RING + 4096)
            A(f"v_lshl_add_u32 v157, v158, 1, s{T}")
            A(f"ds_write_b64 v157, v[{KG+8}:{KG+9}]")
            A("s_waitcnt lgkmcnt(0)")
        A("s_barrier")
    A(f"s_mov_b32 s{CI}, {OS}")
    cev = []
    def pissue(calc, vaddr=158):
        def f(A):
            calc(A)
            A(f"buffer_load_dword v159, v{vaddr}, {WS}, s{T2} offen sc1")
        return f
    def pcheck(vaddr=158):
        def f(A): check(A, A.newlabel("L_p2_cc"), 159, T2, vaddr)
        return f
    def q_h(wn): return lambda A: hf_query(A, T2, 1, wn)
    def q_o(A): lin(A, T2, [(M, 8)], F_O)
    def q_p(A):
        lin(A, T2, [(TILE, 7)], F_P)
        A("v_and_b32 v157, 12, v158")
    ss_of = lambda pos: (pos - 8) // 2
    def both(f, g): return lambda A: (f(A), g(A))
    PD = int(opt("pd", 2))
    cev.append((OS, pissue(q_h(1))))
    if NB0:
        cev.append((OS + 2, both(pcheck(), pissue(q_h(0)))))
        cev.append((OS + 4, pcheck()))
    else: cev.append((OS + 2, pcheck()))
    assert OS + 4 < ss_of(32)
    cev.append((ss_of(OST) - 1 - PD, pissue(q_o)))
    cev.append((ss_of(OST) - 1, pcheck()))
    cev.append((ss_of(N0) - 1 - PD, pissue(q_p, 157)))
    cev.append((ss_of(N0) - 1, pcheck(157)))
    cev.append((1000 + OS, pissue(q_h(0))))
    if K1O:
        cev.append((1000 + OS + 2, both(pcheck(), pissue(q_h(1)))))
        cev.append((1000 + OS + 4, pcheck()))
    else: cev.append((1000 + OS + 2, pcheck()))
    HB = 29
    A(f"s_mul_i32 s{HB}, s{H}, 1000")
    A(f"s_cmp_eq_u32 s{S_W}, 4")
    A(f"s_cselect_b32 s{EVT}, {OS}, -1")
    A.label("L_p2_cloop")
    citer([])
    A(f"s_cmp_eq_u32 s{CI}, s{EVT}")
    A("s_cbranch_scc1 L_p2_cevt")
    A.label("L_p2_cevt_ret")
    A(f"s_add_u32 s{CI}, s{CI}, 1")
    A(f"s_cmp_lg_u32 s{CI}, s{NIT}")
    A("s_barrier")
    A("s_cbranch_scc1 L_p2_cloop")
    A("s_waitcnt vmcnt(0) lgkmcnt(0)")
    stamp(A, 2)
    A(f"s_cmp_eq_u32 s{H}, 1")
    A("s_cbranch_scc0 L_p2_fin")
    lin(A, T, [(TILE, 16), (S_WM, 14)], WS_PART)
    A("v_lshrrev_b32 v8, 2, v6")
    A("v_mul_u32_u24 v8, 1056, v8")
    A("v_and_b32 v9, 3, v6")
    A("v_lshl_add_u32 v8, v9, 8, v8")
    A("v_lshl_add_u32 v8, v5, 3, v8")
    for h in range(2):
        A(f"s_lshl_b32 s{T+1}, s{S_CM}, 1")
        A(f"s_add_u32 s{T+1}, s{T+1}, {(SPL + h) % NSLOT}")
        A(f"s_cmp_ge_u32 s{T+1}, {NSLOT}")
        A(f"s_cselect_b32 s{T+2}, {NSLOT}, 0")
        A(f"s_sub_u32 s{T+1}, s{T+1}, s{T+2}")
        A(f"s_mul_i32 s{T+1}, s{T+1}, {SLOT}")
        A(f"s_lshl_b32 s{T+2}, s{S_CN}, 7")
        A(f"s_add_u32 s{T+1}, s{T+1}, s{T+2}")
        A(f"v_add_u32 v{1+h}, s{T+1}, v8")
    A("s_barrier            ; x landed")
    for blk in range(16):
        cb, tb = blk // 4, blk % 4
        A.ds(f"ds_read_b64 v[{XR+2*blk}:{XR+2*blk+1}], v{1 + (tb >> 1)} offset:{8192 + (tb & 1) * 4 * 1056 + cb * 32}", f"X{blk}")
    for blk in range(16):
        d = XR + blk * 2; a = AC + blk * 4
        A.wait_lgkm(f"X{blk}")
        A(f"v_lshlrev_b32 v8, 16, v{d}")
        A(f"v_and_b32 v9, s{S_HI}, v{d}")
        A(f"v_lshlrev_b32 v10, 16, v{d+1}")
        A(f"v_and_b32 v11, s{S_HI}, v{d+1}")
        for r in range(4): A(f"v_add_f32 v{a+r}, v{a+r}, v{8+r}")
        if blk and blk % 4 == 0: A(f"s_add_u32 s{T}, s{T}, 4096")
        A(f"buffer_store_dwordx4 v[{a}:{a+3}], v4, {WS}, s{T} offen offset:{(blk%4)*1024} sc1")
    off_p(A, T, TILE)
    A("v_mov_b32 v13, 0")
    A("v_mov_b32 v14, 1")
    A("s_waitcnt vmcnt(0)")
    A("s_mov_b64 exec, 1")
    put(A, T, 14, 13)
    A("s_branch L_p2_end")
    A.label("L_p2_fin")
    A(f"s_add_u32 s{T}, s{S_WM}, {N0 % NSLOT}")
    A(f"s_cmp_ge_u32 s{T}, {NSLOT}")
    A(f"s_cselect_b32 s{T+1}, {NSLOT}, 0")
    A(f"s_sub_u32 s{T}, s{T}, s{T+1}")
    A(f"s_mul_i32 s{T}, s{T}, {SLOT}")
    A(f"v_add_u32 v1, s{T}, v4")
    A("v_and_b32 v8, 1, v5")
    A("v_lshlrev_b32 v8, 5, v8")
    A("v_lshrrev_b32 v9, 1, v5")
    A("v_lshl_add_u32 v8, v9, 4, v8")
    A("v_add_u32 v7, v7, v8")
    A("s_barrier")
    for blk in range(16):
        A.ds(f"ds_read_b128 v[{XR+4*blk}:{XR+4*blk+3}], v1 offset:{blk * 1024 if blk < 8 else 8192 + (blk - 8) * 1056}", f"P{blk}")
    for q in range(2):
        for tb in range(4):
            d = 8 + (q * 4 + tb) * 4
            A.wait_lgkm([f"P{(2*q)*4+tb}", f"P{(2*q+1)*4+tb}"])
            for e in range(2):
                cb = 2 * q + e; a = ac(cb, tb); p = XR + (cb * 4 + tb) * 4
                for r in range(4): A(f"v_add_f32 v{a+r}, v{a+r}, v{p+r}")
                cvt(A, d + 2 * e, a); cvt(A, d + 2 * e + 1, a + 2)
            A("s_nop 1")
            A(f"v_permlane16_swap_b32 v{d}, v{d+2}")
            A(f"v_permlane16_swap_b32 v{d+1}, v{d+3}")
            A(f"buffer_store_dwordx4 v[{d}:{d+3}], v7, {srd(SRD_OUT)}, {sof(tb)} offen offset:{q*64} {opt('osc', 'sc1')}")
    A("s_branch L_p2_end")
    A.label("L_p2_cevt")
    A(f"s_add_u32 s{T}, s{CI}, s{HB}")
    for k, (pos, f) in enumerate(cev[1:], 1):
        A(f"s_cmp_eq_u32 s{T}, {pos}")
        A(f"s_cbranch_scc1 L_p2_cev{k}")
    for k, (pos, f) in enumerate(cev):
        A.label(f"L_p2_cev{k}")
        f(A)
        nx = cev[k + 1][0] % 1000 if k + 1 < len(cev) and (cev[k + 1][0] >= 1000) == (pos >= 1000) else -1
        A(f"s_mov_b32 s{EVT}, {nx}")
        A("s_branch L_p2_cevt_ret")
    A.label("L_p2_prod")
    for r in range(16): A(f"v_mov_b32 v{120+r}, v{96+r}")
    for r in range(8): A(f"v_mov_b32 v{56+r}, v{WPK+r}")
    common(A)
    A("s_barrier                 ; B4")
    make_srd(A, SRD_B, 100, 101, 3584 * 2048)
    A("v_lshlrev_b32 v22, 3, v3")
    A(f"v_add_u32 v22, {RING}, v22")
    lin(A, T, [(M, 13), (S_WM, 11)], 0)
    A(f"v_add_u32 v8, s{T}, v4")
    A(f"s_lshl_b32 s{T+1}, s{S_WM}, 1")
    A(f"v_lshlrev_b32 v9, 3, v5")
    A(f"v_add_u32 v9, s{T+1}, v9")
    A("v_lshlrev_b32 v9, 11, v9")
    A("v_lshl_add_u32 v9, v6, 4, v9")
    A(f"s_lshl_b32 s{T}, s{N}, 8")
    A(f"v_add_u32 v9, s{T}, v9              ; regular")
    A("v_lshrrev_b32 v10, 1, v5")
    A(f"v_mul_u32_u24 v10, {96*2048}, v10")
    A("v_add_u32 v10, v10, v9               ; odd")
    A("v_mov_b32 v11, v9")
    A(f"s_lshl_b32 s{LA}, s{S_WM}, 11")
    A(f"s_mul_i32 s{LB}, s{S_WM}, {2*1056}")
    A(f"s_add_u32 s{LB}, s{LB}, 8192")
    lin(A, S_OO, [(S_J, 17), (S_MT, 14), (S_WM, 12)], WS_ACT + 112 * 131072)
    A(f"s_cmp_eq_u32 s{H}, 1")
    A(f"s_cselect_b32 s{AOFF}, 0, {2 * 131072}")
    A(f"s_cselect_b32 s{BOFF}, 0, {64 * 2048}")
    A(f"s_cselect_b32 s{POS}, 1000, 0")
    A(f"s_add_u32 s{AOFF}, s{AOFF}, {WS_ACT}")
    A(f"s_add_u32 s{EVT}, s{POS}, 32")
    A(f"s_mov_b32 s{AINC}, {3 * 131072}")
    A(f"s_mov_b32 s{BINC}, {112 * 2048}")
    A(f"s_mov_b32 s{B2}, 2048")
    o_soft(A, 0)
    own_flags(A)
    def issue_a(A):
        A(f"s_add_u32 m0, s{LDS}, s{LA}")
        A(f"s_add_u32 s{T2}, s{BOFF}, s{B2}")
        A(f"buffer_load_dwordx4 v8, {WS}, s{AOFF} offen sc1 lds")
        A(f"buffer_load_dwordx4 v8, {WS}, s{AOFF} offen offset:1024 sc1 lds")
        if not opt("hitA"): A(f"s_add_u32 s{AOFF}, s{AOFF}, s{AINC}")
    def issue_b(A, own_t2=False):
        A(f"s_add_u32 m0, s{LDS}, s{LB}")
        if own_t2: A(f"s_add_u32 s{T2}, s{BOFF}, s{B2}")
        else: A("s_nop 0")
        A(f"buffer_load_dwordx4 v11, {srd(SRD_B)}, s{BOFF} offen {opt('bsc', 'sc1')} lds")
        A(f"s_add_u32 m0, m0, 1056")
        if not opt("hitB"): A(f"s_add_u32 s{BOFF}, s{BOFF}, s{BINC}")
        else: A("s_nop 0")
        A(f"buffer_load_dwordx4 v11, {srd(SRD_B)}, s{T2} offen {opt('bsc', 'sc1')} lds")
    def nxt(A):
        A(f"s_add_u32 s{LDS}, s{LDS}, {SLOT}")
        A(f"s_cmp_eq_u32 s{LDS}, {RING}")
        A(f"s_cselect_b32 s{LDS}, 0, s{LDS}")
    def issue_kb(A):
        issue_a(A); issue_b(A)
        A(f"s_add_u32 s{POS}, s{POS}, 1")
        nxt(A)
    A(f"s_mov_b32 s{LDS}, 0")
    for k in range(7): issue_b(A, True); nxt(A)
    hf_query(A, T, 0, 0)
    A(f"s_cmp_eq_u32 s{H}, 1")
    A(f"s_cselect_b32 s{T+1}, 0, 512")
    A(f"s_add_u32 s{T}, s{T}, s{T+1}")
    A(f"buffer_load_dword v15, v12, {WS}, s{T} offen sc1")
    o_soft(A, 1)
    check(A, "L_p2_poll0", 15, T, 12)
    A(f"s_mov_b32 s{LDS}, 0")
    for k in range(7): issue_a(A); nxt(A)
    A(f"s_add_u32 s{POS}, s{POS}, 7")
    o_soft(A, 2)
    A("s_waitcnt vmcnt(8)")
    A("s_barrier")
    stamp(A, 1)
    def mid(A):
        lab = A.newlabel("L_p2_ne")
        A(f"s_cmp_eq_u32 s{POS}, s{EVT}")
        A(f"s_cbranch_scc0 {lab}")
        A(f"s_call_b64 s[{RET}:{RET+1}], L_p2_evt")
        A.label(lab)
    NO = 2
    NPEEL = OS + NO + 1
    assert ss_of(OST) - 1 >= OS + NO, (OST, NPEEL)
    for ss in range(NPEEL):
        if ss == OS + NO:
            off_o(A, T2)
            A("s_waitcnt vmcnt(0)")
            A("s_mov_b64 exec, 1")
            put(A, T2, 14, 13)
            A("s_mov_b64 exec, -1")
        issue_kb(A); mid(A); issue_kb(A)
        if ss == OS:
            for db in range(2):
                for hf in range(2):
                    for e in range(2):
                        d = 32 + (db * 2 + hf) * 4 + 2 * e
                        A(f"ds_read_b64 v[{d}:{d+1}], v22 offset:{((2 * hf + e) * 2 + db)*512}")
            for hf in range(2):
                for e in range(2):
                    A(f"ds_read_b64 v[{48+hf*4+2*e}:{49+hf*4+2*e}], v22 offset:{4096 + (2*hf+e)*512}")
        if ss in (1, 4):
            B = Asm(); o_soft(B, 3); h = len(B.lines) // 2
            for l in (B.lines[:h] if ss == 1 else B.lines[h:]): A.raw(l)
        if OS <= ss < OS + NO:
            if ss == OS: A("s_waitcnt lgkmcnt(0)")
            o_fin(A, 2 * (ss - OS), S_OO); o_fin(A, 2 * (ss - OS) + 1, S_OO)
        if ss == 0: A("s_waitcnt vmcnt(12)")
        else: A("s_waitcnt vmcnt(16)")
        A("s_barrier")
        if opt("p2dbg"):
            k = {int(x): 80 + 2 * i for i, x in enumerate(opt('p2dbg').split(','))}.get(ss)
            if k: A(f"s_memrealtime s[{k}:{k+1}]")
    A(f"s_sub_u32 s{NIT}, s{NIT}, {NPEEL}")
    A.label("L_p2_ploop")
    issue_kb(A); mid(A); issue_kb(A)
    A(f"s_sub_u32 s{NIT}, s{NIT}, 1")
    A(f"s_cmp_lg_u32 s{NIT}, 0")
    A("s_waitcnt vmcnt(16)")
    A("s_barrier")
    A("s_cbranch_scc1 L_p2_ploop")
    stamp(A, 2)
    A("s_waitcnt vmcnt(0)")
    A("s_barrier")
    A("s_branch L_p2_end")
    ev = []
    def seg(aoff, ainc, boff, binc, vsel=None, wo=False):
        def f(A):
            A(f"s_mov_b32 s{AOFF}, {aoff}")
            A(f"s_mov_b32 s{AINC}, {ainc}")
            A(f"s_mov_b32 s{BOFF}, {boff}")
            A(f"s_mov_b32 s{BINC}, {binc}")
            if vsel is not None: A(f"v_mov_b32 v11, v{vsel}")
            if wo:
                A(f"s_mov_b32 s{SRD_B}, s{P+6}")
                A(f"s_and_b32 s{SRD_B+1}, s{P+7}, 0xffff")
                A(f"s_mov_b32 s{SRD_B+2}, {1024*2048}")
        return f
    def only0(body):
        def f(A):
            lab = A.newlabel("L_p2_w0")
            A(f"s_cmp_lg_u32 s{S_W}, 0")
            A(f"s_cbranch_scc1 {lab}")
            body(A, lab)
            A.label(lab)
        return f
    def pollh1(both):
        def b(A, lab):
            hf_query(A, T, 1, 0)
            poll64(A, T, lab + "_a", 12, 15)
            if both:
                A(f"s_add_u32 s{T}, s{T}, 512")
                poll64(A, T, lab + "_b", 12, 15)
        return only0(b)
    def pollo(A, lab):
        lin(A, T, [(M, 8)], F_O)
        poll64(A, T, lab + "_a", 12, 15)
    def pollp(A, lab):
        lin(A, T, [(TILE, 7)], F_P)
        A("v_and_b32 v16, 12, v12")
        poll64(A, T, lab + "_a", 16, 15)
    def part(A):
        for k in range(3): A(f"s_mov_b32 s{SRD_B+k}, s{SRD_WS+k}")
        lin(A, AOFF, [(TILE, 16)], WS_PART)
        A(f"s_add_u32 s{BOFF}, s{AOFF}, 8192")
        A(f"s_mov_b32 s{AINC}, 16384")
        A(f"s_mov_b32 s{BINC}, 16384")
        A(f"s_mov_b32 s{B2}, 1024")
        A(f"v_add_u32 v8, s{LA}, v4")
        A("v_mov_b32 v11, v8")
    oob = seg(0x40000000, 0, 0x40000000, 0)
    if NB0: ev.append((32, seg(WS_ACT + (3 * NB1 + 1) * 131072, 3 * 131072, (112 * NB1 + 32) * 2048, 112 * 2048)))
    ev.append((32 + NB0, seg(WS_ACT + (96 + K1O) * 131072, 131072, (96 + 224 * K1O) * 2048, 224 * 2048, vsel=10)))
    ev.append((OST, seg(WS_ACT + 112 * 131072, 131072, 0, 32 * 2048, vsel=9, wo=True)))
    ev.append((N0, part))
    ev.append((N0 + 4, oob))
    ev.append((1032, seg(WS_ACT + 131072, 3 * 131072, 32 * 2048, 112 * 2048)))
    if K1O: ev.append((1064, seg(WS_ACT + 96 * 131072, 131072, 96 * 2048, 224 * 2048, vsel=10)))
    def xseg(A):
        A(f"s_mov_b32 s{AOFF}, 0x40000000")
        A(f"s_mov_b32 s{AINC}, 0")
        A(f"s_mov_b32 s{SRD_B}, s{P}")
        A(f"s_and_b32 s{SRD_B+1}, s{P+1}, 0xffff")
        A(f"s_mov_b32 s{SRD_B+2}, {4*MB}")
        lin(A, BOFF, [(M, 18), (N, 8), (S_WM, 14)], 0)
        A(f"s_mov_b32 s{BINC}, {32*2048}")
        A(f"s_mov_b32 s{B2}, {4*2048}")
        A("v_lshlrev_b32 v11, 11, v5")
        A("v_lshl_add_u32 v11, v6, 4, v11")
    ev.append((1000 + SPL, xseg))
    ev.append((1004 + SPL, oob))
    A.label("L_p2_evt")
    for k, (pos, f) in enumerate(ev[1:], 1):
        A(f"s_cmp_eq_u32 s{POS}, {pos}")
        A(f"s_cbranch_scc1 L_p2_ev{k}")
    for k, (pos, f) in enumerate(ev):
        A.label(f"L_p2_ev{k}")
        f(A)
        nx = ev[k + 1][0] if k + 1 < len(ev) and (ev[k + 1][0] >= 1000) == (pos >= 1000) else -1
        A(f"s_mov_b32 s{EVT}, {nx}")
        A(f"s_setpc_b64 s[{RET}:{RET+1}]")
    A.label("L_p2_end")
    if opt("odbg"):
        A("s_waitcnt vmcnt(0)")
        A("s_memrealtime s[94:95]")
        A("s_load_dwordx2 s[96:97], s[0:1], 72")
        A("s_waitcnt lgkmcnt(0)")
        A("s_cmp_gt_u32 s2, 1")
        A("s_cbranch_scc1 L_done")
        A(f"s_cmp_lg_u32 s{S_W}, 4")
        A("s_cbranch_scc1 L_done")
        make_srd(A, SRD_D, 96, 97, 256)
        A("s_mov_b64 exec, 1")
        A("v_mov_b32 v1, 0")
        A(f"s_lshl_b32 s{T}, s2, 5")
        for i in range(1, 8):
            A(f"s_sub_u32 s{T+1}, s{80+2*i}, s80")
            A(f"v_mov_b32 v2, s{T+1}")
            A(f"buffer_store_dword v2, v1, {srd(SRD_D)}, s{T} offen offset:{4*i}")
            A("s_nop 1")
        A("s_branch L_done")
    if opt("p2dbg"):
        A("s_memrealtime s[94:95]")
        A("s_mov_b64 exec, 1")
        A("s_waitcnt lgkmcnt(0)")
        lin(A, T, [(2, 9), (S_W, 6)], WS_STAMP + MB)
        A("v_mov_b32 v1, 0")
        for i in range(8):
            A(f"v_mov_b32 v2, s{80+2*i}")
            A(f"buffer_store_dword v2, v1, {WS}, s{T} offen offset:{4*i}")
            A("s_nop 1")
    if opt("stamp"):
        A("s_waitcnt vmcnt(0)")
        stamp(A, 3)
        stamp_store(A, WS_STAMP + MB)

def build():
    A = Asm()
    for l in open("cdna_kernels/" + NAME + ".s.ref").read().split("\n"):
        if l.startswith(";") and "@launch" not in l and "Override" not in l and "grid=ceil" not in l: A.raw(l)
    A.raw(f"; @launch kernel=fused_kernel grid=(256,1,1) block=(512,1,1) lds={max(P1_LDS, P2_LDS)}")
    A.raw('.amdgcn_target "amdgcn-amd-amdhsa--gfx950"')
    A.raw(".text")
    kernel_header(A, "fused_kernel")
    p1_prologue(A)
    phase2(A)
    A.label("L_done")
    A("s_endpgm")
    A.raw('.section .rodata,"a"')
    kernel_desc(A, "fused_kernel", 256)
    return A.text()

if __name__ == "__main__":
    for o in sys.argv[2:]:
        if "=" in o: k, v = o.split("=", 1); OPT[k] = v
        else: OPT[o] = True
    open(sys.argv[1], "w").write(build())
```

```python
import sys
from asmlib import *

NAME = "parallel_sum__linear_kernel_hedgehog__glu_gated_glu__prompt"
MB = 1 << 20
WS_BYTES = 268435456
WS_ACT = 8 * MB
WS_KVP = 28 * MB
KVP_SZ = 8448
WS_PART = 32 * MB
WS_FLAG = 48 * MB
WS_STATS = 49 * MB
WS_STAMP = 52 * MB
F_H = WS_FLAG
F_K = WS_FLAG + 16384
F_O = WS_FLAG + 24576
F_P = WS_FLAG + 28672
F_C = WS_FLAG + 45056
WS_CSP = 50 * MB
LOG2E, NLOG2E = 0x3fb8aa3b, 0xbfb8aa3b
OPT = {}
def opt(k, d=None): return OPT.get(k, d)

A_PAGE = 1040; A_BUF = 32 * A_PAGE; LDS_B = 2 * A_BUF; B_STAGE = 20480
X_LDS = LDS_B + 4 * B_STAGE
CSL = X_LDS; STL = X_LDS + 1536; WPL = STL + 4096; CSPL = WPL + 2048; P1_LDS = CSPL + 7680
HOFF = 100 * 1024
SLOT = 16640; NSLOT = 9; RING = SLOT * NSLOT; P2_LDS = RING + 6144
V_A, V_B0, V_B1, V_B2, V_AR, V_BG, V_BQ0, V_BQ1, L16, V_CT = 1, 2, 3, 4, 5, 6, 7, 8, 9, 10
T0, T1A, T1B, WR = 12, 28, 44, 60
V_ST, V_POLL, V_PA, V_CS = 80, 88, 89, 90
V_BG2, V_BQ02, V_BQ12 = 93, 94, 95
ACC = 96
def acc(b, tb): return ACC + (b * 4 + tb) * 4
S_W, S_WM, S_WN, S_J, S_MT = 3, 4, 5, 6, 7
SRD_A, SRD_B0, SRD_B1, SRD_B2 = 8, 12, 16, 20
S_APAGE, S_AK, S_AKE = 24, 25, 26
S_BOFF, S_BINC, S_BLDS = (27, 28, 29), (30, 31, 32), (33, 34, 35)
P = 36
T = 50
SRD_D = 56
S_ITER = 60
S_MYIT = 61
S_RET = 74
SRD_WS, SRD_WP = 64, 68
S_C = 72; S_ONES = 78; S_HI = 79
S_ST = 80
SRD_PF = 96
WS = f"s[{SRD_WS}:{SRD_WS+3}]"
def srd(n): return f"s[{n}:{n+3}]"

def stamp(A, i):
    if opt("odbg"):
        k = i + (4 if getattr(A, "p2", False) else 0)
        A(f"s_memrealtime s[{80+2*k}:{81+2*k}]")
        return
    if opt("pdbg") and i > 0 and not getattr(A, "p2", False): return
    if opt("stamp"):
        A(f"s_memtime s[{S_ST+4*i}:{S_ST+4*i+1}]")
        A(f"s_memrealtime s[{S_ST+4*i+2}:{S_ST+4*i+3}]")
def stamp_store(A, base):
    if not opt("stamp"): return
    A("s_mov_b64 exec, 1")
    A("s_waitcnt lgkmcnt(0)")
    A(f"s_lshl_b32 s{T}, s2, 3")
    A(f"s_add_u32 s{T}, s{T}, s{S_W}")
    A(f"s_lshl_b32 s{T}, s{T}, 6")
    A(f"s_add_u32 s{T}, s{T}, {base}")
    A("v_mov_b32 v1, 0")
    for i in range(4):
        A(f"v_mov_b32 v2, s{S_ST+4*i}")
        A(f"v_mov_b32 v3, s{S_ST+4*i+2}")
        A(f"buffer_store_dwordx2 v[2:3], v1, {WS}, s{T} offen offset:{8*i}")
        A("s_nop 1")
    A(f"s_getreg_b32 s{T+1}, hwreg(HW_REG_XCC_ID)")
    A(f"v_mov_b32 v2, s{T+1}")
    A(f"buffer_store_dword v2, v1, {WS}, s{T} offen offset:32")
    A("s_mov_b64 exec, -1")

def xreduce_g(A, vs, tmps, op):
    ops = op if isinstance(op, list) else [op] * len(vs)
    for sw in ("v_permlane16_swap_b32", "v_permlane32_swap_b32"):
        for v, t in zip(vs, tmps): A(f"v_mov_b32 v{t}, v{v}")
        A("s_nop 1")
        for v, t in zip(vs, tmps): A(f"{sw} v{v}, v{t}")
        if len(vs) == 1: A("s_nop 0")
        for v, t, o in zip(vs, tmps, ops): A(f"v_{o}_f32 v{v}, v{v}, v{t}")
def wave_allreduce(A, v, tmp):
    for dpp in ("quad_perm:[1,0,3,2]", "quad_perm:[2,3,0,1]", "row_half_mirror", "row_mirror"):
        A("s_nop 1")
        A(f"v_add_f32_dpp v{v}, v{v}, v{v} {dpp} row_mask:0xf bank_mask:0xf")
    xreduce_g(A, [v], [tmp], "add")
def MF(A, d, a, b, c=None):
    cs = "0" if c is None else f"v[{c}:{c+3}]"
    A(f"v_mfma_f32_16x16x32_bf16 v[{d}:{d+3}], v[{a}:{a+3}], v[{b}:{b+3}], {cs}")
def cvt(A, d, a): A(f"v_cvt_pk_bf16_f32 v{d}, v{a}, v{a+1}")

def softmax(A, pk, Pp, Pm, t):
    mx, mn, x0, x1, ep, em, sp, sm = t, t + 1, t + 2, t + 3, t + 4, t + 12, t + 20, t + 21
    A(f"v_max3_f32 v{mx}, v{pk}, v{pk+1}, v{pk+2}")
    A(f"v_min3_f32 v{mn}, v{pk}, v{pk+1}, v{pk+2}")
    for r in (3, 5):
        A(f"v_max3_f32 v{mx}, v{mx}, v{pk+r}, v{pk+r+1}")
        A(f"v_min3_f32 v{mn}, v{mn}, v{pk+r}, v{pk+r+1}")
    A(f"v_max_f32 v{mx}, v{mx}, v{pk+7}")
    A(f"v_min_f32 v{mn}, v{mn}, v{pk+7}")
    xreduce_g(A, [mx, mn], [x0, x1], ["max", "min"])
    A(f"v_mul_f32 v{mx}, s{S_C}, v{mx}")
    A(f"v_mul_f32 v{mn}, s{S_C+1}, v{mn}")
    for r in range(8):
        A(f"v_fma_f32 v{ep+r}, v{pk+r}, s{S_C+1}, v{mx}")
        A(f"v_fma_f32 v{em+r}, v{pk+r}, s{S_C}, v{mn}")
    for r in range(8):
        A(f"v_exp_f32 v{ep+r}, v{ep+r}")
        A(f"v_exp_f32 v{em+r}, v{em+r}")
    A(f"v_add_f32 v{sp}, v{ep}, v{ep+1}")
    A(f"v_add_f32 v{sm}, v{em}, v{em+1}")
    for r in range(2, 8):
        A(f"v_add_f32 v{sp}, v{sp}, v{ep+r}")
        A(f"v_add_f32 v{sm}, v{sm}, v{em+r}")
    xreduce_g(A, [sp, sm], [x0, x1], "add")
    A(f"v_rcp_f32 v{sp}, v{sp}")
    A(f"v_rcp_f32 v{sm}, v{sm}")
    A("s_nop 0")
    for r in range(8):
        A(f"v_mul_f32 v{ep+r}, v{ep+r}, v{sp}")
        A(f"v_mul_f32 v{em+r}, v{em+r}, v{sm}")
    for r in range(4):
        cvt(A, Pp + r, ep + 2 * r); cvt(A, Pm + r, em + 2 * r)

def blocks_of(wn):
    if wn == 0: return [("q", 0), ("q", 1)] + [x for b in range(4) for x in (("g", b), ("u", b))]
    return [("k", 0), ("k", 1), ("v", 0), ("v", 1)] + [x for b in range(4, 7) for x in (("g", b), ("u", b))]
def wread(A, wn, blk, stage, dst, tag, t):
    kind, idx = blocks_of(wn)[blk]
    so = (stage & 1) * B_STAGE; hi = stage >> 1
    if kind in "qkv":
        off = so + (2 * "qkv".index(kind) + t) * 1024
        va = ((V_BQ0, V_BQ1), (V_BQ02, V_BQ12))[hi][idx]
    else:
        off = so + (6144 if kind == "g" else 13312) + t * 3584 + idx * 32
        va = (V_BG, V_BG2)[hi]
    A.ds(f"ds_read_b64_tr_b16 v[{dst+2*t}:{dst+2*t+1}], v{va} offset:{off}", tag)
def tread(A, abuf, ks, tb, dst, tag, t):
    A.ds(f"ds_read_b64 v[{dst+tb*4+2*t}:{dst+tb*4+2*t+1}], v{V_AR} offset:{abuf * A_BUF + tb * 256 + ks * 64 + t * 32}", tag)
def nB(w): return 0 if w == 7 else (2 if w == 6 else 3)
def nA(w): return 0 if w == 7 else (4 if w == 6 else 2)
BS = ((V_B0, SRD_B0), (V_B1, SRD_B1), (V_B2, SRD_B2))
def bdma(k, slot):
    def f0(A): A(f"s_add_u32 m0, s{S_BLDS[k]}, {LDS_B + slot * B_STAGE}")
    def f1(A):
        A(f"buffer_load_dwordx4 v{BS[k][0]}, {srd(BS[k][1])}, s{S_BOFF[k]} offen lds")
        A(f"s_add_u32 s{S_BOFF[k]}, s{S_BOFF[k]}, s{S_BINC[k]}")
    return f0, f1
def adma(h, e, abuf, kconst=None):
    def f0(A):
        if kconst is None: A(f"s_add_u32 s{T}, s{S_AKE}, {h * 128 * 2048 + e * 4096}")
        else: A(f"s_mov_b32 s{T}, {kconst + h * 128 * 2048 + e * 4096}")
        A(f"s_add_u32 m0, s{S_APAGE}, {abuf * A_BUF + (16 * h + e) * A_PAGE}")
    def f1(A): A(f"buffer_load_dwordx4 v{V_A}, {srd(SRD_A)}, s{T} offen lds")
    return f0, f1
def pfload(A, k):
    A(f"buffer_load_dword v{V_A}, v{BS[k][0]}, {srd(BS[k][1])}, s{S_BOFF[k]} offen")
    A(f"s_add_u32 s{S_BOFF[k]}, s{S_BOFF[k]}, s{S_BINC[k]}")
def cs_ops(b, half):
    out = []
    c = V_CS + (b // 4)
    for r in (2 * half, 2 * half + 1):
        w = WR + (b % 5) * 4 + r
        def f0(A, w=w):
            A(f"v_lshlrev_b32 v{V_CT}, 16, v{w}")
            A(f"v_and_b32 v{V_CT+1}, s{S_HI}, v{w}")
        def f1(A, c=c):
            A(f"v_add_f32 v{c}, v{c}, v{V_CT}")
            A(f"v_add_f32 v{c}, v{c}, v{V_CT+1}")
        out += [f0, f1]
    return out
def extras_of(w, u):
    if w == 7: return {0: [(2, "poll"), (4, "drain")], 1: [(4, "sig")], 2: [(2, "stat"), (4, "pfd"), (8, "rows")], 3: [(int(opt("pfc", 2)), "pfc")] if opt("pfc", 2) else []}[u]
    return {0: [(2, "poll"), (6, "drain")] + ([(1, "cpoll")] if w == 5 else []), 1: [(3, "wphi")] if w == 4 else [],
            2: [(2, "stat"), (8, "rows")] + ([(1, "cload")] if w == 5 else []), 3: []}[u]

def p1_body(A, w, cs=True):
    wn, wm = w >> 2, w & 3
    blocks = blocks_of(wn)
    G_ = [[] for _ in range(160)]
    def gap(u, i): return G_[(40 * u + i) % 160]
    for u in range(4):
        odd = u & 1
        for c in range(10):
            tgt = c + 4
            blk, st = (tgt, u) if tgt < 10 else (tgt - 10, (u + 1) & 3)
            sl = tgt % 5
            delayed = ((c - 1) % 10) % 4 == wm
            for t in range(2):
                pos = 4 * (c + 1) + 2 + t if delayed else 4 * c + t
                gap(u, pos).append(lambda A, blk=blk, st=st, sl=sl, t=t: wread(A, wn, blk, st, WR + sl * 4, f"W{sl}", t))
        if odd:
            nb = ((u + 1) >> 1) & 1
            Tn1 = T1B if u == 1 else T1A
            tr = [(nb, 0, tb, T0, "T0") for tb in range(4)] + [(nb, 1, tb, Tn1, "T1") for tb in range(4)]
            for k, x in enumerate(tr):
                for t in range(2):
                    gap(u, 4 * [0, 1, 2, 3, 4, 6, 7, 8][k] + 2 + t).append(lambda A, x=x, t=t: tread(A, *x, t))
            def adv(A):
                A(f"s_add_u32 s{S_AK}, s{S_AK}, 128")
                A(f"s_cmp_ge_u32 s{S_AK}, 2048")
                A(f"s_cselect_b32 s{S_AKE}, 0x10000000, s{S_AK}")
            if nA(w): gap(u, 4 * 9 + 2).append(adv)
        dm = [bdma(k, (u + 3) & 3) for k in range(nB(w))] + [adma(u & 1, e, (u >> 1) & 1) for e in range(nA(w))]
        for k, (f0, f1) in enumerate(dm):
            gap(u, 4 * k + 2).insert(0, f0)
            gap(u, 4 * k + 3).insert(0, f1)
        if w == 7:
            for k in range(3): gap(u, 4 * k + 3).append(lambda A, k=k: pfload(A, k))
        for b in (range(wm, 10, 4) if cs else []):
            for k, f in enumerate(cs_ops(b, 0) + cs_ops(b, 1)): gap(u, 4 * b + (k if b < 9 else k // 2)).append(f)
        for it, nm in extras_of(w, u):
            def g(A, it=it, nm=nm):
                lab = A.newlabel("L_nx")
                A(f"s_cmp_eq_u32 s{S_ITER}, {it}")
                A(f"s_cbranch_scc0 {lab}")
                A(f"s_call_b64 s[{S_RET}:{S_RET+1}], L_x_{nm}_{w}")
                A.label(lab)
            gap(u, 4 * 8 + 3).append(g)
    for u in range(4):
        odd = u & 1
        Tuse = T0 if not odd else (T1A if u == 1 else T1B)
        for b in range(10):
            A.wait_lgkm([f"W{b % 5}"] + ([("T1" if odd else "T0")] if b == 0 else []))
            wr = WR + (b % 5) * 4
            for k, tb in enumerate(range(4) if b % 2 == 0 else range(3, -1, -1)):
                a = acc(b, tb)
                if blocks[b][0] == "v": MF(A, a, Tuse + tb * 4, wr, a)
                else: MF(A, a, wr, Tuse + tb * 4, a)
                for f in G_[40 * u + 4 * b + k]: f(A)
        nv = nA(w) + nB(w)
        ws_ = [f"vmcnt({nv})"] if nv else []
        n = A.lgkm_count_for(["T0", "T1"]) if odd else None
        if n is not None:
            ws_.append(f"lgkmcnt({n})"); A.lgkm_retire(n)
        if ws_: A("s_waitcnt " + " ".join(ws_))
        A("s_barrier")

ROWS7 = 0
def p1_extras(A, w):
    global ROWS7
    ROWS7 = 3 * int(opt("npf", 0)) + 9 + (2 if opt("pfx") else 0)
    wm = w & 3
    dbg = srd(SRD_D)
    A.label(f"L_x_drain_{w}")
    A("s_waitcnt vmcnt(0)")
    A(f"s_setpc_b64 s[{S_RET}:{S_RET+1}]")
    A.label(f"L_x_rows_{w}")
    A(f"s_waitcnt vmcnt({ROWS7 if w == 7 else 0})")
    a0, a1, t0, t1 = 88, 89, 10, 11
    for i in range(8):
        A(f"v_lshlrev_b32 v{t0}, 16, v{80+i}")
        A(f"v_and_b32 v{t1}, s{S_HI}, v{80+i}")
        if i == 0:
            A(f"v_mov_b32 v{a0}, v{t0}"); A(f"v_mov_b32 v{a1}, v{t1}")
        else:
            A(f"v_add_f32 v{a0}, v{a0}, v{t0}"); A(f"v_add_f32 v{a1}, v{a1}, v{t1}")
    A(f"v_add_f32 v{a0}, v{a0}, v{a1}")
    wave_allreduce(A, a0, t0)
    A(f"v_mul_f32 v{a0}, 0xba800000, v{a0}     ; -mean")
    for i in range(8):
        A(f"v_lshlrev_b32 v{t0}, 16, v{80+i}")
        A(f"v_and_b32 v{t1}, s{S_HI}, v{80+i}")
        A(f"v_add_f32 v{t0}, v{t0}, v{a0}")
        A(f"v_add_f32 v{t1}, v{t1}, v{a0}")
        if i == 0: A(f"v_mul_f32 v{a1}, v{t0}, v{t0}")
        else: A(f"v_fmac_f32 v{a1}, v{t0}, v{t0}")
        A(f"v_fmac_f32 v{a1}, v{t1}, v{t1}")
    wave_allreduce(A, a1, t0)
    A(f"v_mul_f32 v{a1}, 0x3a800000, v{a1}     ; var")
    A(f"v_cvt_pk_bf16_f32 v{t0}, v{a0}, v{a1}")
    A(f"v_lshlrev_b32 v80, 16, v{t0}")
    A(f"v_and_b32 v{a1}, s{S_HI}, v{t0}")
    A(f"v_add_f32 v{a1}, 0x3727c5ac, v{a1}")
    A(f"v_cvt_pk_bf16_f32 v{a1}, v{a1}, v{a1}")
    A(f"v_lshlrev_b32 v{a1}, 16, v{a1}")
    A(f"v_sqrt_f32 v{a1}, v{a1}")
    A(f"s_lshl_b32 s{T+1}, s2, 6")
    A(f"v_cvt_pk_bf16_f32 v{a1}, v{a1}, v{a1}")
    A(f"s_add_u32 s{T+1}, s{T+1}, {WS_STATS + w * 8}")
    A(f"v_lshlrev_b32 v81, 16, v{a1}")
    A("s_mov_b64 exec, 1")
    A(f"buffer_store_dwordx2 v[80:81], v0, {WS}, s{T+1} offen sc1")
    A("s_mov_b64 exec, -1")
    A(f"s_setpc_b64 s[{S_RET}:{S_RET+1}]")
    def paddr(A):
        A(f"v_and_b32 v{V_PA}, 0x70, v{L16}")
        A(f"v_lshlrev_b32 v{V_PA}, 1, v{V_PA}")
        A(f"buffer_load_dword v{V_POLL}, v{V_PA}, {dbg}, 0 offen sc1")
    A.label(f"L_x_poll_{w}")
    paddr(A)
    A(f"s_setpc_b64 s[{S_RET}:{S_RET+1}]")
    A.label(f"L_x_stat_{w}")
    A("s_waitcnt vmcnt(0)")
    A(f"v_cmp_ne_u32 vcc, 32, v{V_POLL}")
    A("s_nop 4")
    A(f"s_cbranch_vccz L_x_stat_{w}_go")
    A("s_sleep 2")
    paddr(A)
    A(f"s_branch L_x_stat_{w}")
    A.label(f"L_x_stat_{w}_go")
    off_c(A, T + 1)
    A(f"v_mov_b32 v{V_POLL}, 1")
    A("s_mov_b64 exec, 1")
    put(A, T + 1, V_POLL, 0)
    A("s_mov_b64 exec, -1")
    A(f"v_and_b32 v{V_POLL}, 0xf0, v{L16}")
    A(f"v_lshrrev_b32 v{V_POLL}, 1, v{V_POLL}")
    A(f"s_lshl_b32 s{T+1}, s{S_MT}, 11")
    A(f"s_add_u32 s{T+1}, s{T+1}, {WS_STATS + wm * 512}")
    for tb in range(4):
        A(f"buffer_load_dwordx2 v[{V_ST+2*tb}:{V_ST+2*tb+1}], v{V_POLL}, {WS}, s{T+1} offen offset:{tb*128} sc1")
    A(f"s_setpc_b64 s[{S_RET}:{S_RET+1}]")
    A.label(f"L_x_cpub_{w}")
    xreduce_g(A, [V_CS, V_CS + 1, V_CS + 2], [10, 11, V_POLL], "add")
    A(f"v_and_b32 v{V_PA}, 0xf0, v{L16}")
    A(f"v_lshrrev_b32 v{V_PA}, 2, v{V_PA}")
    A(f"s_mul_i32 s{T+1}, s{S_J}, 7680")
    A(f"s_mul_i32 s{T+2}, s{S_MT}, 1280")
    A(f"s_add_u32 s{T+1}, s{T+1}, s{T+2}")
    A(f"s_add_u32 s{T+1}, s{T+1}, {WS_CSP + (w >> 2) * 640 + wm * 64}")
    A("s_mov_b64 exec, 0xffff")
    for i in range(3 if wm < 2 else 2):
        A(f"buffer_store_dword v{V_CS+i}, v{V_PA}, {WS}, s{T+1} offen offset:{256*i} sc1")
    A("s_mov_b64 exec, -1")
    A("s_nop 1")
    for i in range(3): A(f"v_mov_b32 v{V_CS+i}, 0")
    A(f"s_setpc_b64 s[{S_RET}:{S_RET+1}]")
    if w == 5:
        A.label(f"L_x_cpoll_{w}")
        A(f"v_lshrrev_b32 v{V_PA}, 2, v{L16}")
        lin(A, T + 1, [(S_J, 8)], F_C)
        A(f"buffer_load_dword v{V_POLL}, v{V_PA}, {WS}, s{T+1} offen sc1")
        A(f"s_setpc_b64 s[{S_RET}:{S_RET+1}]")
        A.label(f"L_x_cload_{w}")
        A("s_waitcnt vmcnt(0)")
        A(f"v_cmp_ne_u32 vcc, 1, v{V_POLL}")
        A("s_nop 4")
        A(f"s_cbranch_vccz L_x_cload_go")
        A("s_sleep 1")
        A(f"v_lshrrev_b32 v{V_PA}, 2, v{L16}")
        lin(A, T + 1, [(S_J, 8)], F_C)
        A(f"buffer_load_dword v{V_POLL}, v{V_PA}, {WS}, s{T+1} offen sc1")
        A(f"s_branch L_x_cload_{w}")
        A.label("L_x_cload_go")
        A(f"s_mul_i32 s{T+1}, s{S_J}, 7680")
        A(f"s_add_u32 s{T+1}, s{T+1}, {WS_CSP}")
        for h in range(2):
            A(f"s_mov_b32 m0, {CSPL + h * 4096}")
            A("s_nop 0")
            for k in range(4):
                A(f"buffer_load_dwordx4 v{L16}, {WS}, s{T+1} offen offset:{k*1024} sc1 lds")
            A(f"s_add_u32 s{T+1}, s{T+1}, 4096")
        A(f"s_setpc_b64 s[{S_RET}:{S_RET+1}]")
    if w == 4:
        A.label(f"L_x_wphi_{w}")
        A(f"s_mov_b32 m0, {WPL}")
        A(f"s_lshl_b32 s{T+1}, s{S_J}, 11")
        A(f"buffer_load_dwordx4 v{L16}, {srd(SRD_WP)}, s{T+1} offen lds")
        A(f"buffer_load_dwordx4 v{L16}, {srd(SRD_WP)}, s{T+1} offen offset:1024 lds")
        A(f"s_setpc_b64 s[{S_RET}:{S_RET+1}]")
    if w == 7:
        A.label(f"L_x_sig_{w}")
        A(f"s_lshr_b32 s{T+1}, s2, 5")
        A(f"s_lshl_b32 s{T+1}, s{T+1}, 5")
        A(f"v_mov_b32 v{V_POLL}, 1")
        A("s_mov_b64 exec, 1")
        A(f"buffer_atomic_add v{V_POLL}, v0, {dbg}, s{T+1} offen sc1")
        A("s_mov_b64 exec, -1")
        A(f"s_setpc_b64 s[{S_RET}:{S_RET+1}]")
        if opt("pfc", 2):
            A.label(f"L_x_pfc_{w}")
            A(f"s_getpc_b64 s[{SRD_PF}:{SRD_PF+1}]")
            A.label("L_pc_ref")
            A(f"s_sub_u32 s{SRD_PF}, s{SRD_PF}, L_pc_ref - fused_kernel")
            A(f"s_subb_u32 s{SRD_PF+1}, s{SRD_PF+1}, 0")
            A(f"s_and_b32 s{SRD_PF+1}, s{SRD_PF+1}, 0xffff")
            A(f"s_mov_b32 s{SRD_PF+2}, L_done - fused_kernel")
            A(f"s_mov_b32 s{SRD_PF+3}, 0x00020000")
            A(f"v_lshrrev_b32 v{V_POLL}, 4, v{L16}")
            A(f"v_min_u32 v{V_POLL}, 23, v{V_POLL}")
            A(f"v_lshlrev_b32 v{V_POLL}, 7, v{V_POLL}")
            A(f"s_lshr_b32 s{T+1}, s2, 3")
            A(f"s_mul_i32 s{T+1}, s{T+1}, {24*128}")
            A(f"buffer_load_dword v{V_A}, v{V_POLL}, {srd(SRD_PF)}, s{T+1} offen")
            A(f"s_setpc_b64 s[{S_RET}:{S_RET+1}]")
        A.label(f"L_x_pfd_{w}")
        make_srd(A, SRD_PF, 100, 101, 3584 * 2048)
        A(f"v_lshrrev_b32 v{V_POLL}, 4, v{L16}")
        A(f"v_min_u32 v{V_POLL}, 55, v{V_POLL}")
        A(f"v_lshlrev_b32 v{V_POLL}, 7, v{V_POLL}")
        A(f"s_mul_i32 s{T+1}, s2, {224*128}")
        for k in range(4):
            A(f"buffer_load_dword v{V_A}, v{V_POLL}, {srd(SRD_PF)}, s{T+1} offen")
            A(f"s_add_u32 s{T+1}, s{T+1}, {56*128}")
        A(f"s_mov_b32 s{SRD_PF}, s{P+6}")
        A(f"s_and_b32 s{SRD_PF+1}, s{P+7}, 0xffff")
        A(f"s_mov_b32 s{SRD_PF+2}, {1024*2048}")
        A(f"v_lshlrev_b32 v{V_POLL}, 3, v{L16}")
        A(f"s_lshl_b32 s{T+1}, s2, 13")
        A(f"buffer_load_dword v{V_A}, v{V_POLL}, {srd(SRD_PF)}, s{T+1} offen")
        A(f"s_setpc_b64 s[{S_RET}:{S_RET+1}]")

def tile_ids(A, H, M, N, TILE, t):
    A(f"s_and_b32 s{t}, s2, 7")
    A(f"s_lshr_b32 s{t+1}, s2, 3")
    A(f"s_and_b32 s{H}, s{t}, 1")
    A(f"s_lshr_b32 s{M}, s{t}, 1")
    A(f"s_lshl_b32 s{M}, s{M}, 2")
    A(f"s_and_b32 s{t}, s{t+1}, 3")
    A(f"s_add_u32 s{M}, s{M}, s{t}")
    A(f"s_lshr_b32 s{N}, s{t+1}, 2")
    A(f"s_lshl_b32 s{TILE}, s{M}, 3")
    A(f"s_add_u32 s{TILE}, s{TILE}, s{N}")
def lin(A, d, terms, base):
    first = True
    for r, sh in terms:
        if first: A(f"s_lshl_b32 s{d}, s{r}, {sh}"); first = False
        else:
            A(f"s_lshl_b32 s{T+5}, s{r}, {sh}")
            A(f"s_add_u32 s{d}, s{d}, s{T+5}")
    A(f"s_add_u32 s{d}, s{d}, {base}")
def off_h(A, d, ph): lin(A, d, [(S_MT, 11), (S_W, 7), (S_J, 2)], F_H + ph * 1024)
def off_k(A, d): lin(A, d, [(S_J, 8), (S_MT, 5), (S_W, 2)], F_K)
def off_c(A, d): lin(A, d, [(S_J, 8), (S_MT, 5), (S_W, 2)], F_C)
def off_o(A, d): lin(A, d, [(S_MT, 9), (S_WM, 7), (S_J, 2)], F_O)
def off_p(A, d, tile): lin(A, d, [(tile, 7), (S_WM, 2)], F_P)
def put(A, soff, vval, vzero): A(f"buffer_store_dword v{vval}, v{vzero}, {WS}, s{soff} offen sc1")

CR, NM, RR, RL, WPR, WPK, TMP = 12, 80, 2, [0, 1, 10, 11], 56, 88, 72
def pk_fma_bc(A, d, a, bc, c):
    p, s = bc & ~1, bc & 1
    A(f"v_pk_fma_f32 v[{d}:{d+1}], v[{a}:{a+1}], v[{p}:{p+1}], v[{c}:{c+1}] op_sel:[0,{s},0] op_sel_hi:[1,{s},1]")
def pk_mul_bc(A, d, a, bc):
    p, s = bc & ~1, bc & 1
    A(f"v_pk_mul_f32 v[{d}:{d+1}], v[{a}:{a+1}], v[{p}:{p+1}] op_sel:[0,{s}] op_sel_hi:[1,{s}]")
def corr(A, a, b, tb):
    for r in (0, 2): pk_fma_bc(A, a + r, CR + 4 * b + r, NM + 2 * tb, a + r)
def gu(A, bg, bu, tb, dst, tmp):
    g = acc(bg, tb); u = acc(bu, tb)
    corr(A, g, bg, tb); corr(A, u, bu, tb)
    for r in range(4): A(f"v_mul_f32 v{tmp+r}, v{g+r}, v{RL[tb]}")
    for r in range(4): A(f"v_exp_f32 v{tmp+r}, v{tmp+r}")
    for r in range(4): A(f"v_fma_f32 v{tmp+r}, v{tmp+r}, v{NM+2*tb+1}, v{NM+2*tb+1}")
    for r in range(4): A(f"v_rcp_f32 v{tmp+r}, v{tmp+r}")
    for r in range(4): A(f"v_mul_f32 v{tmp+r}, v{tmp+r}, v{u+r}")
    cvt(A, dst, tmp); cvt(A, dst + 1, tmp + 2)
def qk_pack(A, tb):
    d = acc(0, tb)
    for hb in range(2):
        a = acc(hb, tb)
        corr(A, a, hb, tb)
        for r in (0, 2): pk_mul_bc(A, a + r, a + r, RR + tb)
        cvt(A, d + 2 * hb, a); cvt(A, d + 2 * hb + 1, a + 2)
def kwork(A, groups, WP, S):
    KV, D, ISEL, ONES, PP, PM, PK, SC = S, S + 48, S + 80, S + 88, S + 92, S + 96, S + 100, S + 108
    PT = PK
    A(f"v_lshrrev_b32 v{SC}, 4, v{L16}")
    A(f"v_lshrrev_b32 v{SC+1}, 4, v{SC}         ; g")
    A(f"v_and_b32 v{SC}, 15, v{SC}              ; c")
    A(f"v_lshrrev_b32 v{SC+2}, 2, v{SC}")
    A(f"v_and_b32 v{SC+3}, 3, v{SC}")
    A(f"v_cmp_eq_u32 vcc, v{SC+2}, v{SC+1}")
    A(f"v_and_b32 v{SC+4}, 1, v{SC+3}")
    A(f"v_lshlrev_b32 v{SC+4}, 4, v{SC+4}")
    A(f"v_mov_b32 v{SC+5}, 0x3f80")
    A(f"v_lshlrev_b32 v{SC+5}, v{SC+4}, v{SC+5}")
    A(f"v_cndmask_b32 v{SC+5}, 0, v{SC+5}, vcc")
    A(f"v_cmp_gt_u32 vcc, 2, v{SC+3}")
    A(f"v_mov_b32 v{ISEL}, 0")
    A(f"v_mov_b32 v{ISEL+1}, 0")
    A(f"v_cndmask_b32 v{ISEL+2}, 0, v{SC+5}, vcc")
    A(f"v_cndmask_b32 v{ISEL+3}, v{SC+5}, 0, vcc")
    A(f"v_mov_b32 v{ISEL+4}, 0")
    A(f"v_mov_b32 v{ISEL+5}, 0")
    for r in range(4): A(f"v_mov_b32 v{ONES+r}, s{S_ONES}")
    for gi, (VF, kfs) in enumerate(groups):
        if gi: A("s_nop 3")
        for e, kf in kfs.items():
            MF(A, PK, WP, kf); MF(A, PK + 4, WP + 4, kf)
            A("s_nop 7")
            softmax(A, PK, PP, PM, SC)
            A("s_nop 1")
            dd = D + e * 16
            MF(A, dd, PP, ISEL + 2); MF(A, dd + 4, PP, ISEL); MF(A, dd + 8, PM, ISEL + 2); MF(A, dd + 12, PM, ISEL)
        es = list(kfs)
        for e in range(2):
            if e not in kfs:
                for fb in range(4):
                    A(f"v_mov_b32 v{PT+fb*4+2*e}, 0"); A(f"v_mov_b32 v{PT+fb*4+2*e+1}, 0")
        for e in es:
            if e == es[-1] and len(es) == 2: pass
            for fb in range(4):
                dd = D + e * 16 + fb * 4
                cvt(A, PT + fb * 4 + 2 * e, dd); cvt(A, PT + fb * 4 + 2 * e + 1, dd + 2)
        A("s_nop 1")
        for fb in range(4):
            for db in range(3):
                c = KV + (fb * 3 + db) * 4
                MF(A, c, PT + fb * 4, VF + db * 4 if db < 2 else ONES, c if gi else None)
    A("s_nop 7")
    return KV

def p1_epilogue(A, wn):
    st = "sc1"
    A.label(f"L_epi{wn}")
    A.lgkm = []
    A("s_waitcnt vmcnt(0) lgkmcnt(0)")
    stamp(A, 2)
    if opt("edbg"): A("s_memrealtime s[80:81]")
    A(f"v_lshrrev_b32 v54, 8, v{L16}")
    A("v_lshlrev_b32 v52, 4, v54                ; g*16")
    A(f"v_and_b32 v55, 0xf0, v{L16}")
    A("v_lshrrev_b32 v12, 2, v55                ; c*4")
    A("v_lshrrev_b32 v56, 6, v55                ; i>>2")
    A("v_lshl_add_u32 v56, v54, 2, v56")
    A("v_lshlrev_b32 v56, 6, v56")
    A("v_and_b32 v57, 12, v12")
    A("v_lshl_add_u32 v56, v57, 1, v56")
    A(f"v_add_u32 v56, {WPL}, v56")
    A("v_mul_u32_u24 v13, 1280, v54")
    A(f"s_lshl_b32 s{T}, s{S_WM}, 6")
    A(f"s_add_u32 s{T}, s{T}, {CSPL + wn * 640}")
    A(f"v_add3_u32 v13, v13, v12, s{T}")
    A("v_cmp_gt_u32 vcc, 2, v54")
    for i in range(3):
        A(f"ds_read_b32 v{16+2*i}, v13 offset:{256*i}")
        A(f"ds_read_b32 v{17+2*i}, v13 offset:{256*i + 5120}")
    A("s_waitcnt lgkmcnt(0)")
    for i in range(3):
        A(f"v_cndmask_b32 v{17+2*i}, 0, v{17+2*i}, vcc")
        A(f"v_add_f32 v{V_CS+i}, v{V_CS+i}, v{16+2*i}")
        A(f"v_add_f32 v{V_CS+i}, v{V_CS+i}, v{17+2*i}")
    xreduce_g(A, [V_CS, V_CS + 1, V_CS + 2], [13, 14, 15], "add")
    A(f"s_lshl_b32 s{T}, s{S_WM}, 6")
    A(f"s_add_u32 s{T}, s{T}, {CSL + wn * 640}")
    A(f"v_add_u32 v13, s{T}, v12")
    A(f"ds_write_b32 v13, v{V_CS}")
    A(f"ds_write_b32 v13, v{V_CS+1} offset:256")
    A(f"s_cmp_lt_u32 s{S_WM}, 2")
    A(f"s_cselect_b32 s{T}, s{T}, {CSL + 1280 - 512}")
    A(f"v_add_u32 v14, s{T}, v12")
    A(f"ds_write_b32 v14, v{V_CS+2} offset:512")
    for tb in range(4): A(f"v_rcp_f32 v{RR+tb}, v{NM+2*tb+1}")
    A("s_nop 0")
    for tb in range(4): A(f"v_mul_f32 v{RL[tb]}, s{S_C}, v{RR+tb}")
    if wn == 1:
        A(f"s_lshl_b32 s{T}, s{S_W}, 9")
        A(f"s_add_u32 s{T}, s{T}, {STL}")
        A(f"v_lshl_add_u32 v15, v12, 1, s{T}")
        for tb in range(4):
            A(f"v_mov_b32 v{16+2*tb}, v{NM+2*tb}")
            A(f"v_mov_b32 v{17+2*tb}, v{RR+tb}")
            A(f"ds_write_b64 v15, v[{16+2*tb}:{17+2*tb}] offset:{tb*128}")
        A(f"v_lshl_add_u32 v55, v52, 1, s{T}")
        A(f"v_add_u32 v54, {CSL + 640}, v12")
    A(f"v_add_u32 v52, {CSL + wn * 640}, v52")
    lin(A, T + 4, [(S_WM, 13)], HOFF)
    A(f"v_add_u32 v53, s{T+4}, v{L16}")
    lin(A, T, [(S_MT, 14), (S_WM, 12)], WS_ACT)
    A(f"s_mul_i32 s{T+1}, s{S_J}, {3 * 131072}")
    A(f"s_add_u32 s{T+1}, s{T+1}, s{T}")
    A("s_waitcnt lgkmcnt(0)")
    A("s_barrier                ; B1")
    if opt("edbg"): A("s_memrealtime s[82:83]")
    order = [2, 3, 4, 5, 0, 1, 6, 7, 8, 9] if wn == 0 else [4, 5, 6, 7, 0, 1, 8, 9]
    for b in order: A.ds(f"ds_read_b128 v[{CR+4*b}:{CR+4*b+3}], v52 offset:{b*64}", f"C{b}")
    def gupair(b0, soff):
        A.wait_lgkm([f"C{b}" for b in range(b0, b0 + 4)])
        for tb in range(4):
            d = acc(b0, tb)
            gu(A, b0 + 2, b0 + 3, tb, acc(b0 + 2, tb), TMP + 4)
            gu(A, b0, b0 + 1, tb, d, TMP)
            A(f"v_mov_b32 v{d+2}, v{acc(b0+2, tb)}")
            A(f"v_mov_b32 v{d+3}, v{acc(b0+2, tb)+1}")
            A(f"buffer_store_dwordx4 v[{d}:{d+3}], v{L16}, {WS}, s{soff} offen offset:{tb*1024} {st}")
    if wn == 0:
        gupair(2, T + 1)
        A(f"s_add_u32 s{T+1}, s{T+1}, 131072")
        gupair(6, T + 1)
        for tb in range(4): qk_pack(A, tb)
        A("s_barrier                ; B2")
        if opt("edbg"): A("s_memrealtime s[84:85]")
        for k in range(7): A(f"ds_read_b128 v[{12+4*k}:{15+4*k}], v53 offset:{k*1024}")
        off_h(A, T + 3, 0)
        A("v_mov_b32 v58, 1")
        A("v_mov_b32 v59, 0")
        A("s_waitcnt vmcnt(4)")
        A("s_mov_b64 exec, 1")
        put(A, T + 3, 58, 59)
        A("s_mov_b64 exec, -1")
        groups = [(20, {0: 12, 1: 16}), (32, {1: 28})]
    else:
        A.ds(f"ds_read_b32 v{CR+8}, v54 offset:128", "CV")
        A.ds(f"ds_read_b32 v{CR+9}, v54 offset:192", "CV")
        A(f"s_add_u32 s{T+1}, s{T+1}, {2*131072}")
        gupair(4, T + 1)
        A.wait_lgkm(["C0", "C1"])
        for tb in (2, 3, 0, 1): qk_pack(A, tb)
        A(f"ds_write_b128 v53, v[{acc(0,2)}:{acc(0,2)+3}]")
        A(f"ds_write_b128 v53, v[{acc(0,3)}:{acc(0,3)+3}] offset:1024")
        A(f"ds_write_b128 v53, v[{acc(0,1)}:{acc(0,1)+3}] offset:4096")
        for pair in (1, 0):
            for e in range(2):
                tb = 2 * pair + e
                A.ds(f"ds_read_b128 v[{112+8*e}:{115+8*e}], v55 offset:{tb*128}", f"S{e}")
                A.ds(f"ds_read_b128 v[{116+8*e}:{119+8*e}], v55 offset:{tb*128+16}", f"S{e}")
            for e in range(2):
                tb = 2 * pair + e
                A.wait_lgkm(["CV", f"S{e}"])
                for db in range(2):
                    a = acc(2 + db, tb)
                    for r in range(4): A(f"v_fma_f32 v{a+r}, v{CR+8+db}, v{112+8*e+2*r}, v{a+r}")
                    for r in range(4): A(f"v_mul_f32 v{a+r}, v{a+r}, v{113+8*e+2*r}")
                    d = acc(2 + db, 2 * pair) + 2 * e
                    cvt(A, d, a); cvt(A, d + 1, a + 2)
            A("s_nop 0")
            o_ = 2048 if pair == 1 else 5120
            A(f"ds_write_b128 v53, v[{acc(2,2*pair)}:{acc(2,2*pair)+3}] offset:{o_}")
            A(f"ds_write_b128 v53, v[{acc(3,2*pair)}:{acc(3,2*pair)+3}] offset:{o_+1024}")
        A("s_waitcnt lgkmcnt(0)")
        A.lgkm = []
        A("s_barrier                ; B2")
        if opt("edbg"): A("s_memrealtime s[84:85]")
        off_h(A, T + 3, 0)
        A("v_mov_b32 v58, 1")
        A("v_mov_b32 v59, 0")
        A("s_waitcnt vmcnt(0)")
        A("s_mov_b64 exec, 1")
        put(A, T + 3, 58, 59)
        A("s_mov_b64 exec, -1")
        A(f"s_lshr_b32 s{T+2}, s{S_J}, 1")
        A(f"s_add_u32 s{T+2}, s{T+2}, 96")
        A(f"s_lshl_b32 s{T+2}, s{T+2}, 17")
        A(f"s_add_u32 s{T+2}, s{T+2}, s{T}")
        A(f"s_and_b32 s{T+3}, s{S_J}, 1")
        A(f"s_lshl_b32 s{T+3}, s{T+3}, 3")
        A(f"s_add_u32 s{T+2}, s{T+2}, s{T+3}")
        for tb in range(4):
            d = acc(8, tb)
            gu(A, 8, 9, tb, d, TMP + 4 * (tb & 1))
            A(f"buffer_store_dwordx2 v[{d}:{d+1}], v{L16}, {WS}, s{T+2} offen offset:{tb*1024} {st}")
        for db in range(2):
            for r in range(4): A(f"v_mov_b32 v{20+4*db+r}, v{acc(2+db,0)+r}")
        groups = [(20, {0: acc(0, 0)})]
    if opt("edbg"): A("s_memrealtime s[86:87]")
    for fb in range(2):
        for t in range(2):
            A(f"ds_read_b64_tr_b16 v[{WPK+4*fb+2*t}:{WPK+4*fb+2*t+1}], v56 offset:{t*1024 + fb*32}")
    A("s_waitcnt lgkmcnt(0)")
    KV = kwork(A, groups, WPK, 124)
    A(f"s_mul_i32 s{T+1}, s{S_W}, {12*1024}")
    A(f"v_add_u32 v20, s{T+1}, v{L16}")
    for blk in range(12): A(f"ds_write_b128 v20, v[{KV+blk*4}:{KV+blk*4+3}] offset:{blk*1024}")
    if opt("edbg"): A("s_memrealtime s[88:89]"); A("s_memrealtime s[90:91]")
    A("s_waitcnt lgkmcnt(0)")
    A("s_barrier                ; B3")
    if opt("edbg"): A("s_memrealtime s[92:93]")
    A(f"s_lshr_b32 s{T}, s{S_W}, 1")
    A(f"s_mul_i32 s{T}, s{T}, 3")
    A(f"s_and_b32 s{T+1}, s{S_W}, 1")
    A(f"s_add_u32 s{T}, s{T}, s{T+1}")
    A(f"s_lshl_b32 s{T}, s{T}, 10")
    A(f"v_add_u32 v20, s{T}, v{L16}")
    A(f"v_add_u32 v22, {4*12*1024}, v20")
    for p in range(8): A(f"ds_read_b128 v[{124+4*p}:{127+4*p}], v{20 if p < 4 else 22} offset:{(p%4)*12*1024}")
    if wn == 0:
        A(f"s_mul_i32 s{T}, s{S_W}, 3072")
        A(f"v_add_u32 v21, s{T}, v{L16}")
        A(f"v_add_u32 v23, {4*12*1024}, v21")
        for p in range(8): A(f"ds_read_b128 v[{156+4*p}:{159+4*p}], v{21 if p < 4 else 23} offset:{(p%4)*12*1024 + 2048}")
    A(f"s_lshl_b32 s{T}, s{S_J}, 3")
    A(f"s_add_u32 s{T}, s{T}, s{S_MT}")
    A(f"s_mul_i32 s{T}, s{T}, {KVP_SZ}")
    A(f"s_add_u32 s{T}, s{T}, {WS_KVP}")
    A(f"s_lshl_b32 s{T+1}, s{S_W}, 10")
    A(f"s_add_u32 s{T+1}, s{T+1}, s{T}")
    A("s_waitcnt lgkmcnt(0)")
    for base in ((124, 156) if wn == 0 else (124,)):
        for s_ in (16, 8, 4):
            for r in range(0, s_, 2):
                A(f"v_pk_add_f32 v[{base+r}:{base+r+1}], v[{base+r}:{base+r+1}], v[{base+s_+r}:{base+s_+r+1}]")
    A(f"buffer_store_dwordx4 v[124:127], v{L16}, {WS}, s{T+1} offen {st}")
    if wn == 0:
        A(f"s_lshl_b32 s{T+1}, s{S_W}, 6")
        A(f"s_add_u32 s{T+1}, s{T+1}, s{T}")
        A(f"s_add_u32 s{T+1}, s{T+1}, 8192")
        A(f"v_lshrrev_b32 v21, 4, v{L16}")
        A("v_and_b32 v22, 15, v21")
        A("v_cmp_eq_u32 vcc, 0, v22")
        A(f"s_and_saveexec_b64 s[{T+2}:{T+3}], vcc")
        A(f"buffer_store_dwordx4 v[156:159], v21, {WS}, s{T+1} offen {st}")
        A("s_mov_b64 exec, -1")
    stamp(A, 3)
    stamp_store(A, WS_STAMP)
    A(f"s_branch L_p2_{'prod' if wn == 0 else 'cons'}")

def p1_prologue(A):
    A("s_cmp_ge_u32 s2, 256")
    A("s_cbranch_scc1 L_done")
    stamp(A, 0)
    if opt("pfc0", 1):
        A(f"s_getpc_b64 s[{SRD_B2}:{SRD_B2+1}]")
        A.label("L_pc_ref0")
        A(f"s_sub_u32 s{SRD_B2}, s{SRD_B2}, L_pc_ref0 - fused_kernel")
        A(f"s_subb_u32 s{SRD_B2+1}, s{SRD_B2+1}, 0")
        A(f"s_and_b32 s{SRD_B2+1}, s{SRD_B2+1}, 0xffff")
        A(f"s_mov_b32 s{SRD_B2+2}, L_done - fused_kernel")
        A(f"s_mov_b32 s{SRD_B2+3}, 0x00020000")
        A("v_subrev_u32 v13, 448, v0")
        A("v_cmp_gt_u32 vcc, 24, v13")
        A("v_lshlrev_b32 v13, 7, v13")
        A(f"s_lshr_b32 s{T+1}, s2, 3")
        A(f"s_mul_i32 s{T+1}, s{T+1}, {24*128}")
        A(f"s_and_saveexec_b64 s[{T+2}:{T+3}], vcc")
        A("s_cbranch_execz L_pc_skip")
        A(f"buffer_load_dword v{V_A}, v13, {srd(SRD_B2)}, s{T+1} offen")
        A.label("L_pc_skip")
        A("s_mov_b64 exec, -1")
    A(f"s_load_dwordx8 s[{P}:{P+7}], s[0:1], 0")
    A(f"s_load_dwordx4 s[{P+8}:{P+11}], s[0:1], 40")
    A(f"s_load_dwordx4 s[96:99], s[0:1], 72")
    A(f"s_load_dwordx2 s[100:101], s[0:1], 56")
    A(f"s_load_dwordx2 s[{P+12}:{P+13}], s[0:1], 64")
    A("v_lshrrev_b32 v11, 6, v0")
    A("v_and_b32 v10, 63, v0             ; lane")
    A(f"v_readfirstlane_b32 s{S_W}, v11")
    A(f"s_lshl_b32 s{T}, s2, 3")
    A(f"v_add_u32 v60, s{T}, v11")
    A("v_lshlrev_b32 v61, 11, v60")
    A("v_lshl_add_u32 v61, v10, 4, v61")
    A(f"v_lshlrev_b32 v{L16}, 4, v10")
    A(f"s_and_b32 s{S_WM}, s{S_W}, 3")
    A(f"s_lshr_b32 s{S_WN}, s{S_W}, 2")
    A(f"s_and_b32 s{T}, s2, 7")
    A(f"s_lshr_b32 s{T+1}, s2, 3")
    jm = int(opt("jm", 0))
    if jm == 4:
        A(f"s_xor_b32 s{T}, s{T}, 1")
    if jm in (0, 4):
        A(f"s_and_b32 s{S_J}, s{T+1}, 3")
        A(f"s_lshl_b32 s{T}, s{T}, 2")
        A(f"s_add_u32 s{S_J}, s{S_J}, s{T}")
        A(f"s_lshr_b32 s{S_MT}, s{T+1}, 2")
    elif jm == 1:
        A(f"s_and_b32 s{S_J}, s{T+1}, 3")
        A(f"s_lshl_b32 s{S_J}, s{S_J}, 3")
        A(f"s_add_u32 s{S_J}, s{S_J}, s{T}")
        A(f"s_lshr_b32 s{S_MT}, s{T+1}, 2")
    elif jm == 2:
        A(f"s_and_b32 s{S_J}, s{T}, 3")
        A(f"s_lshl_b32 s{S_J}, s{S_J}, 3")
        A(f"s_and_b32 s{T+2}, s{T+1}, 7")
        A(f"s_add_u32 s{S_J}, s{S_J}, s{T+2}")
        A(f"s_lshr_b32 s{S_MT}, s{T}, 2")
        A(f"s_lshl_b32 s{S_MT}, s{S_MT}, 2")
        A(f"s_lshr_b32 s{T+2}, s{T+1}, 3")
        A(f"s_add_u32 s{S_MT}, s{S_MT}, s{T+2}")
    elif jm == 3:
        A(f"s_and_b32 s{S_J}, s{T}, 1")
        A(f"s_lshl_b32 s{S_J}, s{S_J}, 4")
        A(f"s_and_b32 s{T+2}, s{T+1}, 15")
        A(f"s_add_u32 s{S_J}, s{S_J}, s{T+2}")
        A(f"s_lshr_b32 s{S_MT}, s{T}, 1")
        A(f"s_lshl_b32 s{S_MT}, s{S_MT}, 1")
        A(f"s_lshr_b32 s{T+2}, s{T+1}, 4")
        A(f"s_add_u32 s{S_MT}, s{S_MT}, s{T+2}")
    lin(A, T, [(S_MT, 8), (S_WN, 6), (S_WM, 2)], 0)
    A("v_bfe_u32 v11, v10, 3, 1")
    A("v_lshrrev_b32 v12, 4, v10         ; g")
    A("v_lshl_add_u32 v11, v12, 4, v11")
    A(f"v_add_u32 v11, s{T}, v11")
    A("v_lshlrev_b32 v11, 11, v11")
    A("v_and_b32 v13, 7, v10")
    A(f"v_lshl_add_u32 v{V_A}, v13, 4, v11")
    A(f"s_mul_i32 s{S_APAGE}, s{S_W}, {2 * A_PAGE}")
    A(f"s_lshl_b32 s{T}, s{S_W}, 6")
    A(f"v_add_u32 v13, s{T}, v10")
    A("v_mul_u32_u24 v14, 4682, v13")
    A("v_lshrrev_b32 v14, 16, v14")
    A("v_mul_u32_u24 v15, 14, v14")
    A("v_sub_u32 v15, v13, v15")
    A("v_mul_u32_u24 v14, 7168, v14")
    A("v_lshl_add_u32 v14, v15, 4, v14")
    A(f"s_mul_i32 s{T}, s{S_J}, 224")
    A(f"v_add_u32 v{V_B0}, s{T}, v14")
    A(f"v_mov_b32 v{V_B1}, v{V_B0}")
    A("v_lshrrev_b32 v15, 2, v10")
    A("v_mul_u32_u24 v15, 6144, v15")
    A("v_lshrrev_b32 v16, 3, v10")
    A("v_and_b32 v16, 2, v16")
    A("v_and_b32 v17, 3, v10")
    A("v_xor_b32 v16, v16, v17")
    A("v_lshl_add_u32 v15, v16, 4, v15")
    A(f"s_lshr_b32 s{T}, s{S_W}, 1")
    A(f"s_lshl_b32 s{T}, s{T}, 11")
    A(f"s_and_b32 s{T+1}, s{S_W}, 1")
    A(f"s_mul_i32 s{T+1}, s{T+1}, {16*6144}")
    A(f"s_add_u32 s{T}, s{T}, s{T+1}")
    A(f"s_lshl_b32 s{T+1}, s{S_J}, 6")
    A(f"s_add_u32 s{T}, s{T}, s{T+1}")
    A(f"v_add_u32 v{V_B2}, s{T}, v15")
    A(f"s_lshl_b32 s{S_BLDS[2]}, s{S_W}, 10")
    A(f"s_add_u32 s{S_BLDS[0]}, s{S_BLDS[2]}, 6144")
    A(f"s_add_u32 s{S_BLDS[1]}, s{S_BLDS[2]}, 13312")
    for k in range(3):
        A(f"s_mov_b32 s{S_BOFF[k]}, 0")
        A(f"s_mov_b32 s{S_BINC[k]}, {32 * (6144 if k == 2 else 7168)}")
    A("s_waitcnt lgkmcnt(0)")
    if opt("pdbg"): A("s_memrealtime s[86:87]")
    make_srd(A, SRD_A, P, P + 1, 4 * MB)
    make_srd(A, SRD_B0, P + 8, P + 9, 1024 * 7168)
    make_srd(A, SRD_B1, P + 10, P + 11, 1024 * 7168)
    make_srd(A, SRD_B2, P + 2, P + 3, 1024 * 6144)
    A(f"s_cmp_eq_u32 s{S_W}, 7")
    A("s_cbranch_scc1 L_pro7")
    A(f"s_cmp_eq_u32 s{S_W}, 6")
    A("s_cbranch_scc1 L_pro6")
    NPF = int(opt("npf", 0))
    PF0 = int(opt("pf0", 5))
    def run(ops):
        for f0, f1 in ops:
            f0(A); A("s_nop 0"); f1(A)
    pa = lambda w, stage: [adma(h, e, stage & 1, stage * 128) for h in range(2) for e in range(nA(w))]
    pb = lambda w, stage: [bdma(k, stage) for k in range(nB(w))]
    for cls, w in (("", 0), ("L_pro6", 6)):
        if cls: A.label(cls)
        run(pa(w, 0)); run(pb(w, 0)); run(pb(w, 1))
        A("s_branch L_pro_common")
    A.label("L_pro7")
    A(f"buffer_load_dwordx4 v[80:83], v61, {srd(SRD_A)}, 0 offen")
    A(f"buffer_load_dwordx4 v[84:87], v61, {srd(SRD_A)}, 0 offen offset:1024")
    if opt("pfx"):
        A("v_lshlrev_b32 v13, 7, v10")
        A(f"s_lshl_b32 s{T}, s2, 14")
        A(f"buffer_load_dword v{V_A}, v13, {srd(SRD_A)}, s{T} offen")
        A(f"s_add_u32 s{T}, s{T}, 8192")
        A(f"buffer_load_dword v{V_A}, v13, {srd(SRD_A)}, s{T} offen")
    A("v_min_u32 v13, 13, v10")
    A(f"s_mul_i32 s{T}, s2, 14")
    A(f"v_add_u32 v13, s{T}, v13")
    A(f"v_lshlrev_b32 v{V_B0}, 7, v13")
    A(f"v_mov_b32 v{V_B1}, v{V_B0}")
    A("v_min_u32 v13, 11, v10")
    A(f"s_mul_i32 s{T}, s2, 12")
    A(f"v_add_u32 v13, s{T}, v13")
    A(f"v_lshlrev_b32 v{V_B2}, 7, v13")
    for k in range(3):
        A(f"s_mov_b32 s{S_BOFF[k]}, {PF0 * 32 * (6144 if k == 2 else 7168)}")
        A(f"s_mov_b32 s{S_BINC[k]}, {64 * (6144 if k == 2 else 7168)}")
    for i in range(NPF):
        for k in range(3): pfload(A, k)
    A.label("L_pro_common")
    make_srd(A, SRD_WS, 98, 99, WS_BYTES)
    make_srd(A, SRD_D, 96, 97, 256)
    make_srd(A, SRD_WP, P + 4, P + 5, 65536)
    A(f"s_mov_b32 s{S_C}, {NLOG2E}")
    A(f"s_mov_b32 s{S_C+1}, {LOG2E}")
    A(f"s_mov_b32 s{S_ONES}, 0x3f803f80")
    A(f"s_mov_b32 s{S_HI}, 0xffff0000")
    A("v_and_b32 v16, 15, v10")
    A("v_lshrrev_b32 v17, 2, v16")
    A("v_lshl_add_u32 v17, v12, 2, v17   ; 4g + (i>>2)")
    A("v_and_b32 v18, 3, v16")
    A("v_lshlrev_b32 v18, 3, v18")
    A("v_mul_u32_u24 v19, 224, v17")
    A("v_add_u32 v19, v19, v18")
    A(f"v_add_u32 v{V_BG}, {LDS_B}, v19")
    A("v_lshl_add_u32 v19, v17, 6, v18")
    A("v_and_b32 v20, 1, v12")
    A("v_lshl_add_u32 v19, v20, 5, v19")
    A(f"v_add_u32 v{V_BQ0}, {LDS_B}, v19")
    A(f"v_xor_b32 v{V_BQ1}, 32, v{V_BQ0}")
    for a_, b_ in ((V_BG2, V_BG), (V_BQ02, V_BQ0), (V_BQ12, V_BQ1)): A(f"v_add_u32 v{a_}, {2*B_STAGE}, v{b_}")
    A("v_lshrrev_b32 v19, 1, v16")
    A(f"s_lshl_b32 s{T}, s{S_WM}, 3")
    A(f"v_add_u32 v19, s{T}, v19")
    A(f"v_mul_u32_u24 v19, {A_PAGE}, v19")
    A("v_and_b32 v20, 1, v16")
    A("v_lshl_add_u32 v19, v20, 7, v19")
    A(f"v_lshl_add_u32 v{V_AR}, v12, 3, v19")
    A(f"s_mov_b32 s{S_AK}, 256")
    A(f"s_mov_b32 s{S_AKE}, 256")
    for r in range(ACC, 256): A(f"v_mov_b32 v{r}, 0")
    for r in range(3): A(f"v_mov_b32 v{V_CS+r}, 0")
    for r in range(4): A(f"v_mov_b32 v{WR+16+r}, 0")
    A("v_mov_b32 v0, 0")
    off_h(A, T, 0)
    A(f"v_mov_b32 v40, s{T}")
    A(f"s_add_u32 s{T}, s{T}, 1024")
    A(f"v_writelane_b32 v40, s{T}, 1")
    off_k(A, T)
    A(f"v_writelane_b32 v40, s{T}, 2")
    off_o(A, T)
    tile_ids(A, 76, 77, 75, 74, T + 1)
    off_p(A, T + 1, 74)
    A(f"s_cmp_eq_u32 s{S_WN}, 0")
    A(f"s_cselect_b32 s{T}, s{T}, s{T+1}")
    A(f"v_writelane_b32 v40, s{T}, 3")
    A(f"s_cselect_b32 s{T+2}, 31, 23")
    A("s_cmp_eq_u32 s76, 1")
    A(f"s_cselect_b32 s{T+2}, 31, s{T+2}")
    off_c(A, T)
    A(f"v_writelane_b32 v40, s{T}, 4")
    A(f"s_sub_u32 s{S_MYIT}, 8, s{S_MT}")
    A(f"s_cmp_eq_u32 s{S_W}, 7")
    A("s_cbranch_scc1 L_pro_b7")
    A("s_waitcnt vmcnt(0)")
    if opt("pdbg"): A("s_memrealtime s[90:91]")
    A("s_barrier")
    A(f"s_cmp_eq_u32 s{S_W}, 6")
    A("s_cbranch_scc1 L_pro_g6")
    for cls, w in (("", 0), ("L_pro_g6", 6)):
        if cls: A.label(cls)
        run(pb(w, 2)); run(pa(w, 1))
        A(f"buffer_load_dwordx4 v[80:83], v61, {srd(SRD_A)}, 0 offen")
        A(f"buffer_load_dwordx4 v[84:87], v61, {srd(SRD_A)}, 0 offen offset:1024")
        A("s_branch L_pro_c2")
    A.label("L_pro_b7")
    if opt("pdbg"): A("s_memrealtime s[90:91]")
    A("s_barrier")
    A.label("L_pro_c2")
    A(f"s_mov_b32 exec_lo, s{T+2}")
    A("s_mov_b32 exec_hi, 0")
    A(f"buffer_store_dword v0, v40, {WS}, 0 offen sc1")
    A("s_mov_b64 exec, -1")
    if opt("pdbg"): A("s_memrealtime s[94:95]")
    for ts, ks in ((T0, 0), (T1A, 1)):
        for tb in range(4):
            for t in range(2): tread(A, 0, ks, tb, ts, "T", t)
    A(f"s_cmp_eq_u32 s{S_WN}, 1")
    A("s_cbranch_scc1 L_pro_w1")
    for wn in range(2):
        if wn: A.label("L_pro_w1")
        for b in range(4):
            for t in range(2): wread(A, wn, b, 0, WR + b * 4, "W", t)
        A("s_waitcnt lgkmcnt(8)")
        A("s_barrier")
        stamp(A, 1)
        A("s_waitcnt lgkmcnt(0)")
        A(f"s_mov_b32 s{S_ITER}, 8")
        for wm in range(1, 4):
            A(f"s_cmp_eq_u32 s{S_WM}, {wm}")
            A(f"s_cbranch_scc1 L_loop{wn*4+wm}")
        for wm in range(4):
            w = wn * 4 + wm
            B = Asm(); p1_body(B, w); entry = list(B.lgkm)
            A.label(f"L_loop{w}")
            A(f"s_cmp_eq_u32 s{S_ITER}, s{S_MYIT}")
            A(f"s_cbranch_scc1 L_loopc{w}")
            A.lgkm = list(entry)
            A.label(f"L_loopp{w}")
            p1_body(A, w, False)
            assert A.lgkm == entry
            A(f"s_sub_u32 s{S_ITER}, s{S_ITER}, 1")
            A(f"s_cmp_gt_u32 s{S_ITER}, 2")
            A(f"s_cbranch_scc1 L_loop{w}")
            A.label(f"L_loopc{w}")
            p1_body(A, w, True)
            assert A.lgkm == entry
            A(f"s_sub_u32 s{S_ITER}, s{S_ITER}, 1")
            A(f"s_cmp_lt_u32 s{S_ITER}, 2")
            A(f"s_cbranch_scc1 L_loopt{w}")
            A(f"s_call_b64 s[{S_RET}:{S_RET+1}], L_x_cpub_{w}")
            A(f"s_cmp_gt_u32 s{S_ITER}, 2")
            A(f"s_cbranch_scc1 L_loopp{w}")
            A.label(f"L_loopt{w}")
            A(f"s_cmp_lg_u32 s{S_ITER}, 0")
            A(f"s_cbranch_scc1 L_loopc{w}")
            A(f"s_branch L_epi{wn}")
            p1_extras(A, w)
        p1_epilogue(A, wn)

PPB = 136
def o_soft(A, e):
    PK, SC = 64, 96
    q = 120 + 4 * e
    MF(A, PK, 56, q); MF(A, PK + 4, 60, q)
    A("s_nop 7")
    softmax(A, PK, PPB + 8 * e, PPB + 8 * e + 4, SC)
def o_fin(A, e, soff):
    O, N0, N1, DN = 24, 80, 84, 88
    PP, PM = PPB + 8 * e, PPB + 8 * e + 4
    MF(A, DN, 48, PP); MF(A, N0, 32, PP); MF(A, N1, 40, PP)
    MF(A, DN, 52, PM, DN); MF(A, N0, 36, PM, N0); MF(A, N1, 44, PM, N1)
    A("s_nop 7")
    A(f"v_add_f32 v{DN}, 0x358637bd, v{DN}")
    A(f"v_rcp_f32 v{DN}, v{DN}")
    A("s_nop 0")
    for r in range(8): A(f"v_mul_f32 v{N0+r}, v{N0+r}, v{DN}")
    d = O + 4 * (e & 1)
    for r in range(4): cvt(A, d + r, N0 + 2 * r)
    A(f"buffer_store_dwordx4 v[{d}:{d+3}], v4, {WS}, s{soff} offen offset:{e*1024} sc1")

def phase2(A):
    A.p2 = True
    SPL = int(opt("h1n", 64)); NB1 = min(SPL - 32, 32); K1O = SPL - 32 - NB1; NB0 = 32 - NB1; N0 = 144 - SPL; OST = N0 - 32
    assert NB0 % 2 == 0 and NB0 >= 0
    H, M, N, TILE = 20, 21, 22, 23
    SRD_X, SRD_B, SRD_OUT = 8, 12, 16
    S_SLOT, S_DELTA = 24, 25
    AOFF, BOFF, AINC, BINC, POS, EVT, LDS, B2, LA, LB = 26, 27, 28, 29, 30, 31, 32, 33, 34, 35
    NIT, T2, S_OO, RET = 60, 56, 58, 76
    VT, VW = 1, 2
    TS = [8, 24]; WSR = [40, 56]; AC = 72; XR = 136; KG = 160
    KI = [int(opt("kc", 1))]
    OS = KI[0] + int(opt("kd", 6))
    KO1, KO2 = 33, 34
    def ac(cb, tb): return AC + (cb * 4 + tb) * 4
    def common(A):
        stamp(A, 0)
        A(f"v_mov_b32 v4, v{L16}")
        A("v_lshrrev_b32 v3, 4, v4")
        A("v_lshrrev_b32 v5, 4, v3           ; g")
        A("v_and_b32 v6, 15, v3")
        A("v_lshlrev_b32 v12, 2, v3          ; lane*4")
        A("v_mov_b32 v13, 0")
        A("v_mov_b32 v14, 1")
        tile_ids(A, H, M, N, TILE, T)
        A(f"s_cmp_eq_u32 s{H}, 1")
        A(f"s_cselect_b32 s{NIT}, {SPL // 2}, {N0 // 2}")
    def own_flags(A):
        off_h(A, T, 1); off_k(A, T + 1)
        A("s_waitcnt vmcnt(0)")
        A("s_mov_b64 exec, 1")
        put(A, T, 14, 13); put(A, T + 1, 14, 13)
        if opt("edbg"):
            A("s_memrealtime s[94:95]")
            A("s_waitcnt lgkmcnt(0)")
            lin(A, T, [(2, 9), (S_W, 6)], WS_STAMP + MB)
            for i in range(8):
                A(f"v_mov_b32 v15, s{80+2*i}")
                A(f"buffer_store_dword v15, v13, {WS}, s{T} offen offset:{4*i}")
                A("s_nop 1")
        A("s_mov_b64 exec, -1")
    def poll64(A, soff, lab, vaddr, vdst):
        A.label(lab)
        A(f"buffer_load_dword v{vdst}, v{vaddr}, {WS}, s{soff} offen sc1")
        A("s_waitcnt vmcnt(0)")
        A(f"v_cmp_ne_u32 vcc, 1, v{vdst}")
        A("s_nop 4")
        A(f"s_cbranch_vccz {lab}_ok")
        A("s_sleep 1")
        A(f"s_branch {lab}")
        A.label(lab + "_ok")
    def hf_query(A, d, ph, wn):
        A(f"s_lshr_b32 s{d}, s{M}, 1")
        A(f"s_lshl_b32 s{d}, s{d}, 11")
        A(f"s_and_b32 s{d+1}, s{M}, 1")
        A(f"s_lshl_b32 s{d+1}, s{d+1}, 8")
        A(f"s_add_u32 s{d}, s{d}, s{d+1}")
        A(f"s_add_u32 s{d}, s{d}, {F_H + ph * 1024 + wn * 512}")
    A.label("L_p2_cons")
    common(A)
    A("s_barrier                 ; B4")
    make_srd(A, SRD_OUT, P + 12, P + 13, 4 * MB)
    A("v_mov_b32 v158, v12")
    S_CM, S_CN, CI = 26, 27, 28
    A(f"s_and_b32 s{S_CM}, s{S_WM}, 1")
    A(f"s_lshr_b32 s{S_CN}, s{S_WM}, 1")
    A(f"s_lshl_b32 s{T}, s{S_CM}, 12")
    A(f"v_add_u32 v{VT}, s{T}, v4")
    A("v_and_b32 v7, 1, v5")
    A("v_lshrrev_b32 v8, 2, v6")
    A("v_lshl_add_u32 v7, v7, 2, v8")
    A("v_mul_u32_u24 v7, 1056, v7")
    A("v_lshrrev_b32 v8, 1, v5")
    A("v_lshl_add_u32 v7, v8, 8, v7")
    A("v_and_b32 v8, 3, v6")
    A("v_lshl_add_u32 v7, v8, 3, v7")
    lin(A, T, [(S_CN, 7)], 8192)
    A(f"v_add_u32 v{VW}, s{T}, v7")
    lin(A, T, [(M, 7), (S_CM, 6)], 0)
    A(f"v_add_u32 v7, s{T}, v6")
    A("v_lshlrev_b32 v7, 11, v7")
    lin(A, T, [(N, 8), (S_CN, 7)], 0)
    A(f"v_add_u32 v7, s{T}, v7")
    for tb in range(1, 4): A(f"s_mov_b32 s{60+tb}, {tb * 32768}")
    sof = lambda tb: "0" if tb == 0 else f"s{60+tb}"
    for r in range(64): A(f"v_mov_b32 v{AC+r}, 0")
    A(f"s_mov_b32 s{S_SLOT}, 0")
    own_flags(A)
    lin(A, T2, [(S_J, 8)], F_K)
    A("v_lshlrev_b32 v156, 4, v5          ; g*16")
    A(f"s_mul_i32 s{T}, s{S_J}, {8 * KVP_SZ}")
    A(f"s_add_u32 s{T}, s{T}, {WS_KVP}")
    A(f"s_lshl_b32 s{KO1}, s{S_WM}, 11")
    A(f"s_add_u32 s{KO1}, s{KO1}, s{T}")
    A(f"s_lshl_b32 s{KO2}, s{S_WM}, 6")
    A(f"s_add_u32 s{KO2}, s{KO2}, s{T}")
    A(f"s_add_u32 s{KO2}, s{KO2}, 8192")
    if opt("prio"): A("s_setprio 1")
    A("s_barrier")
    A.lgkm = []
    def reads(st):
        out = []
        for k in range(4):
            out.append(lambda A, k=k: A.ds(f"ds_read_b128 v[{TS[st]+4*k}:{TS[st]+4*k+3}], v{VT} offset:{k*1024}", f"S{st}"))
            for tt in range(2):
                out.append(lambda A, k=k, tt=tt: A.ds(f"ds_read_b64_tr_b16 v[{WSR[st]+4*k+2*tt}:{WSR[st]+4*k+2*tt+1}], v{VW} offset:{tt*512 + k*32}", f"S{st}"))
        return out
    def adv0(A):
        A(f"s_add_u32 s{S_SLOT}, s{S_SLOT}, 1")
        A(f"s_cmp_eq_u32 s{S_SLOT}, {NSLOT}")
        A(f"s_cselect_b32 s{S_SLOT}, 0, s{S_SLOT}")
        A(f"s_mov_b32 s{S_DELTA}, {SLOT}")
        A(f"s_cselect_b32 s{S_DELTA}, {(-(NSLOT-1) * SLOT) & 0xffffffff}, s{S_DELTA}")
    def adv1(A):
        A(f"v_add_u32 v{VT}, s{S_DELTA}, v{VT}")
        A(f"v_add_u32 v{VW}, s{S_DELTA}, v{VW}")
    for f in reads(0): f(A)
    adv0(A); adv1(A)
    stamp(A, 1)
    if opt("stamp"): A("s_waitcnt lgkmcnt(0)")
    entry = list(A.lgkm)
    def citer(extra):
        per = [[] for _ in range(32)]
        for k, f in enumerate(extra): per[(k * 32) // len(extra)].append(f)
        for e in range(2):
            A.wait_lgkm(f"S{e}")
            fill = reads(1 - e) + [adv0, adv1]
            m = 0
            for cb in range(4):
                for tb in (range(4) if cb % 2 == 0 else range(3, -1, -1)):
                    MF(A, ac(cb, tb), WSR[e] + 4 * cb, TS[e] + 4 * tb, ac(cb, tb))
                    if m < len(fill): fill[m](A)
                    for f in per[16 * e + m]: f(A)
                    m += 1
        assert A.lgkm == entry[len(entry)-len(A.lgkm):]
    def check(A, lab, vd, soff, vaddr):
        A.label(lab)
        A("s_waitcnt vmcnt(0)")
        A(f"v_cmp_ne_u32 vcc, 1, v{vd}")
        A("s_nop 4")
        A(f"s_cbranch_vccz {lab}_ok")
        A("s_sleep 1")
        A(f"buffer_load_dword v{vd}, v{vaddr}, {WS}, s{soff} offen sc1")
        A(f"s_branch {lab}")
        A.label(lab + "_ok")
    lds_ = []
    for p in range(8):
        def l1(A, p=p): A(f"buffer_load_dwordx4 v[{KG+4*p}:{KG+3+4*p}], v4, {WS}, s{KO1} offen sc1")
        def l2(A, p=p):
            A(f"buffer_load_dwordx4 v[{KG+32+4*p}:{KG+35+4*p}], v4, {WS}, s{KO1} offen offset:1024 sc1")
            A(f"s_add_u32 s{KO1}, s{KO1}, {KVP_SZ}")
        def l3(A, p=p):
            A(f"buffer_load_dwordx4 v[{KG+64+4*p}:{KG+67+4*p}], v156, {WS}, s{KO2} offen sc1")
            A(f"s_add_u32 s{KO2}, s{KO2}, {KVP_SZ}")
        lds_ += [l1, l2, l3]
    adds = []
    for s_ in (16, 8, 4):
        for base in (KG, KG + 32, KG + 64):
            for r in range(s_): adds.append(lambda A, base=base, r=r, s_=s_: A(f"v_add_f32 v{base+r}, v{base+r}, v{base+s_+r}"))
    for k, base in enumerate((KG, KG + 32, KG + 64)):
        adds.append(lambda A, k=k, base=base: cvt(A, KG + 4 + 2 * k, base))
        adds.append(lambda A, k=k, base=base: cvt(A, KG + 5 + 2 * k, base + 2))
    for ci in range(OS):
        ex = []
        if ci in (KI[0] + 1, KI[0] + 2): ex = lds_[12 * (ci - KI[0] - 1):12 * (ci - KI[0])]
        if ci == OS - 2: A("s_waitcnt vmcnt(0)"); ex = adds[:48]
        if ci == OS - 1: ex = adds[48:]
        citer(ex)
        if ci == 0: A(f"buffer_load_dword v159, v158, {WS}, s{T2} offen sc1")
        if ci == KI[0]: check(A, "L_p2_ck", 159, T2, 158)
        if ci == OS - 1:
            lin(A, T, [(S_WM, 10)], RING)
            A(f"v_lshl_add_u32 v159, v158, 1, s{T}")
            A(f"ds_write_b64 v159, v[{KG+4}:{KG+5}]")
            A(f"ds_write_b64 v159, v[{KG+6}:{KG+7}] offset:512")
            lin(A, T, [(S_WM, 9)], RING + 4096)
            A(f"v_lshl_add_u32 v157, v158, 1, s{T}")
            A(f"ds_write_b64 v157, v[{KG+8}:{KG+9}]")
            A("s_waitcnt lgkmcnt(0)")
        A("s_barrier")
    A(f"s_mov_b32 s{CI}, {OS}")
    cev = []
    def pissue(calc, vaddr=158):
        def f(A):
            calc(A)
            A(f"buffer_load_dword v159, v{vaddr}, {WS}, s{T2} offen sc1")
        return f
    def pcheck(vaddr=158):
        def f(A): check(A, A.newlabel("L_p2_cc"), 159, T2, vaddr)
        return f
    def q_h(wn): return lambda A: hf_query(A, T2, 1, wn)
    def q_o(A): lin(A, T2, [(M, 8)], F_O)
    def q_p(A):
        lin(A, T2, [(TILE, 7)], F_P)
        A("v_and_b32 v157, 12, v158")
    ss_of = lambda pos: (pos - 8) // 2
    def both(f, g): return lambda A: (f(A), g(A))
    PD = int(opt("pd", 2))
    cev.append((OS, pissue(q_h(1))))
    if NB0:
        cev.append((OS + 2, both(pcheck(), pissue(q_h(0)))))
        cev.append((OS + 4, pcheck()))
    else: cev.append((OS + 2, pcheck()))
    assert OS + 4 < ss_of(32)
    cev.append((ss_of(OST) - 1 - PD, pissue(q_o)))
    cev.append((ss_of(OST) - 1, pcheck()))
    cev.append((ss_of(N0 + 4) - 1 - PD, pissue(q_p, 157)))
    cev.append((ss_of(N0 + 4) - 1, pcheck(157)))
    cev.append((1000 + OS, pissue(q_h(0))))
    if K1O:
        cev.append((1000 + OS + 2, both(pcheck(), pissue(q_h(1)))))
        cev.append((1000 + OS + 4, pcheck()))
    else: cev.append((1000 + OS + 2, pcheck()))
    HB = 29
    A(f"s_mul_i32 s{HB}, s{H}, 1000")
    A(f"s_cmp_eq_u32 s{S_W}, 4")
    A(f"s_cselect_b32 s{EVT}, {OS}, -1")
    A.label("L_p2_cloop")
    citer([])
    A(f"s_cmp_eq_u32 s{CI}, s{EVT}")
    A("s_cbranch_scc1 L_p2_cevt")
    A.label("L_p2_cevt_ret")
    A(f"s_add_u32 s{CI}, s{CI}, 1")
    A(f"s_cmp_lg_u32 s{CI}, s{NIT}")
    A("s_barrier")
    A("s_cbranch_scc1 L_p2_cloop")
    A("s_waitcnt vmcnt(0) lgkmcnt(0)")
    stamp(A, 2)
    A(f"s_cmp_eq_u32 s{H}, 1")
    A("s_cbranch_scc0 L_p2_fin")
    lin(A, T, [(TILE, 15), (S_WM, 13)], WS_PART)
    A("s_nop 2")
    for k in range(8):
        d = XR + 4 * k
        for e in range(2):
            a = AC + (2 * k + e) * 4
            cvt(A, d + 2 * e, a); cvt(A, d + 2 * e + 1, a + 2)
        if k == 4: A(f"s_add_u32 s{T}, s{T}, 4096")
        A(f"buffer_store_dwordx4 v[{d}:{d+3}], v4, {WS}, s{T} offen offset:{(k%4)*1024} sc1")
    off_p(A, T, TILE)
    A("v_mov_b32 v13, 0")
    A("v_mov_b32 v14, 1")
    A("s_waitcnt vmcnt(0)")
    A("s_mov_b64 exec, 1")
    put(A, T, 14, 13)
    A("s_branch L_p2_end")
    A.label("L_p2_fin")
    A("v_lshrrev_b32 v8, 2, v6")
    A("v_mul_u32_u24 v8, 1056, v8")
    A("v_and_b32 v9, 3, v6")
    A("v_lshl_add_u32 v8, v9, 8, v8")
    A("v_lshl_add_u32 v8, v5, 3, v8")
    def slot_of(d, sreg, sh, base):
        A(f"s_lshl_b32 s{d}, s{sreg}, {sh}")
        A(f"s_add_u32 s{d}, s{d}, {base % NSLOT}")
        A(f"s_cmp_ge_u32 s{d}, {NSLOT}")
        A(f"s_cselect_b32 s{d+1}, {NSLOT}, 0")
        A(f"s_sub_u32 s{d}, s{d}, s{d+1}")
        A(f"s_mul_i32 s{d}, s{d}, {SLOT}")
    for h in range(2):
        slot_of(T + 1, S_CM, 1, N0 + h)
        A(f"s_lshl_b32 s{T+2}, s{S_CN}, 7")
        A(f"s_add_u32 s{T+1}, s{T+1}, s{T+2}")
        A(f"v_add_u32 v{1+h}, s{T+1}, v8")
    slot_of(T + 1, S_CN, 0, N0 + 4)
    A(f"v_add_u32 v3, s{T+1}, v4")
    A("v_and_b32 v8, 1, v5")
    A("v_lshlrev_b32 v8, 5, v8")
    A("v_lshrrev_b32 v9, 1, v5")
    A("v_lshl_add_u32 v8, v9, 4, v8")
    A("v_add_u32 v7, v7, v8")
    XX = 200
    A("s_barrier")
    A(f"s_cmp_eq_u32 s{S_CM}, 1")
    A("s_cbranch_scc1 L_p2_fin1")
    for par in range(2):
        if par: A.label("L_p2_fin1")
        for k in range(8):
            A(f"ds_read_b128 v[{XR+4*k}:{XR+4*k+3}], v3 offset:{k * 1024 if par == 0 else 8192 + k * 1056}")
        if par == 0: A("s_branch L_p2_fin2")
    A.label("L_p2_fin2")
    A.lgkm = [f"P{k}" for k in range(8)]
    for blk in [(2 * q + e) * 4 + tb for q in range(2) for tb in range(4) for e in range(2)]:
        cb, tb = blk // 4, blk % 4
        A.ds(f"ds_read_b64 v[{XX+2*blk}:{XX+2*blk+1}], v{1 + (tb >> 1)} offset:{8192 + (tb & 1) * 4 * 1056 + cb * 32}", f"X{blk}")
    def addbf(a, d):
        A(f"v_lshlrev_b32 v8, 16, v{d}")
        A(f"v_and_b32 v9, s{S_HI}, v{d}")
        A(f"v_lshlrev_b32 v10, 16, v{d+1}")
        A(f"v_and_b32 v11, s{S_HI}, v{d+1}")
        for r in range(4): A(f"v_add_f32 v{a+r}, v{a+r}, v{8+r}")
    for q in range(2):
        for tb in range(4):
            d = 12 + (q * 4 + tb) * 4
            for e in range(2):
                blk = (2 * q + e) * 4 + tb; a = AC + blk * 4
                A.wait_lgkm([f"P{blk // 2}", f"X{blk}"])
                addbf(a, XR + 4 * (blk // 2) + 2 * (blk & 1))
                addbf(a, XX + 2 * blk)
                cvt(A, d + 2 * e, a); cvt(A, d + 2 * e + 1, a + 2)
            A("s_nop 1")
            A(f"v_permlane16_swap_b32 v{d}, v{d+2}")
            A(f"v_permlane16_swap_b32 v{d+1}, v{d+3}")
            A(f"buffer_store_dwordx4 v[{d}:{d+3}], v7, {srd(SRD_OUT)}, {sof(tb)} offen offset:{q*64} sc1")
    A("s_branch L_p2_end")
    A.label("L_p2_cevt")
    A(f"s_add_u32 s{T}, s{CI}, s{HB}")
    for k, (pos, f) in enumerate(cev[1:], 1):
        A(f"s_cmp_eq_u32 s{T}, {pos}")
        A(f"s_cbranch_scc1 L_p2_cev{k}")
    for k, (pos, f) in enumerate(cev):
        A.label(f"L_p2_cev{k}")
        f(A)
        nx = cev[k + 1][0] % 1000 if k + 1 < len(cev) and (cev[k + 1][0] >= 1000) == (pos >= 1000) else -1
        A(f"s_mov_b32 s{EVT}, {nx}")
        A("s_branch L_p2_cevt_ret")
    A.label("L_p2_prod")
    for r in range(16): A(f"v_mov_b32 v{120+r}, v{96+r}")
    for r in range(8): A(f"v_mov_b32 v{56+r}, v{WPK+r}")
    common(A)
    A("s_barrier                 ; B4")
    make_srd(A, SRD_B, 100, 101, 3584 * 2048)
    A("v_lshlrev_b32 v22, 3, v3")
    A(f"v_add_u32 v22, {RING}, v22")
    lin(A, T, [(M, 13), (S_WM, 11)], 0)
    A(f"v_add_u32 v8, s{T}, v4")
    A(f"s_lshl_b32 s{T+1}, s{S_WM}, 1")
    A(f"v_lshlrev_b32 v9, 3, v5")
    A(f"v_add_u32 v9, s{T+1}, v9")
    A("v_lshlrev_b32 v9, 11, v9")
    A("v_lshl_add_u32 v9, v6, 4, v9")
    A(f"s_lshl_b32 s{T}, s{N}, 8")
    A(f"v_add_u32 v9, s{T}, v9              ; regular")
    A("v_lshrrev_b32 v10, 1, v5")
    A(f"v_mul_u32_u24 v10, {96*2048}, v10")
    A("v_add_u32 v10, v10, v9               ; odd")
    A("v_mov_b32 v11, v9")
    A(f"s_lshl_b32 s{LA}, s{S_WM}, 11")
    A(f"s_mul_i32 s{LB}, s{S_WM}, {2*1056}")
    A(f"s_add_u32 s{LB}, s{LB}, 8192")
    lin(A, S_OO, [(S_J, 17), (S_MT, 14), (S_WM, 12)], WS_ACT + 112 * 131072)
    A(f"s_cmp_eq_u32 s{H}, 1")
    A(f"s_cselect_b32 s{AOFF}, 0, {2 * 131072}")
    A(f"s_cselect_b32 s{BOFF}, 0, {64 * 2048}")
    A(f"s_cselect_b32 s{POS}, 1000, 0")
    A(f"s_add_u32 s{AOFF}, s{AOFF}, {WS_ACT}")
    A(f"s_add_u32 s{EVT}, s{POS}, 32")
    A(f"s_mov_b32 s{AINC}, {3 * 131072}")
    A(f"s_mov_b32 s{BINC}, {112 * 2048}")
    A(f"s_mov_b32 s{B2}, 2048")
    o_soft(A, 0)
    own_flags(A)
    def issue_a(A):
        A(f"s_add_u32 m0, s{LDS}, s{LA}")
        A(f"s_add_u32 s{T2}, s{BOFF}, s{B2}")
        A(f"buffer_load_dwordx4 v8, {WS}, s{AOFF} offen sc1 lds")
        A(f"buffer_load_dwordx4 v8, {WS}, s{AOFF} offen offset:1024 sc1 lds")
        if not opt("hitA"): A(f"s_add_u32 s{AOFF}, s{AOFF}, s{AINC}")
    def issue_b(A, own_t2=False):
        A(f"s_add_u32 m0, s{LDS}, s{LB}")
        if own_t2: A(f"s_add_u32 s{T2}, s{BOFF}, s{B2}")
        else: A("s_nop 0")
        A(f"buffer_load_dwordx4 v11, {srd(SRD_B)}, s{BOFF} offen {opt('bsc', 'sc1')} lds")
        A(f"s_add_u32 m0, m0, 1056")
        if not opt("hitB"): A(f"s_add_u32 s{BOFF}, s{BOFF}, s{BINC}")
        else: A("s_nop 0")
        A(f"buffer_load_dwordx4 v11, {srd(SRD_B)}, s{T2} offen {opt('bsc', 'sc1')} lds")
    def nxt(A):
        A(f"s_add_u32 s{LDS}, s{LDS}, {SLOT}")
        A(f"s_cmp_eq_u32 s{LDS}, {RING}")
        A(f"s_cselect_b32 s{LDS}, 0, s{LDS}")
    def issue_kb(A):
        issue_a(A); issue_b(A)
        A(f"s_add_u32 s{POS}, s{POS}, 1")
        nxt(A)
    A(f"s_mov_b32 s{LDS}, 0")
    for k in range(7): issue_b(A, True); nxt(A)
    hf_query(A, T, 0, 0)
    A(f"s_cmp_eq_u32 s{H}, 1")
    A(f"s_cselect_b32 s{T+1}, 0, 512")
    A(f"s_add_u32 s{T}, s{T}, s{T+1}")
    A(f"buffer_load_dword v15, v12, {WS}, s{T} offen sc1")
    o_soft(A, 1)
    check(A, "L_p2_poll0", 15, T, 12)
    A(f"s_mov_b32 s{LDS}, 0")
    for k in range(7): issue_a(A); nxt(A)
    A(f"s_add_u32 s{POS}, s{POS}, 7")
    o_soft(A, 2)
    A("s_waitcnt vmcnt(8)")
    A("s_barrier")
    stamp(A, 1)
    def mid(A):
        lab = A.newlabel("L_p2_ne")
        A(f"s_cmp_eq_u32 s{POS}, s{EVT}")
        A(f"s_cbranch_scc0 {lab}")
        A(f"s_call_b64 s[{RET}:{RET+1}], L_p2_evt")
        A.label(lab)
    NO = 2
    NPEEL = OS + NO + 1
    assert ss_of(OST) - 1 >= OS + NO, (OST, NPEEL)
    for ss in range(NPEEL):
        if ss == OS + NO:
            off_o(A, T2)
            A("s_waitcnt vmcnt(0)")
            A("s_mov_b64 exec, 1")
            put(A, T2, 14, 13)
            A("s_mov_b64 exec, -1")
        issue_kb(A); mid(A); issue_kb(A)
        if ss == OS:
            for db in range(2):
                for hf in range(2):
                    for e in range(2):
                        d = 32 + (db * 2 + hf) * 4 + 2 * e
                        A(f"ds_read_b64 v[{d}:{d+1}], v22 offset:{((2 * hf + e) * 2 + db)*512}")
            for hf in range(2):
                for e in range(2):
                    A(f"ds_read_b64 v[{48+hf*4+2*e}:{49+hf*4+2*e}], v22 offset:{4096 + (2*hf+e)*512}")
        if ss in (1, 4):
            B = Asm(); o_soft(B, 3); h = len(B.lines) // 2
            for l in (B.lines[:h] if ss == 1 else B.lines[h:]): A.raw(l)
        if OS <= ss < OS + NO:
            if ss == OS: A("s_waitcnt lgkmcnt(0)")
            o_fin(A, 2 * (ss - OS), S_OO); o_fin(A, 2 * (ss - OS) + 1, S_OO)
        if ss == 0: A("s_waitcnt vmcnt(12)")
        else: A("s_waitcnt vmcnt(16)")
        A("s_barrier")
        if opt("p2dbg"):
            k = {int(x): 80 + 2 * i for i, x in enumerate(opt('p2dbg').split(','))}.get(ss)
            if k: A(f"s_memrealtime s[{k}:{k+1}]")
    A(f"s_sub_u32 s{NIT}, s{NIT}, {NPEEL}")
    A.label("L_p2_ploop")
    issue_kb(A); mid(A); issue_kb(A)
    A(f"s_sub_u32 s{NIT}, s{NIT}, 1")
    A(f"s_cmp_lg_u32 s{NIT}, 0")
    A("s_waitcnt vmcnt(16)")
    A("s_barrier")
    A("s_cbranch_scc1 L_p2_ploop")
    stamp(A, 2)
    A(f"s_cmp_eq_u32 s{H}, 1")
    A("s_cbranch_scc1 L_p2_end")
    A("s_waitcnt vmcnt(0)")
    A("s_barrier")
    A("s_branch L_p2_end")
    ev = []
    def seg(aoff, ainc, boff, binc, vsel=None, wo=False):
        def f(A):
            A(f"s_mov_b32 s{AOFF}, {aoff}")
            A(f"s_mov_b32 s{AINC}, {ainc}")
            A(f"s_mov_b32 s{BOFF}, {boff}")
            A(f"s_mov_b32 s{BINC}, {binc}")
            if vsel is not None: A(f"v_mov_b32 v11, v{vsel}")
            if wo:
                A(f"s_mov_b32 s{SRD_B}, s{P+6}")
                A(f"s_and_b32 s{SRD_B+1}, s{P+7}, 0xffff")
                A(f"s_mov_b32 s{SRD_B+2}, {1024*2048}")
        return f
    def only0(body):
        def f(A):
            lab = A.newlabel("L_p2_w0")
            A(f"s_cmp_lg_u32 s{S_W}, 0")
            A(f"s_cbranch_scc1 {lab}")
            body(A, lab)
            A.label(lab)
        return f
    def pollh1(both):
        def b(A, lab):
            hf_query(A, T, 1, 0)
            poll64(A, T, lab + "_a", 12, 15)
            if both:
                A(f"s_add_u32 s{T}, s{T}, 512")
                poll64(A, T, lab + "_b", 12, 15)
        return only0(b)
    def pollo(A, lab):
        lin(A, T, [(M, 8)], F_O)
        poll64(A, T, lab + "_a", 12, 15)
    def pollp(A, lab):
        lin(A, T, [(TILE, 7)], F_P)
        A("v_and_b32 v16, 12, v12")
        poll64(A, T, lab + "_a", 16, 15)
    def part(A):
        for k in range(3): A(f"s_mov_b32 s{SRD_B+k}, s{SRD_WS+k}")
        lin(A, AOFF, [(TILE, 15)], WS_PART)
        A(f"s_add_u32 s{BOFF}, s{AOFF}, 8192")
        A(f"s_mov_b32 s{AINC}, 16384")
        A(f"s_mov_b32 s{BINC}, 16384")
        A(f"s_mov_b32 s{B2}, 1024")
        A(f"v_add_u32 v8, s{LA}, v4")
        A("v_mov_b32 v11, v8")
    oob = seg(0x40000000, 0, 0x40000000, 0)
    if NB0: ev.append((32, seg(WS_ACT + (3 * NB1 + 1) * 131072, 3 * 131072, (112 * NB1 + 32) * 2048, 112 * 2048)))
    ev.append((32 + NB0, seg(WS_ACT + (96 + K1O) * 131072, 131072, (96 + 224 * K1O) * 2048, 224 * 2048, vsel=10)))
    ev.append((OST, seg(WS_ACT + 112 * 131072, 131072, 0, 32 * 2048, vsel=9, wo=True)))
    ev.append((N0, lambda A: xseg(A)))
    ev.append((N0 + 4, part))
    ev.append((N0 + 6, oob))
    ev.append((1032, seg(WS_ACT + 131072, 3 * 131072, 32 * 2048, 112 * 2048)))
    if K1O: ev.append((1064, seg(WS_ACT + 96 * 131072, 131072, 96 * 2048, 224 * 2048, vsel=10)))
    def xseg(A):
        A(f"s_mov_b32 s{AOFF}, 0x40000000")
        A(f"s_mov_b32 s{AINC}, 0")
        A(f"s_mov_b32 s{SRD_B}, s{P}")
        A(f"s_and_b32 s{SRD_B+1}, s{P+1}, 0xffff")
        A(f"s_mov_b32 s{SRD_B+2}, {4*MB}")
        lin(A, BOFF, [(M, 18), (N, 8), (S_WM, 14)], 0)
        A(f"s_mov_b32 s{BINC}, {32*2048}")
        A(f"s_mov_b32 s{B2}, {4*2048}")
        A("v_lshlrev_b32 v11, 11, v5")
        A("v_lshl_add_u32 v11, v6, 4, v11")
    ev.append((1000 + SPL, oob))
    A.label("L_p2_evt")
    for k, (pos, f) in enumerate(ev[1:], 1):
        A(f"s_cmp_eq_u32 s{POS}, {pos}")
        A(f"s_cbranch_scc1 L_p2_ev{k}")
    for k, (pos, f) in enumerate(ev):
        A.label(f"L_p2_ev{k}")
        f(A)
        nx = ev[k + 1][0] if k + 1 < len(ev) and (ev[k + 1][0] >= 1000) == (pos >= 1000) else -1
        A(f"s_mov_b32 s{EVT}, {nx}")
        A(f"s_setpc_b64 s[{RET}:{RET+1}]")
    A.label("L_p2_end")
    if opt("odbg"):
        A("s_waitcnt vmcnt(0)")
        A("s_memrealtime s[94:95]")
        A("s_load_dwordx2 s[96:97], s[0:1], 72")
        A("s_waitcnt lgkmcnt(0)")
        A("s_cmp_gt_u32 s2, 1")
        A("s_cbranch_scc1 L_done")
        A(f"s_cmp_lg_u32 s{S_W}, 4")
        A("s_cbranch_scc1 L_done")
        make_srd(A, SRD_D, 96, 97, 256)
        A("s_mov_b64 exec, 1")
        A("v_mov_b32 v1, 0")
        A(f"s_lshl_b32 s{T}, s2, 5")
        for i in range(1, 8):
            A(f"s_sub_u32 s{T+1}, s{80+2*i}, s80")
            A(f"v_mov_b32 v2, s{T+1}")
            A(f"buffer_store_dword v2, v1, {srd(SRD_D)}, s{T} offen offset:{4*i}")
            A("s_nop 1")
        A("s_branch L_done")
    if opt("p2dbg"):
        A("s_memrealtime s[94:95]")
        A("s_mov_b64 exec, 1")
        A("s_waitcnt lgkmcnt(0)")
        lin(A, T, [(2, 9), (S_W, 6)], WS_STAMP + MB)
        A("v_mov_b32 v1, 0")
        for i in range(8):
            A(f"v_mov_b32 v2, s{80+2*i}")
            A(f"buffer_store_dword v2, v1, {WS}, s{T} offen offset:{4*i}")
            A("s_nop 1")
    if opt("stamp"):
        A("s_waitcnt vmcnt(0)")
        stamp(A, 3)
        stamp_store(A, WS_STAMP + MB)

def build():
    A = Asm()
    for l in open("cdna_kernels/" + NAME + ".s.ref").read().split("\n"):
        if l.startswith(";") and "@launch" not in l and "Override" not in l and "grid=ceil" not in l: A.raw(l)
    A.raw(f"; @launch kernel=fused_kernel grid=(256,1,1) block=(512,1,1) lds={max(P1_LDS, P2_LDS)}")
    A.raw('.amdgcn_target "amdgcn-amd-amdhsa--gfx950"')
    A.raw(".text")
    kernel_header(A, "fused_kernel")
    p1_prologue(A)
    phase2(A)
    A.label("L_done")
    A("s_endpgm")
    A.raw('.section .rodata,"a"')
    kernel_desc(A, "fused_kernel", 256)
    return A.text()

if __name__ == "__main__":
    for o in sys.argv[2:]:
        if "=" in o: k, v = o.split("=", 1); OPT[k] = v
        else: OPT[o] = True
    open(sys.argv[1], "w").write(build())
```

```python
import sys
from asmlib import *

NAME = "parallel_sum__linear_kernel_hedgehog__glu_gated_glu__prompt"
MB = 1 << 20
WS_BYTES = 268435456
WS_ACT = 8 * MB
WS_KVP = 28 * MB
KVP_SZ = 8448
WS_PART = 32 * MB
WS_FLAG = 48 * MB
WS_STATS = 49 * MB
WS_STAMP = 52 * MB
F_H = WS_FLAG
F_K = WS_FLAG + 16384
F_O = WS_FLAG + 24576
F_P = WS_FLAG + 28672
F_C = WS_FLAG + 45056
WS_CSP = 50 * MB
LOG2E, NLOG2E = 0x3fb8aa3b, 0xbfb8aa3b
OPT = {}
def opt(k, d=None): return OPT.get(k, d)

A_PAGE = 1040; A_BUF = 32 * A_PAGE; LDS_B = 2 * A_BUF; B_STAGE = 20480
X_LDS = LDS_B + 4 * B_STAGE
CSL = X_LDS; STL = X_LDS + 1536; WPL = STL + 4096; CSPL = WPL + 2048; P1_LDS = CSPL + 7680
HOFF = 100 * 1024
SLOT = 16640; NSLOT = 9; RING = SLOT * NSLOT; P2_LDS = RING + 6144
V_A, V_B0, V_B1, V_B2, V_AR, V_BG, V_BQ0, V_BQ1, L16, V_CT = 1, 2, 3, 4, 5, 6, 7, 8, 9, 10
T0, T1A, T1B, WR = 12, 28, 44, 60
V_ST, V_POLL, V_PA, V_CS = 80, 88, 89, 90
V_BG2, V_BQ02, V_BQ12 = 93, 94, 95
ACC = 96
def acc(b, tb): return ACC + (b * 4 + tb) * 4
S_W, S_WM, S_WN, S_J, S_MT = 3, 4, 5, 6, 7
SRD_A, SRD_B0, SRD_B1, SRD_B2 = 8, 12, 16, 20
S_APAGE, S_AK, S_AKE = 24, 25, 26
S_BOFF, S_BINC, S_BLDS = (27, 28, 29), (30, 31, 32), (33, 34, 35)
P = 36
T = 50
SRD_D = 56
S_ITER = 60
S_MYIT = 61
S_RET = 74
SRD_WS, SRD_WP = 64, 68
S_C = 72; S_ONES = 78; S_HI = 79
S_ST = 80
SRD_PF = 96
WS = f"s[{SRD_WS}:{SRD_WS+3}]"
def srd(n): return f"s[{n}:{n+3}]"

def stamp(A, i):
    if opt("odbg"):
        k = i + (4 if getattr(A, "p2", False) else 0)
        A(f"s_memrealtime s[{80+2*k}:{81+2*k}]")
        return
    if opt("pdbg") and i > 0 and not getattr(A, "p2", False): return
    if opt("stamp"):
        A(f"s_memtime s[{S_ST+4*i}:{S_ST+4*i+1}]")
        A(f"s_memrealtime s[{S_ST+4*i+2}:{S_ST+4*i+3}]")
def stamp_store(A, base):
    if not opt("stamp"): return
    A("s_mov_b64 exec, 1")
    A("s_waitcnt lgkmcnt(0)")
    A(f"s_lshl_b32 s{T}, s2, 3")
    A(f"s_add_u32 s{T}, s{T}, s{S_W}")
    A(f"s_lshl_b32 s{T}, s{T}, 6")
    A(f"s_add_u32 s{T}, s{T}, {base}")
    A("v_mov_b32 v1, 0")
    for i in range(4):
        A(f"v_mov_b32 v2, s{S_ST+4*i}")
        A(f"v_mov_b32 v3, s{S_ST+4*i+2}")
        A(f"buffer_store_dwordx2 v[2:3], v1, {WS}, s{T} offen offset:{8*i}")
        A("s_nop 1")
    A(f"s_getreg_b32 s{T+1}, hwreg(HW_REG_XCC_ID)")
    A(f"v_mov_b32 v2, s{T+1}")
    A(f"buffer_store_dword v2, v1, {WS}, s{T} offen offset:32")
    A("s_mov_b64 exec, -1")

def xreduce_g(A, vs, tmps, op):
    ops = op if isinstance(op, list) else [op] * len(vs)
    for sw in ("v_permlane16_swap_b32", "v_permlane32_swap_b32"):
        for v, t in zip(vs, tmps): A(f"v_mov_b32 v{t}, v{v}")
        A("s_nop 1")
        for v, t in zip(vs, tmps): A(f"{sw} v{v}, v{t}")
        if len(vs) == 1: A("s_nop 0")
        for v, t, o in zip(vs, tmps, ops): A(f"v_{o}_f32 v{v}, v{v}, v{t}")
def wave_allreduce(A, v, tmp):
    for dpp in ("quad_perm:[1,0,3,2]", "quad_perm:[2,3,0,1]", "row_half_mirror", "row_mirror"):
        A("s_nop 1")
        A(f"v_add_f32_dpp v{v}, v{v}, v{v} {dpp} row_mask:0xf bank_mask:0xf")
    xreduce_g(A, [v], [tmp], "add")
def MF(A, d, a, b, c=None):
    cs = "0" if c is None else f"v[{c}:{c+3}]"
    A(f"v_mfma_f32_16x16x32_bf16 v[{d}:{d+3}], v[{a}:{a+3}], v[{b}:{b+3}], {cs}")
def cvt(A, d, a): A(f"v_cvt_pk_bf16_f32 v{d}, v{a}, v{a+1}")

def softmax(A, pk, Pp, Pm, t):
    mx, mn, x0, x1, ep, em, sp, sm = t, t + 1, t + 2, t + 3, t + 4, t + 12, t + 20, t + 21
    A(f"v_max3_f32 v{mx}, v{pk}, v{pk+1}, v{pk+2}")
    A(f"v_min3_f32 v{mn}, v{pk}, v{pk+1}, v{pk+2}")
    for r in (3, 5):
        A(f"v_max3_f32 v{mx}, v{mx}, v{pk+r}, v{pk+r+1}")
        A(f"v_min3_f32 v{mn}, v{mn}, v{pk+r}, v{pk+r+1}")
    A(f"v_max_f32 v{mx}, v{mx}, v{pk+7}")
    A(f"v_min_f32 v{mn}, v{mn}, v{pk+7}")
    xreduce_g(A, [mx, mn], [x0, x1], ["max", "min"])
    A(f"v_mul_f32 v{mx}, s{S_C}, v{mx}")
    A(f"v_mul_f32 v{mn}, s{S_C+1}, v{mn}")
    for r in range(8):
        A(f"v_fma_f32 v{ep+r}, v{pk+r}, s{S_C+1}, v{mx}")
        A(f"v_fma_f32 v{em+r}, v{pk+r}, s{S_C}, v{mn}")
    for r in range(8):
        A(f"v_exp_f32 v{ep+r}, v{ep+r}")
        A(f"v_exp_f32 v{em+r}, v{em+r}")
    A(f"v_add_f32 v{sp}, v{ep}, v{ep+1}")
    A(f"v_add_f32 v{sm}, v{em}, v{em+1}")
    for r in range(2, 8):
        A(f"v_add_f32 v{sp}, v{sp}, v{ep+r}")
        A(f"v_add_f32 v{sm}, v{sm}, v{em+r}")
    xreduce_g(A, [sp, sm], [x0, x1], "add")
    A(f"v_rcp_f32 v{sp}, v{sp}")
    A(f"v_rcp_f32 v{sm}, v{sm}")
    A("s_nop 0")
    for r in range(8):
        A(f"v_mul_f32 v{ep+r}, v{ep+r}, v{sp}")
        A(f"v_mul_f32 v{em+r}, v{em+r}, v{sm}")
    for r in range(4):
        cvt(A, Pp + r, ep + 2 * r); cvt(A, Pm + r, em + 2 * r)

def blocks_of(wn):
    if wn == 0: return [("q", 0), ("q", 1)] + [x for b in range(4) for x in (("g", b), ("u", b))]
    return [("k", 0), ("k", 1), ("v", 0), ("v", 1)] + [x for b in range(4, 7) for x in (("g", b), ("u", b))]
def wread(A, wn, blk, stage, dst, tag, t):
    kind, idx = blocks_of(wn)[blk]
    so = (stage & 1) * B_STAGE; hi = stage >> 1
    if kind in "qkv":
        off = so + (2 * "qkv".index(kind) + t) * 1024
        va = ((V_BQ0, V_BQ1), (V_BQ02, V_BQ12))[hi][idx]
    else:
        off = so + (6144 if kind == "g" else 13312) + t * 3584 + idx * 32
        va = (V_BG, V_BG2)[hi]
    A.ds(f"ds_read_b64_tr_b16 v[{dst+2*t}:{dst+2*t+1}], v{va} offset:{off}", tag)
def tread(A, abuf, ks, tb, dst, tag, t):
    A.ds(f"ds_read_b64 v[{dst+tb*4+2*t}:{dst+tb*4+2*t+1}], v{V_AR} offset:{abuf * A_BUF + tb * 256 + ks * 64 + t * 32}", tag)
def nB(w): return 0 if w == 7 else (2 if w == 6 else 3)
def nA(w): return 0 if w == 7 else (4 if w == 6 else 2)
BS = ((V_B0, SRD_B0), (V_B1, SRD_B1), (V_B2, SRD_B2))
def bdma(k, slot):
    def f0(A): A(f"s_add_u32 m0, s{S_BLDS[k]}, {LDS_B + slot * B_STAGE}")
    def f1(A):
        A(f"buffer_load_dwordx4 v{BS[k][0]}, {srd(BS[k][1])}, s{S_BOFF[k]} offen lds")
        A(f"s_add_u32 s{S_BOFF[k]}, s{S_BOFF[k]}, s{S_BINC[k]}")
    return f0, f1
def adma(h, e, abuf, kconst=None):
    def f0(A):
        if kconst is None: A(f"s_add_u32 s{T}, s{S_AKE}, {h * 128 * 2048 + e * 4096}")
        else: A(f"s_mov_b32 s{T}, {kconst + h * 128 * 2048 + e * 4096}")
        A(f"s_add_u32 m0, s{S_APAGE}, {abuf * A_BUF + (16 * h + e) * A_PAGE}")
    def f1(A): A(f"buffer_load_dwordx4 v{V_A}, {srd(SRD_A)}, s{T} offen lds")
    return f0, f1
def pfload(A, k):
    A(f"buffer_load_dword v{V_A}, v{BS[k][0]}, {srd(BS[k][1])}, s{S_BOFF[k]} offen")
    A(f"s_add_u32 s{S_BOFF[k]}, s{S_BOFF[k]}, s{S_BINC[k]}")
def cs_ops(b, half):
    out = []
    c = V_CS + (b // 4)
    for r in (2 * half, 2 * half + 1):
        w = WR + (b % 5) * 4 + r
        def f0(A, w=w):
            A(f"v_lshlrev_b32 v{V_CT}, 16, v{w}")
            A(f"v_and_b32 v{V_CT+1}, s{S_HI}, v{w}")
        def f1(A, c=c):
            A(f"v_add_f32 v{c}, v{c}, v{V_CT}")
            A(f"v_add_f32 v{c}, v{c}, v{V_CT+1}")
        out += [f0, f1]
    return out
def extras_of(w, u):
    if w == 7: return {0: [(2, "poll"), (4, "sig")], 1: [], 2: [(2, "stat"), (8, "rows")], 3: [(5, "drain"), (int(opt("pfc", 2)), "pfc")]}[u]
    return {0: [(2, "poll"), (6, "drain")] + ([(1, "cpoll")] if w == 5 else []), 1: [(3, "wphi")] if w == 4 else [],
            2: [(2, "stat"), (8, "rows")] + ([(1, "cload")] if w == 5 else []), 3: []}[u]

def p1_body(A, w, cs=True):
    wn, wm = w >> 2, w & 3
    blocks = blocks_of(wn)
    G_ = [[] for _ in range(160)]
    def gap(u, i): return G_[(40 * u + i) % 160]
    for u in range(4):
        odd = u & 1
        for c in range(10):
            tgt = c + 4
            blk, st = (tgt, u) if tgt < 10 else (tgt - 10, (u + 1) & 3)
            sl = tgt % 5
            delayed = ((c - 1) % 10) % 4 == wm
            for t in range(2):
                pos = 4 * (c + 1) + 2 + t if delayed else 4 * c + t
                gap(u, pos).append(lambda A, blk=blk, st=st, sl=sl, t=t: wread(A, wn, blk, st, WR + sl * 4, f"W{sl}", t))
        if odd:
            nb = ((u + 1) >> 1) & 1
            Tn1 = T1B if u == 1 else T1A
            tr = [(nb, 0, tb, T0, "T0") for tb in range(4)] + [(nb, 1, tb, Tn1, "T1") for tb in range(4)]
            for k, x in enumerate(tr):
                for t in range(2):
                    gap(u, 4 * [0, 1, 2, 3, 4, 6, 7, 8][k] + 2 + t).append(lambda A, x=x, t=t: tread(A, *x, t))
            def adv(A):
                A(f"s_add_u32 s{S_AK}, s{S_AK}, 128")
                A(f"s_cmp_ge_u32 s{S_AK}, 2048")
                A(f"s_cselect_b32 s{S_AKE}, 0x10000000, s{S_AK}")
            if nA(w): gap(u, 4 * 9 + 2).append(adv)
        dm = [bdma(k, (u + 3) & 3) for k in range(nB(w))] + [adma(u & 1, e, (u >> 1) & 1) for e in range(nA(w))]
        for k, (f0, f1) in enumerate(dm):
            gap(u, 4 * k + 2).insert(0, f0)
            gap(u, 4 * k + 3).insert(0, f1)
        if w == 7:
            for k in range(3): gap(u, 4 * k + 3).append(lambda A, k=k: pfload(A, k))
        for b in (range(wm, 10, 4) if cs else []):
            for k, f in enumerate(cs_ops(b, 0) + cs_ops(b, 1)): gap(u, 4 * b + (k if b < 9 else k // 2)).append(f)
        for it, nm in extras_of(w, u):
            def g(A, it=it, nm=nm):
                lab = A.newlabel("L_nx")
                A(f"s_cmp_eq_u32 s{S_ITER}, {it}")
                A(f"s_cbranch_scc0 {lab}")
                A(f"s_call_b64 s[{S_RET}:{S_RET+1}], L_x_{nm}_{w}")
                A.label(lab)
            gap(u, 1 if (opt("xg", 1) and nm in ("drain", "stat", "rows", "cload")) else 35).append(g)
    for u in range(4):
        odd = u & 1
        Tuse = T0 if not odd else (T1A if u == 1 else T1B)
        for b in range(10):
            A.wait_lgkm([f"W{b % 5}"] + ([("T1" if odd else "T0")] if b == 0 else []))
            wr = WR + (b % 5) * 4
            for k, tb in enumerate(range(4) if b % 2 == 0 else range(3, -1, -1)):
                a = acc(b, tb)
                if blocks[b][0] == "v": MF(A, a, Tuse + tb * 4, wr, a)
                else: MF(A, a, wr, Tuse + tb * 4, a)
                for f in G_[40 * u + 4 * b + k]: f(A)
        nv = nA(w) + nB(w)
        ws_ = [f"vmcnt({nv})"] if nv else []
        n = A.lgkm_count_for(["T0", "T1"]) if odd else None
        if n is not None:
            ws_.append(f"lgkmcnt({n})"); A.lgkm_retire(n)
        if ws_: A("s_waitcnt " + " ".join(ws_))
        A("s_barrier")

ROWS7 = 0
def p1_extras(A, w):
    global ROWS7
    ROWS7 = 3 * int(opt("npf", 0)) + (6 if opt("xg", 1) else 9) + (2 if opt("pfx") else 0)
    wm = w & 3
    dbg = srd(SRD_D)
    A.label(f"L_x_drain_{w}")
    A("s_waitcnt vmcnt(0)")
    A(f"s_setpc_b64 s[{S_RET}:{S_RET+1}]")
    A.label(f"L_x_rows_{w}")
    A(f"s_waitcnt vmcnt({ROWS7 if w == 7 else 0})")
    a0, a1, t0, t1 = 88, 89, 10, 11
    for i in range(8):
        A(f"v_lshlrev_b32 v{t0}, 16, v{80+i}")
        A(f"v_and_b32 v{t1}, s{S_HI}, v{80+i}")
        if i == 0:
            A(f"v_mov_b32 v{a0}, v{t0}"); A(f"v_mov_b32 v{a1}, v{t1}")
        else:
            A(f"v_add_f32 v{a0}, v{a0}, v{t0}"); A(f"v_add_f32 v{a1}, v{a1}, v{t1}")
    A(f"v_add_f32 v{a0}, v{a0}, v{a1}")
    wave_allreduce(A, a0, t0)
    A(f"v_mul_f32 v{a0}, 0xba800000, v{a0}     ; -mean")
    for i in range(8):
        A(f"v_lshlrev_b32 v{t0}, 16, v{80+i}")
        A(f"v_and_b32 v{t1}, s{S_HI}, v{80+i}")
        A(f"v_add_f32 v{t0}, v{t0}, v{a0}")
        A(f"v_add_f32 v{t1}, v{t1}, v{a0}")
        if i == 0: A(f"v_mul_f32 v{a1}, v{t0}, v{t0}")
        else: A(f"v_fmac_f32 v{a1}, v{t0}, v{t0}")
        A(f"v_fmac_f32 v{a1}, v{t1}, v{t1}")
    wave_allreduce(A, a1, t0)
    A(f"v_mul_f32 v{a1}, 0x3a800000, v{a1}     ; var")
    A(f"v_cvt_pk_bf16_f32 v{t0}, v{a0}, v{a1}")
    A(f"v_lshlrev_b32 v80, 16, v{t0}")
    A(f"v_and_b32 v{a1}, s{S_HI}, v{t0}")
    A(f"v_add_f32 v{a1}, 0x3727c5ac, v{a1}")
    A(f"v_cvt_pk_bf16_f32 v{a1}, v{a1}, v{a1}")
    A(f"v_lshlrev_b32 v{a1}, 16, v{a1}")
    A(f"v_sqrt_f32 v{a1}, v{a1}")
    A(f"s_lshl_b32 s{T+1}, s2, 6")
    A(f"v_cvt_pk_bf16_f32 v{a1}, v{a1}, v{a1}")
    A(f"s_add_u32 s{T+1}, s{T+1}, {WS_STATS + w * 8}")
    A(f"v_lshlrev_b32 v81, 16, v{a1}")
    A("s_mov_b64 exec, 1")
    A(f"buffer_store_dwordx2 v[80:81], v0, {WS}, s{T+1} offen sc1")
    A("s_mov_b64 exec, -1")
    A(f"s_setpc_b64 s[{S_RET}:{S_RET+1}]")
    def paddr(A):
        A(f"v_and_b32 v{V_PA}, 0x70, v{L16}")
        A(f"v_lshlrev_b32 v{V_PA}, 1, v{V_PA}")
        A(f"buffer_load_dword v{V_POLL}, v{V_PA}, {dbg}, 0 offen sc1")
    A.label(f"L_x_poll_{w}")
    paddr(A)
    A(f"s_setpc_b64 s[{S_RET}:{S_RET+1}]")
    A.label(f"L_x_stat_{w}")
    A("s_waitcnt vmcnt(0)")
    A(f"v_cmp_ne_u32 vcc, 32, v{V_POLL}")
    A("s_nop 4")
    A(f"s_cbranch_vccz L_x_stat_{w}_go")
    A("s_sleep 2")
    paddr(A)
    A(f"s_branch L_x_stat_{w}")
    A.label(f"L_x_stat_{w}_go")
    off_c(A, T + 1)
    A(f"v_mov_b32 v{V_POLL}, 1")
    A("s_mov_b64 exec, 1")
    put(A, T + 1, V_POLL, 0)
    A("s_mov_b64 exec, -1")
    A(f"v_and_b32 v{V_POLL}, 0xf0, v{L16}")
    A(f"v_lshrrev_b32 v{V_POLL}, 1, v{V_POLL}")
    A(f"s_lshl_b32 s{T+1}, s{S_MT}, 11")
    A(f"s_add_u32 s{T+1}, s{T+1}, {WS_STATS + wm * 512}")
    for tb in range(4):
        A(f"buffer_load_dwordx2 v[{V_ST+2*tb}:{V_ST+2*tb+1}], v{V_POLL}, {WS}, s{T+1} offen offset:{tb*128} sc1")
    A(f"s_setpc_b64 s[{S_RET}:{S_RET+1}]")
    A.label(f"L_x_cpub_{w}")
    xreduce_g(A, [V_CS, V_CS + 1, V_CS + 2], [10, 11, V_POLL], "add")
    A(f"v_and_b32 v{V_PA}, 0xf0, v{L16}")
    A(f"v_lshrrev_b32 v{V_PA}, 2, v{V_PA}")
    A(f"s_mul_i32 s{T+1}, s{S_J}, 7680")
    A(f"s_mul_i32 s{T+2}, s{S_MT}, 1280")
    A(f"s_add_u32 s{T+1}, s{T+1}, s{T+2}")
    A(f"s_add_u32 s{T+1}, s{T+1}, {WS_CSP + (w >> 2) * 640 + wm * 64}")
    A("s_mov_b64 exec, 0xffff")
    for i in range(3 if wm < 2 else 2):
        A(f"buffer_store_dword v{V_CS+i}, v{V_PA}, {WS}, s{T+1} offen offset:{256*i} sc1")
    A("s_mov_b64 exec, -1")
    A("s_nop 1")
    for i in range(3): A(f"v_mov_b32 v{V_CS+i}, 0")
    A(f"s_setpc_b64 s[{S_RET}:{S_RET+1}]")
    if w == 5:
        A.label(f"L_x_cpoll_{w}")
        A(f"v_lshrrev_b32 v{V_PA}, 2, v{L16}")
        lin(A, T + 1, [(S_J, 8)], F_C)
        A(f"buffer_load_dword v{V_POLL}, v{V_PA}, {WS}, s{T+1} offen sc1")
        A(f"s_setpc_b64 s[{S_RET}:{S_RET+1}]")
        A.label(f"L_x_cload_{w}")
        A("s_waitcnt vmcnt(0)")
        A(f"v_cmp_ne_u32 vcc, 1, v{V_POLL}")
        A("s_nop 4")
        A(f"s_cbranch_vccz L_x_cload_go")
        A("s_sleep 1")
        A(f"v_lshrrev_b32 v{V_PA}, 2, v{L16}")
        lin(A, T + 1, [(S_J, 8)], F_C)
        A(f"buffer_load_dword v{V_POLL}, v{V_PA}, {WS}, s{T+1} offen sc1")
        A(f"s_branch L_x_cload_{w}")
        A.label("L_x_cload_go")
        A(f"s_mul_i32 s{T+1}, s{S_J}, 7680")
        A(f"s_add_u32 s{T+1}, s{T+1}, {WS_CSP}")
        for h in range(2):
            A(f"s_mov_b32 m0, {CSPL + h * 4096}")
            A("s_nop 0")
            for k in range(4):
                A(f"buffer_load_dwordx4 v{L16}, {WS}, s{T+1} offen offset:{k*1024} sc1 lds")
            A(f"s_add_u32 s{T+1}, s{T+1}, 4096")
        A(f"s_setpc_b64 s[{S_RET}:{S_RET+1}]")
    if w == 4:
        A.label(f"L_x_wphi_{w}")
        A(f"s_mov_b32 m0, {WPL}")
        A(f"s_lshl_b32 s{T+1}, s{S_J}, 11")
        A(f"buffer_load_dwordx4 v{L16}, {srd(SRD_WP)}, s{T+1} offen lds")
        A(f"buffer_load_dwordx4 v{L16}, {srd(SRD_WP)}, s{T+1} offen offset:1024 lds")
        A(f"s_setpc_b64 s[{S_RET}:{S_RET+1}]")
    if w == 7:
        A.label(f"L_x_sig_{w}")
        A(f"s_lshr_b32 s{T+1}, s2, 5")
        A(f"s_lshl_b32 s{T+1}, s{T+1}, 5")
        A(f"v_mov_b32 v{V_POLL}, 1")
        A("s_mov_b64 exec, 1")
        A(f"buffer_atomic_add v{V_POLL}, v0, {dbg}, s{T+1} offen sc1")
        A("s_mov_b64 exec, -1")
        for d in (SRD_B0, SRD_B1):
            A(f"s_mov_b32 s{d}, s100")
            A(f"s_and_b32 s{d+1}, s101, 0xffff")
            A(f"s_add_u32 s{T+1}, s2, 1")
            A(f"s_mul_i32 s{d+2}, s{T+1}, {224*128}")
        A(f"s_mov_b32 s{SRD_B2}, s{P+6}")
        A(f"s_and_b32 s{SRD_B2+1}, s{P+7}, 0xffff")
        A(f"s_lshl_b32 s{SRD_B2+2}, s{T+1}, 13")
        A(f"v_lshrrev_b32 v{V_B0}, 4, v{L16}")
        A(f"v_and_b32 v{V_B2}, 7, v{V_B0}")
        A(f"v_lshlrev_b32 v{V_B2}, 7, v{V_B2}")
        A(f"v_min_u32 v{V_B0}, 13, v{V_B0}")
        A(f"v_lshlrev_b32 v{V_B0}, 7, v{V_B0}")
        A(f"v_mov_b32 v{V_B1}, v{V_B0}")
        A(f"s_mul_i32 s{S_BOFF[0]}, s2, {224*128}")
        A(f"s_add_u32 s{S_BOFF[1]}, s{S_BOFF[0]}, {14*128}")
        A(f"s_lshl_b32 s{S_BOFF[2]}, s2, 13")
        A(f"s_mov_b32 s{S_BINC[0]}, {28*128}")
        A(f"s_mov_b32 s{S_BINC[1]}, {28*128}")
        A(f"s_mov_b32 s{S_BINC[2]}, 1024")
        A(f"s_setpc_b64 s[{S_RET}:{S_RET+1}]")
        if opt("pfc", 2):
            A.label(f"L_x_pfc_{w}")
            A(f"s_getpc_b64 s[{SRD_PF}:{SRD_PF+1}]")
            A.label("L_pc_ref")
            A(f"s_sub_u32 s{SRD_PF}, s{SRD_PF}, L_pc_ref - fused_kernel")
            A(f"s_subb_u32 s{SRD_PF+1}, s{SRD_PF+1}, 0")
            A(f"s_and_b32 s{SRD_PF+1}, s{SRD_PF+1}, 0xffff")
            A(f"s_mov_b32 s{SRD_PF+2}, L_done - fused_kernel")
            A(f"s_mov_b32 s{SRD_PF+3}, 0x00020000")
            A(f"v_lshrrev_b32 v{V_POLL}, 4, v{L16}")
            A(f"v_min_u32 v{V_POLL}, 23, v{V_POLL}")
            A(f"v_lshlrev_b32 v{V_POLL}, 7, v{V_POLL}")
            A(f"s_lshr_b32 s{T+1}, s2, 3")
            A(f"s_mul_i32 s{T+1}, s{T+1}, {24*128}")
            A(f"buffer_load_dword v{V_A}, v{V_POLL}, {srd(SRD_PF)}, s{T+1} offen")
            A(f"s_setpc_b64 s[{S_RET}:{S_RET+1}]")

def tile_ids(A, H, M, N, TILE, t):
    A(f"s_and_b32 s{t}, s2, 7")
    A(f"s_lshr_b32 s{t+1}, s2, 3")
    A(f"s_and_b32 s{H}, s{t}, 1")
    A(f"s_lshr_b32 s{M}, s{t}, 1")
    A(f"s_lshl_b32 s{M}, s{M}, 2")
    A(f"s_and_b32 s{t}, s{t+1}, 3")
    A(f"s_add_u32 s{M}, s{M}, s{t}")
    A(f"s_lshr_b32 s{N}, s{t+1}, 2")
    A(f"s_lshl_b32 s{TILE}, s{M}, 3")
    A(f"s_add_u32 s{TILE}, s{TILE}, s{N}")
def lin(A, d, terms, base):
    first = True
    for r, sh in terms:
        if first: A(f"s_lshl_b32 s{d}, s{r}, {sh}"); first = False
        else:
            A(f"s_lshl_b32 s{T+5}, s{r}, {sh}")
            A(f"s_add_u32 s{d}, s{d}, s{T+5}")
    A(f"s_add_u32 s{d}, s{d}, {base}")
def off_h(A, d, ph): lin(A, d, [(S_MT, 11), (S_W, 7), (S_J, 2)], F_H + ph * 1024)
def off_k(A, d): lin(A, d, [(S_J, 8), (S_MT, 5), (S_W, 2)], F_K)
def off_c(A, d): lin(A, d, [(S_J, 8), (S_MT, 5), (S_W, 2)], F_C)
def off_o(A, d): lin(A, d, [(S_MT, 9), (S_WM, 7), (S_J, 2)], F_O)
def off_p(A, d, tile): lin(A, d, [(tile, 7), (S_WM, 2)], F_P)
def put(A, soff, vval, vzero): A(f"buffer_store_dword v{vval}, v{vzero}, {WS}, s{soff} offen sc1")

CR, NM, RR, RL, WPR, WPK, TMP = 12, 80, 2, [0, 1, 10, 11], 56, 88, 72
def pk_fma_bc(A, d, a, bc, c):
    if not opt("pk"):
        for r in range(2): A(f"v_fma_f32 v{d+r}, v{a+r}, v{bc}, v{c+r}")
        return
    p, s = bc & ~1, bc & 1
    A(f"v_pk_fma_f32 v[{d}:{d+1}], v[{a}:{a+1}], v[{p}:{p+1}], v[{c}:{c+1}] op_sel:[0,{s},0] op_sel_hi:[1,{s},1]")
def pk_mul_bc(A, d, a, bc):
    if not opt("pk"):
        for r in range(2): A(f"v_mul_f32 v{d+r}, v{a+r}, v{bc}")
        return
    p, s = bc & ~1, bc & 1
    A(f"v_pk_mul_f32 v[{d}:{d+1}], v[{a}:{a+1}], v[{p}:{p+1}] op_sel:[0,{s}] op_sel_hi:[1,{s}]")
def corr(A, a, b, tb):
    for r in (0, 2): pk_fma_bc(A, a + r, CR + 4 * b + r, NM + 2 * tb, a + r)
def gu(A, bg, bu, tb, dst, tmp):
    g = acc(bg, tb); u = acc(bu, tb)
    corr(A, g, bg, tb); corr(A, u, bu, tb)
    for r in range(4): A(f"v_mul_f32 v{tmp+r}, v{g+r}, v{RL[tb]}")
    for r in range(4): A(f"v_exp_f32 v{tmp+r}, v{tmp+r}")
    for r in range(4): A(f"v_fma_f32 v{tmp+r}, v{tmp+r}, v{NM+2*tb+1}, v{NM+2*tb+1}")
    for r in range(4): A(f"v_rcp_f32 v{tmp+r}, v{tmp+r}")
    for r in range(4): A(f"v_mul_f32 v{tmp+r}, v{tmp+r}, v{u+r}")
    cvt(A, dst, tmp); cvt(A, dst + 1, tmp + 2)
def qk_pack(A, tb):
    d = acc(0, tb)
    for hb in range(2):
        a = acc(hb, tb)
        corr(A, a, hb, tb)
        for r in (0, 2): pk_mul_bc(A, a + r, a + r, RR + tb)
        cvt(A, d + 2 * hb, a); cvt(A, d + 2 * hb + 1, a + 2)
def kwork(A, groups, WP, S):
    KV, D, ISEL, ONES, PP, PM, PK, SC = S, S + 48, S + 80, S + 88, S + 92, S + 96, S + 100, S + 108
    PT = PK
    A(f"v_lshrrev_b32 v{SC}, 4, v{L16}")
    A(f"v_lshrrev_b32 v{SC+1}, 4, v{SC}         ; g")
    A(f"v_and_b32 v{SC}, 15, v{SC}              ; c")
    A(f"v_lshrrev_b32 v{SC+2}, 2, v{SC}")
    A(f"v_and_b32 v{SC+3}, 3, v{SC}")
    A(f"v_cmp_eq_u32 vcc, v{SC+2}, v{SC+1}")
    A(f"v_and_b32 v{SC+4}, 1, v{SC+3}")
    A(f"v_lshlrev_b32 v{SC+4}, 4, v{SC+4}")
    A(f"v_mov_b32 v{SC+5}, 0x3f80")
    A(f"v_lshlrev_b32 v{SC+5}, v{SC+4}, v{SC+5}")
    A(f"v_cndmask_b32 v{SC+5}, 0, v{SC+5}, vcc")
    A(f"v_cmp_gt_u32 vcc, 2, v{SC+3}")
    A(f"v_mov_b32 v{ISEL}, 0")
    A(f"v_mov_b32 v{ISEL+1}, 0")
    A(f"v_cndmask_b32 v{ISEL+2}, 0, v{SC+5}, vcc")
    A(f"v_cndmask_b32 v{ISEL+3}, v{SC+5}, 0, vcc")
    A(f"v_mov_b32 v{ISEL+4}, 0")
    A(f"v_mov_b32 v{ISEL+5}, 0")
    for r in range(4): A(f"v_mov_b32 v{ONES+r}, s{S_ONES}")
    for gi, (VF, kfs) in enumerate(groups):
        if gi: A("s_nop 3")
        for e, kf in kfs.items():
            MF(A, PK, WP, kf); MF(A, PK + 4, WP + 4, kf)
            A("s_nop 7")
            softmax(A, PK, PP, PM, SC)
            A("s_nop 1")
            dd = D + e * 16
            MF(A, dd, PP, ISEL + 2); MF(A, dd + 4, PP, ISEL); MF(A, dd + 8, PM, ISEL + 2); MF(A, dd + 12, PM, ISEL)
        es = list(kfs)
        for e in range(2):
            if e not in kfs:
                for fb in range(4):
                    A(f"v_mov_b32 v{PT+fb*4+2*e}, 0"); A(f"v_mov_b32 v{PT+fb*4+2*e+1}, 0")
        for e in es:
            if e == es[-1] and len(es) == 2: pass
            for fb in range(4):
                dd = D + e * 16 + fb * 4
                cvt(A, PT + fb * 4 + 2 * e, dd); cvt(A, PT + fb * 4 + 2 * e + 1, dd + 2)
        A("s_nop 1")
        for fb in range(4):
            for db in range(3):
                c = KV + (fb * 3 + db) * 4
                MF(A, c, PT + fb * 4, VF + db * 4 if db < 2 else ONES, c if gi else None)
    A("s_nop 7")
    return KV

def p1_epilogue(A, wn):
    st = "sc1"
    A.label(f"L_epi{wn}")
    A.lgkm = []
    A("s_waitcnt vmcnt(0) lgkmcnt(0)")
    stamp(A, 2)
    if opt("edbg"): A("s_memrealtime s[80:81]")
    A(f"v_lshrrev_b32 v54, 8, v{L16}")
    A("v_lshlrev_b32 v52, 4, v54                ; g*16")
    A(f"v_and_b32 v55, 0xf0, v{L16}")
    A("v_lshrrev_b32 v12, 2, v55                ; c*4")
    A("v_lshrrev_b32 v56, 6, v55                ; i>>2")
    A("v_lshl_add_u32 v56, v54, 2, v56")
    A("v_lshlrev_b32 v56, 6, v56")
    A("v_and_b32 v57, 12, v12")
    A("v_lshl_add_u32 v56, v57, 1, v56")
    A(f"v_add_u32 v56, {WPL}, v56")
    A("v_mul_u32_u24 v13, 1280, v54")
    A(f"s_lshl_b32 s{T}, s{S_WM}, 6")
    A(f"s_add_u32 s{T}, s{T}, {CSPL + wn * 640}")
    A(f"v_add3_u32 v13, v13, v12, s{T}")
    A("v_cmp_gt_u32 vcc, 2, v54")
    for i in range(3):
        A(f"ds_read_b32 v{16+2*i}, v13 offset:{256*i}")
        A(f"ds_read_b32 v{17+2*i}, v13 offset:{256*i + 5120}")
    A("s_waitcnt lgkmcnt(0)")
    for i in range(3):
        A(f"v_cndmask_b32 v{17+2*i}, 0, v{17+2*i}, vcc")
        A(f"v_add_f32 v{V_CS+i}, v{V_CS+i}, v{16+2*i}")
        A(f"v_add_f32 v{V_CS+i}, v{V_CS+i}, v{17+2*i}")
    xreduce_g(A, [V_CS, V_CS + 1, V_CS + 2], [13, 14, 15], "add")
    A(f"s_lshl_b32 s{T}, s{S_WM}, 6")
    A(f"s_add_u32 s{T}, s{T}, {CSL + wn * 640}")
    A(f"v_add_u32 v13, s{T}, v12")
    A(f"ds_write_b32 v13, v{V_CS}")
    A(f"ds_write_b32 v13, v{V_CS+1} offset:256")
    A(f"s_cmp_lt_u32 s{S_WM}, 2")
    A(f"s_cselect_b32 s{T}, s{T}, {CSL + 1280 - 512}")
    A(f"v_add_u32 v14, s{T}, v12")
    A(f"ds_write_b32 v14, v{V_CS+2} offset:512")
    for tb in range(4): A(f"v_rcp_f32 v{RR+tb}, v{NM+2*tb+1}")
    A("s_nop 0")
    for tb in range(4): A(f"v_mul_f32 v{RL[tb]}, s{S_C}, v{RR+tb}")
    if wn == 1:
        A(f"s_lshl_b32 s{T}, s{S_W}, 9")
        A(f"s_add_u32 s{T}, s{T}, {STL}")
        A(f"v_lshl_add_u32 v15, v12, 1, s{T}")
        for tb in range(4):
            A(f"v_mov_b32 v{16+2*tb}, v{NM+2*tb}")
            A(f"v_mov_b32 v{17+2*tb}, v{RR+tb}")
            A(f"ds_write_b64 v15, v[{16+2*tb}:{17+2*tb}] offset:{tb*128}")
        A(f"v_lshl_add_u32 v55, v52, 1, s{T}         ; stats scratch + g*32")
        A(f"v_add_u32 v54, {CSL + 640}, v12")
    A(f"v_add_u32 v52, {CSL + wn * 640}, v52")
    lin(A, T + 4, [(S_WM, 13)], HOFF)
    A(f"v_add_u32 v53, s{T+4}, v{L16}")
    lin(A, T, [(S_MT, 14), (S_WM, 12)], WS_ACT)
    A(f"s_mul_i32 s{T+1}, s{S_J}, {3 * 131072}")
    A(f"s_add_u32 s{T+1}, s{T+1}, s{T}")
    A("s_waitcnt lgkmcnt(0)")
    A("s_barrier                ; B1")
    if opt("edbg"): A("s_memrealtime s[82:83]")
    order = [2, 3, 4, 5, 0, 1, 6, 7, 8, 9] if wn == 0 else [4, 5, 6, 7, 0, 1, 8, 9]
    for b in order: A.ds(f"ds_read_b128 v[{CR+4*b}:{CR+4*b+3}], v52 offset:{b*64}", f"C{b}")
    def hflag(n):
        off_h(A, T + 3, 0)
        A("v_mov_b32 v58, 1")
        A("v_mov_b32 v59, 0")
        A(f"s_waitcnt vmcnt({n})")
        A("s_mov_b64 exec, 1")
        put(A, T + 3, 58, 59)
        A("s_mov_b64 exec, -1")
    def gupair(b0, soff, fl=None):
        A.wait_lgkm([f"C{b}" for b in range(b0, b0 + 4)])
        for tb in range(4):
            if fl == tb: hflag(tb)
            d = acc(b0, tb)
            gu(A, b0 + 2, b0 + 3, tb, acc(b0 + 2, tb), TMP + 4)
            gu(A, b0, b0 + 1, tb, d, TMP)
            A(f"v_mov_b32 v{d+2}, v{acc(b0+2, tb)}")
            A(f"v_mov_b32 v{d+3}, v{acc(b0+2, tb)+1}")
            A(f"buffer_store_dwordx4 v[{d}:{d+3}], v{L16}, {WS}, s{soff} offen offset:{tb*1024} {st}")
    if wn == 0:
        gupair(2, T + 1)
        A(f"s_add_u32 s{T+1}, s{T+1}, 131072")
        gupair(6, T + 1, int(opt("ef")) if opt("ef") else None)
        for tb in range(4): qk_pack(A, tb)
        A("s_barrier                ; B2")
        if opt("edbg"): A("s_memrealtime s[84:85]")
        for k in range(7): A(f"ds_read_b128 v[{12+4*k}:{15+4*k}], v53 offset:{k*1024}")
        if not opt("ef"): hflag(4)
        groups = [(20, {0: 12, 1: 16}), (32, {1: 28})]
    else:
        A.ds(f"ds_read_b32 v{CR+8}, v54 offset:128", "CV")
        A.ds(f"ds_read_b32 v{CR+9}, v54 offset:192", "CV")
        A(f"s_add_u32 s{T+1}, s{T+1}, {2*131072}")
        gupair(4, T + 1)
        A.wait_lgkm(["C0", "C1"])
        for tb in (2, 3, 0, 1): qk_pack(A, tb)
        if opt("ef"): hflag(0)
        A(f"ds_write_b128 v53, v[{acc(0,2)}:{acc(0,2)+3}]")
        A(f"ds_write_b128 v53, v[{acc(0,3)}:{acc(0,3)+3}] offset:1024")
        A(f"ds_write_b128 v53, v[{acc(0,1)}:{acc(0,1)+3}] offset:4096")
        for pair in (1, 0):
            for e in range(2):
                tb = 2 * pair + e
                A.ds(f"ds_read_b128 v[{112+8*e}:{115+8*e}], v55 offset:{tb*128}", f"S{e}")
                A.ds(f"ds_read_b128 v[{116+8*e}:{119+8*e}], v55 offset:{tb*128+16}", f"S{e}")
            for e in range(2):
                tb = 2 * pair + e
                A.wait_lgkm(["CV", f"S{e}"])
                for db in range(2):
                    a = acc(2 + db, tb)
                    for r in range(4): A(f"v_fma_f32 v{a+r}, v{CR+8+db}, v{112+8*e+2*r}, v{a+r}")
                    for r in range(4): A(f"v_mul_f32 v{a+r}, v{a+r}, v{113+8*e+2*r}")
                    d = acc(2 + db, 2 * pair) + 2 * e
                    cvt(A, d, a); cvt(A, d + 1, a + 2)
            A("s_nop 0")
            o_ = 2048 if pair == 1 else 5120
            A(f"ds_write_b128 v53, v[{acc(2,2*pair)}:{acc(2,2*pair)+3}] offset:{o_}")
            A(f"ds_write_b128 v53, v[{acc(3,2*pair)}:{acc(3,2*pair)+3}] offset:{o_+1024}")
        A("s_waitcnt lgkmcnt(0)")
        A.lgkm = []
        A("s_barrier                ; B2")
        if opt("edbg"): A("s_memrealtime s[84:85]")
        if not opt("ef"): hflag(0)
        A(f"s_lshr_b32 s{T+2}, s{S_J}, 1")
        A(f"s_add_u32 s{T+2}, s{T+2}, 96")
        A(f"s_lshl_b32 s{T+2}, s{T+2}, 17")
        A(f"s_add_u32 s{T+2}, s{T+2}, s{T}")
        A(f"s_and_b32 s{T+3}, s{S_J}, 1")
        A(f"s_lshl_b32 s{T+3}, s{T+3}, 3")
        A(f"s_add_u32 s{T+2}, s{T+2}, s{T+3}")
        for tb in range(4):
            d = acc(8, tb)
            gu(A, 8, 9, tb, d, TMP + 4 * (tb & 1))
            A(f"buffer_store_dwordx2 v[{d}:{d+1}], v{L16}, {WS}, s{T+2} offen offset:{tb*1024} {st}")
        for db in range(2):
            for r in range(4): A(f"v_mov_b32 v{20+4*db+r}, v{acc(2+db,0)+r}")
        groups = [(20, {0: acc(0, 0)})]
    if opt("edbg"): A("s_memrealtime s[86:87]")
    for fb in range(2):
        for t in range(2):
            A(f"ds_read_b64_tr_b16 v[{WPK+4*fb+2*t}:{WPK+4*fb+2*t+1}], v56 offset:{t*1024 + fb*32}")
    A("s_waitcnt lgkmcnt(0)")
    KV = kwork(A, groups, WPK, 124)
    A(f"s_mul_i32 s{T+1}, s{S_W}, {12*1024}")
    A(f"v_add_u32 v20, s{T+1}, v{L16}")
    for blk in range(12): A(f"ds_write_b128 v20, v[{KV+blk*4}:{KV+blk*4+3}] offset:{blk*1024}")
    if opt("edbg"): A("s_memrealtime s[88:89]"); A("s_memrealtime s[90:91]")
    A("s_waitcnt lgkmcnt(0)")
    A("s_barrier                ; B3")
    if opt("edbg"): A("s_memrealtime s[92:93]")
    A(f"s_lshr_b32 s{T}, s{S_W}, 1")
    A(f"s_mul_i32 s{T}, s{T}, 3")
    A(f"s_and_b32 s{T+1}, s{S_W}, 1")
    A(f"s_add_u32 s{T}, s{T}, s{T+1}")
    A(f"s_lshl_b32 s{T}, s{T}, 10")
    A(f"v_add_u32 v20, s{T}, v{L16}")
    A(f"v_add_u32 v22, {4*12*1024}, v20")
    for p in range(8): A(f"ds_read_b128 v[{124+4*p}:{127+4*p}], v{20 if p < 4 else 22} offset:{(p%4)*12*1024}")
    if wn == 0:
        A(f"s_mul_i32 s{T}, s{S_W}, 3072")
        A(f"v_add_u32 v21, s{T}, v{L16}")
        A(f"v_add_u32 v23, {4*12*1024}, v21")
        for p in range(8): A(f"ds_read_b128 v[{156+4*p}:{159+4*p}], v{21 if p < 4 else 23} offset:{(p%4)*12*1024 + 2048}")
    A(f"s_lshl_b32 s{T}, s{S_J}, 3")
    A(f"s_add_u32 s{T}, s{T}, s{S_MT}")
    A(f"s_mul_i32 s{T}, s{T}, {KVP_SZ}")
    A(f"s_add_u32 s{T}, s{T}, {WS_KVP}")
    A(f"s_lshl_b32 s{T+1}, s{S_W}, 10")
    A(f"s_add_u32 s{T+1}, s{T+1}, s{T}")
    A("s_waitcnt lgkmcnt(0)")
    for base in ((124, 156) if wn == 0 else (124,)):
        for s_ in (16, 8, 4):
            for r in range(s_):
                A(f"v_add_f32 v{base+r}, v{base+r}, v{base+s_+r}")
    A(f"buffer_store_dwordx4 v[124:127], v{L16}, {WS}, s{T+1} offen {st}")
    if wn == 0:
        A(f"s_lshl_b32 s{T+1}, s{S_W}, 6")
        A(f"s_add_u32 s{T+1}, s{T+1}, s{T}")
        A(f"s_add_u32 s{T+1}, s{T+1}, 8192")
        A(f"v_lshrrev_b32 v21, 4, v{L16}")
        A("v_and_b32 v22, 15, v21")
        A("v_cmp_eq_u32 vcc, 0, v22")
        A(f"s_and_saveexec_b64 s[{T+2}:{T+3}], vcc")
        A(f"buffer_store_dwordx4 v[156:159], v21, {WS}, s{T+1} offen {st}")
        A("s_mov_b64 exec, -1")
    stamp(A, 3)
    stamp_store(A, WS_STAMP)
    A(f"s_branch L_p2_{'prod' if wn == 0 else 'cons'}")

def p1_prologue(A):
    A("s_cmp_ge_u32 s2, 256")
    A("s_cbranch_scc1 L_done")
    stamp(A, 0)
    if opt("pfc0", 1):
        A(f"s_getpc_b64 s[{SRD_B2}:{SRD_B2+1}]")
        A.label("L_pc_ref0")
        A(f"s_sub_u32 s{SRD_B2}, s{SRD_B2}, L_pc_ref0 - fused_kernel")
        A(f"s_subb_u32 s{SRD_B2+1}, s{SRD_B2+1}, 0")
        A(f"s_and_b32 s{SRD_B2+1}, s{SRD_B2+1}, 0xffff")
        A(f"s_mov_b32 s{SRD_B2+2}, L_done - fused_kernel")
        A(f"s_mov_b32 s{SRD_B2+3}, 0x00020000")
        A("v_subrev_u32 v13, 448, v0")
        A("v_cmp_gt_u32 vcc, 24, v13")
        A("v_lshlrev_b32 v13, 7, v13")
        A(f"s_lshr_b32 s{T+1}, s2, 3")
        A(f"s_mul_i32 s{T+1}, s{T+1}, {24*128}")
        A(f"s_and_saveexec_b64 s[{T+2}:{T+3}], vcc")
        A("s_cbranch_execz L_pc_skip")
        A(f"buffer_load_dword v{V_A}, v13, {srd(SRD_B2)}, s{T+1} offen")
        A.label("L_pc_skip")
        A("s_mov_b64 exec, -1")
    A(f"s_load_dwordx8 s[{P}:{P+7}], s[0:1], 0")
    A(f"s_load_dwordx4 s[{P+8}:{P+11}], s[0:1], 40")
    A(f"s_load_dwordx4 s[96:99], s[0:1], 72")
    A(f"s_load_dwordx2 s[100:101], s[0:1], 56")
    A(f"s_load_dwordx2 s[{P+12}:{P+13}], s[0:1], 64")
    A("v_lshrrev_b32 v11, 6, v0")
    A("v_and_b32 v10, 63, v0             ; lane")
    A(f"v_readfirstlane_b32 s{S_W}, v11")
    A(f"s_lshl_b32 s{T}, s2, 3")
    A(f"v_add_u32 v60, s{T}, v11          ; stats row")
    A("v_lshlrev_b32 v61, 11, v60")
    A("v_lshl_add_u32 v61, v10, 4, v61")
    A(f"v_lshlrev_b32 v{L16}, 4, v10")
    A(f"s_and_b32 s{S_WM}, s{S_W}, 3")
    A(f"s_lshr_b32 s{S_WN}, s{S_W}, 2")
    A(f"s_and_b32 s{T}, s2, 7")
    A(f"s_lshr_b32 s{T+1}, s2, 3")
    jm = int(opt("jm", 0))
    if jm == 4:
        A(f"s_xor_b32 s{T}, s{T}, 1")
    if jm in (0, 4):
        A(f"s_and_b32 s{S_J}, s{T+1}, 3")
        A(f"s_lshl_b32 s{T}, s{T}, 2")
        A(f"s_add_u32 s{S_J}, s{S_J}, s{T}")
        A(f"s_lshr_b32 s{S_MT}, s{T+1}, 2")
    elif jm == 1:
        A(f"s_and_b32 s{S_J}, s{T+1}, 3")
        A(f"s_lshl_b32 s{S_J}, s{S_J}, 3")
        A(f"s_add_u32 s{S_J}, s{S_J}, s{T}")
        A(f"s_lshr_b32 s{S_MT}, s{T+1}, 2")
    elif jm == 2:
        A(f"s_and_b32 s{S_J}, s{T}, 3")
        A(f"s_lshl_b32 s{S_J}, s{S_J}, 3")
        A(f"s_and_b32 s{T+2}, s{T+1}, 7")
        A(f"s_add_u32 s{S_J}, s{S_J}, s{T+2}")
        A(f"s_lshr_b32 s{S_MT}, s{T}, 2")
        A(f"s_lshl_b32 s{S_MT}, s{S_MT}, 2")
        A(f"s_lshr_b32 s{T+2}, s{T+1}, 3")
        A(f"s_add_u32 s{S_MT}, s{S_MT}, s{T+2}")
    elif jm == 3:
        A(f"s_and_b32 s{S_J}, s{T}, 1")
        A(f"s_lshl_b32 s{S_J}, s{S_J}, 4")
        A(f"s_and_b32 s{T+2}, s{T+1}, 15")
        A(f"s_add_u32 s{S_J}, s{S_J}, s{T+2}")
        A(f"s_lshr_b32 s{S_MT}, s{T}, 1")
        A(f"s_lshl_b32 s{S_MT}, s{S_MT}, 1")
        A(f"s_lshr_b32 s{T+2}, s{T+1}, 4")
        A(f"s_add_u32 s{S_MT}, s{S_MT}, s{T+2}")
    lin(A, T, [(S_MT, 8), (S_WN, 6), (S_WM, 2)], 0)
    A("v_bfe_u32 v11, v10, 3, 1")
    A("v_lshrrev_b32 v12, 4, v10         ; g")
    A("v_lshl_add_u32 v11, v12, 4, v11")
    A(f"v_add_u32 v11, s{T}, v11")
    A("v_lshlrev_b32 v11, 11, v11")
    A("v_and_b32 v13, 7, v10")
    A(f"v_lshl_add_u32 v{V_A}, v13, 4, v11")
    A(f"s_mul_i32 s{S_APAGE}, s{S_W}, {2 * A_PAGE}")
    A(f"s_lshl_b32 s{T}, s{S_W}, 6")
    A(f"v_add_u32 v13, s{T}, v10")
    A("v_mul_u32_u24 v14, 4682, v13")
    A("v_lshrrev_b32 v14, 16, v14")
    A("v_mul_u32_u24 v15, 14, v14")
    A("v_sub_u32 v15, v13, v15")
    A("v_mul_u32_u24 v14, 7168, v14")
    A("v_lshl_add_u32 v14, v15, 4, v14")
    A(f"s_mul_i32 s{T}, s{S_J}, 224")
    A(f"v_add_u32 v{V_B0}, s{T}, v14")
    A(f"v_mov_b32 v{V_B1}, v{V_B0}")
    A("v_lshrrev_b32 v15, 2, v10")
    A("v_mul_u32_u24 v15, 6144, v15")
    A("v_lshrrev_b32 v16, 3, v10")
    A("v_and_b32 v16, 2, v16")
    A("v_and_b32 v17, 3, v10")
    A("v_xor_b32 v16, v16, v17")
    A("v_lshl_add_u32 v15, v16, 4, v15")
    A(f"s_lshr_b32 s{T}, s{S_W}, 1")
    A(f"s_lshl_b32 s{T}, s{T}, 11")
    A(f"s_and_b32 s{T+1}, s{S_W}, 1")
    A(f"s_mul_i32 s{T+1}, s{T+1}, {16*6144}")
    A(f"s_add_u32 s{T}, s{T}, s{T+1}")
    A(f"s_lshl_b32 s{T+1}, s{S_J}, 6")
    A(f"s_add_u32 s{T}, s{T}, s{T+1}")
    A(f"v_add_u32 v{V_B2}, s{T}, v15")
    A(f"s_lshl_b32 s{S_BLDS[2]}, s{S_W}, 10")
    A(f"s_add_u32 s{S_BLDS[0]}, s{S_BLDS[2]}, 6144")
    A(f"s_add_u32 s{S_BLDS[1]}, s{S_BLDS[2]}, 13312")
    for k in range(3):
        A(f"s_mov_b32 s{S_BOFF[k]}, 0")
        A(f"s_mov_b32 s{S_BINC[k]}, {32 * (6144 if k == 2 else 7168)}")
    A("s_waitcnt lgkmcnt(0)")
    if opt("pdbg"): A("s_memrealtime s[86:87]")
    make_srd(A, SRD_A, P, P + 1, 4 * MB)
    make_srd(A, SRD_B0, P + 8, P + 9, 1024 * 7168)
    make_srd(A, SRD_B1, P + 10, P + 11, 1024 * 7168)
    make_srd(A, SRD_B2, P + 2, P + 3, 1024 * 6144)
    A(f"s_cmp_eq_u32 s{S_W}, 7")
    A("s_cbranch_scc1 L_pro7")
    A(f"s_cmp_eq_u32 s{S_W}, 6")
    A("s_cbranch_scc1 L_pro6")
    NPF = int(opt("npf", 0))
    PF0 = int(opt("pf0", 5))
    def run(ops):
        for f0, f1 in ops:
            f0(A); A("s_nop 0"); f1(A)
    pa = lambda w, stage: [adma(h, e, stage & 1, stage * 128) for h in range(2) for e in range(nA(w))]
    pb = lambda w, stage: [bdma(k, stage) for k in range(nB(w))]
    for cls, w in (("", 0), ("L_pro6", 6)):
        if cls: A.label(cls)
        run(pa(w, 0)); run(pb(w, 0)); run(pb(w, 1))
        A("s_branch L_pro_common")
    A.label("L_pro7")
    A(f"buffer_load_dwordx4 v[80:83], v61, {srd(SRD_A)}, 0 offen")
    A(f"buffer_load_dwordx4 v[84:87], v61, {srd(SRD_A)}, 0 offen offset:1024")
    if opt("pfx"):
        A("v_lshlrev_b32 v13, 7, v10")
        A(f"s_lshl_b32 s{T}, s2, 14")
        A(f"buffer_load_dword v{V_A}, v13, {srd(SRD_A)}, s{T} offen")
        A(f"s_add_u32 s{T}, s{T}, 8192")
        A(f"buffer_load_dword v{V_A}, v13, {srd(SRD_A)}, s{T} offen")
    A("v_min_u32 v13, 13, v10")
    A(f"s_mul_i32 s{T}, s2, 14")
    A(f"v_add_u32 v13, s{T}, v13")
    A(f"v_lshlrev_b32 v{V_B0}, 7, v13")
    A(f"v_mov_b32 v{V_B1}, v{V_B0}")
    A("v_min_u32 v13, 11, v10")
    A(f"s_mul_i32 s{T}, s2, 12")
    A(f"v_add_u32 v13, s{T}, v13")
    A(f"v_lshlrev_b32 v{V_B2}, 7, v13")
    for k in range(3):
        A(f"s_mov_b32 s{S_BOFF[k]}, {PF0 * 32 * (6144 if k == 2 else 7168)}")
        A(f"s_mov_b32 s{S_BINC[k]}, {64 * (6144 if k == 2 else 7168)}")
    for i in range(NPF):
        for k in range(3): pfload(A, k)
    A.label("L_pro_common")
    make_srd(A, SRD_WS, 98, 99, WS_BYTES)
    make_srd(A, SRD_D, 96, 97, 256)
    make_srd(A, SRD_WP, P + 4, P + 5, 65536)
    A(f"s_mov_b32 s{S_C}, {NLOG2E}")
    A(f"s_mov_b32 s{S_C+1}, {LOG2E}")
    A(f"s_mov_b32 s{S_ONES}, 0x3f803f80")
    A(f"s_mov_b32 s{S_HI}, 0xffff0000")
    A("v_and_b32 v16, 15, v10")
    A("v_lshrrev_b32 v17, 2, v16")
    A("v_lshl_add_u32 v17, v12, 2, v17   ; 4g + (i>>2)")
    A("v_and_b32 v18, 3, v16")
    A("v_lshlrev_b32 v18, 3, v18")
    A("v_mul_u32_u24 v19, 224, v17")
    A("v_add_u32 v19, v19, v18")
    A(f"v_add_u32 v{V_BG}, {LDS_B}, v19")
    A("v_lshl_add_u32 v19, v17, 6, v18")
    A("v_and_b32 v20, 1, v12")
    A("v_lshl_add_u32 v19, v20, 5, v19")
    A(f"v_add_u32 v{V_BQ0}, {LDS_B}, v19")
    A(f"v_xor_b32 v{V_BQ1}, 32, v{V_BQ0}")
    for a_, b_ in ((V_BG2, V_BG), (V_BQ02, V_BQ0), (V_BQ12, V_BQ1)): A(f"v_add_u32 v{a_}, {2*B_STAGE}, v{b_}")
    A("v_lshrrev_b32 v19, 1, v16")
    A(f"s_lshl_b32 s{T}, s{S_WM}, 3")
    A(f"v_add_u32 v19, s{T}, v19")
    A(f"v_mul_u32_u24 v19, {A_PAGE}, v19")
    A("v_and_b32 v20, 1, v16")
    A("v_lshl_add_u32 v19, v20, 7, v19")
    A(f"v_lshl_add_u32 v{V_AR}, v12, 3, v19")
    A(f"s_mov_b32 s{S_AK}, 256")
    A(f"s_mov_b32 s{S_AKE}, 256")
    for r in range(ACC, 256): A(f"v_mov_b32 v{r}, 0")
    for r in range(3): A(f"v_mov_b32 v{V_CS+r}, 0")
    for r in range(4): A(f"v_mov_b32 v{WR+16+r}, 0")
    A("v_mov_b32 v0, 0")
    off_h(A, T, 0)
    A(f"v_mov_b32 v40, s{T}")
    A(f"s_add_u32 s{T}, s{T}, 1024")
    A(f"v_writelane_b32 v40, s{T}, 1")
    off_k(A, T)
    A(f"v_writelane_b32 v40, s{T}, 2")
    off_o(A, T)
    tile_ids(A, 76, 77, 75, 74, T + 1)
    off_p(A, T + 1, 74)
    A(f"s_cmp_eq_u32 s{S_WN}, 0")
    A(f"s_cselect_b32 s{T}, s{T}, s{T+1}")
    A(f"v_writelane_b32 v40, s{T}, 3")
    A(f"s_cselect_b32 s{T+2}, 31, 23")
    A("s_cmp_eq_u32 s76, 1")
    A(f"s_cselect_b32 s{T+2}, 31, s{T+2}")
    off_c(A, T)
    A(f"v_writelane_b32 v40, s{T}, 4")
    A(f"s_sub_u32 s{S_MYIT}, 8, s{S_MT}")
    A(f"s_cmp_eq_u32 s{S_W}, 7")
    A("s_cbranch_scc1 L_pro_b7")
    A("s_waitcnt vmcnt(0)")
    if opt("pdbg"): A("s_memrealtime s[90:91]")
    A("s_barrier")
    A(f"s_cmp_eq_u32 s{S_W}, 6")
    A("s_cbranch_scc1 L_pro_g6")
    for cls, w in (("", 0), ("L_pro_g6", 6)):
        if cls: A.label(cls)
        run(pb(w, 2)); run(pa(w, 1))
        A(f"buffer_load_dwordx4 v[80:83], v61, {srd(SRD_A)}, 0 offen")
        A(f"buffer_load_dwordx4 v[84:87], v61, {srd(SRD_A)}, 0 offen offset:1024")
        A("s_branch L_pro_c2")
    A.label("L_pro_b7")
    if opt("pdbg"): A("s_memrealtime s[90:91]")
    A("s_barrier")
    A.label("L_pro_c2")
    A(f"s_mov_b32 exec_lo, s{T+2}")
    A("s_mov_b32 exec_hi, 0")
    A(f"buffer_store_dword v0, v40, {WS}, 0 offen sc1")
    A("s_mov_b64 exec, -1")
    if opt("pdbg"): A("s_memrealtime s[94:95]")
    for ts, ks in ((T0, 0), (T1A, 1)):
        for tb in range(4):
            for t in range(2): tread(A, 0, ks, tb, ts, "T", t)
    A(f"s_cmp_eq_u32 s{S_WN}, 1")
    A("s_cbranch_scc1 L_pro_w1")
    for wn in range(2):
        if wn: A.label("L_pro_w1")
        for b in range(4):
            for t in range(2): wread(A, wn, b, 0, WR + b * 4, "W", t)
        A("s_waitcnt lgkmcnt(8)")
        A("s_barrier")
        stamp(A, 1)
        A("s_waitcnt lgkmcnt(0)")
        A(f"s_mov_b32 s{S_ITER}, 8")
        for wm in range(1, 4):
            A(f"s_cmp_eq_u32 s{S_WM}, {wm}")
            A(f"s_cbranch_scc1 L_loop{wn*4+wm}")
        for wm in range(4):
            w = wn * 4 + wm
            B = Asm(); p1_body(B, w); entry = list(B.lgkm)
            A.label(f"L_loop{w}")
            A(f"s_cmp_eq_u32 s{S_ITER}, s{S_MYIT}")
            A(f"s_cbranch_scc1 L_loopc{w}")
            A.lgkm = list(entry)
            A.label(f"L_loopp{w}")
            p1_body(A, w, False)
            assert A.lgkm == entry
            if opt("idbg"): A(f"s_call_b64 s[{S_RET}:{S_RET+1}], L_idbg")
            A(f"s_sub_u32 s{S_ITER}, s{S_ITER}, 1")
            A(f"s_cmp_gt_u32 s{S_ITER}, 2")
            A(f"s_cbranch_scc1 L_loop{w}")
            A.label(f"L_loopc{w}")
            p1_body(A, w, True)
            assert A.lgkm == entry
            if opt("idbg"): A(f"s_call_b64 s[{S_RET}:{S_RET+1}], L_idbg")
            A(f"s_sub_u32 s{S_ITER}, s{S_ITER}, 1")
            A(f"s_cmp_lt_u32 s{S_ITER}, 2")
            A(f"s_cbranch_scc1 L_loopt{w}")
            A(f"s_call_b64 s[{S_RET}:{S_RET+1}], L_x_cpub_{w}")
            A(f"s_cmp_gt_u32 s{S_ITER}, 2")
            A(f"s_cbranch_scc1 L_loopp{w}")
            A.label(f"L_loopt{w}")
            A(f"s_cmp_lg_u32 s{S_ITER}, 0")
            A(f"s_cbranch_scc1 L_loopc{w}")
            A(f"s_branch L_epi{wn}")
            p1_extras(A, w)
        p1_epilogue(A, wn)

PPB = 136
def o_soft(A, e):
    PK, SC = 64, 96
    q = 120 + 4 * e
    MF(A, PK, 56, q); MF(A, PK + 4, 60, q)
    A("s_nop 7")
    softmax(A, PK, PPB + 8 * e, PPB + 8 * e + 4, SC)
def o_fin(A, e, soff):
    O, N0, N1, DN = 24, 80, 84, 88
    PP, PM = PPB + 8 * e, PPB + 8 * e + 4
    MF(A, DN, 48, PP); MF(A, N0, 32, PP); MF(A, N1, 40, PP)
    MF(A, DN, 52, PM, DN); MF(A, N0, 36, PM, N0); MF(A, N1, 44, PM, N1)
    A("s_nop 7")
    A(f"v_add_f32 v{DN}, 0x358637bd, v{DN}")
    A(f"v_rcp_f32 v{DN}, v{DN}")
    A("s_nop 0")
    for r in range(8): A(f"v_mul_f32 v{N0+r}, v{N0+r}, v{DN}")
    d = O + 4 * (e & 1)
    for r in range(4): cvt(A, d + r, N0 + 2 * r)
    A(f"buffer_store_dwordx4 v[{d}:{d+3}], v4, {WS}, s{soff} offen offset:{e*1024} sc1")

def phase2(A):
    A.p2 = True
    SPL = int(opt("h1n", 68)); NB1 = min(SPL - 32, 32); K1O = SPL - 32 - NB1; NB0 = 32 - NB1; N0 = 144 - SPL; OST = N0 - 32
    assert NB0 % 2 == 0 and NB0 >= 0
    H, M, N, TILE = 20, 21, 22, 23
    SRD_X, SRD_B, SRD_OUT = 8, 12, 16
    S_SLOT, S_DELTA = 24, 25
    AOFF, BOFF, AINC, BINC, POS, EVT, LDS, B2, LA, LB = 26, 27, 28, 29, 30, 31, 32, 33, 34, 35
    NIT, T2, S_OO, RET = 60, 56, 58, 76
    VT, VW = 1, 2
    TS = [8, 24]; WSR = [40, 56]; AC = 72; XR = 136; KG = 160
    KI = [int(opt("kc", 1))]
    OS = KI[0] + int(opt("kd", 6))
    KO1, KO2 = 33, 34
    def ac(cb, tb): return AC + (cb * 4 + tb) * 4
    def common(A):
        stamp(A, 0)
        A(f"v_mov_b32 v4, v{L16}")
        A("v_lshrrev_b32 v3, 4, v4")
        A("v_lshrrev_b32 v5, 4, v3           ; g")
        A("v_and_b32 v6, 15, v3")
        A("v_lshlrev_b32 v12, 2, v3          ; lane*4")
        A("v_mov_b32 v13, 0")
        A("v_mov_b32 v14, 1")
        tile_ids(A, H, M, N, TILE, T)
        A(f"s_cmp_eq_u32 s{H}, 1")
        A(f"s_cselect_b32 s{NIT}, {SPL // 2}, {N0 // 2}")
    def own_flags(A):
        off_h(A, T, 1); off_k(A, T + 1)
        A("s_waitcnt vmcnt(0)")
        A("s_mov_b64 exec, 1")
        put(A, T, 14, 13); put(A, T + 1, 14, 13)
        if opt("edbg") or opt("idbg"):
            if opt("edbg"): A("s_memrealtime s[94:95]")
            A("s_waitcnt lgkmcnt(0)")
            lin(A, T, [(2, 9), (S_W, 6)], WS_STAMP + MB)
            for i in range(8):
                A(f"v_mov_b32 v15, s{80+2*i}")
                A(f"buffer_store_dword v15, v13, {WS}, s{T} offen offset:{4*i}")
                A("s_nop 1")
        A("s_mov_b64 exec, -1")
    def poll64(A, soff, lab, vaddr, vdst):
        A.label(lab)
        A(f"buffer_load_dword v{vdst}, v{vaddr}, {WS}, s{soff} offen sc1")
        A("s_waitcnt vmcnt(0)")
        A(f"v_cmp_ne_u32 vcc, 1, v{vdst}")
        A("s_nop 4")
        A(f"s_cbranch_vccz {lab}_ok")
        A("s_sleep 1")
        A(f"s_branch {lab}")
        A.label(lab + "_ok")
    def hf_query(A, d, ph, wn):
        A(f"s_lshr_b32 s{d}, s{M}, 1")
        A(f"s_lshl_b32 s{d}, s{d}, 11")
        A(f"s_and_b32 s{d+1}, s{M}, 1")
        A(f"s_lshl_b32 s{d+1}, s{d+1}, 8")
        A(f"s_add_u32 s{d}, s{d}, s{d+1}")
        A(f"s_add_u32 s{d}, s{d}, {F_H + ph * 1024 + wn * 512}")
    A.label("L_p2_cons")
    common(A)
    A("s_barrier                 ; B4")
    make_srd(A, SRD_OUT, P + 12, P + 13, 4 * MB)
    A("v_mov_b32 v158, v12")
    S_CM, S_CN, CI = 26, 27, 28
    A(f"s_and_b32 s{S_CM}, s{S_WM}, 1")
    A(f"s_lshr_b32 s{S_CN}, s{S_WM}, 1")
    A(f"s_lshl_b32 s{T}, s{S_CM}, 12")
    A(f"v_add_u32 v{VT}, s{T}, v4")
    A("v_and_b32 v7, 1, v5")
    A("v_lshrrev_b32 v8, 2, v6")
    A("v_lshl_add_u32 v7, v7, 2, v8")
    A("v_mul_u32_u24 v7, 1056, v7")
    A("v_lshrrev_b32 v8, 1, v5")
    A("v_lshl_add_u32 v7, v8, 8, v7")
    A("v_and_b32 v8, 3, v6")
    A("v_lshl_add_u32 v7, v8, 3, v7")
    lin(A, T, [(S_CN, 7)], 8192)
    A(f"v_add_u32 v{VW}, s{T}, v7")
    lin(A, T, [(M, 7), (S_CM, 6)], 0)
    A(f"v_add_u32 v7, s{T}, v6")
    A("v_lshlrev_b32 v7, 11, v7")
    lin(A, T, [(N, 8), (S_CN, 7)], 0)
    A(f"v_add_u32 v7, s{T}, v7")
    for tb in range(1, 4): A(f"s_mov_b32 s{60+tb}, {tb * 32768}")
    sof = lambda tb: "0" if tb == 0 else f"s{60+tb}"
    for r in range(64): A(f"v_mov_b32 v{AC+r}, 0")
    A(f"s_mov_b32 s{S_SLOT}, 0")
    own_flags(A)
    lin(A, T2, [(S_J, 8)], F_K)
    A("v_lshlrev_b32 v156, 4, v5          ; g*16")
    A(f"s_mul_i32 s{T}, s{S_J}, {8 * KVP_SZ}")
    A(f"s_add_u32 s{T}, s{T}, {WS_KVP}")
    A(f"s_lshl_b32 s{KO1}, s{S_WM}, 11")
    A(f"s_add_u32 s{KO1}, s{KO1}, s{T}")
    A(f"s_lshl_b32 s{KO2}, s{S_WM}, 6")
    A(f"s_add_u32 s{KO2}, s{KO2}, s{T}")
    A(f"s_add_u32 s{KO2}, s{KO2}, 8192")
    if opt("prio"): A("s_setprio 1")
    A("s_barrier")
    A.lgkm = []
    def reads(st):
        out = []
        for k in range(4):
            out.append(lambda A, k=k: A.ds(f"ds_read_b128 v[{TS[st]+4*k}:{TS[st]+4*k+3}], v{VT} offset:{k*1024}", f"S{st}"))
            for tt in range(2):
                out.append(lambda A, k=k, tt=tt: A.ds(f"ds_read_b64_tr_b16 v[{WSR[st]+4*k+2*tt}:{WSR[st]+4*k+2*tt+1}], v{VW} offset:{tt*512 + k*32}", f"S{st}"))
        return out
    def adv0(A):
        A(f"s_add_u32 s{S_SLOT}, s{S_SLOT}, 1")
        A(f"s_cmp_eq_u32 s{S_SLOT}, {NSLOT}")
        A(f"s_cselect_b32 s{S_SLOT}, 0, s{S_SLOT}")
        A(f"s_mov_b32 s{S_DELTA}, {SLOT}")
        A(f"s_cselect_b32 s{S_DELTA}, {(-(NSLOT-1) * SLOT) & 0xffffffff}, s{S_DELTA}")
    def adv1(A):
        A(f"v_add_u32 v{VT}, s{S_DELTA}, v{VT}")
        A(f"v_add_u32 v{VW}, s{S_DELTA}, v{VW}")
    for f in reads(0): f(A)
    adv0(A); adv1(A)
    stamp(A, 1)
    if opt("stamp"): A("s_waitcnt lgkmcnt(0)")
    entry = list(A.lgkm)
    def citer(extra):
        per = [[] for _ in range(32)]
        for k, f in enumerate(extra): per[(k * 32) // len(extra)].append(f)
        for e in range(2):
            A.wait_lgkm(f"S{e}")
            fill = reads(1 - e) + [adv0, adv1]
            m = 0
            for cb in range(4):
                for tb in (range(4) if cb % 2 == 0 else range(3, -1, -1)):
                    MF(A, ac(cb, tb), WSR[e] + 4 * cb, TS[e] + 4 * tb, ac(cb, tb))
                    if m < len(fill): fill[m](A)
                    for f in per[16 * e + m]: f(A)
                    m += 1
        assert A.lgkm == entry[len(entry)-len(A.lgkm):]
    def check(A, lab, vd, soff, vaddr):
        A.label(lab)
        A("s_waitcnt vmcnt(0)")
        A(f"v_cmp_ne_u32 vcc, 1, v{vd}")
        A("s_nop 4")
        A(f"s_cbranch_vccz {lab}_ok")
        A("s_sleep 1")
        A(f"buffer_load_dword v{vd}, v{vaddr}, {WS}, s{soff} offen sc1")
        A(f"s_branch {lab}")
        A.label(lab + "_ok")
    lds_ = []
    for p in range(8):
        def l1(A, p=p): A(f"buffer_load_dwordx4 v[{KG+4*p}:{KG+3+4*p}], v4, {WS}, s{KO1} offen sc1")
        def l2(A, p=p):
            A(f"buffer_load_dwordx4 v[{KG+32+4*p}:{KG+35+4*p}], v4, {WS}, s{KO1} offen offset:1024 sc1")
            A(f"s_add_u32 s{KO1}, s{KO1}, {KVP_SZ}")
        def l3(A, p=p):
            A(f"buffer_load_dwordx4 v[{KG+64+4*p}:{KG+67+4*p}], v156, {WS}, s{KO2} offen sc1")
            A(f"s_add_u32 s{KO2}, s{KO2}, {KVP_SZ}")
        lds_ += [l1, l2, l3]
    adds = []
    for s_ in (16, 8, 4):
        for base in (KG, KG + 32, KG + 64):
            for r in range(s_): adds.append(lambda A, base=base, r=r, s_=s_: A(f"v_add_f32 v{base+r}, v{base+r}, v{base+s_+r}"))
    for k, base in enumerate((KG, KG + 32, KG + 64)):
        adds.append(lambda A, k=k, base=base: cvt(A, KG + 4 + 2 * k, base))
        adds.append(lambda A, k=k, base=base: cvt(A, KG + 5 + 2 * k, base + 2))
    for ci in range(OS):
        ex = []
        if ci in (KI[0] + 1, KI[0] + 2): ex = lds_[12 * (ci - KI[0] - 1):12 * (ci - KI[0])]
        if ci == OS - 2: A("s_waitcnt vmcnt(0)"); ex = adds[:48]
        if ci == OS - 1: ex = adds[48:]
        citer(ex)
        if ci == 0: A(f"buffer_load_dword v159, v158, {WS}, s{T2} offen sc1")
        if ci == KI[0]: check(A, "L_p2_ck", 159, T2, 158)
        if ci == OS - 1:
            lin(A, T, [(S_WM, 10)], RING)
            A(f"v_lshl_add_u32 v159, v158, 1, s{T}")
            A(f"ds_write_b64 v159, v[{KG+4}:{KG+5}]")
            A(f"ds_write_b64 v159, v[{KG+6}:{KG+7}] offset:512")
            lin(A, T, [(S_WM, 9)], RING + 4096)
            A(f"v_lshl_add_u32 v157, v158, 1, s{T}")
            A(f"ds_write_b64 v157, v[{KG+8}:{KG+9}]")
            A("s_waitcnt lgkmcnt(0)")
        A("s_barrier")
    A(f"s_mov_b32 s{CI}, {OS}")
    cev = []
    def pissue(calc, vaddr=158):
        def f(A):
            calc(A)
            A(f"buffer_load_dword v159, v{vaddr}, {WS}, s{T2} offen sc1")
        return f
    def pcheck(vaddr=158):
        def f(A): check(A, A.newlabel("L_p2_cc"), 159, T2, vaddr)
        return f
    def q_h(wn): return lambda A: hf_query(A, T2, 1, wn)
    def q_o(A): lin(A, T2, [(M, 8)], F_O)
    def q_p(A):
        lin(A, T2, [(TILE, 7)], F_P)
        A("v_and_b32 v157, 12, v158")
    ss_of = lambda pos: (pos - 8) // 2
    def both(f, g): return lambda A: (f(A), g(A))
    PD = int(opt("pd", 2))
    cev.append((OS, pissue(q_h(1))))
    if NB0:
        cev.append((OS + 2, both(pcheck(), pissue(q_h(0)))))
        cev.append((OS + 4, pcheck()))
    else: cev.append((OS + 2, pcheck()))
    assert OS + 4 < ss_of(32)
    cev.append((ss_of(OST) - 1 - PD, pissue(q_o)))
    cev.append((ss_of(OST) - 1, pcheck()))
    cev.append((ss_of(N0 + 4) - 1 - PD, pissue(q_p, 157)))
    cev.append((ss_of(N0 + 4) - 1, pcheck(157)))
    cev.append((1000 + OS, pissue(q_h(0))))
    if K1O:
        cev.append((1000 + OS + 2, both(pcheck(), pissue(q_h(1)))))
        cev.append((1000 + OS + 4, pcheck()))
    else: cev.append((1000 + OS + 2, pcheck()))
    HB = 29
    A(f"s_mul_i32 s{HB}, s{H}, 1000")
    A(f"s_cmp_eq_u32 s{S_W}, 4")
    A(f"s_cselect_b32 s{EVT}, {OS}, -1")
    A.label("L_p2_cloop")
    citer([])
    A(f"s_cmp_eq_u32 s{CI}, s{EVT}")
    A("s_cbranch_scc1 L_p2_cevt")
    A.label("L_p2_cevt_ret")
    A(f"s_add_u32 s{CI}, s{CI}, 1")
    A(f"s_cmp_lg_u32 s{CI}, s{NIT}")
    A("s_barrier")
    A("s_cbranch_scc1 L_p2_cloop")
    A("s_waitcnt vmcnt(0) lgkmcnt(0)")
    stamp(A, 2)
    A(f"s_cmp_eq_u32 s{H}, 1")
    A("s_cbranch_scc0 L_p2_fin")
    lin(A, T, [(TILE, 15), (S_WM, 13)], WS_PART)
    A("s_nop 2")
    for k in range(8):
        d = XR + 4 * k
        for e in range(2):
            a = AC + (2 * k + e) * 4
            cvt(A, d + 2 * e, a); cvt(A, d + 2 * e + 1, a + 2)
        if k == 4: A(f"s_add_u32 s{T}, s{T}, 4096")
        A(f"buffer_store_dwordx4 v[{d}:{d+3}], v4, {WS}, s{T} offen offset:{(k%4)*1024} sc1")
    off_p(A, T, TILE)
    A("v_mov_b32 v13, 0")
    A("v_mov_b32 v14, 1")
    A("s_waitcnt vmcnt(0)")
    A("s_mov_b64 exec, 1")
    put(A, T, 14, 13)
    A("s_branch L_p2_end")
    A.label("L_p2_fin")
    A("v_lshrrev_b32 v8, 2, v6")
    A("v_mul_u32_u24 v8, 1056, v8")
    A("v_and_b32 v9, 3, v6")
    A("v_lshl_add_u32 v8, v9, 8, v8")
    A("v_lshl_add_u32 v8, v5, 3, v8")
    def slot_of(d, sreg, sh, base):
        A(f"s_lshl_b32 s{d}, s{sreg}, {sh}")
        A(f"s_add_u32 s{d}, s{d}, {base % NSLOT}")
        A(f"s_cmp_ge_u32 s{d}, {NSLOT}")
        A(f"s_cselect_b32 s{d+1}, {NSLOT}, 0")
        A(f"s_sub_u32 s{d}, s{d}, s{d+1}")
        A(f"s_mul_i32 s{d}, s{d}, {SLOT}")
    for h in range(2):
        slot_of(T + 1, S_CM, 1, N0 + h)
        A(f"s_lshl_b32 s{T+2}, s{S_CN}, 7")
        A(f"s_add_u32 s{T+1}, s{T+1}, s{T+2}")
        A(f"v_add_u32 v{1+h}, s{T+1}, v8")
    slot_of(T + 1, S_CN, 0, N0 + 4)
    A(f"v_add_u32 v3, s{T+1}, v4")
    A("v_and_b32 v8, 1, v5")
    A("v_lshlrev_b32 v8, 5, v8")
    A("v_lshrrev_b32 v9, 1, v5")
    A("v_lshl_add_u32 v8, v9, 4, v8")
    A("v_add_u32 v7, v7, v8")
    XX = 200
    A("s_barrier")
    A(f"s_cmp_eq_u32 s{S_CM}, 1")
    A("s_cbranch_scc1 L_p2_fin1")
    for par in range(2):
        if par: A.label("L_p2_fin1")
        for k in range(8):
            A(f"ds_read_b128 v[{XR+4*k}:{XR+4*k+3}], v3 offset:{k * 1024 if par == 0 else 8192 + k * 1056}")
        if par == 0: A("s_branch L_p2_fin2")
    A.label("L_p2_fin2")
    A.lgkm = [f"P{k}" for k in range(8)]
    for blk in [(2 * q + e) * 4 + tb for q in range(2) for tb in range(4) for e in range(2)]:
        cb, tb = blk // 4, blk % 4
        A.ds(f"ds_read_b64 v[{XX+2*blk}:{XX+2*blk+1}], v{1 + (tb >> 1)} offset:{8192 + (tb & 1) * 4 * 1056 + cb * 32}", f"X{blk}")
    def addbf(a, d):
        A(f"v_lshlrev_b32 v8, 16, v{d}")
        A(f"v_and_b32 v9, s{S_HI}, v{d}")
        A(f"v_lshlrev_b32 v10, 16, v{d+1}")
        A(f"v_and_b32 v11, s{S_HI}, v{d+1}")
        for r in range(4): A(f"v_add_f32 v{a+r}, v{a+r}, v{8+r}")
    for q in range(2):
        for tb in range(4):
            d = 12 + (q * 4 + tb) * 4
            for e in range(2):
                blk = (2 * q + e) * 4 + tb; a = AC + blk * 4
                A.wait_lgkm([f"P{blk // 2}", f"X{blk}"])
                addbf(a, XR + 4 * (blk // 2) + 2 * (blk & 1))
                addbf(a, XX + 2 * blk)
                cvt(A, d + 2 * e, a); cvt(A, d + 2 * e + 1, a + 2)
            A("s_nop 1")
            A(f"v_permlane16_swap_b32 v{d}, v{d+2}")
            A(f"v_permlane16_swap_b32 v{d+1}, v{d+3}")
            A(f"buffer_store_dwordx4 v[{d}:{d+3}], v7, {srd(SRD_OUT)}, {sof(tb)} offen offset:{q*64} sc1")
    A("s_branch L_p2_end")
    A.label("L_p2_cevt")
    A(f"s_add_u32 s{T}, s{CI}, s{HB}")
    for k, (pos, f) in enumerate(cev[1:], 1):
        A(f"s_cmp_eq_u32 s{T}, {pos}")
        A(f"s_cbranch_scc1 L_p2_cev{k}")
    for k, (pos, f) in enumerate(cev):
        A.label(f"L_p2_cev{k}")
        f(A)
        nx = cev[k + 1][0] % 1000 if k + 1 < len(cev) and (cev[k + 1][0] >= 1000) == (pos >= 1000) else -1
        A(f"s_mov_b32 s{EVT}, {nx}")
        A("s_branch L_p2_cevt_ret")
    A.label("L_p2_prod")
    for r in range(16): A(f"v_mov_b32 v{120+r}, v{96+r}")
    for r in range(8): A(f"v_mov_b32 v{56+r}, v{WPK+r}")
    common(A)
    A("s_barrier                 ; B4")
    make_srd(A, SRD_B, 100, 101, 3584 * 2048)
    A("v_lshlrev_b32 v22, 3, v3")
    A(f"v_add_u32 v22, {RING}, v22")
    lin(A, T, [(M, 13), (S_WM, 11)], 0)
    A(f"v_add_u32 v8, s{T}, v4")
    A(f"s_lshl_b32 s{T+1}, s{S_WM}, 1")
    A(f"v_lshlrev_b32 v9, 3, v5")
    A(f"v_add_u32 v9, s{T+1}, v9")
    A("v_lshlrev_b32 v9, 11, v9")
    A("v_lshl_add_u32 v9, v6, 4, v9")
    A(f"s_lshl_b32 s{T}, s{N}, 8")
    A(f"v_add_u32 v9, s{T}, v9              ; regular")
    A("v_lshrrev_b32 v10, 1, v5")
    A(f"v_mul_u32_u24 v10, {96*2048}, v10")
    A("v_add_u32 v10, v10, v9               ; odd")
    A("v_mov_b32 v11, v9")
    A(f"s_lshl_b32 s{LA}, s{S_WM}, 11")
    A(f"s_mul_i32 s{LB}, s{S_WM}, {2*1056}")
    A(f"s_add_u32 s{LB}, s{LB}, 8192")
    lin(A, S_OO, [(S_J, 17), (S_MT, 14), (S_WM, 12)], WS_ACT + 112 * 131072)
    A(f"s_cmp_eq_u32 s{H}, 1")
    A(f"s_cselect_b32 s{AOFF}, 0, {2 * 131072}")
    A(f"s_cselect_b32 s{BOFF}, 0, {64 * 2048}")
    A(f"s_cselect_b32 s{POS}, 1000, 0")
    A(f"s_add_u32 s{AOFF}, s{AOFF}, {WS_ACT}")
    A(f"s_add_u32 s{EVT}, s{POS}, 32")
    A(f"s_mov_b32 s{AINC}, {3 * 131072}")
    A(f"s_mov_b32 s{BINC}, {112 * 2048}")
    A(f"s_mov_b32 s{B2}, 2048")
    if not opt("t2"):
        o_soft(A, 0)
        own_flags(A)
    def issue_a(A):
        A(f"s_add_u32 m0, s{LDS}, s{LA}")
        A(f"s_add_u32 s{T2}, s{BOFF}, s{B2}")
        A(f"buffer_load_dwordx4 v8, {WS}, s{AOFF} offen sc1 lds")
        A(f"buffer_load_dwordx4 v8, {WS}, s{AOFF} offen offset:1024 sc1 lds")
        if not opt("hitA"): A(f"s_add_u32 s{AOFF}, s{AOFF}, s{AINC}")
    def issue_b(A, own_t2=False):
        A(f"s_add_u32 m0, s{LDS}, s{LB}")
        if own_t2: A(f"s_add_u32 s{T2}, s{BOFF}, s{B2}")
        else: A("s_nop 0")
        A(f"buffer_load_dwordx4 v11, {srd(SRD_B)}, s{BOFF} offen {opt('bsc', 'sc1')} lds")
        A(f"s_add_u32 m0, m0, 1056")
        if not opt("hitB"): A(f"s_add_u32 s{BOFF}, s{BOFF}, s{BINC}")
        else: A("s_nop 0")
        A(f"buffer_load_dwordx4 v11, {srd(SRD_B)}, s{T2} offen {opt('bsc', 'sc1')} lds")
    def nxt(A):
        A(f"s_add_u32 s{LDS}, s{LDS}, {SLOT}")
        A(f"s_cmp_eq_u32 s{LDS}, {RING}")
        A(f"s_cselect_b32 s{LDS}, 0, s{LDS}")
    def issue_kb(A):
        issue_a(A); issue_b(A)
        A(f"s_add_u32 s{POS}, s{POS}, 1")
        nxt(A)
    A(f"s_mov_b32 s{LDS}, 0")
    for k in range(7): issue_b(A, True); nxt(A)
    hf_query(A, T, 0, 0)
    A(f"s_cmp_eq_u32 s{H}, 1")
    A(f"s_cselect_b32 s{T+1}, 0, 512")
    A(f"s_add_u32 s{T}, s{T}, s{T+1}")
    A(f"buffer_load_dword v15, v12, {WS}, s{T} offen sc1")
    if opt("t2"):
        A(f"s_mov_b32 s{T+4}, s{T}")
        if opt("t2") == "1": o_soft(A, 0)
        own_flags(A)
        check(A, "L_p2_poll0", 15, T + 4, 12)
    else:
        o_soft(A, 1)
        check(A, "L_p2_poll0", 15, T, 12)
    A(f"s_mov_b32 s{LDS}, 0")
    for k in range(7): issue_a(A); nxt(A)
    A(f"s_add_u32 s{POS}, s{POS}, 7")
    if opt("t2") == "2": o_soft(A, 0)
    if opt("t2"): o_soft(A, 1)
    if not opt("t2"): o_soft(A, 2)
    A("s_waitcnt vmcnt(8)")
    A("s_barrier")
    stamp(A, 1)
    def mid(A):
        lab = A.newlabel("L_p2_ne")
        A(f"s_cmp_eq_u32 s{POS}, s{EVT}")
        A(f"s_cbranch_scc0 {lab}")
        A(f"s_call_b64 s[{RET}:{RET+1}], L_p2_evt")
        A.label(lab)
    NO = 2
    NPEEL = OS + NO + 1
    assert ss_of(OST) - 1 >= OS + NO, (OST, NPEEL)
    for ss in range(NPEEL):
        if ss == OS + NO:
            off_o(A, T2)
            A("s_waitcnt vmcnt(0)")
            A("s_mov_b64 exec, 1")
            put(A, T2, 14, 13)
            A("s_mov_b64 exec, -1")
        issue_kb(A); mid(A); issue_kb(A)
        if ss == OS:
            for db in range(2):
                for hf in range(2):
                    for e in range(2):
                        d = 32 + (db * 2 + hf) * 4 + 2 * e
                        A(f"ds_read_b64 v[{d}:{d+1}], v22 offset:{((2 * hf + e) * 2 + db)*512}")
            for hf in range(2):
                for e in range(2):
                    A(f"ds_read_b64 v[{48+hf*4+2*e}:{49+hf*4+2*e}], v22 offset:{4096 + (2*hf+e)*512}")
        pcs = {1: (3, 0), 4: (3, 1)} if not opt("t2") else {0: (2, 0), 1: (2, 1), 4: (3, 0), 5: (3, 1)}
        if ss in pcs:
            B = Asm(); o_soft(B, pcs[ss][0]); h = len(B.lines) // 2
            for l in (B.lines[:h] if pcs[ss][1] == 0 else B.lines[h:]): A.raw(l)
        if OS <= ss < OS + NO:
            if ss == OS: A("s_waitcnt lgkmcnt(0)")
            o_fin(A, 2 * (ss - OS), S_OO); o_fin(A, 2 * (ss - OS) + 1, S_OO)
        if ss == 0: A("s_waitcnt vmcnt(12)")
        else: A("s_waitcnt vmcnt(16)")
        A("s_barrier")
        if opt("p2dbg"):
            k = {int(x): 80 + 2 * i for i, x in enumerate(opt('p2dbg').split(','))}.get(ss)
            if k: A(f"s_memrealtime s[{k}:{k+1}]")
    A(f"s_sub_u32 s{NIT}, s{NIT}, {NPEEL}")
    A.label("L_p2_ploop")
    issue_kb(A); mid(A); issue_kb(A)
    A(f"s_sub_u32 s{NIT}, s{NIT}, 1")
    A(f"s_cmp_lg_u32 s{NIT}, 0")
    A("s_waitcnt vmcnt(16)")
    A("s_barrier")
    A("s_cbranch_scc1 L_p2_ploop")
    stamp(A, 2)
    A(f"s_cmp_eq_u32 s{H}, 1")
    A("s_cbranch_scc1 L_p2_end")
    A("s_waitcnt vmcnt(0)")
    A("s_barrier")
    A("s_branch L_p2_end")
    ev = []
    def seg(aoff, ainc, boff, binc, vsel=None, wo=False):
        def f(A):
            A(f"s_mov_b32 s{AOFF}, {aoff}")
            A(f"s_mov_b32 s{AINC}, {ainc}")
            A(f"s_mov_b32 s{BOFF}, {boff}")
            A(f"s_mov_b32 s{BINC}, {binc}")
            if vsel is not None: A(f"v_mov_b32 v11, v{vsel}")
            if wo:
                A(f"s_mov_b32 s{SRD_B}, s{P+6}")
                A(f"s_and_b32 s{SRD_B+1}, s{P+7}, 0xffff")
                A(f"s_mov_b32 s{SRD_B+2}, {1024*2048}")
        return f
    def only0(body):
        def f(A):
            lab = A.newlabel("L_p2_w0")
            A(f"s_cmp_lg_u32 s{S_W}, 0")
            A(f"s_cbranch_scc1 {lab}")
            body(A, lab)
            A.label(lab)
        return f
    def pollh1(both):
        def b(A, lab):
            hf_query(A, T, 1, 0)
            poll64(A, T, lab + "_a", 12, 15)
            if both:
                A(f"s_add_u32 s{T}, s{T}, 512")
                poll64(A, T, lab + "_b", 12, 15)
        return only0(b)
    def pollo(A, lab):
        lin(A, T, [(M, 8)], F_O)
        poll64(A, T, lab + "_a", 12, 15)
    def pollp(A, lab):
        lin(A, T, [(TILE, 7)], F_P)
        A("v_and_b32 v16, 12, v12")
        poll64(A, T, lab + "_a", 16, 15)
    def part(A):
        for k in range(3): A(f"s_mov_b32 s{SRD_B+k}, s{SRD_WS+k}")
        lin(A, AOFF, [(TILE, 15)], WS_PART)
        A(f"s_add_u32 s{BOFF}, s{AOFF}, 8192")
        A(f"s_mov_b32 s{AINC}, 16384")
        A(f"s_mov_b32 s{BINC}, 16384")
        A(f"s_mov_b32 s{B2}, 1024")
        A(f"v_add_u32 v8, s{LA}, v4")
        A("v_mov_b32 v11, v8")
    oob = seg(0x40000000, 0, 0x40000000, 0)
    if NB0: ev.append((32, seg(WS_ACT + (3 * NB1 + 1) * 131072, 3 * 131072, (112 * NB1 + 32) * 2048, 112 * 2048)))
    ev.append((32 + NB0, seg(WS_ACT + (96 + K1O) * 131072, 131072, (96 + 224 * K1O) * 2048, 224 * 2048, vsel=10)))
    ev.append((OST, seg(WS_ACT + 112 * 131072, 131072, 0, 32 * 2048, vsel=9, wo=True)))
    ev.append((N0, lambda A: xseg(A)))
    ev.append((N0 + 4, part))
    ev.append((N0 + 6, oob))
    ev.append((1032, seg(WS_ACT + 131072, 3 * 131072, 32 * 2048, 112 * 2048)))
    if K1O: ev.append((1064, seg(WS_ACT + 96 * 131072, 131072, 96 * 2048, 224 * 2048, vsel=10)))
    def xseg(A):
        A(f"s_mov_b32 s{AOFF}, 0x40000000")
        A(f"s_mov_b32 s{AINC}, 0")
        A(f"s_mov_b32 s{SRD_B}, s{P}")
        A(f"s_and_b32 s{SRD_B+1}, s{P+1}, 0xffff")
        A(f"s_mov_b32 s{SRD_B+2}, {4*MB}")
        lin(A, BOFF, [(M, 18), (N, 8), (S_WM, 14)], 0)
        A(f"s_mov_b32 s{BINC}, {32*2048}")
        A(f"s_mov_b32 s{B2}, {4*2048}")
        A("v_lshlrev_b32 v11, 11, v5")
        A("v_lshl_add_u32 v11, v6, 4, v11")
    ev.append((1000 + SPL, oob))
    A.label("L_p2_evt")
    for k, (pos, f) in enumerate(ev[1:], 1):
        A(f"s_cmp_eq_u32 s{POS}, {pos}")
        A(f"s_cbranch_scc1 L_p2_ev{k}")
    for k, (pos, f) in enumerate(ev):
        A.label(f"L_p2_ev{k}")
        f(A)
        nx = ev[k + 1][0] if k + 1 < len(ev) and (ev[k + 1][0] >= 1000) == (pos >= 1000) else -1
        A(f"s_mov_b32 s{EVT}, {nx}")
        A(f"s_setpc_b64 s[{RET}:{RET+1}]")
    A.label("L_p2_end")
    if opt("odbg"):
        A("s_waitcnt vmcnt(0)")
        A("s_memrealtime s[94:95]")
        A("s_load_dwordx2 s[96:97], s[0:1], 72")
        A("s_waitcnt lgkmcnt(0)")
        A("s_cmp_gt_u32 s2, 1")
        A("s_cbranch_scc1 L_done")
        A(f"s_cmp_lg_u32 s{S_W}, 4")
        A("s_cbranch_scc1 L_done")
        make_srd(A, SRD_D, 96, 97, 256)
        A("s_mov_b64 exec, 1")
        A("v_mov_b32 v1, 0")
        A(f"s_lshl_b32 s{T}, s2, 5")
        for i in range(1, 8):
            A(f"s_sub_u32 s{T+1}, s{80+2*i}, s80")
            A(f"v_mov_b32 v2, s{T+1}")
            A(f"buffer_store_dword v2, v1, {srd(SRD_D)}, s{T} offen offset:{4*i}")
            A("s_nop 1")
        A("s_branch L_done")
    if opt("p2dbg"):
        A("s_memrealtime s[94:95]")
        A("s_mov_b64 exec, 1")
        A("s_waitcnt lgkmcnt(0)")
        lin(A, T, [(2, 9), (S_W, 6)], WS_STAMP + MB)
        A("v_mov_b32 v1, 0")
        for i in range(8):
            A(f"v_mov_b32 v2, s{80+2*i}")
            A(f"buffer_store_dword v2, v1, {WS}, s{T} offen offset:{4*i}")
            A("s_nop 1")
    if opt("stamp"):
        A("s_waitcnt vmcnt(0)")
        stamp(A, 3)
        stamp_store(A, WS_STAMP + MB)

def build():
    A = Asm()
    for l in open("cdna_kernels/" + NAME + ".s.ref").read().split("\n"):
        if l.startswith(";") and "@launch" not in l and "Override" not in l and "grid=ceil" not in l: A.raw(l)
    A.raw(f"; @launch kernel=fused_kernel grid=(256,1,1) block=(512,1,1) lds={max(P1_LDS, P2_LDS)}")
    A.raw('.amdgcn_target "amdgcn-amd-amdhsa--gfx950"')
    A.raw(".text")
    kernel_header(A, "fused_kernel")
    p1_prologue(A)
    phase2(A)
    if opt("idbg"):
        A("s_endpgm")
        A.label("L_idbg")
        for it in range(8, 0, -1):
            A(f"s_cmp_eq_u32 s{S_ITER}, {it}")
            A(f"s_cbranch_scc0 L_idbg{it}")
            A(f"s_memrealtime s[{80+2*(8-it)}:{81+2*(8-it)}]")
            A("s_waitcnt lgkmcnt(0)")
            A(f"s_setpc_b64 s[{S_RET}:{S_RET+1}]")
            A.label(f"L_idbg{it}")
        A(f"s_setpc_b64 s[{S_RET}:{S_RET+1}]")
    A.label("L_done")
    A("s_endpgm")
    A.raw('.section .rodata,"a"')
    kernel_desc(A, "fused_kernel", 256)
    return A.text()

if __name__ == "__main__":
    for o in sys.argv[2:]:
        if "=" in o: k, v = o.split("=", 1); OPT[k] = v
        else: OPT[o] = True
    open(sys.argv[1], "w").write(build())
```
